```python
import torch

def _softmax(x, axis=-1):
    return torch.softmax(x, dim=axis)

def _gelu(x):
    return torch.nn.functional.gelu(x, approximate='tanh')

def _silu(x):
    return torch.nn.functional.silu(x)

def _sigmoid(x):
    return torch.sigmoid(x)

def _layernorm(x, axis=-1, eps=1e-05):
    m = x.mean(dim=axis, keepdim=True)
    v = x.var(dim=axis, keepdim=True, unbiased=False)
    return (x - m) / torch.sqrt(v + eps)

def _scatter_add(tgt, idx, src, axis=0):
    return tgt.clone().index_add_(axis, idx, src)

def _segment_sum(src, seg, n):
    out = torch.zeros((n,) + src.shape[1:], dtype=src.dtype)
    return out.index_add_(0, seg, src)

def _pad(x, pw):
    flat = tuple((v for pair in reversed(pw) for v in pair))
    return torch.nn.functional.pad(x, flat)
kernel_name = 'recurrent_scan__memory_aug_recurrent_mem_tr__glu_gated_reglu__prompt'

def setup_inputs():

    _w = lambda a: (lambda t: t.to(torch.bfloat16) if t.is_floating_point() else t)(torch.as_tensor(a))

    def _A_setup():
        B, S, Dm = (1, 2048, 448)
        H, Dh = (16, 256)
        M, seg = (8, 32)
        seg = min(seg, S)
        S = S // seg * seg
        return {'x': _w((lambda *s: torch.randn(*s, dtype=torch.bfloat16) * 0.1)(B, S, Dm)), 'mem0': _w((lambda *s: torch.randn(*s, dtype=torch.bfloat16) * 1.6)(B, M, Dm)), 'Wq': _w((lambda *s: torch.randn(*s, dtype=torch.bfloat16) * 0.8)(Dm, H, Dh) * Dm ** (-0.5)), 'Wk': _w((lambda *s: torch.randn(*s, dtype=torch.bfloat16) * 0.8)(Dm, H, Dh) * Dm ** (-0.5)), 'Wv': _w((lambda *s: torch.randn(*s, dtype=torch.bfloat16) * 1.6)(Dm, H, Dh) * Dm ** (-0.5)), 'Wo': _w((lambda *s: torch.randn(*s, dtype=torch.bfloat16) * 1.6)(H, Dh, Dm) * (H * Dh) ** (-0.5)), 'seg_len': seg}
    _A_in = _A_setup()

    def _B_setup():
        B, S, D, F = (1, 2048, 448, 1792)
        return {'x': _w((lambda *s: torch.randn(*s, dtype=torch.bfloat16) * 0.1)(B, S, D)), 'W_gate': _w((lambda *s: torch.randn(*s, dtype=torch.bfloat16) * 0.4)(D, F) * (2.0 / D) ** 0.5), 'W_up': _w((lambda *s: torch.randn(*s, dtype=torch.bfloat16) * 0.4)(D, F) * (2.0 / D) ** 0.5), 'W_down': _w((lambda *s: torch.randn(*s, dtype=torch.bfloat16) * 0.4)(F, D) * (1.0 / F) ** 0.5)}
    _B_in = _B_setup()
    return {'A_x': _A_in['x'], 'A_mem0': _A_in['mem0'], 'A_Wq': _A_in['Wq'], 'A_Wk': _A_in['Wk'], 'A_Wv': _A_in['Wv'], 'A_Wo': _A_in['Wo'], 'A_seg_len': _A_in['seg_len'], 'B_x': _B_in['x'], 'B_W_gate': _B_in['W_gate'], 'B_W_up': _B_in['W_up'], 'B_W_down': _B_in['W_down']}

def reference(A_x, A_mem0, A_Wq, A_Wk, A_Wv, A_Wo, A_seg_len, B_x, B_W_gate, B_W_up, B_W_down):

    def _A_ref(x, mem0, Wq, Wk, Wv, Wo, seg_len):
        B, S, Dm = x.shape
        H, Dh = (Wq.shape[1], Wq.shape[2])
        M = mem0.shape[1]
        scale = Dh ** (-0.5)
        n_seg = S // seg_len
        L = M + seg_len
        idx = torch.arange(L)
        mask = (idx[:, None] < M) | (idx[:, None] >= idx[None, :])
        mem = mem0
        outs = []
        for s in range(n_seg):
            xs = x[:, s * seg_len:(s + 1) * seg_len, :].clone()
            h = torch.concatenate([mem, xs], axis=1)
            q = torch.einsum('btd,dhe->bhte', h, Wq)
            k = torch.einsum('btd,dhe->bhte', h, Wk)
            v = torch.einsum('btd,dhe->bhte', h, Wv)
            scores = torch.einsum('bhqe,bhke->bhqk', q, k) * scale
            scores = torch.where(mask[None, None], scores, -1000000000.0)
            p = _softmax(scores, axis=-1)
            o = torch.einsum('bhqk,bhke->bhqe', p, v)
            o = torch.einsum('bhte,hed->btd', o, Wo)
            mem = o[:, :M, :].clone()
            outs.append(o[:, M:, :])
        return torch.concatenate(outs, axis=1)

    def _B_ref(x, W_gate, W_up, W_down):
        gate = torch.einsum('bsd,df->bsf', x, W_gate)
        up = torch.einsum('bsd,df->bsf', x, W_up)
        gate = gate * (lambda x, dt: x.to(dt))(gate > 0, gate.dtype)
        h = gate * up
        return torch.einsum('bsf,fd->bsd', h, W_down)
    x = A_x
    xn = _layernorm(x, axis=-1)
    s = _A_ref(xn, A_mem0, A_Wq, A_Wk, A_Wv, A_Wo, A_seg_len)
    g = _silu(_B_ref(xn, B_W_gate, B_W_up, B_W_down))
    return x + s * g
```

```python
from kfw import *
from layout import *

class Q:
    def __init__(self, k):
        self.k = k; self.lg = []; self.vm = []
    def ds(self, txt, tag=None):
        self.k(txt); self.lg.append(tag)
    def vmem(self, txt, tag=None):
        self.k(txt); self.vm.append(tag)
    def _n(self, lst, tag):
        idx = max(i for i, t in enumerate(lst) if t == tag)
        return len(lst) - 1 - idx
    def wait_lg(self, tag):
        n = min(self._n(self.lg, tag), 15)
        self.k(f"s_waitcnt lgkmcnt({n})")
    def wait_vm(self, tag):
        n = min(self._n(self.vm, tag), 63)
        self.k(f"s_waitcnt vmcnt({n})")
    def lg0(self):
        self.k("s_waitcnt lgkmcnt(0)"); self.lg = []
    def reset(self):
        self.lg = []; self.vm = []

sWS   = 8
sRANK = 12
sWAVE = 13
sSTEP = 14
sMS   = 15
sPS   = 16
sT0   = 17
sT1   = 18
sSPIN = 19
sMaskA = 20
sMaskB = 22
sXK   = 24
sMS1  = 25
sRST  = 26
sOUT  = 27
sFLG  = 50
sMODE = 51
sVXC  = 92
sTA   = 28
sTB   = 30
sPROF = 32
SPIN  = 200000

class Prof:
    def __init__(self, k, on, rawon=False): self.k, self.on, self.n, self.rawon = k, on, 0, rawon
    def start(self):
        if not self.on: return
        k = self.k
        for i in range(12): k(f"s_mov_b32 s{sPROF+i}, 0")
        k(f"s_memtime s[{sTA}:{sTA+1}]\ns_waitcnt lgkmcnt(0)")
    def stamp(self, i):
        if not self.on: return
        k = self.k
        k(f"s_memtime s[{sTB}:{sTB+1}]\ns_waitcnt lgkmcnt(0)")
        k(f"s_sub_u32 s{sT0}, s{sTB}, s{sTA}\ns_add_u32 s{sPROF+i}, s{sPROF+i}, s{sT0}\ns_mov_b32 s{sTA}, s{sTB}")
    def raw(self, i):
        if self.rawon: self.k(f"{'s_memrealtime' if self.rawon == 'rt' else 's_memtime'} s[{52+2*i}:{53+2*i}]")
    def raw_dump(self, tmpv, offv):
        if not self.rawon: return
        k = self.k
        k("s_waitcnt lgkmcnt(0)")
        k(f"s_lshl_b32 s{sT0}, s{sRANK}, 2\ns_add_u32 s{sT0}, s{sT0}, s{sWAVE}\ns_lshl_b32 s{sT0}, s{sT0}, 6\ns_add_u32 s{sT0}, s{sT0}, {PROF}")
        k(f"v_mov_b32 v{offv}, 0")
        for i in range(16):
            k(f"v_mov_b32 v{tmpv}, s{52+2*i}")
            k(f"buffer_store_dword v{tmpv}, v{offv}, s[{sWS}:{sWS+3}], s{sT0} offen offset:{4*i}")
        k("s_waitcnt vmcnt(0)")
    def tot_start(self, on):
        if on: self.k(f"s_mov_b32 s{sPROF+11}, 0\ns_memtime s[{sTA}:{sTA+1}]\ns_memrealtime s[44:45]\ns_waitcnt lgkmcnt(0)")
    def tot_dump(self, on, tmpv, offv):
        if not on: return
        k = self.k
        k(f"s_memtime s[{sTB}:{sTB+1}]\ns_memrealtime s[46:47]\ns_waitcnt lgkmcnt(0)")
        k(f"s_sub_u32 s{sPROF}, s{sTB}, s{sTA}\ns_sub_u32 s{sPROF+1}, s46, s44\ns_sub_u32 s{sPROF+2}, s44, s48")
        k(f"s_lshl_b32 s{sT0}, s{sRANK}, 2\ns_add_u32 s{sT0}, s{sT0}, s{sWAVE}\ns_lshl_b32 s{sT0}, s{sT0}, 6\ns_add_u32 s{sT0}, s{sT0}, {PROF}")
        k(f"v_mov_b32 v{offv}, 0")
        k(f"s_mov_b32 s{sPROF+3}, s{sPROF+11}")
        for i in range(4):
            k(f"v_mov_b32 v{tmpv}, s{sPROF+i}")
            k(f"buffer_store_dword v{tmpv}, v{offv}, s[{sWS}:{sWS+3}], s{sT0} offen offset:{4*i}")
        k("s_waitcnt vmcnt(0)")
    def dump(self, tmpv, offv):
        if not self.on: return
        k = self.k
        k(f"s_lshl_b32 s{sT0}, s{sRANK}, 2\ns_add_u32 s{sT0}, s{sT0}, s{sWAVE}\ns_lshl_b32 s{sT0}, s{sT0}, 6\ns_add_u32 s{sT0}, s{sT0}, {PROF}")
        k(f"v_mov_b32 v{offv}, 0")
        for i in range(12):
            k(f"v_mov_b32 v{tmpv}, s{sPROF+i}")
            k(f"buffer_store_dword v{tmpv}, v{offv}, s[{sWS}:{sWS+3}], s{sT0} offen offset:{4*i}")
        k("s_waitcnt vmcnt(0)")


SP_L = 0
SP_STRIDE = 3200
TR_L = 12800
MKP_L = 27136
MEM_L = 0
OP_L = 7168
WL = 12288

def retry_block(cfg, label, body, abort, target):
    cfg.setdefault("outofline", []).append(
        f"{label}:\ns_sub_u32 s{sSPIN}, s{sSPIN}, 1\ns_cbranch_scc1 {abort}\n{body}s_branch {target}")

def emit_flag_poll(k, cfg, vAddr, vD0, sExp, off, abort):
    WSR = f"s[{sWS}:{sWS+3}]"
    top = k.uid("FP"); done = k.uid("FPD")
    k(f"s_mov_b32 s{sT0}, {off}" if isinstance(off, int) else f"s_mov_b32 s{sT0}, {off}")
    k(f"buffer_load_dword v{vD0}, v{vAddr}, {WSR}, s{sT0} offen sc1")
    k.label(top)
    k(f"buffer_load_dword v{vD0+1}, v{vAddr}, {WSR}, s{sT0} offen sc1")
    k("s_waitcnt vmcnt(1)")
    k(f"v_cmp_gt_u32 vcc, s{sExp}, v{vD0}")
    k(f"s_cbranch_vccz {done}")
    k(f"buffer_load_dword v{vD0}, v{vAddr}, {WSR}, s{sT0} offen sc1")
    k("s_waitcnt vmcnt(1)")
    k(f"v_cmp_gt_u32 vcc, s{sExp}, v{vD0+1}")
    k(f"s_cbranch_vccz {done}")
    k(f"s_sub_u32 s{sSPIN}, s{sSPIN}, 1\ns_cbranch_scc0 {top}\ns_branch {abort}")
    k.label(done)

def blockregA(b):
    return Reg("a", 8 * b) if b < 28 else Reg("v", 88 + 8 * (b - 28))

def emit_ring_advance(k):
    k(f"s_add_u32 s{sSTEP}, s{sSTEP}, 1")
    k(f"s_and_b32 s{sT0}, s{sSTEP}, 3")
    k(f"s_mul_i32 s{sMS}, s{sT0}, 7168\ns_add_u32 s{sMS}, s{sMS}, {MEMRING}")
    k(f"s_mul_i32 s{sPS}, s{sT0}, 10240\ns_add_u32 s{sPS}, s{sPS}, {PRING}")

def emit_chain_A(k, cfg, abort):
    prof = Prof(k, cfg.get("prof"), cfg.get("raw"))
    q = Q(k)
    WSR = f"s[{sWS}:{sWS+3}]"
    modes = cfg.get("modes", [cfg.get("st", "")])
    ST = modes[0]
    vL16, vL8, vTRw, vTRr, vMKg, vSR, vSR2, vPst, vIdx, vX, vT, vDet, vSW = range(1, 14)
    vLane = 0
    TMP, ACC, TR, MEM = 16, 20, 48, 60
    SACC = ACC
    XK = 224
    def TRr(tile): return (A(252, 2) if tile == 6 else V(TR + 2 * tile, 2))
    k("v_and_b32 v0, 63, v0")
    k(f"v_lshlrev_b32 v{vL16}, 4, v{vLane}")
    k(f"v_lshlrev_b32 v{vL8}, 3, v{vLane}")
    k(f"v_and_b32 v{vX}, 15, v{vLane}")
    k(f"v_lshrrev_b32 v{vT}, 4, v{vLane}")
    k(f"v_min_u32 v{vDet}, 13, v{vX}\nv_lshlrev_b32 v{vDet}, 2, v{vDet}")
    k(f"s_mul_i32 s{sT1}, s{sWAVE}, 3584\ns_add_u32 s{sT1}, s{sT1}, {TR_L}")
    k(f"v_lshrrev_b32 v{vTRw}, 3, v{vX}\nv_lshlrev_b32 v{vTRw}, 8, v{vTRw}")
    k(f"v_lshl_add_u32 v{vTRw}, v{vT}, 6, v{vTRw}")
    k(f"v_and_b32 v{TMP}, 7, v{vX}\nv_lshl_add_u32 v{vTRw}, v{TMP}, 3, v{vTRw}")
    k(f"v_add_u32 v{vTRw}, s{sT1}, v{vTRw}")
    k(f"v_lshrrev_b32 v{vTRr}, 1, v{vT}\nv_lshlrev_b32 v{vTRr}, 8, v{vTRr}")
    k(f"v_and_b32 v{TMP}, 3, v{vLane}\nv_lshl_add_u32 v{vTRr}, v{TMP}, 6, v{vTRr}")
    k(f"v_and_b32 v{TMP}, 1, v{vT}\nv_lshl_add_u32 v{vTRr}, v{TMP}, 5, v{vTRr}")
    k(f"v_bfe_u32 v{TMP}, v{vLane}, 2, 2\nv_lshl_add_u32 v{vTRr}, v{TMP}, 3, v{vTRr}")
    k(f"v_add_u32 v{vTRr}, s{sT1}, v{vTRr}")
    k(f"v_lshrrev_b32 v{vMKg}, 1, v{vT}\nv_lshlrev_b32 v{vMKg}, 7, v{vMKg}")
    k(f"v_and_b32 v{TMP}, 7, v{vLane}\nv_lshl_add_u32 v{vMKg}, v{TMP}, 4, v{vMKg}")
    k(f"v_and_b32 v{TMP+1}, 1, v{vT}\nv_lshl_add_u32 v{vMKg}, v{TMP+1}, 3, v{vMKg}")
    k(f"s_mul_i32 s{sT1}, s{sWAVE}, {SP_STRIDE}\ns_add_u32 s{sT1}, s{sT1}, {SP_L}")
    for kap in range(3):
        pbase = 0 if kap == 2 else 2 + 4 * kap
        k(f"v_add_u32 v{TMP}, v{vX}, v{vT}\nv_add_u32 v{TMP}, {pbase}, v{TMP}\nv_and_b32 v{TMP}, 15, v{TMP}")
        k(f"v_lshlrev_b32 v{vSW+kap}, 4, v{TMP}\nv_lshl_add_u32 v{vSW+kap}, v{vT}, 8, v{vSW+kap}")
        k(f"v_add_u32 v{vSW+kap}, s{sT1}, v{vSW+kap}")
        if kap: k(f"v_add_u32 v{vSW+kap}, {kap*1024}, v{vSW+kap}")
    k(f"s_lshl_b32 s{sT1}, s{sWAVE}, 2")
    k(f"v_add_u32 v{TMP}, s{sT1}, v{vT}")
    k(f"v_subrev_u32 v{TMP+1}, 2, v{vX}")
    k(f"v_lshrrev_b32 v{TMP+2}, 2, v{TMP+1}\nv_and_b32 v{TMP+3}, 3, v{TMP+1}")
    k(f"v_cmp_gt_u32 vcc, 2, v{vX}\ns_nop 1")
    k(f"v_cndmask_b32 v{TMP+2}, v{TMP+2}, 2, vcc\nv_cndmask_b32 v{TMP+3}, v{TMP+3}, v{vX}, vcc")
    k(f"v_lshlrev_b32 v{vSR}, 10, v{TMP+2}\nv_lshl_add_u32 v{vSR}, v{TMP+3}, 8, v{vSR}")
    k(f"v_add_u32 v{TMP+2}, v{TMP}, v{vX}")
    k(f"v_and_b32 v{TMP+3}, 15, v{TMP+2}\nv_lshl_add_u32 v{vSR2}, v{TMP+3}, 4, v{vSR}")
    k(f"v_add_u32 v{TMP+2}, 8, v{TMP+2}\nv_and_b32 v{TMP+3}, 15, v{TMP+2}\nv_lshl_add_u32 v{vSR}, v{TMP+3}, 4, v{vSR}")
    k(f"v_add_u32 v{vSR}, {SP_L}, v{vSR}\nv_add_u32 v{vSR2}, {SP_L}, v{vSR2}")
    k(f"v_cmp_gt_u32 vcc, 10, v{vX}\nv_mov_b32 v{TMP+3}, {SP_L+3072}\ns_nop 0")
    k(f"v_cndmask_b32 v{vSR}, v{TMP+3}, v{vSR}, vcc\nv_cndmask_b32 v{vSR2}, v{TMP+3}, v{vSR2}, vcc")
    k(f"v_cmp_gt_u32 s[{sMaskA}:{sMaskA+1}], 10, v{vX}")
    k(f"v_cmp_gt_u32 s[{sMaskB}:{sMaskB+1}], 40, v{vLane}")
    k(f"v_mov_b32 v{vIdx}, 0x44444444\nv_mov_b32 v{TMP+2}, 0xeeeeeeee")
    k(f"v_and_b32 v{TMP+1}, 8, v{vLane}\nv_cmp_ne_u32 vcc, 0, v{TMP+1}\ns_nop 1\nv_cndmask_b32 v{vIdx}, v{vIdx}, v{TMP+2}, vcc")
    k(f"s_lshr_b32 s{sT0}, s{sRANK}, 2\ns_mul_i32 s{sT0}, s{sT0}, 2560")
    k(f"s_bfe_u32 s{sT1}, s{sRANK}, 0x10001\ns_lshl_b32 s{sMS}, s{sT1}, 10\ns_lshl_b32 s{sPS}, s{sT1}, 8")
    k(f"s_and_b32 s{sT1}, s{sRANK}, 1\ns_lshl_b32 s{sMS1}, s{sT1}, 9\ns_add_u32 s{sMS}, s{sMS}, s{sMS1}")
    k(f"s_lshl_b32 s{sMS1}, s{sT1}, 7\ns_add_u32 s{sPS}, s{sPS}, s{sMS1}\ns_add_u32 s{sPS}, s{sPS}, 2048")
    k(f"s_add_u32 s{sMS}, s{sMS}, s{sT0}\ns_add_u32 s{sPS}, s{sPS}, s{sT0}")
    k(f"v_subrev_u32 v{TMP+1}, 2, v{vX}\nv_lshrrev_b32 v{TMP+1}, 1, v{TMP+1}")
    k(f"v_lshrrev_b32 v{TMP+2}, 1, v{TMP+1}\nv_lshlrev_b32 v{TMP+2}, 8, v{TMP+2}")
    k(f"v_and_b32 v{TMP+1}, 1, v{TMP+1}\nv_lshl_add_u32 v{TMP+2}, v{TMP+1}, 7, v{TMP+2}\nv_add_u32 v{TMP+2}, s{sMS}, v{TMP+2}")
    k(f"v_mov_b32 v{TMP+1}, s{sPS}\nv_cmp_gt_u32 vcc, 2, v{vX}\ns_nop 1\nv_cndmask_b32 v{TMP+2}, v{TMP+2}, v{TMP+1}, vcc")
    k(f"v_lshl_add_u32 v{vPst}, v{TMP}, 4, v{TMP+2}")
    k(f"v_and_b32 v{TMP+1}, 1, v{vX}\nv_lshl_add_u32 v{vPst}, v{TMP+1}, 3, v{vPst}")
    k(f"v_add_u32 v{TMP+1}, s{sMS}, v{vL16}\nv_add_u32 v{TMP+2}, s{sPS}, v{vL16}\nv_subrev_u32 v{TMP+2}, 512, v{TMP+2}")
    k(f"v_cmp_gt_u32 vcc, 32, v{vLane}\ns_nop 1\nv_cndmask_b32 v0, v{TMP+2}, v{TMP+1}, vcc")
    k(f"s_lshr_b32 s{sT0}, s{sRANK}, 2\ns_lshl_b32 s{sT0}, s{sT0}, 7\ns_and_b32 s{sT1}, s{sRANK}, 3\ns_lshl_b32 s{sT1}, s{sT1}, 2")
    k(f"s_add_u32 s{sFLG}, s{sT0}, s{sT1}\ns_add_u32 s{sFLG}, s{sFLG}, {FLAGP}")
    k(f"s_mul_i32 s{sT0}, s{sRANK}, 401408\ns_mul_i32 s{sT1}, s{sWAVE}, 100352\ns_add_u32 s{sT0}, s{sT0}, s{sT1}")
    if WA_OFF: k(f"s_add_u32 s{sT0}, s{sT0}, {WA_OFF}")
    for b in range(49):
        R = blockregA(b)
        for a in range(2):
            off = (b * 2 + a) * 1024
            if off and off % 4096 == 0: k(f"s_add_u32 s{sT0}, s{sT0}, 4096")
            k(f"buffer_load_dwordx4 {R.r(4*a,4)}, v{vL16}, {WSR}, s{sT0} offen offset:{off%4096}")
    def xk_prefetch():
        for kap in range(2):
            for p in range(3):
                off = kap * 3584 + p * 1024
                so = sXK if off < 4096 else sT1
                if off >= 4096 and p == 1: k(f"s_add_u32 s{sT1}, s{sXK}, 4096")
                k(f"buffer_load_dwordx4 {A(XK+kap*14+4*p,4)}, v{vL16}, {WSR}, s{so} offen offset:{off%4096}")
            off = kap * 3584 + 3072
            so = sXK if off < 4096 else sT1
            k(f"buffer_load_dwordx2 {A(XK+kap*14+12,2)}, v{vL8}, {WSR}, s{so} offen offset:{off%4096}")
    k(f"s_mul_i32 s{sXK}, s{sWAVE}, 7168\ns_add_u32 s{sXK}, s{sXK}, {XK_OFF}")
    xk_prefetch()
    def zero_acc():
        for i in range(0, 28, 2): k(f"v_mov_b64 {V(ACC+i,2)}, 0")
    zero_acc()
    for i in range(4): k(f"v_mov_b32 v{TR+i}, 0xff800000")
    k(f"s_mul_i32 s{sT1}, s{sWAVE}, {SP_STRIDE}\ns_add_u32 s{sT1}, s{sT1}, {SP_L+3072}\nv_mov_b32 v{TMP}, s{sT1}")
    k(f"ds_write_b128 v{TMP}, {V(TR,4)}")
    k("s_waitcnt vmcnt(0) lgkmcnt(0)")
    k(f"s_mov_b32 s{sSTEP}, 0\ns_mov_b32 s{sMS}, {MEMRING}\ns_mov_b32 s{sPS}, {PRING}")
    def softmax(q, W, ST):
        X = TR
        dst = [TR, MEM, MEM+4, MEM+8, MEM+12, MEM+16, MEM+20, MEM+24]
        for u in range(8):
            w_, hf = u >> 1, u & 1
            q.ds(f"ds_read_b128 {V(dst[u],4)}, v{vSR if hf else vSR2} offset:{w_*SP_STRIDE}", f"sp{u}")
        def pflag():
            if W != 0: return
            k(f"s_add_u32 s{sT0}, s{sSTEP}, 1\nv_mov_b32 v{TMP}, s{sT0}\nv_mov_b32 v{TMP+1}, 0")
            k(f"s_mov_b64 exec, 1\nbuffer_store_dword v{TMP}, v{TMP+1}, {WSR}, s{sFLG} offen {ST}\ns_mov_b64 exec, -1")
        fpos = cfg.get("pflag_pos", 2)
        if fpos == 0: pflag()
        def pk(d, a, b):
            k(f"v_pk_add_f32 {V(d,2)}, {V(a,2)}, {V(b,2)}\nv_pk_add_f32 {V(d+2,2)}, {V(a+2,2)}, {V(b+2,2)}")
        q.wait_lg("sp1"); pk(dst[0], dst[0], dst[1])
        q.wait_lg("sp3"); pk(dst[2], dst[2], dst[3])
        q.wait_lg("sp5"); pk(dst[4], dst[4], dst[5]); pk(dst[0], dst[0], dst[2])
        q.wait_lg("sp7"); pk(dst[6], dst[6], dst[7]); pk(dst[4], dst[4], dst[6]); pk(dst[0], dst[0], dst[4])
        q.reset()
        prof.raw(8)
        if fpos == 1: pflag()
        M = vX; L = vT
        k(f"v_max3_f32 v{M}, v{X}, v{X+1}, v{X+2}")
        k(f"v_max_f32 v{M}, v{M}, v{X+3}")
        for ror in (8, 4, 2, 1):
            k("s_nop 1")
            k(f"v_max_f32_dpp v{M}, v{M}, v{M} row_ror:{ror} row_mask:0xf bank_mask:0xf")
        if fpos == 2: pflag()
        k(f"v_sub_f32 v{X}, v{X}, v{M}\nv_sub_f32 v{X+1}, v{X+1}, v{M}\nv_sub_f32 v{X+2}, v{X+2}, v{M}\nv_sub_f32 v{X+3}, v{X+3}, v{M}")
        for i in range(4): k(f"v_exp_f32 v{X+i}, v{X+i}")
        if fpos == 3: pflag()
        k(f"v_add_f32 v{L}, v{X}, v{X+1}")
        k(f"v_add_f32 v{M}, v{X+2}, v{X+3}")
        k(f"v_add_f32 v{L}, v{L}, v{M}")
        for ror in (8, 4, 2, 1):
            k("s_nop 1")
            k(f"v_add_f32_dpp v{L}, v{L}, v{L} row_ror:{ror} row_mask:0xf bank_mask:0xf")
        if fpos == 4: pflag()
        k(f"v_rcp_f32 v{L}, v{L}")
        k("s_nop 0")
        for i in range(4): k(f"v_mul_f32 v{X+i}, v{X+i}, v{L}")
        k(f"v_cvt_pk_bf16_f32 v{X}, v{X}, v{X+1}\nv_cvt_pk_bf16_f32 v{X+1}, v{X+2}, v{X+3}")
        k(f"v_min_u32 v{X}, -2, v{X}\nv_min_u32 v{X+1}, -2, v{X+1}")
        k(f"s_mov_b64 exec, s[{sMaskA}:{sMaskA+1}]")
        k(f"buffer_store_dwordx2 {V(X,2)}, v{vPst}, {WSR}, s{sPS} offen {ST}")
        k("s_mov_b64 exec, -1")
        prof.raw(9)
        if fpos == 5: pflag()
        prof.raw(11)
    def preset(ST):
        X = TR
        k(f"s_add_u32 s{sRST}, s{sSTEP}, 2\ns_and_b32 s{sRST}, s{sRST}, 3\ns_mul_i32 s{sRST}, s{sRST}, 10240\ns_add_u32 s{sRST}, s{sRST}, {PRING}")
        for i in range(4): k(f"v_mov_b32 v{X+i}, -1")
        k(f"s_mov_b64 exec, s[{sMaskB}:{sMaskB+1}]")
        k(f"buffer_store_dwordx4 {V(X,4)}, v0, {WSR}, s{sRST} offen {ST}")
        k("s_mov_b64 exec, -1")
    def wave_loop(W, ST):
        q = Q(k)
        prof.start(); prof.tot_start(cfg.get("tot"))
        loop = k.uid("A_loop")
        k.label(loop)
        prof.stamp(0); prof.raw(0)
        if W == 2: emit_flag_poll(k, cfg, vDet, TMP, sSTEP, FLAGM, abort)
        k("s_barrier")
        prof.stamp(1); prof.raw(1)
        if cfg.get("trace"): k(f"s_memtime s[90:91]")
        q.reset()
        def mem_load(t):
            so = sMS if t < 4 else sMS1
            q.vmem(f"buffer_load_dwordx4 {V(MEM+4*t,4)}, v{vL16}, {WSR}, s{so} offen offset:{(t*1024)%4096} sc1", f"mem{t}")
        mem_load(0)
        k(f"s_add_u32 s{sMS1}, s{sMS}, 4096")
        for i in range(0, 14, 2): k(f"v_mov_b64 {V(ACC+i,2)}, 0")
        for i in range(cfg.get("pace", 5)): k("s_nop 0")
        mem_load(1)
        for i in range(14, 28, 2): k(f"v_mov_b64 {V(ACC+i,2)}, 0")
        for i in range(cfg.get("pace", 5)): k("s_nop 0")
        mem_load(2)
        k(f"s_nop {cfg.get('pace2', 12)}")
        mem_load(3)
        k(f"s_nop {cfg.get('pace2', 12)}")
        mem_load(4)
        again = k.uid("A_again"); retry = k.uid("A_retry")
        t0w, t1w = (112 * W) >> 6, (112 * W + 111) >> 6
        def stage(t, out=None):
            txt = f"ds_write_b128 v{vL16}, {V(MEM+4*t,4)} offset:{MKP_L + W*3072 + (t-t0w)*1024}"
            if out is None: q.ds(txt, f"st{t}")
            else: out(txt)
        def smf(tt, t):
            R = blockregA(7 * tt + t)
            k(f"v_smfmac_f32_16x16x64_bf16 {V(ACC+4*tt,4)}, {V(MEM+4*t,4)}, {R.r(0,8)}, v{vIdx}")
        k("s_waitcnt vmcnt(4)")
        prof.raw(2)
        for t in range(7):
            m0 = MEM + 4 * t
            fl = [[], [], [], []]
            if t < 2: fl[0].append(lambda t=t: mem_load(t + 5))
            fl[1 if t < 2 else 0].append(lambda t=t, m0=m0: k(f"v_max_u32 v{vX}, v{m0}, v{m0+1}" if t == 0 else f"v_max3_u32 v{vX}, v{vX}, v{m0}, v{m0+1}"))
            fl[2 if t < 2 else 1].append(lambda m0=m0: k(f"v_max3_u32 v{vX}, v{vX}, v{m0+2}, v{m0+3}"))
            if t0w <= t <= t1w: fl[3 if t < 2 else 2].append(lambda t=t: stage(t))
            if t == 6: fl[3].append(lambda: k(f"v_cmp_eq_u32 vcc, -1, v{vX}"))
            else: fl[3].append(lambda t=t: k(f"s_waitcnt vmcnt({[4,4,3,2,1,0][t]})"))
            for tt in range(4):
                smf(tt, t)
                for f in fl[tt]: f()
        k(f"s_cbranch_vccnz {retry}")
        prof.raw(3)
        rb = K()
        lab = k.uid("A_rl")
        rb(f"{lab}:")
        rb(f"s_add_u32 s{sMS1}, s{sMS}, 4096")
        for t in range(7):
            so = sMS if t < 4 else sMS1
            rb(f"buffer_load_dwordx4 {V(MEM+4*t,4)}, v{vL16}, {WSR}, s{so} offen offset:{(t*1024)%4096} sc1")
        rb("s_waitcnt vmcnt(0)")
        rb(f"v_max3_u32 v{vX}, v{MEM}, v{MEM+1}, v{MEM+2}")
        for i in range(3, 27, 2): rb(f"v_max3_u32 v{vX}, v{vX}, v{MEM+i}, v{MEM+i+1}")
        rb(f"v_max_u32 v{vX}, v{vX}, v{MEM+27}")
        rb(f"v_cmp_eq_u32 vcc, -1, v{vX}")
        ok_ = k.uid("A_rok")
        rb(f"s_cbranch_vccz {ok_}")
        rb(f"s_sub_u32 s{sSPIN}, s{sSPIN}, 1\ns_cbranch_scc0 {lab}\ns_branch {abort}")
        rb(f"{ok_}:")
        for i in range(0, 16, 2): rb(f"v_mov_b64 {V(ACC+i,2)}, 0")
        if cfg.get("cnt_retry"): rb(f"s_add_u32 s{sPROF+11}, s{sPROF+11}, 1")
        for t in range(t0w, t1w + 1): stage(t, rb)
        rb("s_nop 1")
        for t in range(7):
            for tt in range(4):
                R = blockregA(7 * tt + t)
                rb(f"v_smfmac_f32_16x16x64_bf16 {V(ACC+4*tt,4)}, {V(MEM+4*t,4)}, {R.r(0,8)}, v{vIdx}")
        rb(f"s_branch {again}")
        cfg.setdefault("outofline", []).append(f"{retry}:\ns_nop 7\n" + rb.text())
        k.label(again)
        q.vm = []
        def cvt(tile, hi):
            pa = ACC + 4 * tile + 2 * hi
            k(f"v_cvt_pk_bf16_f32 v{TMP+2*(tile&1)+hi}, v{pa}, v{pa+1}")
        def wr(tile): q.ds(f"ds_write_b64 v{vTRw}, {V(TMP+2*(tile&1),2)} offset:{tile*512}", f"w{tile}")
        def tr(tile): q.ds(f"ds_read_b64_tr_b16 {TRr(tile)}, v{vTRr} offset:{tile*512}", f"tr{tile}")
        def mk(tt): q.ds(f"ds_read_b64 {V(MEM+2*tt,2)}, v{vMKg} offset:{MKP_L + W*3072 + 256*(7*W+tt-4*t0w)}", f"mk{tt}")
        fill = []
        for tile in range(4): fill += [("c", tile, 0), ("c", tile, 1), ("w", tile), ("t", tile)]
        fill_after = {}
        slot = 1
        for f in fill: fill_after.setdefault(slot, []).append(f); slot += 1
        for j, f in enumerate([("c", 4, 0), ("c", 4, 1), ("w", 4), ("t", 4)]): fill_after.setdefault(17 + j, []).append(f)
        def dofill(f):
            if f[0] == "c": cvt(f[1], f[2])
            elif f[0] == "w": wr(f[1])
            elif f[0] == "t": tr(f[1])
        sl = 0
        for tt in (4, 5, 6):
            for t in range(7):
                smf(tt, t)
                for f in fill_after.get(sl, []): dofill(f)
                sl += 1
        prof.raw(4)
        def smm(kap, p, first=False):
            D = V(SACC + 4 * kap, 4)
            C = "0" if first else D
            if p < 3:
                Aop = A(XK + kap * 14 + 4 * p, 4) if kap < 2 else V(MEM + 4 * p, 4)
                k(f"v_mfma_f32_16x16x32_bf16 {D}, {Aop}, {V(TR+4*p,4)}, {C}")
            else:
                Aop = A(XK + kap * 14 + 12, 2) if kap < 2 else V(MEM + 12, 2)
                k(f"v_mfma_f32_16x16x16_bf16 {D}, {Aop}, {TRr(6)}, {C}")
        cvt(5, 0); cvt(5, 1)
        q.wait_lg("tr3")
        smm(0, 0, True)
        wr(5); tr(5)
        smm(1, 0, True)
        mk(0); mk(1)
        smm(0, 1)
        cvt(6, 0); cvt(6, 1)
        smm(1, 1)
        wr(6); tr(6)
        mk(2); mk(3); mk(4); mk(5); mk(6)
        q.wait_lg("mk1")
        smm(0, 2); smm(1, 2)
        smm(2, 0, True)
        q.wait_lg("mk5")
        smm(2, 1); smm(2, 2)
        q.wait_lg("mk6")
        smm(0, 3); smm(1, 3); smm(2, 3)
        prof.raw(5)
        k(f"s_add_u32 s{sXK}, s{sXK}, 28672")
        k("s_nop 4")
        q.ds(f"ds_write_b128 v{vSW}, {V(SACC,4)}")
        k("s_nop 1")
        q.ds(f"ds_write_b128 v{vSW+1}, {V(SACC+4,4)}")
        q.ds(f"ds_write_b128 v{vSW+2}, {V(SACC+8,4)}")
        q.lg0()
        prof.stamp(3); prof.raw(6)
        k("s_barrier")
        prof.stamp(4); prof.raw(7)
        X = TR
        if W < 2: softmax(q, W, ST)
        if cfg.get("bar3", True): k("s_barrier")
        if W == 3: preset(ST)
        if cfg.get("trace") and W == 3:
            k(f"s_waitcnt lgkmcnt(0)\ns_lshl_b32 s{sT0}, s{sRANK}, 6\ns_add_u32 s{sT0}, s{sT0}, s{sSTEP}\ns_lshl_b32 s{sT0}, s{sT0}, 2\ns_add_u32 s{sT0}, s{sT0}, {PROF+8192}")
            k(f"v_mov_b32 v{TR+4}, s90\nv_mov_b32 v{TR+5}, 0\ns_mov_b64 exec, 1\nbuffer_store_dword v{TR+4}, v{TR+5}, {WSR}, s{sT0} offen\ns_mov_b64 exec, -1")
        xk_prefetch()
        prof.stamp(5); prof.raw(10)
        emit_ring_advance(k)
        k("s_waitcnt vmcnt(0)")
        k(f"s_cmp_lt_u32 s{sSTEP}, {cfg['nsteps']}\ns_cbranch_scc1 {loop}")
        prof.raw_dump(TR, TR + 1); prof.dump(TR, TR + 1); prof.tot_dump(cfg.get("tot"), TR, TR + 1)
        k("s_endpgm")
    if cfg.get("mode_hook"): cfg["mode_hook"](k, TR)
    mlabs = [k.uid("A_m") for _ in modes]
    if len(modes) > 1: k(f"s_cmp_eq_u32 s{sMODE}, 1\ns_cbranch_scc1 {mlabs[1]}")
    for mi, st in enumerate(modes):
        k.label(mlabs[mi])
        labs = [k.uid("A_w") for _ in range(4)]
        for w in range(1, 4): k(f"s_cmp_eq_u32 s{sWAVE}, {w}\ns_cbranch_scc1 {labs[w]}")
        for w in range(4):
            k.label(labs[w])
            wave_loop(w, st)

def blockregB(tau, t):
    if t == 6 and tau < 6: return None
    b = 7 * tau + t - min(tau, 6)
    return Reg("a", 32 + 8 * b) if b < 28 else Reg("v", 80 + 8 * (b - 28))

def emit_chain_B(k, cfg, abort):
    prof = Prof(k, cfg.get("prof"), cfg.get("raw"))
    q = Q(k)
    WSR = f"s[{sWS}:{sWS+3}]"
    modes = cfg.get("modes", [cfg.get("st", "")])
    vL16, vPollA, vPollB, vP0, vPm, vOA, vOR, vMst, vIdx, vWL, vDet = range(1, 12)
    vLane = 0
    WT, ACC, VB, MEM = 12, 28, 36, 52
    vT = WT
    VXR = 0
    k(f"s_sub_u32 s{sRANK}, s{sRANK}, 16")
    k("v_and_b32 v0, 63, v0")
    k(f"v_lshlrev_b32 v{vL16}, 4, v{vLane}")
    k(f"s_mul_i32 s{sT0}, s{sWAVE}, 1792")
    k(f"v_add_u32 v{vPollA}, s{sT0}, v{vL16}")
    k(f"v_min_u32 v{vT}, 47, v{vLane}")
    k(f"v_lshlrev_b32 v{vT}, 4, v{vT}")
    k(f"s_add_u32 s{sT1}, s{sT0}, 1024")
    k(f"v_add_u32 v{vPollB}, s{sT1}, v{vT}")
    I, SUB, GA, T2 = WT + 1, WT + 2, WT + 3, WT + 4
    k(f"v_and_b32 v{I}, 7, v{vLane}\nv_bfe_u32 v{SUB}, v{vLane}, 3, 1\nv_lshrrev_b32 v{GA}, 4, v{vLane}")
    k(f"v_and_b32 v{T2}, 3, v{vLane}\nv_lshlrev_b32 v{vDet}, 2, v{T2}\ns_lshl_b32 s{sT0}, s{sWAVE}, 7\nv_add_u32 v{vDet}, s{sT0}, v{vDet}")
    k(f"s_mul_i32 s{sT0}, s{sWAVE}, 2560")
    k(f"v_add_u32 v{vP0}, s{sT0}, v{vL16}")
    k(f"v_lshrrev_b32 v{T2}, 1, v{GA}\nv_lshlrev_b32 v{vPm}, 8, v{T2}")
    k(f"v_lshl_add_u32 v{vPm}, v{SUB}, 7, v{vPm}\nv_lshl_add_u32 v{vPm}, v{I}, 4, v{vPm}")
    k(f"s_add_u32 s{sT0}, s{sT0}, 2048\nv_add_u32 v{vPm}, s{sT0}, v{vPm}")
    C2, CG = WT + 5, WT + 6
    k(f"v_and_b32 v{C2}, 3, v{vLane}")
    k(f"v_bfe_u32 v{CG}, v{vLane}, 2, 2\nv_lshrrev_b32 v{T2}, 5, v{vLane}\nv_lshl_add_u32 v{CG}, v{T2}, 2, v{CG}")
    k(f"v_and_b32 v{T2}, 1, v{GA}\nv_lshl_add_u32 v{T2}, v{CG}, 1, v{T2}")
    k(f"v_lshlrev_b32 v{vOA}, 2, v{C2}\nv_xor_b32 v{T2}, v{T2}, v{vOA}\nv_and_b32 v{T2}, 15, v{T2}")
    k(f"v_lshlrev_b32 v{vOA}, 8, v{C2}\nv_lshl_add_u32 v{vOA}, v{T2}, 4, v{vOA}")
    k(f"s_lshl_b32 s{sT0}, s{sWAVE}, 10\ns_add_u32 s{sT0}, s{sT0}, {OP_L}\nv_add_u32 v{vOA}, s{sT0}, v{vOA}")
    k(f"v_lshlrev_b32 v{T2}, 2, v{GA}\nv_and_b32 v{vOR}, 15, v{vLane}\nv_xor_b32 v{vOR}, v{vOR}, v{T2}\nv_and_b32 v{vOR}, 15, v{vOR}")
    k(f"v_lshlrev_b32 v{vOR}, 4, v{vOR}\nv_lshl_add_u32 v{vOR}, v{GA}, 8, v{vOR}\nv_add_u32 v{vOR}, {OP_L}, v{vOR}")
    k(f"v_and_b32 v{T2}, 1, v{vLane}\nv_lshl_add_u32 v{T2}, v{T2}, 2, v{GA}")
    k(f"v_bfe_u32 v{vMst}, v{vLane}, 3, 1\nv_lshl_add_u32 v{T2}, v{vMst}, 4, v{T2}")
    k(f"v_bfe_u32 v{vMst}, v{vLane}, 2, 1\nv_lshl_add_u32 v{T2}, v{vMst}, 3, v{T2}")
    k(f"v_lshlrev_b32 v{T2}, 4, v{T2}")
    k(f"v_bfe_u32 v{vMst}, v{vLane}, 1, 1\nv_lshl_add_u32 v{vMst}, v{vMst}, 3, v{T2}")
    k(f"s_lshl_b32 s{sT0}, s{sRANK}, 9\nv_add_u32 v{vMst}, s{sT0}, v{vMst}")
    k(f"s_lshl_b32 s{sFLG}, s{sRANK}, 2\ns_add_u32 s{sFLG}, s{sFLG}, {FLAGM}")
    k(f"v_mov_b32 v{vIdx}, 0x44444444\nv_mov_b32 v{T2}, 0xeeeeeeee")
    k(f"v_cmp_ne_u32 vcc, 0, v{SUB}\ns_nop 1\nv_cndmask_b32 v{vIdx}, v{vIdx}, v{T2}, vcc")
    if cfg.get("warm", True):
        sk = k.uid("B_warm")
        k(f"s_cmp_lg_u32 s{sRANK}, 0\ns_cbranch_scc1 {sk}")
        k(f"s_lshl_b32 s{sT0}, s{sWAVE}, 6\nv_add_u32 v{WT}, s{sT0}, v{vLane}\nv_lshlrev_b32 v{WT}, 7, v{WT}")
        for u in range(3):
            k(f"s_mov_b32 s{sT0}, {MEMRING + u*32768}\nbuffer_load_dword v{WT+1}, v{WT}, {WSR}, s{sT0} offen sc1")
        k("s_waitcnt vmcnt(0)")
        k.label(sk)
    k(f"s_mul_i32 s{sT0}, s{sRANK}, 458752\ns_mul_i32 s{sT1}, s{sWAVE}, 114688\ns_add_u32 s{sT0}, s{sT0}, s{sT1}\ns_add_u32 s{sT0}, s{sT0}, {WB_OFF}")
    k(f"s_mul_i32 s{sT1}, s{sWAVE}, 12288\ns_add_u32 s{sT1}, s{sT1}, {WL}\nv_add_u32 v{vWL}, s{sT1}, v{vL16}")
    for tau in range(8):
        for t in range(7):
            R = blockregB(tau, t)
            for a in range(2):
                off = ((7 * tau + t) * 2 + a) * 1024
                if off and off % 4096 == 0: k(f"s_add_u32 s{sT0}, s{sT0}, 4096")
                if R is not None:
                    k(f"buffer_load_dwordx4 {R.r(4*a,4)}, v{vL16}, {WSR}, s{sT0} offen offset:{off%4096}")
                else:
                    k(f"buffer_load_dwordx4 {V(MEM+4*a,4)}, v{vL16}, {WSR}, s{sT0} offen offset:{off%4096}")
            if R is None:
                k("s_waitcnt vmcnt(0)")
                for a in range(2):
                    k(f"ds_write_b128 v{vWL}, {V(MEM+4*a,4)} offset:{tau*2048+a*1024}")
                k("s_waitcnt lgkmcnt(0)")
    PX = WT + 15
    for i in range(8): k(f"v_mov_b32 v{ACC+i}, 0")
    k("s_waitcnt vmcnt(0) lgkmcnt(0)")
    k(f"s_mov_b32 s{sSTEP}, 0\ns_mov_b32 s{sMS}, {MEMRING}\ns_mov_b32 s{sPS}, {PRING}")
    k(f"s_mul_i32 s{sXK}, s{sRANK}, 32768\ns_lshl_b32 s{sT0}, s{sWAVE}, 13\ns_add_u32 s{sXK}, s{sXK}, s{sT0}\ns_add_u32 s{sXK}, s{sXK}, {VX_OFF}")
    k(f"s_mov_b32 s{sOUT}, {MEMOUT+7168}")
    k(f"s_mov_b32 s{sVXC}, {C_VX}")
    def b_loop(ST):
        q = Q(k)
        prof.start(); prof.tot_start(cfg.get("tot"))
        loop = k.uid("B_loop")
        k.label(loop)
        prof.stamp(0); prof.raw(0)
        if cfg.get("b_sleep"): k(f"s_sleep {cfg['b_sleep']}")
        top = k.uid("PM"); retry = k.uid("PMR")
        k.label(top)
        k(f"buffer_load_dwordx4 {V(WT,4)}, v{vPollA}, {WSR}, s{sMS} offen sc1")
        k(f"buffer_load_dwordx4 {V(WT+4,4)}, v{vPollB}, {WSR}, s{sMS} offen sc1")
        if cfg.get("vxwait"): k(f"v_mov_b32 v{WT+9}, 0\nbuffer_load_dword v{WT+8}, v{WT+9}, {WSR}, s{sVXC} offen sc1")
        k("s_waitcnt vmcnt(0)")
        k(f"v_max3_u32 v{PX}, v{WT}, v{WT+1}, v{WT+2}")
        k(f"v_max3_u32 v{PX}, v{PX}, v{WT+3}, v{WT+4}")
        k(f"v_max3_u32 v{PX}, v{PX}, v{WT+5}, v{WT+6}")
        k(f"v_max_u32 v{PX}, v{PX}, v{WT+7}")
        k(f"v_cmp_eq_u32 vcc, -1, v{PX}")
        k(f"s_cbranch_vccnz {retry}")
        if cfg.get("vxwait"):
            k(f"v_cmp_gt_u32 vcc, 28, v{WT+8}")
            k(f"s_cbranch_vccnz {retry}")
        retry_block(cfg, retry, "", abort, top)
        q.reset()
        prof.stamp(1); prof.raw(1)
        q.ds(f"ds_write_b128 v{vPollA}, {V(WT,4)} offset:{MEM_L}")
        q.ds(f"ds_write_b128 v{vPollB}, {V(WT+4,4)} offset:{MEM_L}")
        q.lg0()
        k("s_barrier")
        prof.stamp(2)
        for t in range(7):
            q.ds(f"ds_read_b128 {V(MEM+4*t,4)}, v{vL16} offset:{MEM_L+t*1024}", f"mem{t}")
        k(f"s_add_u32 s{sT1}, s{sXK}, 4096")
        def vx_load(u):
            off = u * 1024
            so = sXK if off < 4096 else sT1
            k(f"buffer_load_dwordx4 {A(VXR+4*u,4)}, v{vL16}, {WSR}, s{so} offen offset:{off%4096} sc1")
        def vb_dst(tau, rp):
            hh, c = tau >> 1, tau & 1
            a, sub = hh >> 1, hh & 1
            return VB + 8 * c + 4 * a + 2 * rp + sub
        for tau in range(8):
            for t in range(7):
                if tau == 0: q.wait_lg(f"mem{t}")
                R = blockregB(tau, t)
                if R is None:
                    q.wait_lg(f"wl{tau}b")
                    Bop = V(WT + 8 * (tau & 1), 8)
                else:
                    Bop = R.r(0, 8)
                k(f"v_smfmac_f32_16x16x64_bf16 {V(ACC+4*(tau&1),4)}, {V(MEM+4*t,4)}, {Bop}, v{vIdx}")
                if tau < 6:
                    if t == 0: q.ds(f"ds_read_b128 {V(WT+8*(tau&1),4)}, v{vWL} offset:{tau*2048}", f"wl{tau}a")
                    if t == 1: q.ds(f"ds_read_b128 {V(WT+8*(tau&1)+4,4)}, v{vWL} offset:{tau*2048+1024}", f"wl{tau}b")
                if tau < 4 and t in (5, 6): vx_load(2 * tau + (t - 5))
                if tau >= 1:
                    pa = ACC + 4 * ((tau - 1) & 1)
                    if t == 2: k(f"v_cvt_pk_bf16_f32 v{vb_dst(tau-1,0)}, v{pa}, v{pa+1}")
                    if t == 3: k(f"v_cvt_pk_bf16_f32 v{vb_dst(tau-1,1)}, v{pa+2}, v{pa+3}")
                    if t == 4: k(f"v_mov_b64 {V(pa,2)}, 0")
                    if t == 5: k(f"v_mov_b64 {V(pa+2,2)}, 0")
        k(f"s_add_u32 s{sXK}, s{sXK}, 458752")
        k("s_nop 6")
        pa = ACC + 4
        k(f"v_cvt_pk_bf16_f32 v{vb_dst(7,0)}, v{pa}, v{pa+1}")
        k(f"v_cvt_pk_bf16_f32 v{vb_dst(7,1)}, v{pa+2}, v{pa+3}")
        k(f"v_mov_b64 {V(pa,2)}, 0\nv_mov_b64 {V(pa+2,2)}, 0")
        prof.raw(2)
        k("s_waitcnt vmcnt(0)")
        prof.stamp(3); prof.raw(3)
        k(f"s_add_u32 s{sMS1}, s{sSTEP}, 1")
        emit_flag_poll(k, cfg, vDet, WT, sMS1, FLAGP, abort)
        prof.stamp(4); prof.raw(4)
        P0, P1, PM = MEM, MEM + 4, MEM + 8
        q.reset()
        def p_loads(qq):
            qq(f"buffer_load_dwordx4 {V(P0,4)}, v{vP0}, {WSR}, s{sPS} offen sc1", "p0")
            qq(f"buffer_load_dwordx4 {V(P1,4)}, v{vP0}, {WSR}, s{sPS} offen offset:1024 sc1", "p1")
            qq(f"buffer_load_dwordx4 {V(PM,4)}, v{vPm}, {WSR}, s{sPS} offen sc1", "pm")
        p_loads(q.vmem)
        again = k.uid("B_again"); retry = k.uid("B_retry")
        k.label(again)
        for (Pr, src, tag) in ((P0, "x0", "p0"), (P1, "x1", "p1"), (PM, "m", "pm")):
            q.wait_vm(tag)
            if tag == "p0": prof.raw(5)
            if tag == "pm": prof.raw(6)
            for c in range(2):
                Bop = {"x0": A(VXR + c * 8, 8), "x1": A(VXR + 16 + c * 8, 8), "m": V(VB + 8 * c, 8)}[src]
                k(f"v_smfmac_f32_16x16x64_bf16 {V(ACC+4*c,4)}, {V(Pr,4)}, {Bop}, v{vIdx}")
                if c == 0: k(f"v_max_u32 v{PX}, v{Pr}, v{Pr+1}" if src == "x0" else f"v_max3_u32 v{PX}, v{PX}, v{Pr}, v{Pr+1}")
                else: k(f"v_max3_u32 v{PX}, v{PX}, v{Pr+2}, v{Pr+3}")
        k(f"v_cmp_eq_u32 vcc, -1, v{PX}")
        k(f"s_cbranch_vccnz {retry}")
        rb = K(); lab = k.uid("B_rl"); ok_ = k.uid("B_rok")
        rb(f"{lab}:")
        p_loads(lambda txt, tag: rb(txt))
        rb("s_waitcnt vmcnt(0)")
        rb(f"v_max3_u32 v{PX}, v{P0}, v{P0+1}, v{P0+2}")
        for i in range(3, 11, 2): rb(f"v_max3_u32 v{PX}, v{PX}, v{P0+i}, v{P0+i+1}")
        rb(f"v_max_u32 v{PX}, v{PX}, v{P0+11}")
        rb(f"v_cmp_eq_u32 vcc, -1, v{PX}")
        rb(f"s_cbranch_vccz {ok_}")
        rb(f"s_sub_u32 s{sSPIN}, s{sSPIN}, 1\ns_cbranch_scc0 {lab}\ns_branch {abort}")
        rb(f"{ok_}:")
        for i in range(0, 8, 2): rb(f"v_mov_b64 {V(ACC+i,2)}, 0")
        if cfg.get("cnt_retry"): rb(f"s_add_u32 s{sPROF+11}, s{sPROF+11}, 1")
        rb(f"s_nop 1\ns_branch {again}")
        cfg.setdefault("outofline", []).append(f"{retry}:\ns_nop 7\n" + rb.text())
        def mflag():
            k(f"s_add_u32 s{sT0}, s{sSTEP}, 1\nv_mov_b32 v{PX}, s{sT0}\nv_mov_b32 v{PX-1}, 0")
            k(f"s_mov_b64 exec, 1\nbuffer_store_dword v{PX}, v{PX-1}, {WSR}, s{sFLG} offen {ST}\ns_mov_b64 exec, -1")
        mpos = cfg.get("mflag_pos", 1)
        k("s_nop 5")
        for r in range(4): k(f"v_permlane32_swap_b32 v{ACC+r}, v{ACC+4+r}")
        k(f"v_pk_add_f32 {V(ACC,2)}, {V(ACC,2)}, {V(ACC+4,2)}\nv_pk_add_f32 {V(ACC+2,2)}, {V(ACC+2,2)}, {V(ACC+6,2)}")
        q.ds(f"ds_write_b128 v{vOA}, {V(ACC,4)}")
        nofin = k.uid("B_nofin"); join = k.uid("B_join")
        if mpos == 0:
            sk = k.uid("B_f0"); k(f"s_cmp_lg_u32 s{sWAVE}, 0\ns_cbranch_scc1 {sk}"); mflag(); k.label(sk)
        q.lg0()
        prof.stamp(5); prof.raw(7)
        k("s_barrier")
        prof.stamp(6); prof.raw(8)
        k(f"s_cmp_lg_u32 s{sWAVE}, 0\ns_cbranch_scc1 {nofin}")
        X = WT
        for w_ in range(4): q.ds(f"ds_read_b128 {V(X+4*w_,4)}, v{vOR} offset:{w_*1024}", f"o{w_}")
        def mflag2():
            k(f"s_mov_b64 exec, 1\nbuffer_store_dword v{ACC+4}, v{ACC+5}, {WSR}, s{sFLG} offen {ST}\ns_mov_b64 exec, -1")
        k(f"s_add_u32 s{sT0}, s{sSTEP}, 1\nv_mov_b32 v{ACC+4}, s{sT0}\nv_mov_b32 v{ACC+5}, 0")
        if mpos == 1: mflag2()
        k(f"s_add_u32 s{sT0}, s{sSTEP}, 1\ns_and_b32 s{sT0}, s{sT0}, 3\ns_mul_i32 s{sMS1}, s{sT0}, 7168\ns_add_u32 s{sMS1}, s{sMS1}, {MEMRING}")
        def pk(d, a, b):
            k(f"v_pk_add_f32 {V(d,2)}, {V(a,2)}, {V(b,2)}\nv_pk_add_f32 {V(d+2,2)}, {V(a+2,2)}, {V(b+2,2)}")
        q.wait_lg("o1")
        if mpos == 11: mflag2()
        pk(X, X, X+4)
        q.wait_lg("o3"); pk(X+8, X+8, X+12); pk(X, X, X+8)
        q.reset()
        prof.raw(9)
        if mpos == 12: mflag2()
        else: k("s_nop 1")
        k(f"v_permlane32_swap_b32 v{X}, v{X+2}\nv_permlane32_swap_b32 v{X+1}, v{X+3}")
        k("s_nop 1")
        k(f"v_permlane16_swap_b32 v{X}, v{X+1}\nv_permlane16_swap_b32 v{X+2}, v{X+3}")
        if mpos == 13: mflag2()
        k(f"v_cvt_pk_bf16_f32 v{X}, v{X}, v{X+1}\nv_cvt_pk_bf16_f32 v{X+1}, v{X+2}, v{X+3}")
        k(f"v_min_u32 v{X}, -2, v{X}\nv_min_u32 v{X+1}, -2, v{X+1}")
        k(f"buffer_store_dwordx2 {V(X,2)}, v{vMst}, {WSR}, s{sMS1} offen {ST}")
        prof.raw(10)
        if mpos == 2: mflag2()
        k(f"buffer_store_dwordx2 {V(X,2)}, v{vMst}, {WSR}, s{sOUT} offen sc1")
        k.label(nofin)
        if cfg.get("bar4", True): k("s_barrier")
        k(f"s_cmp_lg_u32 s{sWAVE}, 1\ns_cbranch_scc1 {join}")
        X = WT
        k(f"s_add_u32 s{sRST}, s{sSTEP}, 3\ns_and_b32 s{sRST}, s{sRST}, 3\ns_mul_i32 s{sRST}, s{sRST}, 7168\ns_add_u32 s{sRST}, s{sRST}, {MEMRING}")
        k(f"v_mov_b32 v{X}, -1\nv_mov_b32 v{X+1}, -1")
        k(f"buffer_store_dwordx2 {V(X,2)}, v{vMst}, {WSR}, s{sRST} offen {ST}")
        k.label(join)
        for i in range(0, 8, 2): k(f"v_mov_b64 {V(ACC+i,2)}, 0")
        prof.stamp(7)
        k(f"s_add_u32 s{sOUT}, s{sOUT}, 7168\ns_add_u32 s{sVXC}, s{sVXC}, 16")
        emit_ring_advance(k)
        k(f"s_cmp_lt_u32 s{sSTEP}, {cfg['nsteps']}\ns_cbranch_scc1 {loop}")
        k(f"s_add_u32 s{sRANK}, s{sRANK}, 16")
        prof.raw_dump(WT, WT + 1); prof.dump(WT, WT + 1); prof.tot_dump(cfg.get("tot"), WT, WT + 1)
        k("s_endpgm")
    if cfg.get("mode_hook"): cfg["mode_hook"](k, WT)
    mlabs = [k.uid("B_m") for _ in modes]
    if len(modes) > 1: k(f"s_cmp_eq_u32 s{sMODE}, 1\ns_cbranch_scc1 {mlabs[1]}")
    for mi, st in enumerate(modes):
        k.label(mlabs[mi])
        b_loop(st)

def emit_prefetcher(k, cfg, abort):
    WSR = f"s[{sWS}:{sWS+3}]"
    dist = cfg.get("pf_dist", 2)
    k("; ================= L2 prefetcher =================")
    k(f"v_lshlrev_b32 v1, 7, v0")
    k("v_mov_b32 v2, 0")
    k(f"s_mov_b32 s{sSTEP}, 0\ns_mov_b32 s{sXK}, {VX_OFF}\ns_mov_b32 s{sOUT}, {XK_OFF}")
    loop = k.uid("PF_loop"); go = k.uid("PF_go"); poll = k.uid("PF_poll")
    k.label(loop)
    k(f"s_cmp_le_u32 s{sSTEP}, {dist}\ns_cbranch_scc1 {go}")
    k(f"s_sub_u32 s{sMS}, s{sSTEP}, {dist}\ns_mov_b32 s{sT0}, {FLAGM}")
    k.label(poll)
    k(f"buffer_load_dword v3, v2, {WSR}, s{sT0} offen sc1\ns_waitcnt vmcnt(0)")
    k(f"v_cmp_gt_u32 vcc, s{sMS}, v3\ns_cbranch_vccz {go}")
    k(f"s_sleep 4\ns_sub_u32 s{sSPIN}, s{sSPIN}, 1\ns_cbranch_scc0 {poll}\ns_branch {abort}")
    k.label(go)
    k(f"s_mov_b32 s{sT1}, s{sXK}")
    for u in range(14):
        k(f"buffer_load_dword v{8+u}, v1, {WSR}, s{sT1} offen sc1")
        k(f"s_add_u32 s{sT1}, s{sT1}, 32768")
    k(f"v_cmp_gt_u32 vcc, 224, v0\ns_and_saveexec_b64 s[20:21], vcc")
    skip = k.uid("PF_s")
    k(f"s_cbranch_execz {skip}")
    k(f"buffer_load_dword v30, v1, {WSR}, s{sOUT} offen")
    k.label(skip)
    k("s_mov_b64 exec, s[20:21]")
    k("s_waitcnt vmcnt(0)")
    k(f"s_add_u32 s{sXK}, s{sXK}, 458752\ns_add_u32 s{sOUT}, s{sOUT}, 28672\ns_add_u32 s{sSTEP}, s{sSTEP}, 1")
    k(f"s_cmp_lt_u32 s{sSTEP}, 64\ns_cbranch_scc1 {loop}")
    k("s_endpgm")

def gen_chain_test(cfg):
    k = K()
    name = "chain_kernel"
    k(f'.amdgcn_target "amdgcn-amd-amdhsa--gfx950"\n.text\n.globl {name}\n.p2align 8\n.type {name},@function\n{name}:')
    k("s_load_dwordx4 s[4:7], s[0:1], 0")
    if cfg.get("tot"): k("s_memrealtime s[48:49]")
    k("s_getreg_b32 s3, hwreg(HW_REG_XCC_ID)\ns_and_b32 s3, s3, 15")
    k("s_waitcnt lgkmcnt(0)")
    k(f"s_mov_b32 s{sWS}, s4\ns_mov_b32 s{sWS+1}, s5\ns_mov_b32 s{sWS+2}, {WS_BYTES}\ns_mov_b32 s{sWS+3}, 0x20000")
    if cfg.get("same_xcd", True):
        k("s_cmp_lg_u32 s3, 0\ns_cbranch_scc1 L_exit")
    k("v_mov_b32 v1, 0\nv_mov_b32 v2, 1")
    k("v_cmp_eq_u32 vcc, 0, v0\ns_and_saveexec_b64 s[20:21], vcc\ns_cbranch_execz L_t")
    k("global_atomic_add v3, v1, v2, s[6:7] sc0\ns_waitcnt vmcnt(0)\nds_write_b32 v1, v3\ns_waitcnt lgkmcnt(0)")
    k.label("L_t")
    k("s_mov_b64 exec, s[20:21]\ns_barrier\nds_read_b32 v3, v1\ns_waitcnt lgkmcnt(0)\ns_nop 0")
    k(f"v_readfirstlane_b32 s{sRANK}, v3")
    k(f"v_lshrrev_b32 v3, 6, v0\ns_nop 0\nv_readfirstlane_b32 s{sWAVE}, v3")
    k("s_barrier")
    k(f"s_mov_b32 s{sSPIN}, {SPIN}")
    if cfg.get("pf", True): k(f"s_cmp_eq_u32 s{sRANK}, 30\ns_cbranch_scc1 L_rolePF")
    k(f"s_cmp_ge_u32 s{sRANK}, 30\ns_cbranch_scc1 L_exit")
    k(f"s_cmp_ge_u32 s{sRANK}, 16\ns_cbranch_scc1 L_roleB")
    emit_chain_A(k, cfg, "L_abort")
    k.label("L_roleB")
    emit_chain_B(k, cfg, "L_abort")
    k.label("L_rolePF")
    emit_prefetcher(k, cfg, "L_abort")
    for t in cfg.get("outofline", []): k(t)
    k.label("L_abort")
    k(f"v_mov_b32 v1, 0\nv_mov_b32 v2, 1\nglobal_atomic_add v1, v2, s[6:7] offset:4\ns_waitcnt vmcnt(0)")
    k.label("L_exit")
    k("s_endpgm")
    k(f""".section .rodata,"a"
.p2align 6
.amdhsa_kernel {name}
  .amdhsa_next_free_vgpr 512
  .amdhsa_next_free_sgpr 96
  .amdhsa_accum_offset 256
  .amdhsa_group_segment_fixed_size 0
  .amdhsa_kernarg_size 16
  .amdhsa_user_sgpr_count 2
  .amdhsa_user_sgpr_kernarg_segment_ptr 1
  .amdhsa_system_sgpr_workgroup_id_x 1
.end_amdhsa_kernel""")
    return k.text()

if __name__ == "__main__":
    import sys, kfw
    cfg = dict(nsteps=63, prof=("prof" in sys.argv))
    t = gen_chain_test(cfg)
    open("chain_test.s", "w").write(t)
    p = kfw.check(t); w = kfw.check_waits(t)
    print("hazards", len(p), "waits", len(w))
```

```python
import re

class K:
    def __init__(self):
        self.lines = []
        self._uid = 0
    def __call__(self, s=""):
        for ln in s.split("\n"):
            self.lines.append(ln)
    def uid(self, base):
        self._uid += 1
        return f"{base}_{self._uid}"
    def label(self, name):
        self.lines.append(f"{name}:")
    def text(self):
        return "\n".join(self.lines) + "\n"

def V(i, n=1):
    return f"v{i}" if n == 1 else f"v[{i}:{i+n-1}]"
def A(i, n=1):
    return f"a{i}" if n == 1 else f"a[{i}:{i+n-1}]"
def S(i, n=1):
    return f"s{i}" if n == 1 else f"s[{i}:{i+n-1}]"

class Reg:
    def __init__(self, kind, idx): self.kind, self.idx = kind, idx
    def r(self, off=0, n=1):
        i = self.idx + off
        return f"{self.kind}{i}" if n == 1 else f"{self.kind}[{i}:{i+n-1}]"

_reg_re = re.compile(r"^(-|\|)?(abs\()?([vas])(?:(\d+)|\[(\d+):(\d+)\])\)?\|?$")
def regs_of(tok):
    tok = tok.strip()
    if tok in ("vcc",): return {("s", "vcc_lo"), ("s", "vcc_hi")}
    if tok in ("vcc_lo", "vcc_hi"): return {("s", tok)}
    if tok == "exec": return {("s", "exec")}
    if tok == "m0": return {("s", "m0")}
    m = _reg_re.match(tok)
    if not m: return set()
    kind = m.group(3)
    if m.group(4) is not None: return {(kind, int(m.group(4)))}
    return {(kind, i) for i in range(int(m.group(5)), int(m.group(6)) + 1)}

MFMA_PASSES = {"16x16x32": 4, "16x16x64": 4, "16x16x16": 4, "32x32x16": 8, "32x32x8": 8, "32x32x32": 8}
TRANS = ("v_exp_f32", "v_log_f32", "v_rcp_f32", "v_rsq_f32", "v_sqrt_f32", "v_sin_f32", "v_cos_f32", "v_rcp_iflag_f32")

class Ins:
    __slots__ = ("line", "no", "op", "ops", "mods", "kind", "rd", "wr", "passes", "srcC", "srcAB", "dpp", "nop", "target", "wide_store_data")
    def __init__(self, line, no):
        self.line, self.no = line, no
        s = line.split(";")[0].strip()
        parts = s.split(None, 1)
        self.op = op = parts[0]
        rest = parts[1] if len(parts) > 1 else ""
        toks = [t.strip() for t in rest.split(",")] if rest else []
        self.mods = ""
        if toks:
            last = toks[-1].split()
            if len(last) > 1 and not toks[-1].startswith("hwreg"):
                toks[-1] = last[0]; self.mods = " ".join(last[1:])
        self.ops = toks
        self.rd, self.wr = set(), set()
        self.passes = 0; self.srcC = set(); self.srcAB = set(); self.dpp = False; self.nop = 0
        self.target = None; self.wide_store_data = set()
        R = [regs_of(t) for t in toks]
        base = re.sub(r"_(e32|e64|dpp|sdwa)$", "", op)
        if op.startswith("v_mfma") or op.startswith("v_smfmac"):
            self.kind = "mfma"
            for k_, p in MFMA_PASSES.items():
                if k_ in op: self.passes = p
            assert self.passes, line
            self.wr = R[0]
            if op.startswith("v_smfmac"):
                self.srcC = set(R[0]); self.srcAB = R[1] | R[2] | R[3]
            else:
                self.srcC = set(R[3]); self.srcAB = R[1] | R[2]
            self.rd = self.srcC | self.srcAB
        elif op.startswith("v_"):
            self.kind = "valu"
            self.dpp = ("row_" in self.mods or "quad_perm" in self.mods or "wave_" in self.mods or op.endswith("_dpp"))
            if base.startswith("v_cmpx"):
                self.wr = R[0] | {("s", "exec")}; self.rd = set().union(*R[1:])
            elif base.startswith("v_cmp"):
                self.wr = R[0]; self.rd = set().union(*R[1:])
            elif base.startswith("v_permlane") and "swap" in base:
                self.wr = R[0] | R[1]; self.rd = R[0] | R[1]
            elif base in ("v_add_co_u32", "v_sub_co_u32", "v_subrev_co_u32"):
                self.wr = R[0] | R[1]; self.rd = set().union(*R[2:])
            elif base in ("v_addc_co_u32", "v_subb_co_u32"):
                self.wr = R[0] | R[1]; self.rd = set().union(*R[2:])
            elif base == "v_nop":
                pass
            else:
                self.wr = R[0]; self.rd = set().union(*R[1:]) if len(R) > 1 else set()
                if base in ("v_fmac_f32", "v_pk_fmac_f16", "v_dot2c_f32_bf16", "v_writelane_b32") or self.dpp:
                    self.rd |= R[0]
                if base == "v_cndmask_b32" and len(toks) == 3:
                    self.rd |= regs_of("vcc")
        elif op.startswith("ds_"):
            self.kind = "ds"
            if op.startswith("ds_read") or op.startswith("ds_bpermute") or op.startswith("ds_permute") or op.startswith("ds_swizzle") or "_rtn" in op:
                self.wr = R[0]; self.rd = set().union(*R[1:])
            else:
                self.rd = set().union(*R)
        elif op.startswith("buffer_") or op.startswith("global_") or op.startswith("flat_"):
            self.kind = "vmem"
            if op in ("buffer_wbl2", "buffer_inv"):
                pass
            elif "_load" in op:
                if "lds" in self.mods.split() or op.startswith("global_load_lds"):
                    self.rd = set().union(*R) | {("s", "m0")}
                else:
                    self.wr = R[0]; self.rd = set().union(*R[1:])
            elif "_store" in op:
                self.rd = set().union(*R)
                if "x3" in op or "x4" in op:
                    self.wide_store_data = R[0] if op.startswith("buffer_") else R[1]
            elif "_atomic" in op:
                self.rd = set().union(*R)
                if "sc0" in self.mods.split(): self.wr = R[0]
            else:
                raise ValueError(line)
        elif op.startswith("s_"):
            self.kind = "salu"
            if op == "s_nop":
                self.nop = int(toks[0], 0) + 1
            elif op.startswith("s_cbranch") or op == "s_branch":
                self.target = toks[0]
            elif op in ("s_waitcnt", "s_barrier", "s_endpgm", "s_sleep", "s_setprio", "s_sethalt"):
                pass
            elif op.startswith("s_cmp") or op.startswith("s_bitcmp"):
                self.rd = set().union(*R)
            elif op.startswith("s_load") or op.startswith("s_memtime") or op.startswith("s_memrealtime") or op.startswith("s_buffer_load"):
                self.kind = "smem"; self.wr = R[0]; self.rd = set().union(*R[1:]) if len(R) > 1 else set()
            else:
                self.wr = R[0] if R else set(); self.rd = set().union(*R[1:]) if len(R) > 1 else set()
                if op.startswith("s_addk") or op.startswith("s_mulk"): self.rd |= R[0]
                if "saveexec" in op: self.wr |= {("s", "exec")}; self.rd |= {("s", "exec")}
        else:
            raise ValueError("unknown instr: " + line)

def _is_v(r): return r[0] in ("v", "a")

def need(p, c):
    best = (0, "")
    def up(n, why):
        nonlocal best
        if n > best[0]: best = (n, why)
    pw_v = {r for r in p.wr if _is_v(r)}
    pw_s = {r for r in p.wr if r[0] == "s"}
    if p.kind == "valu":
        if c.kind == "mfma" and pw_v & c.rd: up(2, "VALU->MFMA src")
        if c.kind == "valu":
            if c.dpp and pw_v & c.rd: up(2, "VALU->DPP")
            if c.op.startswith("v_permlane") and pw_v & c.rd: up(2, "VALU->permlane")
            if (c.op.startswith("v_readlane") or c.op.startswith("v_readfirstlane")) and pw_v & c.rd: up(1, "VALU->readlane")
            if re.sub(r"_(e32|e64)$", "", p.op) in TRANS and re.sub(r"_(e32|e64)$", "", c.op) not in TRANS and pw_v & c.rd: up(1, "trans->VALU")
            if pw_s & c.rd and ("s", "exec") not in (pw_s & c.rd): up(2, "VALU sgpr->VALU const")
            if ("s", "exec") in pw_s and c.dpp: up(5, "VALU exec->DPP")
            if ("s", "exec") in pw_s and (c.op.startswith("v_readlane") or c.op.startswith("v_readfirstlane") or c.op.startswith("v_permlane") or c.op.startswith("v_writelane")): up(4, "cmpx->lane op")
            if (c.op.startswith("v_readlane") or c.op.startswith("v_writelane")) and pw_s & c.rd: up(4, "VALU sgpr->lanesel")
        if c.kind == "mfma" and ("s", "exec") in pw_s: up(4, "VALU exec->MFMA")
        if c.kind == "vmem" and pw_s & c.rd: up(5, "VALU sgpr->VMEM")
        if c.kind == "smem" and pw_s & c.rd: up(1, "VALU sgpr->SMEM (pad)")
    if p.kind == "mfma":
        n = p.passes
        tab_rw = {2: 5, 4: 8, 8: 12, 16: 20}[n]
        tab_ov = {2: 4, 4: 6, 8: 10, 16: 18}[n]
        if c.kind == "mfma":
            if pw_v & c.srcAB: up(tab_rw, "MFMA D->MFMA A/B")
            if pw_v & c.srcC:
                if not (p.wr == c.srcC and p.op == c.op): up(tab_ov, "MFMA D->MFMA C overlap")
            if pw_v & c.wr and not (pw_v & c.srcC): up(tab_ov, "MFMA D->MFMA D WAW")
        elif c.kind == "valu":
            if pw_v & (c.rd | c.wr): up(tab_rw, "MFMA D->VALU")
            war = {2: 1, 4: 3, 8: 7, 16: 15}[n]
            if p.srcC & c.wr: up(war, "MFMA C WAR VALU")
        elif c.kind in ("ds", "vmem"):
            if pw_v & (c.rd | c.wr): up(tab_rw, "MFMA D->mem")
    if p.kind == "vmem" and p.wide_store_data:
        if c.kind == "valu" and p.wide_store_data & c.wr: up(2, "wide store WAR VALU")
        elif c.kind in ("ds", "vmem", "mfma") and p.wide_store_data & c.wr: up(1, "wide store WAR")
    if p.kind == "salu" and ("s", "m0") in p.wr:
        if c.kind in ("vmem", "ds") and (("s", "m0") in c.rd or "addtid" in c.op): up(1, "m0->lds dma")
    return best

def check(text, physical=True, verbose=True, fix=False):
    raw = text.split("\n")
    ins = []; labels = {}
    for no, ln in enumerate(raw):
        s = ln.split(";")[0].strip()
        if not s or s.startswith("."): continue
        m = re.match(r"^([\w.$]+):\s*(.*)$", s)
        if m:
            labels[m.group(1)] = len(ins)
            s = m.group(2)
            if not s: continue
        ins.append(Ins(s, no))
    def succ(i):
        x = ins[i]
        if x.op == "s_endpgm": return []
        if x.op == "s_branch": return [labels[x.target]] if x.target in labels else []
        out = [i + 1] if i + 1 < len(ins) else []
        if x.target is not None and x.target in labels: out.append(labels[x.target])
        return out
    def cost(x):
        if x.kind == "mfma": return 8 if physical else 4
        if x.nop: return 4 * x.nop
        return 4
    problems = []
    for i, p in enumerate(ins):
        if p.kind == "smem" or (p.kind == "ds") : continue
        if p.kind == "salu" and ("s", "m0") not in p.wr: continue
        if p.kind == "vmem" and not p.wide_store_data: continue
        c0 = cost(p)
        lm = (0, p.passes) if p.kind == "mfma" else None
        stack = [(j, c0, lm) for j in succ(i)]
        seen = {}
        while stack:
            j, t, lm = stack.pop()
            c = ins[j]
            if physical and c.kind == "mfma" and lm is not None:
                t = max(t, lm[0] + 4 * lm[1])
            key = (j, lm[0] if lm else -1)
            if key in seen and seen[key] <= t: continue
            seen[key] = t
            n, why = need(p, c)
            if n:
                have = (t - c0) // 4
                if have < n:
                    problems.append((p, c, n, have, why))
            if t - c0 >= 4 * 21: continue
            nl = (t, c.passes) if c.kind == "mfma" else lm
            for q in succ(j): stack.append((q, t + cost(c), nl))
    if verbose:
        seenp = set()
        for p, c, n, have, why in problems:
            key = (p.no, c.no)
            if key in seenp: continue
            seenp.add(key)
            print(f"HAZARD {why}: need {n} have {have}\n   L{p.no+1}: {p.line}\n   L{c.no+1}: {c.line}")
    return problems

def _parse(text):
    raw = text.split("\n")
    ins = []; labels = {}
    for no, ln in enumerate(raw):
        s = ln.split(";")[0].strip()
        if not s or s.startswith("."): continue
        m = re.match(r"^([\w.$]+):\s*(.*)$", s)
        if m:
            labels[m.group(1)] = len(ins)
            s = m.group(2)
            if not s: continue
        ins.append(Ins(s, no))
    return ins, labels

def check_waits(text, entry_labels=None, max_visits=3, verbose=True):
    ins, labels = _parse(text)
    def succ(i):
        x = ins[i]
        if x.op == "s_endpgm": return []
        if x.op == "s_branch": return [labels[x.target]] if x.target in labels else []
        out = [i + 1] if i + 1 < len(ins) else []
        if x.target is not None and x.target in labels: out.append(labels[x.target])
        return out
    starts = [labels[l] for l in entry_labels] if entry_labels else [0]
    problems = {}
    visits = {}
    seen = set()
    stack = [(s, (), ()) for s in starts]
    while stack:
        i, vm, lg = stack.pop()
        key = (i, vm, lg)
        if key in seen: continue
        seen.add(key)
        visits[i] = visits.get(i, 0) + 1
        if visits[i] > max_visits: continue
        x = ins[i]
        if x.op == "s_waitcnt":
            txt = x.line
            m = re.search(r"vmcnt\((\d+)\)", txt)
            if m:
                n = int(m.group(1))
                if len(vm) > n: vm = vm[len(vm) - n:] if n else ()
            m = re.search(r"lgkmcnt\((\d+)\)", txt)
            if m:
                n = int(m.group(1))
                if n == 0: lg = ()
                elif not any(e[0] == "smem" for e in lg):
                    if len(lg) > n: lg = lg[len(lg) - n:]
        else:
            touched = x.rd | x.wr
            for q, nm in ((vm, "vmcnt"), (lg, "lgkmcnt")):
                for e in q:
                    hit = e[1] & touched
                    if hit:
                        if x.kind == e[0] and not (e[1] & x.rd): continue
                        problems[(e[2], x.no)] = (nm, e[3], x.line, sorted(hit, key=str)[:2])
            if x.kind == "vmem" and x.op not in ("buffer_wbl2",):
                vm = vm + (("vmem", frozenset(x.wr), x.no, x.line),)
                if len(vm) > 63: vm = vm[-63:]
            elif x.kind == "ds":
                lg = lg + (("ds", frozenset(x.wr), x.no, x.line),)
                if len(lg) > 40: lg = lg[-40:]
            elif x.kind == "smem":
                lg = lg + (("smem", frozenset(x.wr), x.no, x.line),)
        for j in succ(i): stack.append((j, vm, lg))
    if verbose:
        for (a, b), (nm, l1, l2, hit) in sorted(problems.items()):
            print(f"WAIT missing ({nm}) regs {hit}\n   L{a+1}: {l1}\n   L{b+1}: {l2}")
    return problems
```

```python
NSEG = 64
WA_OFF   = 0
WB_OFF   = WA_OFF + 16 * 401408
VX_OFF   = WB_OFF + 14 * 458752
XK_OFF   = VX_OFF + 64 * 458752
MEMRING  = XK_OFF + 64 * 28672
PRING    = MEMRING + 4 * 7168
FLAGM    = PRING + 4 * 10240
FLAGP    = FLAGM + 128
CNT      = FLAGP + 512
CNT_BYTES = 4096
MEMOUT   = CNT + CNT_BYTES
XKP_OFF  = MEMOUT + 64 * 7168
XNA_OFF  = XKP_OFF + 64 * 28672
VM_OFF   = XNA_OFF + 64 * 28672
PX_OFF   = VM_OFF + 64 * 229376
G_OFF    = PX_OFF + 64 * 49152
WG_OFF   = G_OFF + 64 * 57344
WD_OFF   = WG_OFF + 112 * 2 * 14 * 1024
PROF     = WD_OFF + 56 * 28 * 1024
WS_END   = PROF + 65536
WS_BYTES = 268435456
CSEG   = CNT
C_VX, C_VM, C_PX, C_G = CSEG, CSEG + 4, CSEG + 8, CSEG + 12
C_RL   = CNT + 1024
REG    = CNT + 2048
FLAGV  = CNT + 3072
if __name__ == "__main__":
    for k_,v in list(globals().items()):
        if k_.isupper(): print(k_, v)
```

```python
from kfw import *
from layout import *
import math

KARG = dict(x=0, mem0=8, Wq=16, Wk=24, Wv=32, Wo=40, seg=48, Bx=56, Wg=64, Wu=72, Wd=80, out=88, dbg=96, ws=104)

def srd(k, s, koff, nbytes):
    k(f"s_load_dwordx2 s[{s}:{s+1}], s[0:1], {koff}")
    k(f"s_mov_b32 s{s+2}, {nbytes}\ns_mov_b32 s{s+3}, 0x20000")

LOG2E_16 = math.log2(math.e) / 16.0
import struct
def fbits(x): return struct.unpack("<I", struct.pack("<f", x))[0]

def emit_prep(k, name="prep_kernel"):
    k(f".globl {name}\n.p2align 8\n.type {name},@function\n{name}:")
    sWS, sA, sB = 8, 12, 16
    k(f"s_cmp_ge_u32 s2, 289\ns_cbranch_scc1 P_exit")
    srd(k, sWS, KARG["ws"], WS_BYTES)
    k("v_lshrrev_b32 v1, 6, v0\ns_nop 0\nv_readfirstlane_b32 s3, v1")
    k("v_and_b32 v1, 63, v0")
    k("s_cmp_ge_u32 s2, 288\ns_cbranch_scc1 P_init")
    k("s_cmp_ge_u32 s2, 224\ns_cbranch_scc1 P_ln")
    WSR = f"s[{sWS}:{sWS+3}]"
    sMat, sH, sT, sTmp, sTmp2 = 20, 21, 22, 23, 24
    sTile = 28
    sCol = 32
    sOut = 40
    k(f"s_cmp_ge_u32 s2, 112\ns_cselect_b32 s{sMat}, 1, 0\ns_mul_i32 s{sTmp}, s{sMat}, 112\ns_sub_u32 s{sTmp}, s2, s{sTmp}")
    k(f"s_mul_i32 s{sH}, s{sTmp}, 9363\ns_lshr_b32 s{sH}, s{sH}, 16")
    k(f"s_mul_i32 s{sT}, s{sH}, 7\ns_sub_u32 s{sT}, s{sTmp}, s{sT}")
    vLane, vN, vG, vA, vB, vT, vL16 = 1, 2, 3, 4, 5, 6, 7
    k(f"v_and_b32 v{vN}, 15, v{vLane}\nv_lshrrev_b32 v{vG}, 4, v{vLane}\nv_lshlrev_b32 v{vL16}, 4, v{vLane}")
    k(f"v_bfe_u32 v{vT}, v{vN}, 3, 1\nv_lshlrev_b32 v{vA}, 4, v{vT}")
    k(f"v_bfe_u32 v{vT}, v{vN}, 1, 1\nv_lshl_add_u32 v{vA}, v{vT}, 3, v{vA}")
    k(f"v_bfe_u32 v{vT}, v{vN}, 2, 1\nv_lshl_add_u32 v{vA}, v{vT}, 2, v{vA}")
    k(f"v_and_b32 v{vT}, 1, v{vN}\nv_add_u32 v{vA}, v{vA}, v{vT}")
    k(f"v_lshlrev_b32 v{vA}, 13, v{vA}\nv_lshl_add_u32 v{vA}, v{vG}, 4, v{vA}")
    for r4 in range(4):
        a, b2 = r4 >> 1, r4 & 1
        k(f"s_lshl_b32 s{sTile+r4}, s{sT}, 6\ns_add_u32 s{sTile+r4}, s{sTile+r4}, {32*a+2*b2}\ns_lshl_b32 s{sTile+r4}, s{sTile+r4}, 13")
        k(f"s_lshl_b32 s{sTmp}, s{sH}, 9\ns_add_u32 s{sTile+r4}, s{sTile+r4}, s{sTmp}")
    AF, BF, STG, ACC = 16, 48, 104, 132
    SA = f"s[{sA}:{sA+3}]"; SB = f"s[{sB}:{sB+3}]"
    def aloads(kk):
        for r4 in range(4):
            k(f"buffer_load_dwordx4 {V(AF+16*(kk&1)+4*r4,4)}, v{vA}, {SA}, s{sTile+r4} offen offset:{kk*64}")
    def mfmas(kk, bbase):
        for tt in range(7):
            for r4 in range(4):
                D = V(ACC + 4 * (4 * tt + r4), 4)
                k(f"v_mfma_f32_16x16x32_bf16 {D}, {V(AF+16*(kk&1)+4*r4,4)}, {V(bbase+4*tt,4)}, {'0' if kk == 0 else D}")
    def epilogue(scale, addr_of_tile):
        k("s_nop 7")
        for tt in range(7):
            base = ACC + 16 * tt
            if scale is not None:
                for i in range(0, 16, 2):
                    k(f"v_pk_mul_f32 {V(base+i,2)}, {V(base+i,2)}, s[44:45]")
            for i in range(8):
                k(f"v_cvt_pk_bf16_f32 v{base+i}, v{base+2*i}, v{base+2*i+1}")
            addr_of_tile(tt)
            for a in range(2):
                k(f"buffer_store_dwordx4 {V(base+4*a,4)}, v{vL16}, {WSR}, s{sOut} offen offset:{a*1024}")
    k(f"s_cmp_eq_u32 s{sMat}, 1\ns_cbranch_scc1 P_wb")
    srd(k, sA, KARG["Wq"], 3670016); srd(k, sB, KARG["Wk"], 3670016)
    k(f"v_lshlrev_b32 v{vB}, 13, v{vN}\nv_lshl_add_u32 v{vB}, v{vG}, 4, v{vB}")
    for tt in range(7):
        k(f"s_mul_i32 s{sTmp}, s3, 7\ns_add_u32 s{sTmp}, s{sTmp}, {tt}\ns_lshl_b32 s{sTmp}, s{sTmp}, 17")
        k(f"s_lshl_b32 s{sTmp2}, s{sH}, 9\ns_add_u32 s{sCol+tt}, s{sTmp}, s{sTmp2}")
    k(f"s_mov_b32 s44, {fbits(LOG2E_16):#x}\ns_mov_b32 s45, {fbits(LOG2E_16):#x}")
    k("s_waitcnt lgkmcnt(0)")
    def bloads(kk):
        for tt in range(7):
            k(f"buffer_load_dwordx4 {V(BF+28*(kk&1)+4*tt,4)}, v{vB}, {SB}, s{sCol+tt} offen offset:{kk*64}")
    aloads(0); bloads(0)
    for kk in range(8):
        if kk < 7:
            aloads(kk + 1); bloads(kk + 1)
            k("s_waitcnt vmcnt(11)")
        else:
            k("s_waitcnt vmcnt(0)")
        mfmas(kk, BF + 28 * (kk & 1))
    def wa_addr(tt):
        k(f"s_mul_i32 s{sOut}, s{sH}, 401408\ns_mul_i32 s{sTmp}, s3, 100352\ns_add_u32 s{sOut}, s{sOut}, s{sTmp}")
        k(f"s_add_u32 s{sTmp}, s{sT}, {7*tt}\ns_lshl_b32 s{sTmp}, s{sTmp}, 11\ns_add_u32 s{sOut}, s{sOut}, s{sTmp}")
        if WA_OFF: k(f"s_add_u32 s{sOut}, s{sOut}, {WA_OFF}")
    epilogue(True, wa_addr)
    k("s_endpgm")
    k.label("P_wb")
    srd(k, sA, KARG["Wv"], 3670016); srd(k, sB, KARG["Wo"], 3670016)
    LS = 928; SLAB = 32 * LS
    vW = 8
    for u in range(7):
        k(f"v_add_u32 v{vT}, {256*u}, v0")
        k(f"v_mul_u32_u24 v{vB}, 2341, v{vT}\nv_lshrrev_b32 v{vB}, 17, v{vB}")
        k(f"v_mul_u32_u24 v{vW+u}, 56, v{vB}\nv_sub_u32 v{vW+u}, v{vT}, v{vW+u}\nv_lshlrev_b32 v{vW+u}, 4, v{vW+u}")
        k(f"v_mul_u32_u24 v{vB}, {LS}, v{vB}\nv_add_u32 v{vW+u}, v{vW+u}, v{vB}")
    vR = 5
    k(f"v_bfe_u32 v{vT}, v{vLane}, 2, 2\nv_lshl_add_u32 v{vT}, v{vG}, 3, v{vT}\nv_mul_u32_u24 v{vR}, {LS}, v{vT}")
    k(f"v_and_b32 v{vT}, 3, v{vLane}\nv_lshl_add_u32 v{vR}, v{vT}, 3, v{vR}")
    k(f"s_mul_i32 s{sTmp}, s3, 224\nv_add_u32 v{vR}, s{sTmp}, v{vR}")
    vG16 = 15
    k(f"v_lshlrev_b32 v{vG16}, 4, v0")
    k(f"s_mul_i32 s{sTmp2}, s{sH}, 229376")
    k("s_waitcnt lgkmcnt(0)")
    def slab_load(kk):
        k(f"s_add_u32 s{sTmp}, s{sTmp2}, {kk*28672}")
        for u in range(7):
            if u == 1: pass
            k(f"buffer_load_dwordx4 {V(STG-28+4*u+28,4)}, v{vG16}, {SB}, s{sTmp} offen")
            if u < 6: k(f"s_add_u32 s{sTmp}, s{sTmp}, 4096")
    def slab_store(kk):
        for u in range(7):
            k(f"ds_write_b128 v{vW+u}, {V(STG+4*u,4)} offset:{(kk&1)*SLAB}")
    BFW = BF
    slab_load(0); aloads(0)
    k("s_waitcnt vmcnt(4)")
    slab_store(0)
    k("s_waitcnt lgkmcnt(0)\ns_barrier")
    for kk in range(8):
        if kk < 7:
            slab_load(kk + 1); aloads(kk + 1)
        for tt in range(7):
            for u in range(2):
                k(f"ds_read_b64_tr_b16 {V(BFW+4*tt+2*u,2)}, v{vR} offset:{(kk&1)*SLAB + u*4*LS + tt*32}")
        k(f"s_waitcnt vmcnt({11 if kk < 7 else 0}) lgkmcnt(0)")
        mfmas(kk, BFW)
        if kk < 7:
            k("s_waitcnt vmcnt(4)")
            slab_store(kk + 1)
            k("s_waitcnt lgkmcnt(0)\ns_barrier")
    def wb_addr(tt):
        k(f"s_mul_i32 s{sTmp}, s3, 7\ns_add_u32 s{sTmp}, s{sTmp}, {tt}")
        k(f"s_lshr_b32 s{sOut}, s{sTmp}, 1\ns_mul_i32 s{sOut}, s{sOut}, 458752")
        k(f"s_and_b32 s{sTmp}, s{sTmp}, 1\ns_and_b32 s{sTmp2}, s{sH}, 3\ns_lshl_b32 s{sTmp2}, s{sTmp2}, 1\ns_add_u32 s{sTmp}, s{sTmp}, s{sTmp2}")
        k(f"s_mul_i32 s{sTmp}, s{sTmp}, 7\ns_add_u32 s{sTmp}, s{sTmp}, s{sT}\ns_lshl_b32 s{sTmp}, s{sTmp}, 11\ns_add_u32 s{sOut}, s{sOut}, s{sTmp}")
        k(f"s_lshr_b32 s{sTmp}, s{sH}, 2\ns_mul_i32 s{sTmp}, s{sTmp}, 114688\ns_add_u32 s{sOut}, s{sOut}, s{sTmp}\ns_add_u32 s{sOut}, s{sOut}, {WB_OFF}")
    epilogue(None, wb_addr)
    k("s_endpgm")
    k.label("P_ln")
    srd(k, sA, KARG["x"], 1835008)
    sSeg = 20
    k(f"s_sub_u32 s{sSeg}, s2, 224")
    RS = 912
    vRow, vPart, vAd, vM, vT2 = 2, 3, 4, 6, 8
    X, F = 16, 48
    k(f"v_lshrrev_b32 v{vRow}, 3, v1\ns_lshl_b32 s21, s3, 3\nv_add_u32 v{vRow}, s21, v{vRow}\nv_and_b32 v{vPart}, 7, v1")
    k(f"v_mul_u32_u24 v{vAd}, 896, v{vRow}\nv_lshl_add_u32 v{vAd}, v{vPart}, 4, v{vAd}")
    k(f"s_mul_i32 s21, s{sSeg}, 28672")
    k("s_waitcnt lgkmcnt(0)")
    for u in range(7):
        k(f"buffer_load_dwordx4 {V(X+4*u,4)}, v{vAd}, s[{sA}:{sA+3}], s21 offen offset:{u*128}")
    k("s_waitcnt vmcnt(0)")
    for j in range(28):
        k(f"v_lshlrev_b32 v{F+2*j}, 16, v{X+j}\nv_and_b32 v{F+2*j+1}, 0xffff0000, v{X+j}")
    def red8(r):
        for m in ("quad_perm:[1,0,3,2]", "quad_perm:[2,3,0,1]", "row_half_mirror"):
            k(f"s_nop 1\nv_add_f32_dpp v{r}, v{r}, v{r} {m} row_mask:0xf bank_mask:0xf")
    k(f"v_pk_add_f32 {V(vM,2)}, {V(F,2)}, {V(F+2,2)}")
    for j in range(2, 28): k(f"v_pk_add_f32 {V(vM,2)}, {V(vM,2)}, {V(F+2*j,2)}")
    k(f"v_add_f32 v{vM}, v{vM}, v{vM+1}")
    red8(vM)
    k(f"v_mul_f32 v{vM}, {fbits(1/448.):#x}, v{vM}\nv_mov_b32 v{vM+1}, v{vM}")
    for j in range(28): k(f"v_pk_add_f32 {V(F+2*j,2)}, {V(F+2*j,2)}, {V(vM,2)} neg_lo:[0,1] neg_hi:[0,1]")
    k(f"v_pk_mul_f32 {V(vT2,2)}, {V(F,2)}, {V(F,2)}")
    for j in range(1, 28): k(f"v_pk_fma_f32 {V(vT2,2)}, {V(F+2*j,2)}, {V(F+2*j,2)}, {V(vT2,2)}")
    k(f"v_add_f32 v{vT2}, v{vT2}, v{vT2+1}")
    red8(vT2)
    k(f"v_mov_b32 v{vT2+1}, {fbits(1e-5):#x}\nv_mov_b32 v{vT2+2}, {fbits(1/448.):#x}")
    k(f"v_fma_f32 v{vT2}, v{vT2}, v{vT2+2}, v{vT2+1}")
    k(f"v_rsq_f32 v{vT2}, v{vT2}\ns_nop 0\nv_mov_b32 v{vT2+1}, v{vT2}")
    for j in range(28):
        k(f"v_pk_mul_f32 {V(F+2*j,2)}, {V(F+2*j,2)}, {V(vT2,2)}")
        k(f"v_cvt_pk_bf16_f32 v{X+j}, v{F+2*j}, v{F+2*j+1}")
    k(f"v_mul_u32_u24 v{vAd}, {RS}, v{vRow}\nv_lshl_add_u32 v{vAd}, v{vPart}, 4, v{vAd}")
    for u in range(7): k(f"ds_write_b128 v{vAd}, {V(X+4*u,4)} offset:{u*128}")
    k("s_waitcnt lgkmcnt(0)\ns_barrier")
    vm, vg, vKey, vL16, vL8, vR0 = 2, 3, 4, 5, 12, 13
    k(f"v_and_b32 v{vm}, 15, v1\nv_lshrrev_b32 v{vg}, 4, v1\nv_lshlrev_b32 v{vL16}, 4, v1\nv_lshlrev_b32 v{vL8}, 3, v1")
    k(f"v_bfe_u32 v{vT2}, v{vm}, 3, 1\nv_lshlrev_b32 v{vKey}, 4, v{vT2}")
    k(f"v_bfe_u32 v{vT2}, v{vm}, 1, 1\nv_lshl_add_u32 v{vKey}, v{vT2}, 3, v{vKey}")
    k(f"v_bfe_u32 v{vT2}, v{vm}, 2, 1\nv_lshl_add_u32 v{vKey}, v{vT2}, 2, v{vKey}")
    k(f"v_and_b32 v{vT2}, 1, v{vm}\nv_add_u32 v{vKey}, v{vKey}, v{vT2}")
    k(f"s_lshr_b32 s21, s3, 1\ns_lshl_b32 s22, s21, 1\nv_add_u32 v{vR0}, s22, v{vKey}\nv_mul_u32_u24 v{vR0}, {RS}, v{vR0}")
    k(f"v_lshrrev_b32 v{vT2}, 1, v{vg}\nv_lshl_add_u32 v{vR0}, v{vT2}, 5, v{vR0}")
    k(f"v_and_b32 v{vT2}, 1, v{vg}\nv_lshl_add_u32 v{vR0}, v{vT2}, 3, v{vR0}")
    k(f"s_and_b32 s22, s3, 1\ns_mul_i32 s22, s22, 448\nv_add_u32 v{vR0}, s22, v{vR0}")
    for u in range(7):
        k(f"ds_read2_b32 {V(X+4*u,2)}, v{vR0} offset0:{16*u} offset1:{16*u+4}")
        k(f"ds_read2_b32 {V(X+4*u+2,2)}, v{vR0} offset0:{16*u+1} offset1:{16*u+5}")
    k(f"s_mul_i32 s22, s{sSeg}, 28672\ns_mul_i32 s23, s3, 7168\ns_add_u32 s22, s22, s23")
    k(f"s_add_u32 s24, s22, {XNA_OFF}")
    k("s_waitcnt lgkmcnt(0)")
    for u in range(7):
        if u == 4: k("s_add_u32 s24, s24, 4096")
        k(f"buffer_store_dwordx4 {V(X+4*u,4)}, v{vL16}, {WSR}, s24 offen offset:{(u*1024)%4096}")
    for perm, off in ((0, XK_OFF), (1, XKP_OFF)):
        Y = F if perm == 0 else F + 28
        for kap in range(2):
            if perm == 0: k(f"v_add_u32 v{vR0}, {16*kap}, v{vm}")
            else: k(f"v_add_u32 v{vR0}, {2*kap}, v{vKey}")
            k(f"v_mul_u32_u24 v{vR0}, {RS}, v{vR0}\nv_lshl_add_u32 v{vR0}, v{vg}, 3, v{vR0}")
            k(f"s_mul_i32 s23, s3, 224\nv_add_u32 v{vR0}, s23, v{vR0}")
            for p in range(3):
                k(f"ds_read2_b64 {V(Y+14*kap+4*p,4)}, v{vR0} offset0:{8*p} offset1:{8*p+4}")
            k(f"ds_read_b64 {V(Y+14*kap+12,2)}, v{vR0} offset:192")
        k("s_waitcnt lgkmcnt(0)")
        k(f"s_add_u32 s24, s22, {off}\ns_add_u32 s25, s24, 4096")
        for kap in range(2):
            for p in range(3):
                o = kap * 3584 + p * 1024
                k(f"buffer_store_dwordx4 {V(Y+14*kap+4*p,4)}, v{vL16}, {WSR}, s{24 if o < 4096 else 25} offen offset:{o%4096}")
            o = kap * 3584 + 3072
            k(f"buffer_store_dwordx2 {V(Y+14*kap+12,2)}, v{vL8}, {WSR}, s{24 if o < 4096 else 25} offen offset:{o%4096}")
    sk = k.uid("P_nos")
    k(f"s_cmp_eq_u32 s{sSeg}, 0\ns_cbranch_scc1 {sk}")
    for i in range(4): k(f"v_mov_b32 v{X+i}, -1")
    k(f"s_mul_i32 s24, s{sSeg}, 7168\ns_add_u32 s24, s24, {MEMOUT}\nv_lshlrev_b32 v{vR0}, 4, v0")
    k(f"buffer_store_dwordx4 {V(X,4)}, v{vR0}, {WSR}, s24 offen")
    k(f"v_cmp_gt_u32 vcc, 192, v0\ns_and_saveexec_b64 s[26:27], vcc")
    k(f"s_add_u32 s24, s24, 4096\nbuffer_store_dwordx4 {V(X,4)}, v{vR0}, {WSR}, s24 offen")
    k("s_mov_b64 exec, s[26:27]")
    k.label(sk)
    k("s_endpgm")
    k.label("P_init")
    srd(k, sA, KARG["mem0"], 7168)
    k("s_waitcnt lgkmcnt(0)")
    k("v_lshlrev_b32 v2, 4, v0")
    for i in range(4): k(f"v_mov_b32 v{8+i}, -1\nv_mov_b32 v{12+i}, 0")
    tot = 3 * 7168 + 4 * 10240
    for o in range(0, tot, 4096):
        n = min(4096, tot - o)
        k(f"s_mov_b32 s20, {MEMRING + 7168 + o}")
        if n < 4096:
            k(f"v_cmp_gt_u32 vcc, {n//16}, v0\ns_and_saveexec_b64 s[22:23], vcc")
        k(f"buffer_store_dwordx4 v[8:11], v2, {WSR}, s20 offen")
        if n < 4096: k("s_mov_b64 exec, s[22:23]")
    tot = 128 + 512 + CNT_BYTES
    for o in range(0, tot, 4096):
        n = min(4096, tot - o)
        k(f"s_mov_b32 s20, {FLAGM + o}")
        if n < 4096:
            k(f"v_cmp_gt_u32 vcc, {n//16}, v0\ns_and_saveexec_b64 s[22:23], vcc")
        k(f"buffer_store_dwordx4 v[12:15], v2, {WSR}, s20 offen")
        if n < 4096: k("s_mov_b64 exec, s[22:23]")
    k("s_waitcnt lgkmcnt(0)")
    for u in range(2):
        k(f"v_add_u32 v3, {256*u}, v0")
        k("v_and_b32 v4, 7, v3\nv_mul_u32_u24 v4, 896, v4")
        k("v_lshrrev_b32 v5, 6, v3\nv_lshl_add_u32 v4, v5, 7, v4")
        k("v_bfe_u32 v5, v3, 4, 2\nv_lshl_add_u32 v4, v5, 5, v4")
        k("v_bfe_u32 v5, v3, 3, 1\nv_lshl_add_u32 v4, v5, 4, v4")
        k("v_lshlrev_b32 v5, 4, v3")
        if u == 1: k("v_cmp_gt_u32 vcc, 448, v3\ns_and_saveexec_b64 s[22:23], vcc")
        k(f"buffer_load_dwordx4 v[16:19], v4, s[{sA}:{sA+3}], 0 offen\ns_waitcnt vmcnt(0)")
        k(f"s_mov_b32 s20, {MEMRING}\nbuffer_store_dwordx4 v[16:19], v5, {WSR}, s20 offen")
        k(f"s_mov_b32 s20, {MEMOUT}\nbuffer_store_dwordx4 v[16:19], v5, {WSR}, s20 offen")
        if u == 1: k("s_mov_b64 exec, s[22:23]")
        k("s_nop 1")
    k.label("P_exit")
    k("s_endpgm")

def kd(name, vgpr, accum, sgpr=96):
    return f""".p2align 6
.amdhsa_kernel {name}
  .amdhsa_next_free_vgpr {vgpr}
  .amdhsa_next_free_sgpr {sgpr}
  .amdhsa_accum_offset {accum}
  .amdhsa_group_segment_fixed_size 0
  .amdhsa_kernarg_size 112
  .amdhsa_user_sgpr_count 2
  .amdhsa_user_sgpr_kernarg_segment_ptr 1
  .amdhsa_system_sgpr_workgroup_id_x 1
.end_amdhsa_kernel"""

if __name__ == "__main__":
    import kfw
    k = K()
    k('.amdgcn_target "amdgcn-amd-amdhsa--gfx950"\n.text')
    emit_prep(k)
    k('.section .rodata,"a"')
    k(kd("prep_kernel", 256, 256))
    t = k.text()
    open("prep_test.s", "w").write(t)
    print("hazards", len(kfw.check(t)), "waits", len(kfw.check_waits(t)))
```

```python
from kfw import *
from layout import *
from chain import Q, sWS, sRANK, sWAVE, sT0, sT1, sSPIN, SPIN
from prepk import srd, KARG, fbits

WSR = f"s[{sWS}:{sWS+3}]"

def wait_counter(k, off_sgpr, target, vtmp, vzero, abort, sleep=2):
    top = k.uid("WC"); done = k.uid("WCD")
    k.label(top)
    k(f"buffer_load_dword v{vtmp}, v{vzero}, {WSR}, s{off_sgpr} offen sc1\ns_waitcnt vmcnt(0)")
    k(f"v_cmp_gt_u32 vcc, {target}, v{vtmp}" if isinstance(target, int) else f"v_cmp_gt_u32 vcc, {target}, v{vtmp}")
    k(f"s_cbranch_vccz {done}")
    k(f"s_sleep {sleep}\ns_sub_u32 s{sSPIN}, s{sSPIN}, 1\ns_cbranch_scc0 {top}\ns_branch {abort}")
    k.label(done)

def signal(k, off_sgpr, vone, vzero):
    k(f"s_mov_b64 exec, 1\nbuffer_atomic_add v{vone}, v{vzero}, {WSR}, s{off_sgpr} offen sc1\ns_mov_b64 exec, -1")

def dma(k, vaddr, soff, ldsoff_m0, imm=0):
    k(f"s_mov_b32 m0, {ldsoff_m0}\ns_nop 0\nbuffer_load_dwordx4 v{vaddr}, {WSR}, s{soff} offen offset:{imm} lds")

def emit_vxgen(k, cfg, abort):
    NPAR = cfg.get("vx_par", 2)
    sJ, sWp, sPar, sSeg, sSrc, sDst, sCnt, sBuf, sM = 20, 21, 22, 23, 24, 25, 26, 27, 28
    vL16, vZ, vOne, vT, vRd = 1, 2, 3, 4, 5
    XF, ACC = 8, 32
    k("v_and_b32 v0, 63, v0")
    k(f"v_lshlrev_b32 v{vL16}, 4, v0\nv_mov_b32 v{vZ}, 0\nv_mov_b32 v{vOne}, 1")
    k(f"s_mul_i32 s{sPar}, s{sRANK}, 2341\ns_lshr_b32 s{sPar}, s{sPar}, 16")
    k(f"s_mul_i32 s{sT0}, s{sPar}, 28\ns_sub_u32 s{sT0}, s{sRANK}, s{sT0}")
    k(f"s_lshr_b32 s{sJ}, s{sT0}, 1\ns_and_b32 s{sWp}, s{sT0}, 1")
    sW, sKs = 29, 30
    k(f"s_lshr_b32 s{sW}, s{sWAVE}, 1\ns_lshl_b32 s{sT0}, s{sWp}, 1\ns_add_u32 s{sW}, s{sW}, s{sT0}\ns_and_b32 s{sKs}, s{sWAVE}, 1")
    k(f"s_mul_i32 s{sSrc}, s{sJ}, 458752\ns_mul_i32 s{sT0}, s{sW}, 114688\ns_add_u32 s{sSrc}, s{sSrc}, s{sT0}")
    k(f"s_mul_i32 s{sT0}, s{sKs}, {4*14336}\ns_add_u32 s{sSrc}, s{sSrc}, s{sT0}\ns_add_u32 s{sSrc}, s{sSrc}, {WB_OFF}")
    def Wreg(c, a, kk): return ((a * 2 + c) * 14 + kk) * 4
    for a in range(2):
        for c in range(2):
            for kk in range(14):
                off = ((2 * a + c) * 14 + kk) * 1024
                if off and off % 4096 == 0: k(f"s_add_u32 s{sSrc}, s{sSrc}, 4096")
                k(f"buffer_load_dwordx4 {A(Wreg(c,a,kk),4)}, v{vL16}, {WSR}, s{sSrc} offen offset:{off%4096}")
    k(f"s_mul_i32 s{sDst}, s{sJ}, 32768\ns_lshl_b32 s{sT0}, s{sW}, 13\ns_add_u32 s{sDst}, s{sDst}, s{sT0}")
    k(f"s_lshl_b32 s{sT0}, s{sKs}, 12\ns_add_u32 s{sDst}, s{sDst}, s{sT0}\ns_add_u32 s{sDst}, s{sDst}, {VX_OFF}")
    k(f"s_mul_i32 s{sT0}, s{sPar}, 458752\ns_add_u32 s{sDst}, s{sDst}, s{sT0}")
    k(f"s_mov_b32 s{sSeg}, s{sPar}")
    k(f"s_lshl_b32 s{sCnt}, s{sPar}, 4\ns_add_u32 s{sCnt}, s{sCnt}, {C_VX}")
    k(f"s_mul_i32 s{sSrc}, s{sPar}, 28672\ns_mul_i32 s{sT0}, s{sWAVE}, 7168\ns_add_u32 s{sSrc}, s{sSrc}, s{sT0}\ns_add_u32 s{sSrc}, s{sSrc}, {XNA_OFF}")
    k(f"s_mul_i32 s{sM}, s{sWAVE}, 7168")
    k(f"s_mov_b32 s{sBuf}, 0")
    def issue_dma(bufreg):
        k(f"s_add_u32 s{sT1}, s{sM}, s{bufreg}")
        for u in range(7):
            k(f"s_add_u32 m0, s{sT1}, {u*1024}")
            if u == 4: k(f"s_add_u32 s{sT0}, s{sSrc}, 4096")
            else: k("s_nop 0")
            k(f"buffer_load_dwordx4 v{vL16}, {WSR}, s{sSrc if u < 4 else sT0} offen offset:{(u*1024)%4096} lds")
    def issue_dma(bufreg):
        k(f"s_add_u32 s{sT1}, s{sM}, s{bufreg}")
        k(f"s_mov_b32 m0, s{sT1}\ns_nop 0")
        for u in range(4):
            k(f"buffer_load_dwordx4 v{vL16}, {WSR}, s{sSrc} offen offset:{u*1024} lds")
        k(f"s_add_u32 m0, s{sT1}, 4096\ns_add_u32 s{sT0}, s{sSrc}, 4096")
        for u in range(3):
            k(f"buffer_load_dwordx4 v{vL16}, {WSR}, s{sT0} offen offset:{u*1024} lds")
    issue_dma(sBuf)
    loop = k.uid("VX_loop"); last = k.uid("VX_nopf")
    k.label(loop)
    k("s_waitcnt vmcnt(0)\ns_barrier")
    k(f"v_add_u32 v{vRd}, s{sBuf}, v{vL16}")
    k(f"s_xor_b32 s{sBuf}, s{sBuf}, 28672")
    k(f"s_add_u32 s{sSrc}, s{sSrc}, {28672*NPAR}")
    k(f"s_add_u32 s{sT0}, s{sSeg}, {NPAR}\ns_cmp_ge_u32 s{sT0}, 64\ns_cbranch_scc1 {last}")
    issue_dma(sBuf)
    k.label(last)
    q = Q(k)
    def rd(kk):
        for rho in range(2):
            q.ds(f"ds_read_b128 {V(XF+8*(kk&1)+4*rho,4)}, v{vRd} offset:{(rho*14+kk)*1024}", f"x{kk}_{rho}")
    rd(0)
    for kk in range(14):
        if kk < 13: rd(kk + 1)
        q.wait_lg(f"x{kk}_1")
        for a in range(2):
            for c in range(2):
                for rho in range(2):
                    D = V(ACC + ((c * 2 + a) * 2 + rho) * 4, 4)
                    k(f"v_mfma_f32_16x16x32_bf16 {D}, {V(XF+8*(kk&1)+4*rho,4)}, {A(Wreg(c,a,kk),4)}, {'0' if kk == 0 else D}")
    k("s_nop 7")
    for c in range(2):
        for a in range(2):
            b = ACC + (c * 2 + a) * 8
            for i in range(4): k(f"v_cvt_pk_bf16_f32 v{b+i}, v{b+2*i}, v{b+2*i+1}")
            k(f"buffer_store_dwordx4 {V(b,4)}, v{vL16}, {WSR}, s{sDst} offen offset:{(c*2+a)*1024} sc1")
    k("s_waitcnt vmcnt(0)\ns_barrier")
    sk = k.uid("VX_ns")
    k(f"s_cmp_lg_u32 s{sWAVE}, 0\ns_cbranch_scc1 {sk}")
    signal(k, sCnt, vOne, vZ)
    k.label(sk)
    k(f"s_add_u32 s{sDst}, s{sDst}, {458752*NPAR}\ns_add_u32 s{sCnt}, s{sCnt}, {16*NPAR}\ns_add_u32 s{sSeg}, s{sSeg}, {NPAR}")
    k(f"s_cmp_lt_u32 s{sSeg}, 64\ns_cbranch_scc1 {loop}")
    if cfg.get("vm", True): emit_vm_phase(k, cfg, abort, locals())
    k("s_waitcnt vmcnt(0)")
    k("s_endpgm")

def emit_vm_phase(k, cfg, abort, L):
    NPAR = L["NPAR"]; Wreg = L["Wreg"]
    sJ, sPar, sSeg, sSrc, sDst, sCnt, sW, sKs = L["sJ"], L["sPar"], L["sSeg"], L["sSrc"], L["sDst"], L["sCnt"], L["sW"], L["sKs"]
    vL16, vZ, vOne, vT = L["vL16"], L["vZ"], L["vOne"], L["vT"]
    vPA, vPB, vRd, vX = 5, 6, 7, 64
    MF, ACC, TA = 72, 32, 8
    k("; ---- V_m phase")
    k(f"s_mul_i32 s{sT0}, s{sWAVE}, 1792\nv_add_u32 v{vPA}, s{sT0}, v{vL16}")
    k(f"v_min_u32 v{vT}, 47, v0\nv_lshlrev_b32 v{vT}, 4, v{vT}\ns_add_u32 s{sT0}, s{sT0}, 1024\nv_add_u32 v{vPB}, s{sT0}, v{vT}")
    k(f"v_lshrrev_b32 v{vT}, 5, v0\nv_lshlrev_b32 v{vRd}, 8, v{vT}")
    k(f"v_and_b32 v{vT}, 7, v0\nv_lshl_add_u32 v{vRd}, v{vT}, 4, v{vRd}")
    k(f"v_bfe_u32 v{vT}, v0, 4, 1\nv_lshl_add_u32 v{vRd}, v{vT}, 3, v{vRd}")
    k(f"s_mov_b32 s{sSeg}, s{sPar}")
    k(f"s_mul_i32 s{sSrc}, s{sPar}, 7168\ns_add_u32 s{sSrc}, s{sSrc}, {MEMOUT}")
    k(f"s_mul_i32 s{sDst}, s{sJ}, 16384\ns_lshl_b32 s{sT0}, s{sW}, 12\ns_add_u32 s{sDst}, s{sDst}, s{sT0}")
    k(f"s_lshl_b32 s{sT0}, s{sKs}, 11\ns_add_u32 s{sDst}, s{sDst}, s{sT0}\ns_add_u32 s{sDst}, s{sDst}, {VM_OFF}")
    k(f"s_mul_i32 s{sT0}, s{sPar}, 229376\ns_add_u32 s{sDst}, s{sDst}, s{sT0}")
    k(f"s_lshl_b32 s{sCnt}, s{sPar}, 4\ns_add_u32 s{sCnt}, s{sCnt}, {C_VM}")
    loop = k.uid("VM_loop"); top = k.uid("VM_poll"); ok_ = k.uid("VM_ok")
    k.label(loop)
    k.label(top)
    k(f"buffer_load_dwordx4 {V(TA,4)}, v{vPA}, {WSR}, s{sSrc} offen sc1")
    k(f"buffer_load_dwordx4 {V(TA+4,4)}, v{vPB}, {WSR}, s{sSrc} offen sc1")
    k("s_waitcnt vmcnt(0)")
    k(f"v_max3_u32 v{vX}, v{TA}, v{TA+1}, v{TA+2}\nv_max3_u32 v{vX}, v{vX}, v{TA+3}, v{TA+4}")
    k(f"v_max3_u32 v{vX}, v{vX}, v{TA+5}, v{TA+6}\nv_max_u32 v{vX}, v{vX}, v{TA+7}")
    k(f"v_cmp_eq_u32 vcc, -1, v{vX}\ns_cbranch_vccz {ok_}")
    k(f"s_sleep 4\ns_sub_u32 s{sSPIN}, s{sSPIN}, 1\ns_cbranch_scc0 {top}\ns_branch {abort}")
    k.label(ok_)
    k(f"ds_write_b128 v{vPA}, {V(TA,4)}\nds_write_b128 v{vPB}, {V(TA+4,4)}")
    k("s_waitcnt lgkmcnt(0)\ns_barrier")
    for t in range(7):
        if t: k(f"v_add_u32 v{vX}, {t*1024}, v{vRd}")
        ad = vRd if t == 0 else vX
        for a in range(2):
            k(f"ds_read2_b64 {V(MF+4*(2*t+a),4)}, v{ad} offset0:{a*64} offset1:{a*64+16}")
    k(f"s_add_u32 s{sSrc}, s{sSrc}, {7168*NPAR}")
    k("s_waitcnt lgkmcnt(0)")
    for kk in range(14): k(f"v_swap_b32 v{MF+4*kk+1}, v{MF+4*kk+2}")
    k("s_nop 1")
    for kk in range(14):
        for c in range(2):
            for a in range(2):
                D = V(ACC + (c * 2 + a) * 4, 4)
                k(f"v_mfma_f32_16x16x32_bf16 {D}, {V(MF+4*kk,4)}, {A(Wreg(c,a,kk),4)}, {'0' if kk == 0 else D}")
    k("s_nop 7")
    for c in range(2):
        b = ACC + c * 8
        for i in range(4): k(f"v_cvt_pk_bf16_f32 v{b+i}, v{b+2*i}, v{b+2*i+1}")
        k(f"buffer_store_dwordx4 {V(b,4)}, v{vL16}, {WSR}, s{sDst} offen offset:{c*1024} sc1")
    k("s_waitcnt vmcnt(0)\ns_barrier")
    sk = k.uid("VM_ns")
    k(f"s_cmp_lg_u32 s{sWAVE}, 0\ns_cbranch_scc1 {sk}")
    signal(k, sCnt, vOne, vZ)
    k.label(sk)
    k(f"s_add_u32 s{sDst}, s{sDst}, {229376*NPAR}\ns_add_u32 s{sCnt}, s{sCnt}, {16*NPAR}\ns_add_u32 s{sSeg}, s{sSeg}, {NPAR}")
    k(f"s_cmp_lt_u32 s{sSeg}, 64\ns_cbranch_scc1 {loop}")

def test_kernel(role_emit, name, cfg, nroles):
    k = K()
    k(f'.amdgcn_target "amdgcn-amd-amdhsa--gfx950"\n.text\n.globl {name}\n.p2align 8\n.type {name},@function\n{name}:')
    k(f"s_cmp_ge_u32 s2, {nroles}\ns_cbranch_scc1 L_exit")
    srd(k, sWS, KARG["ws"], WS_BYTES)
    k(f"s_mov_b32 s{sRANK}, s2\ns_mov_b32 s{sSPIN}, {SPIN}")
    k(f"v_lshrrev_b32 v3, 6, v0\ns_nop 0\nv_readfirstlane_b32 s{sWAVE}, v3")
    k("s_waitcnt lgkmcnt(0)")
    role_emit(k, cfg, "L_abort")
    for t in cfg.get("outofline", []): k(t)
    k.label("L_abort")
    k("s_load_dwordx2 s[4:5], s[0:1], 96\ns_waitcnt lgkmcnt(0)\nv_mov_b32 v1, 0\nv_mov_b32 v2, 1\nglobal_atomic_add v1, v2, s[4:5] offset:4\ns_waitcnt vmcnt(0)")
    k.label("L_exit")
    k("s_endpgm")
    from prepk import kd
    k('.section .rodata,"a"')
    k(kd(name, 512, 256))
    return k.text()

if __name__ == "__main__":
    import sys, kfw
    t = test_kernel(emit_vxgen, "vx_kernel", {}, 56)
    open("vx_test.s", "w").write(t)
    print("hazards", len(kfw.check(t)), "waits", len(kfw.check_waits(t)))

def blockregA(b):
    return Reg("a", 8 * b) if b < 28 else Reg("v", 88 + 8 * (b - 28))

def emit_xattn(k, cfg, abort):
    NPAR = cfg.get("xa_par", 2)
    sH, sPar, sSeg, sSrc, sBuf, sM, sKey, sMem, sPx, sCnt = 20, 21, 22, 23, 24, 25, 26, 27, 28, 29
    sMask = 32
    sLo = 48
    vL16, vL8, vZ, vOne, vRd, vMK, vSW, vSR, vX, vT, vNeg = 1, 2, 3, 4, 5, 6, 7, 8, 9, 10, 11
    XF, QT1, ACC, EX = 12, 28, 44, 76
    SACC = 56
    XK = 224
    SP_L = 57344
    k("v_and_b32 v0, 63, v0")
    k(f"v_lshlrev_b32 v{vL16}, 4, v0\nv_lshlrev_b32 v{vL8}, 3, v0\nv_mov_b32 v{vZ}, 0\nv_mov_b32 v{vOne}, 1\nv_mov_b32 v{vNeg}, 0xff800000")
    k(f"s_and_b32 s{sH}, s{sRANK}, 15\ns_lshr_b32 s{sPar}, s{sRANK}, 4")
    N_, G_ = XF, XF + 1
    k(f"v_and_b32 v{N_}, 15, v0\nv_lshrrev_b32 v{G_}, 4, v0")
    k(f"s_mul_i32 s{sT0}, s{sWAVE}, 1792")
    k(f"v_lshrrev_b32 v{vT}, 1, v{G_}\nv_lshlrev_b32 v{vMK}, 7, v{vT}")
    k(f"v_and_b32 v{vT}, 7, v0\nv_lshl_add_u32 v{vMK}, v{vT}, 4, v{vMK}")
    k(f"v_and_b32 v{vT}, 1, v{G_}\nv_lshl_add_u32 v{vMK}, v{vT}, 3, v{vMK}\nv_add_u32 v{vMK}, s{sT0}, v{vMK}")
    k(f"s_mul_i32 s{sT0}, s{sWAVE}, 6144\ns_add_u32 s{sT0}, s{sT0}, {SP_L}\nv_add_u32 v{vSW}, s{sT0}, v{vL16}")
    k(f"s_and_b32 s{sT0}, s{sWAVE}, 1\ns_lshl_b32 s{sT0}, s{sT0}, 10\ns_add_u32 s{sT0}, s{sT0}, {SP_L}\nv_add_u32 v{vSR}, s{sT0}, v{vL16}")
    k(f"v_bfe_u32 v{vT}, v{N_}, 3, 1\nv_lshlrev_b32 v{vX}, 4, v{vT}")
    k(f"v_bfe_u32 v{vT}, v{N_}, 1, 1\nv_lshl_add_u32 v{vX}, v{vT}, 3, v{vX}")
    k(f"v_bfe_u32 v{vT}, v{N_}, 2, 1\nv_lshl_add_u32 v{vX}, v{vT}, 2, v{vX}")
    k(f"v_and_b32 v{vT}, 1, v{N_}\nv_add_u32 v{vX}, v{vX}, v{vT}")
    k(f"s_and_b32 s{sT0}, s{sWAVE}, 1\ns_lshl_b32 s{sT0}, s{sT0}, 1\nv_add_u32 v{vX}, s{sT0}, v{vX}")
    k(f"v_lshrrev_b32 v{vT}, 1, v{G_}\nv_lshlrev_b32 v{vT}, 4, v{vT}\nv_sub_u32 v{vX}, v{vX}, v{vT}")
    k(f"v_and_b32 v{vT}, 1, v{G_}\nv_lshlrev_b32 v{vT}, 2, v{vT}\nv_sub_u32 v{vX}, v{vX}, v{vT}")
    for kap in range(2):
        for r in range(4):
            c = 8 * (r >> 1) + 2 * kap + (r & 1)
            m = sMask + 2 * (4 * kap + r)
            k(f"v_cmp_le_i32 s[{m}:{m+1}], {c}, v{vX}")
    k(f"v_cmp_gt_u32 s[{sLo}:{sLo+1}], 2, v{G_}")
    k(f"s_mul_i32 s{sT0}, s{sH}, 401408\ns_mul_i32 s{sT1}, s{sWAVE}, 100352\ns_add_u32 s{sT0}, s{sT0}, s{sT1}")
    if WA_OFF: k(f"s_add_u32 s{sT0}, s{sT0}, {WA_OFF}")
    for b in range(49):
        R = blockregA(b)
        for a in range(2):
            off = (b * 2 + a) * 1024
            if off and off % 4096 == 0: k(f"s_add_u32 s{sT0}, s{sT0}, 4096")
            k(f"buffer_load_dwordx4 {R.r(4*a,4)}, v{vL16}, {WSR}, s{sT0} offen offset:{off%4096}")
    def Wf(tt, kk):
        return blockregA(7 * tt + (kk >> 1)).r(4 * (kk & 1), 4)
    k(f"s_mov_b32 s{sSeg}, s{sPar}")
    k(f"s_mul_i32 s{sSrc}, s{sPar}, 28672\ns_mul_i32 s{sT0}, s{sWAVE}, 7168\ns_add_u32 s{sSrc}, s{sSrc}, s{sT0}")
    k(f"s_add_u32 s{sKey}, s{sSrc}, {XKP_OFF}\ns_add_u32 s{sSrc}, s{sSrc}, {XNA_OFF}")
    k(f"s_mul_i32 s{sMem}, s{sPar}, 7168\ns_add_u32 s{sMem}, s{sMem}, {MEMOUT}")
    k(f"s_mul_i32 s{sPx}, s{sPar}, 49152\ns_mul_i32 s{sT0}, s{sH}, 3072\ns_add_u32 s{sPx}, s{sPx}, s{sT0}\ns_add_u32 s{sPx}, s{sPx}, {PX_OFF}")
    k(f"s_lshl_b32 s{sCnt}, s{sPar}, 4\ns_add_u32 s{sCnt}, s{sCnt}, {C_PX}")
    k(f"s_mul_i32 s{sM}, s{sWAVE}, 7168\ns_mov_b32 s{sBuf}, 0")
    def issue_dma(bufreg):
        k(f"s_add_u32 s{sT1}, s{sM}, s{bufreg}")
        k(f"s_mov_b32 m0, s{sT1}\ns_nop 0")
        for u in range(4):
            k(f"buffer_load_dwordx4 v{vL16}, {WSR}, s{sSrc} offen offset:{u*1024} lds")
        k(f"s_add_u32 m0, s{sT1}, 4096\ns_add_u32 s{sT0}, s{sSrc}, 4096")
        for u in range(3):
            k(f"buffer_load_dwordx4 v{vL16}, {WSR}, s{sT0} offen offset:{u*1024} lds")
    issue_dma(sBuf)
    loop = k.uid("XA_loop"); last = k.uid("XA_nopf")
    k.label(loop)
    k("s_waitcnt vmcnt(0)\ns_barrier")
    k(f"v_add_u32 v{vRd}, s{sBuf}, v{vL16}")
    k(f"s_xor_b32 s{sBuf}, s{sBuf}, 28672")
    for kap in range(2):
        for p in range(3):
            off = kap * 3584 + p * 1024
            so = sKey if off < 4096 else sT1
            if off >= 4096 and p == 1: k(f"s_add_u32 s{sT1}, s{sKey}, 4096")
            k(f"buffer_load_dwordx4 {A(XK+kap*14+4*p,4)}, v{vL16}, {WSR}, s{so} offen offset:{off%4096}")
        off = kap * 3584 + 3072
        so = sKey if off < 4096 else sT1
        k(f"buffer_load_dwordx2 {A(XK+kap*14+12,2)}, v{vL8}, {WSR}, s{so} offen offset:{off%4096}")
    k(f"s_add_u32 s{sSrc}, s{sSrc}, {28672*NPAR}\ns_add_u32 s{sKey}, s{sKey}, {28672*NPAR}")
    k(f"s_add_u32 s{sT0}, s{sSeg}, {NPAR}\ns_cmp_ge_u32 s{sT0}, 64\ns_cbranch_scc1 {last}")
    issue_dma(sBuf)
    k.label(last)
    q = Q(k)
    def qx_pass(tiles):
        def rd(kk):
            for rho in range(2):
                q.ds(f"ds_read_b128 {V(XF+8*(kk&1)+4*rho,4)}, v{vRd} offset:{(rho*14+kk)*1024}", f"x{kk}_{rho}")
        rd(0)
        for kk in range(14):
            if kk < 13: rd(kk + 1)
            q.wait_lg(f"x{kk}_1")
            for i, tt in enumerate(tiles):
                for rho in range(2):
                    D = V(ACC + (i * 2 + rho) * 4, 4)
                    k(f"v_mfma_f32_16x16x32_bf16 {D}, {Wf(tt,kk)}, {V(XF+8*(kk&1)+4*rho,4)}, {'0' if kk == 0 else D}")
        q.reset()
        k("s_nop 7")
    qx_pass([0, 1, 2, 3])
    for i in range(4):
        for rho in range(2):
            src = ACC + (i * 2 + rho) * 4; dst = QT1 + rho * 8 + (i >> 1) * 4 + (i & 1) * 2
            k(f"v_cvt_pk_bf16_f32 v{dst}, v{src}, v{src+1}\nv_cvt_pk_bf16_f32 v{dst+1}, v{src+2}, v{src+3}")
    qx_pass([4, 5, 6])
    for (i, rho, dst) in ((0, 0, 0), (1, 0, 2), (0, 1, 4), (1, 1, 6), (2, 0, 8), (2, 1, 10)):
        src = ACC + (i * 2 + rho) * 4
        k(f"v_cvt_pk_bf16_f32 v{ACC+dst}, v{src}, v{src+1}\nv_cvt_pk_bf16_f32 v{ACC+dst+1}, v{src+2}, v{src+3}")
    def QTr(p, rho):
        if p < 2: return V(QT1 + rho * 8 + p * 4, 4)
        if p == 2: return V(ACC + rho * 4, 4)
        return V(ACC + 8 + rho * 2, 2)
    def smm(kap, p, rho):
        D = V(SACC + (kap * 2 + rho) * 4, 4)
        C = "0" if p == 0 else D
        if p < 3:
            Aop = A(XK + kap * 14 + 4 * p, 4) if kap < 2 else V(XF + 4 * p, 4)
            k(f"v_mfma_f32_16x16x32_bf16 {D}, {Aop}, {QTr(p,rho)}, {C}")
        else:
            Aop = A(XK + kap * 14 + 12, 2) if kap < 2 else V(XF + 12, 2)
            k(f"v_mfma_f32_16x16x16_bf16 {D}, {Aop}, {QTr(p,rho)}, {C}")
    k("s_waitcnt vmcnt(0)")
    for kap in range(2):
        for p in range(4):
            for rho in range(2): smm(kap, p, rho)
    top = k.uid("XA_mk"); ok_ = k.uid("XA_mkok")
    k.label(top)
    for tt in range(7):
        k(f"buffer_load_dwordx2 {V(XF+2*tt,2)}, v{vMK}, {WSR}, s{sMem} offen offset:{256*tt} sc1")
    k("s_waitcnt vmcnt(0)")
    k(f"v_max3_u32 v{vX}, v{XF}, v{XF+1}, v{XF+2}")
    for i in range(3, 13, 2): k(f"v_max3_u32 v{vX}, v{vX}, v{XF+i}, v{XF+i+1}")
    k(f"v_max_u32 v{vX}, v{vX}, v{XF+13}")
    k(f"v_cmp_eq_u32 vcc, -1, v{vX}\ns_cbranch_vccz {ok_}")
    k(f"s_sleep 2\ns_sub_u32 s{sSPIN}, s{sSPIN}, 1\ns_cbranch_scc0 {top}\ns_branch {abort}")
    k.label(ok_)
    for p in range(4):
        for rho in range(2): smm(2, p, rho)
    k("s_nop 7")
    for u in range(6): k(f"ds_write_b128 v{vSW}, {V(SACC+4*u,4)} offset:{u*1024}")
    k("s_waitcnt lgkmcnt(0)\ns_barrier")
    fin = k.uid("XA_fin")
    k(f"s_cmp_ge_u32 s{sWAVE}, 2\ns_cbranch_scc1 {fin}")
    S = 44
    T_ = 56
    for src in range(4):
        dst = S if src == 0 else (T_ if src & 1 else T_ + 12)
        for kap in range(3):
            k(f"ds_read_b128 {V(dst+4*kap,4)}, v{vSR} offset:{src*6144+kap*2048}")
        if src >= 1:
            k("s_waitcnt lgkmcnt(0)")
            for i in range(0, 12, 2): k(f"v_pk_add_f32 {V(S+i,2)}, {V(S+i,2)}, {V(dst+i,2)}")
    for kap in range(2):
        for r in range(4):
            m = sMask + 2 * (4 * kap + r)
            k(f"v_cndmask_b32 v{S+4*kap+r}, v{vNeg}, v{S+4*kap+r}, s[{m}:{m+1}]")
    M = vX; T2 = vT
    k(f"v_max3_f32 v{M}, v{S}, v{S+1}, v{S+2}")
    for i in range(3, 11, 2): k(f"v_max3_f32 v{M}, v{M}, v{S+i}, v{S+i+1}")
    k(f"v_max_f32 v{M}, v{M}, v{S+11}")
    def xg(op):
        for sw in ("v_permlane32_swap_b32", "v_permlane16_swap_b32"):
            k(f"v_mov_b32 v{T2}, v{M}\ns_nop 1\n{sw} v{M}, v{T2}\n{op} v{M}, v{M}, v{T2}")
    xg("v_max_f32")
    for i in range(12): k(f"v_sub_f32 v{S+i}, v{S+i}, v{M}")
    for i in range(12): k(f"v_exp_f32 v{S+i}, v{S+i}")
    k("s_nop 0")
    for i in range(8, 12): k(f"v_cndmask_b32 v{S+i}, 0, v{S+i}, s[{sLo}:{sLo+1}]")
    k(f"v_add_f32 v{M}, v{S}, v{S+1}")
    for i in range(2, 12): k(f"v_add_f32 v{M}, v{M}, v{S+i}")
    xg("v_add_f32")
    k(f"v_rcp_f32 v{M}, v{M}\ns_nop 0")
    for i in range(12): k(f"v_mul_f32 v{S+i}, v{S+i}, v{M}")
    for i in range(6): k(f"v_cvt_pk_bf16_f32 v{S+i}, v{S+2*i}, v{S+2*i+1}")
    k(f"s_and_b32 s{sT0}, s{sWAVE}, 1\ns_lshl_b32 s{sT1}, s{sT0}, 10\ns_add_u32 s{sT1}, s{sT1}, s{sPx}")
    k(f"buffer_store_dwordx4 {V(S,4)}, v{vL16}, {WSR}, s{sT1} offen sc1")
    k(f"s_lshl_b32 s{sT1}, s{sT0}, 9\ns_add_u32 s{sT1}, s{sT1}, s{sPx}")
    k(f"buffer_store_dwordx2 {V(S+4,2)}, v{vL8}, {WSR}, s{sT1} offen offset:2048 sc1")
    k("s_waitcnt vmcnt(0)")
    k.label(fin)
    k("s_barrier")
    sk = k.uid("XA_ns")
    k(f"s_cmp_lg_u32 s{sWAVE}, 0\ns_cbranch_scc1 {sk}")
    signal(k, sCnt, vOne, vZ)
    k.label(sk)
    k(f"s_add_u32 s{sMem}, s{sMem}, {7168*NPAR}\ns_add_u32 s{sPx}, s{sPx}, {49152*NPAR}\ns_add_u32 s{sCnt}, s{sCnt}, {16*NPAR}\ns_add_u32 s{sSeg}, s{sSeg}, {NPAR}")
    k(f"s_cmp_lt_u32 s{sSeg}, 64\ns_cbranch_scc1 {loop}")
    k("s_waitcnt vmcnt(0)")
    k("s_endpgm")

def emit_pvout(k, cfg, abort):
    NPAR = cfg.get("pv_par", 2)
    sX, sO = 36, 40
    sCg, sPar, sSeg, sVX, sVM, sPX, sG, sXo, sC = 20, 21, 22, 23, 24, 25, 26, 27, 28
    vL16, vL8, vZ, vT, vRow, vRd, vRm = 1, 2, 3, 4, 5, 7, 8
    PF, D, GV, XV = 12, 44, 52, 60
    srd(k, sX, KARG["x"], 1835008); srd(k, sO, KARG["out"], 1835008)
    k("v_and_b32 v0, 63, v0")
    k(f"v_lshlrev_b32 v{vL16}, 4, v0\nv_lshlrev_b32 v{vL8}, 3, v0\nv_mov_b32 v{vZ}, 0")
    k(f"s_mul_i32 s{sPar}, s{sRANK}, 9363\ns_lshr_b32 s{sPar}, s{sPar}, 16\ns_mul_i32 s{sT0}, s{sPar}, 7\ns_sub_u32 s{sCg}, s{sRANK}, s{sT0}")
    k(f"v_and_b32 v{vT}, 15, v0")
    k(f"v_bfe_u32 v{vRow}, v{vT}, 3, 1\nv_lshlrev_b32 v{vRow}, 4, v{vRow}")
    k(f"v_bfe_u32 v{vRow+1}, v{vT}, 1, 1\nv_lshl_add_u32 v{vRow}, v{vRow+1}, 3, v{vRow}")
    k(f"v_bfe_u32 v{vRow+1}, v{vT}, 2, 1\nv_lshl_add_u32 v{vRow}, v{vRow+1}, 2, v{vRow}")
    k(f"v_and_b32 v{vRow+1}, 1, v{vT}\nv_add_u32 v{vRow}, v{vRow}, v{vRow+1}")
    k(f"v_mul_u32_u24 v{vRow}, 896, v{vRow}")
    k(f"v_lshrrev_b32 v{vT}, 4, v0\nv_lshl_add_u32 v{vRow}, v{vT}, 3, v{vRow}")
    k(f"s_lshl_b32 s{sT0}, s{sCg}, 2\ns_add_u32 s{sT0}, s{sT0}, s{sWAVE}")
    k(f"s_lshl_b32 s{sT1}, s{sT0}, 5\nv_add_u32 v{vRow}, s{sT1}, v{vRow}\nv_add_u32 v{vRow+1}, {2*896}, v{vRow}")
    k(f"s_mul_i32 s{sG}, s{sT0}, 2048\ns_mul_i32 s{sT1}, s{sPar}, 57344\ns_add_u32 s{sG}, s{sG}, s{sT1}\ns_add_u32 s{sG}, s{sG}, {G_OFF}")
    k(f"s_lshr_b32 s{sT0}, s{sT0}, 1")
    k(f"s_mul_i32 s{sVX}, s{sT0}, 32768\ns_mul_i32 s{sVM}, s{sT0}, 16384")
    k(f"s_and_b32 s{sT0}, s{sWAVE}, 1\ns_lshl_b32 s{sT1}, s{sT0}, 11\ns_add_u32 s{sVX}, s{sVX}, s{sT1}\ns_lshl_b32 s{sT1}, s{sT0}, 10\ns_add_u32 s{sVM}, s{sVM}, s{sT1}")
    k(f"s_mul_i32 s{sT1}, s{sPar}, 458752\ns_add_u32 s{sVX}, s{sVX}, s{sT1}\ns_add_u32 s{sVX}, s{sVX}, {VX_OFF}")
    k(f"s_mul_i32 s{sT1}, s{sPar}, 229376\ns_add_u32 s{sVM}, s{sVM}, s{sT1}\ns_add_u32 s{sVM}, s{sVM}, {VM_OFF}")
    k(f"s_mul_i32 s{sPX}, s{sPar}, 49152\ns_mul_i32 s{sT1}, s{sWAVE}, 12288\ns_add_u32 s{sPX}, s{sPX}, s{sT1}\ns_add_u32 s{sPX}, s{sPX}, {PX_OFF}")
    k(f"s_mul_i32 s{sXo}, s{sPar}, 28672\ns_lshl_b32 s{sC}, s{sPar}, 4\ns_mov_b32 s{sSeg}, s{sPar}")
    k("s_waitcnt lgkmcnt(0)")
    VXR, VMR = 0, 64
    loop = k.uid("PV_loop")
    k.label(loop)
    REC = 64
    def waitrec(checks):
        top = k.uid("PV_w"); done = k.uid("PV_wd")
        k(f"s_add_u32 s{sT0}, s{sC}, {CSEG}")
        k.label(top)
        k(f"buffer_load_dwordx4 {V(REC,4)}, v{vZ}, {WSR}, s{sT0} offen sc1\ns_waitcnt vmcnt(0)")
        first = True
        for idx, target in checks:
            k(f"v_cmp_gt_u32 vcc, {target}, v{REC+idx}")
            if first: k(f"s_mov_b64 s[30:31], vcc"); first = False
            else: k(f"s_or_b64 s[30:31], s[30:31], vcc")
        k(f"s_cmp_eq_u64 s[30:31], 0\ns_cbranch_scc1 {done}")
        k(f"s_sleep 2\ns_sub_u32 s{sSPIN}, s{sSPIN}, 1\ns_cbranch_scc0 {top}\ns_branch {abort}")
        k.label(done)
    waitrec([(0, 28), (1, 28), (3, 1)])
    for w in range(4):
        for ks in range(2):
            k(f"s_add_u32 s{sT0}, s{sVX}, {w*8192+ks*4096}")
            for a in range(2):
                k(f"buffer_load_dwordx4 {A(VXR+((w*2+ks)*2+a)*4,4)}, v{vL16}, {WSR}, s{sT0} offen offset:{a*1024} sc1")
    for rho in range(2): k(f"buffer_load_dwordx2 {V(XV+2*rho,2)}, v{vRow+rho}, s[{sX}:{sX+3}], s{sXo} offen")
    for rho in range(2): k(f"buffer_load_dwordx4 {V(GV+4*rho,4)}, v{vL16}, {WSR}, s{sG} offen offset:{rho*1024} sc1")
    for w in range(4):
        k(f"s_add_u32 s{sT0}, s{sVM}, {w*4096}")
        for ks in range(2):
            k(f"buffer_load_dwordx4 {A(VMR+(w*2+ks)*4,4)}, v{vL16}, {WSR}, s{sT0} offen offset:{ks*2048} sc1")
    waitrec([(2, 16)])
    k("s_barrier")
    k(f"s_mul_i32 s{sT1}, s{sWAVE}, 12288")
    for u4 in range(3):
        k(f"s_add_u32 m0, s{sT1}, {u4*4096}\ns_add_u32 s{sT0}, s{sPX}, {u4*4096}")
        for u in range(4): k(f"buffer_load_dwordx4 v{vL16}, {WSR}, s{sT0} offen offset:{u*1024} sc1 lds")
    k("s_waitcnt vmcnt(0)\ns_barrier")
    q = Q(k)
    steps = []
    for h in range(16):
        for rho in range(2): steps.append(("x", h, rho))
    for pr in range(8):
        for rho in range(2): steps.append(("m", pr, rho))
    def rd(i):
        kind, a_, rho = steps[i]
        dst = V(PF + 4 * (i % 8), 4)
        if kind == "x": q.ds(f"ds_read_b128 {dst}, v{vL16} offset:{a_*3072+rho*1024}", f"p{i}")
        else: q.ds(f"ds_read2st64_b64 {dst}, v{vL8} offset0:{(2*a_*3072+2048+rho*512)//512} offset1:{((2*a_+1)*3072+2048+rho*512)//512}", f"p{i}")
    for i in range(6): rd(i)
    first = [True, True]
    for i, (kind, a_, rho) in enumerate(steps):
        if i + 6 < len(steps): rd(i + 6)
        q.wait_lg(f"p{i}")
        Aop = A(VXR + a_ * 4, 4) if kind == "x" else A(VMR + a_ * 4, 4)
        Dr = V(D + 4 * rho, 4)
        k(f"v_mfma_f32_16x16x32_bf16 {Dr}, {Aop}, {V(PF+4*(i%8),4)}, {'0' if first[rho] else Dr}")
        first[rho] = False
    k("s_nop 7")
    for rho in range(2):
        T = PF
        k(f"v_lshlrev_b32 v{T}, 16, v{XV+2*rho}\nv_and_b32 v{T+1}, 0xffff0000, v{XV+2*rho}")
        k(f"v_lshlrev_b32 v{T+2}, 16, v{XV+2*rho+1}\nv_and_b32 v{T+3}, 0xffff0000, v{XV+2*rho+1}")
        for r in range(4): k(f"v_fma_f32 v{T+r}, v{D+4*rho+r}, v{GV+4*rho+r}, v{T+r}")
        k(f"v_cvt_pk_bf16_f32 v{T+4+2*rho}, v{T}, v{T+1}\nv_cvt_pk_bf16_f32 v{T+5+2*rho}, v{T+2}, v{T+3}")
        k(f"buffer_store_dwordx2 {V(T+4+2*rho,2)}, v{vRow+rho}, s[{sO}:{sO+3}], s{sXo} offen")
    k(f"s_add_u32 s{sVX}, s{sVX}, {458752*NPAR}\ns_add_u32 s{sVM}, s{sVM}, {229376*NPAR}\ns_add_u32 s{sPX}, s{sPX}, {49152*NPAR}")
    k(f"s_add_u32 s{sG}, s{sG}, {57344*NPAR}\ns_add_u32 s{sXo}, s{sXo}, {28672*NPAR}\ns_add_u32 s{sC}, s{sC}, {16*NPAR}\ns_add_u32 s{sSeg}, s{sSeg}, {NPAR}")
    k(f"s_cmp_lt_u32 s{sSeg}, 64\ns_cbranch_scc1 {loop}")
    k("s_waitcnt vmcnt(0)")
    k("s_endpgm")

import math
def emit_ffn(k, cfg, abort):
    k("; ================= FFN =================")
    sA = 36
    sU, sGu, sTt, sFg, sSrc, sDst, sCnt = 20, 21, 22, 23, 24, 25, 26
    vL16, vZ, vOne, vT, vN, vG, vLd, vR = 1, 2, 3, 4, 5, 6, 7, 8
    k("v_mov_b32 v9, v0")
    k("v_and_b32 v0, 63, v0")
    k(f"v_lshlrev_b32 v{vL16}, 4, v0\nv_mov_b32 v{vZ}, 0\nv_mov_b32 v{vOne}, 1")
    k(f"v_and_b32 v{vN}, 15, v0\nv_lshrrev_b32 v{vG}, 4, v0")
    if cfg.get("relayout", True):
        STG = 16
        OUT = 48
        uloop = k.uid("FF_u"); isd = k.uid("FF_d"); nxt = k.uid("FF_n"); done = k.uid("FF_rd")
        k(f"s_mov_b32 s{sU}, s{sRANK}")
        k.label(uloop)
        k(f"s_cmp_ge_u32 s{sU}, 154\ns_cbranch_scc1 {done}")
        k(f"s_cmp_ge_u32 s{sU}, 98\ns_cbranch_scc1 {isd}")
        LS = 544
        k(f"s_cmp_ge_u32 s{sU}, 49\ns_cselect_b32 s{sGu}, 1, 0\ns_mul_i32 s{sT0}, s{sGu}, 49\ns_sub_u32 s{sT0}, s{sU}, s{sT0}")
        k(f"s_mul_i32 s{sTt}, s{sT0}, 9363\ns_lshr_b32 s{sTt}, s{sTt}, 16\ns_mul_i32 s{sT1}, s{sTt}, 7\ns_sub_u32 s{sFg}, s{sT0}, s{sT1}")
        g_ = k.uid("FF_g"); gu_ = k.uid("FF_gu")
        k(f"s_cmp_eq_u32 s{sGu}, 1\ns_cbranch_scc1 {g_}")
        srd(k, sA, KARG["Wg"], 1605632)
        k(f"s_branch {gu_}")
        k.label(g_)
        srd(k, sA, KARG["Wu"], 1605632)
        k.label(gu_)
        k(f"v_lshrrev_b32 v{vT}, 5, v9\nv_mul_u32_u24 v{vLd}, 3584, v{vT}\nv_mul_u32_u24 v{vR}, {LS}, v{vT}")
        k(f"v_and_b32 v{vT}, 31, v9\nv_lshl_add_u32 v{vLd}, v{vT}, 4, v{vLd}\nv_lshl_add_u32 v{vR}, v{vT}, 4, v{vR}")
        k(f"s_mul_i32 s{sSrc}, s{sTt}, {64*3584}\ns_lshl_b32 s{sT0}, s{sFg}, 9\ns_add_u32 s{sSrc}, s{sSrc}, s{sT0}")
        k("s_waitcnt lgkmcnt(0)")
        for u in range(8):
            k(f"buffer_load_dwordx4 {V(STG+4*u,4)}, v{vLd}, s[{sA}:{sA+3}], s{sSrc} offen")
            if u < 7: k(f"s_add_u32 s{sSrc}, s{sSrc}, {8*3584}")
        k("s_barrier")
        k("s_waitcnt vmcnt(0)")
        for u in range(8): k(f"ds_write_b128 v{vR}, {V(STG+4*u,4)} offset:{u*8*LS}")
        k(f"v_lshrrev_b32 v{vT}, 1, v{vG}\nv_lshlrev_b32 v{vR}, 4, v{vT}")
        k(f"v_and_b32 v{vT}, 1, v{vG}\nv_lshl_add_u32 v{vR}, v{vT}, 2, v{vR}")
        k(f"v_bfe_u32 v{vT}, v0, 2, 1\nv_add_u32 v{vR}, v{vR}, v{vT}")
        k(f"v_bfe_u32 v{vT}, v0, 3, 1\nv_lshl_add_u32 v{vR}, v{vT}, 3, v{vR}")
        k(f"v_mul_u32_u24 v{vR}, {LS}, v{vR}\nv_and_b32 v{vT}, 3, v0\nv_lshl_add_u32 v{vR}, v{vT}, 3, v{vR}")
        k(f"s_lshl_b32 s{sT0}, s{sWAVE}, 7\nv_add_u32 v{vR}, s{sT0}, v{vR}")
        k("s_waitcnt lgkmcnt(0)\ns_barrier")
        for ftl in range(4):
            for a in range(2):
                for u in range(2):
                    k(f"ds_read_b64_tr_b16 {V(OUT+(ftl*2+a)*4+2*u,2)}, v{vR} offset:{(32*a+2*u)*LS+ftl*32}")
        k("s_waitcnt lgkmcnt(0)")
        for ftl in range(4):
            k(f"s_lshl_b32 s{sT0}, s{sFg}, 4\ns_lshl_b32 s{sT1}, s{sWAVE}, 2\ns_add_u32 s{sT0}, s{sT0}, s{sT1}\ns_add_u32 s{sT0}, s{sT0}, {ftl}")
            k(f"s_lshl_b32 s{sT0}, s{sT0}, 1\ns_add_u32 s{sT0}, s{sT0}, s{sGu}\ns_mul_i32 s{sT0}, s{sT0}, 14\ns_lshl_b32 s{sT1}, s{sTt}, 1\ns_add_u32 s{sT0}, s{sT0}, s{sT1}")
            k(f"s_lshl_b32 s{sDst}, s{sT0}, 10\ns_add_u32 s{sDst}, s{sDst}, {WG_OFF}")
            for a in range(2):
                k(f"buffer_store_dwordx4 {V(OUT+(ftl*2+a)*4,4)}, v{vL16}, {WSR}, s{sDst} offen offset:{a*1024} sc1")
        k(f"s_branch {nxt}")
        k.label(isd)
        LS = 928
        srd(k, sA, KARG["Wd"], 1605632)
        k(f"s_sub_u32 s{sFg}, s{sU}, 98")
        k(f"s_mul_i32 s{sSrc}, s{sFg}, 28672")
        k(f"v_lshlrev_b32 v{vLd}, 4, v9")
        k("s_waitcnt lgkmcnt(0)")
        for u in range(7):
            k(f"buffer_load_dwordx4 {V(STG+4*u,4)}, v{vLd}, s[{sA}:{sA+3}], s{sSrc} offen")
            if u < 6: k(f"s_add_u32 s{sSrc}, s{sSrc}, 4096")
        k("s_barrier")
        for u in range(7):
            k(f"v_add_u32 v{vT}, {256*u}, v9\nv_mul_u32_u24 v{vR}, 2341, v{vT}\nv_lshrrev_b32 v{vR}, 17, v{vR}")
            k(f"v_mul_u32_u24 v{vLd}, 56, v{vR}\nv_sub_u32 v{vLd}, v{vT}, v{vLd}\nv_lshlrev_b32 v{vLd}, 4, v{vLd}")
            k(f"v_mul_u32_u24 v{vR}, {LS}, v{vR}\nv_add_u32 v{vLd}, v{vLd}, v{vR}")
            if u == 0: k("s_waitcnt vmcnt(0)")
            k(f"ds_write_b128 v{vLd}, {V(STG+4*u,4)}")
        k(f"v_bfe_u32 v{vT}, v0, 2, 2\nv_lshl_add_u32 v{vT}, v{vG}, 2, v{vT}\nv_mul_u32_u24 v{vR}, {LS}, v{vT}")
        k(f"v_and_b32 v{vT}, 3, v0\nv_lshl_add_u32 v{vR}, v{vT}, 3, v{vR}")
        k(f"s_mul_i32 s{sT0}, s{sWAVE}, 224\nv_add_u32 v{vR}, s{sT0}, v{vR}")
        k("s_waitcnt lgkmcnt(0)\ns_barrier")
        for i in range(7):
            for u in range(2):
                k(f"ds_read_b64_tr_b16 {V(OUT+i*4+2*u,2)}, v{vR} offset:{16*u*LS+i*32}")
        k(f"s_mul_i32 s{sDst}, s{sFg}, 28\ns_mul_i32 s{sT0}, s{sWAVE}, 7\ns_add_u32 s{sDst}, s{sDst}, s{sT0}\ns_lshl_b32 s{sDst}, s{sDst}, 10\ns_add_u32 s{sDst}, s{sDst}, {WD_OFF}")
        k("s_waitcnt lgkmcnt(0)")
        for i in range(7):
            if i == 4: k(f"s_add_u32 s{sDst}, s{sDst}, 4096")
            k(f"buffer_store_dwordx4 {V(OUT+i*4,4)}, v{vL16}, {WSR}, s{sDst} offen offset:{(i*1024)%4096} sc1")
        k.label(nxt)
        k(f"s_add_u32 s{sU}, s{sU}, 64\ns_branch {uloop}")
        k.label(done)
        k("s_waitcnt vmcnt(0)\ns_barrier")
        sk = k.uid("FF_ns")
        k(f"s_mov_b32 s{sCnt}, {C_RL}")
        k(f"s_cmp_lg_u32 s{sWAVE}, 0\ns_cbranch_scc1 {sk}")
        signal(k, sCnt, vOne, vZ)
        k.label(sk)
    XF, GU, HB, RING = 12, 124, 156, 164
    R, DEP = 21, 20
    k(f"s_mul_i32 s{sSrc}, s{sRANK}, 28672\ns_add_u32 s{sSrc}, s{sSrc}, {XNA_OFF}")
    for f in range(28):
        if f and f % 4 == 0: k(f"s_add_u32 s{sSrc}, s{sSrc}, 4096")
        k(f"buffer_load_dwordx4 {V(XF+4*f,4)}, v{vL16}, {WSR}, s{sSrc} offen offset:{(f*1024)%4096}")
    for i in range(224): k(f"v_accvgpr_write_b32 a{i}, 0")
    if cfg.get("relayout", True):
        k(f"s_mov_b32 s{sCnt}, {C_RL}")
        wait_counter(k, sCnt, 64, vT, vZ, abort)
    else:
        k("s_waitcnt vmcnt(0)")
    sGU, sWD, sIt, sGUn, sWDn, sA0 = 27, 28, 29, 30, 31, 32
    k(f"s_mul_i32 s{sGU}, s{sWAVE}, {14*57344}\ns_add_u32 s{sGU}, s{sGU}, {WG_OFF}")
    k(f"s_mul_i32 s{sWD}, s{sWAVE}, {14*28672}\ns_add_u32 s{sWD}, s{sWD}, {WD_OFF}")
    seq = []
    for kk in range(14):
        for gu, ftl in ((0, 0), (0, 1), (1, 0), (1, 1)): seq.append(("gu", gu, ftl, kk))
    for ct in range(28): seq.append(("d", ct))
    NS = len(seq)
    def issue(i, nxt_iter):
        e = seq[i % NS]
        slot = V(RING + 4 * (i % R), 4)
        if e[0] == "gu":
            off = e[2] * 28672 + e[1] * 14336 + e[3] * 1024
            base = sGUn if nxt_iter else sGU
        else:
            off = e[1] * 1024
            base = sWDn if nxt_iter else sWD
        hi = off - off % 4096
        if hi: k(f"s_add_u32 s{sA0}, s{base}, {hi}")
        k(f"buffer_load_dwordx4 {slot}, v{vL16}, {WSR}, s{sA0 if hi else base} offen offset:{off%4096} sc1")
    for i in range(DEP): issue(i, False)
    k(f"s_mov_b32 s{sIt}, 0")
    loop = k.uid("FF_loop")
    k.label(loop)
    k(f"s_cmp_lt_u32 s{sIt}, 13\ns_cselect_b32 s{sT0}, 57344, 0\ns_add_u32 s{sGUn}, s{sGU}, s{sT0}\ns_cselect_b32 s{sT0}, 0, 0")
    k(f"s_cmp_lt_u32 s{sIt}, 13\ns_cselect_b32 s{sT0}, 28672, 0\ns_add_u32 s{sWDn}, s{sWD}, s{sT0}")
    for i, e in enumerate(seq):
        k(f"s_waitcnt vmcnt({DEP-1})")
        slot = V(RING + 4 * (i % R), 4)
        if e[0] == "gu":
            _, gu, ftl, kk = e
            for rho in range(2):
                D = V(GU + ((gu * 2 + ftl) * 2 + rho) * 4, 4)
                k(f"v_mfma_f32_16x16x32_bf16 {D}, {slot}, {V(XF+(rho*14+kk)*4,4)}, {'0' if kk == 0 else D}")
        else:
            if e[1] == 0:
                k("s_nop 7")
                for ftl in range(2):
                    for rho in range(2):
                        g0 = GU + ((0 * 2 + ftl) * 2 + rho) * 4; u0 = GU + ((1 * 2 + ftl) * 2 + rho) * 4
                        for r in range(4): k(f"v_max_f32 v{g0+r}, 0, v{g0+r}")
                        for r in range(4): k(f"v_mul_f32 v{g0+r}, v{g0+r}, v{u0+r}")
                        k(f"v_cvt_pk_bf16_f32 v{HB+4*rho+2*ftl}, v{g0}, v{g0+1}\nv_cvt_pk_bf16_f32 v{HB+4*rho+2*ftl+1}, v{g0+2}, v{g0+3}")
                k("s_nop 1")
            ct = e[1]
            for rho in range(2):
                D = A((ct * 2 + rho) * 4, 4)
                k(f"v_mfma_f32_16x16x32_bf16 {D}, {slot}, {V(HB+4*rho,4)}, {D}")
        j = i + DEP
        issue(j, j >= NS)
    k(f"s_mov_b32 s{sGU}, s{sGUn}\ns_mov_b32 s{sWD}, s{sWDn}\ns_add_u32 s{sIt}, s{sIt}, 1")
    k(f"s_cmp_lt_u32 s{sIt}, 14\ns_cbranch_scc1 {loop}")
    k("s_waitcnt vmcnt(0)\ns_nop 7")
    vW, vRd = 7, 8
    k(f"s_mul_i32 s{sT0}, s{sWAVE}, 28672\nv_add_u32 v{vW}, s{sT0}, v{vL16}")
    k(f"s_mul_i32 s{sT0}, s{sWAVE}, 7168\nv_add_u32 v{vRd}, s{sT0}, v{vL16}\nv_add_u32 v10, 57344, v{vRd}")
    k(f"s_mul_i32 s{sDst}, s{sRANK}, 57344\ns_mul_i32 s{sT0}, s{sWAVE}, 7168\ns_add_u32 s{sDst}, s{sDst}, s{sT0}\ns_add_u32 s{sDst}, s{sDst}, {G_OFF}")
    k(f"s_mov_b32 s{sT1}, {fbits(-math.log2(math.e)):#x}")
    T = 16
    for rnd in range(2):
        k("s_barrier")
        for u in range(28): k(f"ds_write_b128 v{vW}, {A((rnd*28+u)*4,4)} offset:{u*1024}")
        k("s_waitcnt lgkmcnt(0)\ns_barrier")
        for i in range(7):
            for src in range(4): k(f"ds_read_b128 {V(T+4*src,4)}, v{vRd if src < 2 else 10} offset:{(src&1)*28672+i*1024}")
            k("s_waitcnt lgkmcnt(0)")
            for p in (0, 2):
                k(f"v_pk_add_f32 {V(T+p,2)}, {V(T+p,2)}, {V(T+4+p,2)}\nv_pk_add_f32 {V(T+8+p,2)}, {V(T+8+p,2)}, {V(T+12+p,2)}")
                k(f"v_pk_add_f32 {V(T+p,2)}, {V(T+p,2)}, {V(T+8+p,2)}")
            for r in range(4): k(f"v_mul_f32 v{T+4+r}, s{sT1}, v{T+r}")
            for r in range(4): k(f"v_exp_f32 v{T+4+r}, v{T+4+r}")
            k("s_nop 0")
            for r in range(4): k(f"v_add_f32 v{T+4+r}, 1.0, v{T+4+r}")
            for r in range(4): k(f"v_rcp_f32 v{T+4+r}, v{T+4+r}")
            k("s_nop 0")
            for r in range(4): k(f"v_mul_f32 v{T+20+r}, v{T+r}, v{T+4+r}")
            off = rnd * 28672 + i * 1024
            k(f"s_add_u32 s{sT0}, s{sDst}, {off - off%4096}")
            k(f"buffer_store_dwordx4 {V(T+20,4)}, v{vL16}, {WSR}, s{sT0} offen offset:{off%4096} sc1")
            k("s_nop 1")
    k("s_waitcnt vmcnt(0)\ns_barrier")
    sk = k.uid("FF_gs")
    k(f"s_lshl_b32 s{sCnt}, s{sRANK}, 4\ns_add_u32 s{sCnt}, s{sCnt}, {C_G}")
    k(f"s_cmp_lg_u32 s{sWAVE}, 0\ns_cbranch_scc1 {sk}")
    signal(k, sCnt, vOne, vZ)
    k.label(sk)
    k("s_waitcnt vmcnt(0)")
    k("s_endpgm")
```

```python
import sys
from kfw import *
from layout import *
import chain, workers, prepk
from chain import sWS, sRANK, sWAVE, sT0, sT1, sSPIN, SPIN, sMODE
from prepk import srd, KARG, kd

NAME = "recurrent_scan__memory_aug_recurrent_mem_tr__glu_gated_reglu__prompt"
HEADER = open("cdna_kernels/" + NAME + ".s.ref").read().split("; Override launch geometry")[0]

def emit_main(k, cfg, name):
    VXP, XAP, PVP = cfg.get("vx_par", 2), cfg.get("xa_par", 3), cfg.get("pv_par", 4)
    nVX, nXA, nPV, nFF = 28 * VXP, 16 * XAP, 7 * PVP, 64
    t1, t2, t3, t4 = nVX, nVX + nXA, nVX + nXA + nPV, nVX + nXA + nPV + nFF
    assert t4 <= 224
    k(f".globl {name}\n.p2align 8\n.type {name},@function\n{name}:")
    k("s_cmp_ge_u32 s2, 256\ns_cbranch_scc1 M_exit")
    srd(k, sWS, KARG["ws"], WS_BYTES)
    k(f"s_load_dwordx2 s[4:5], s[0:1], {KARG['dbg']}")
    k("s_getreg_b32 s3, hwreg(HW_REG_XCC_ID)\ns_and_b32 s3, s3, 15")
    k(f"s_mov_b32 s{sSPIN}, {SPIN}")
    k(f"v_lshrrev_b32 v3, 6, v0\ns_nop 0\nv_readfirstlane_b32 s{sWAVE}, v3")
    k("s_waitcnt lgkmcnt(0)")
    k("v_mov_b32 v1, 0\nv_mov_b32 v2, 1")
    k("v_cmp_eq_u32 vcc, 0, v0\ns_and_saveexec_b64 s[20:21], vcc\ns_cbranch_execz M_reg_done")
    force = cfg.get("force_slow")
    k(f"s_cmp_lg_u32 s3, {99 if force else 0}\ns_cbranch_scc1 M_reg_worker")
    k("global_atomic_add v3, v1, v2, s[4:5] sc0 sc1\ns_waitcnt vmcnt(0)")
    k("v_cmp_gt_u32 vcc, 30, v3\ns_cbranch_vccnz M_reg_store")
    k.label("M_reg_worker")
    k("global_atomic_add v3, v1, v2, s[4:5] offset:4 sc0 sc1\ns_waitcnt vmcnt(0)")
    k("v_add_u32 v3, 64, v3")
    k.label("M_reg_store")
    k("global_atomic_add v1, v2, s[4:5] offset:8 sc1")
    k("ds_write_b32 v1, v3\ns_waitcnt vmcnt(0) lgkmcnt(0)")
    k.label("M_reg_done")
    k("s_mov_b64 exec, s[20:21]\ns_barrier\nds_read_b32 v3, v1\ns_waitcnt lgkmcnt(0)\ns_nop 0")
    k(f"v_readfirstlane_b32 s{sRANK}, v3")
    k("s_barrier")
    def wait_all(k, vt):
        top = k.uid("M_wa"); done = k.uid("M_wad")
        k(f"v_mov_b32 v{vt}, 0")
        k.label(top)
        k(f"global_load_dwordx3 v[{vt+2}:{vt+4}], v{vt}, s[4:5] sc1\ns_waitcnt vmcnt(0)")
        k(f"v_cmp_gt_u32 vcc, 0x100, v{vt+4}\ns_cbranch_vccz {done}")
        k(f"s_sleep 2\ns_sub_u32 s{sSPIN}, s{sSPIN}, 1\ns_cbranch_scc0 {top}\ns_branch M_abort")
        k.label(done)
        k(f"v_readfirstlane_b32 s{sT1}, v{vt+2}")
    def mode_hook(k, vt):
        wait_all(k, vt)
        k(f"s_cmp_lt_u32 s{sT1}, 30\ns_cselect_b32 s{sMODE}, 1, 0")
    k(f"s_cmp_lt_u32 s{sRANK}, 64\ns_cbranch_scc1 M_chain")
    k(f"s_sub_u32 s{sRANK}, s{sRANK}, 64")
    k(f"s_cmp_lt_u32 s{sRANK}, {t1}\ns_cbranch_scc1 M_vx")
    k(f"s_cmp_lt_u32 s{sRANK}, {t2}\ns_cbranch_scc1 M_xa")
    k(f"s_cmp_lt_u32 s{sRANK}, {t3}\ns_cbranch_scc1 M_pv")
    k(f"s_cmp_lt_u32 s{sRANK}, {t4}\ns_cbranch_scc1 M_ff")
    wait_all(k, 8)
    k(f"s_cmp_ge_u32 s{sT1}, 30\ns_cbranch_scc1 M_exit")
    k(f"s_sub_u32 s{sRANK}, s{sRANK}, {t4}\ns_add_u32 s{sRANK}, s{sRANK}, s{sT1}")
    k(f"s_cmp_ge_u32 s{sRANK}, 30\ns_cbranch_scc1 M_exit")
    k.label("M_chain")
    ccfg = dict(nsteps=63, modes=["", "sc1"], mode_hook=mode_hook, vxwait=True, pflag_pos=2, mflag_pos=1)
    ccfg.update(cfg.get("chain", {}))
    k(f"s_cmp_ge_u32 s{sRANK}, 16\ns_cbranch_scc1 M_chainB")
    chain.emit_chain_A(k, ccfg, "M_abort")
    k.label("M_chainB")
    chain.emit_chain_B(k, ccfg, "M_abort")
    wcfg = dict(vx_par=VXP, xa_par=XAP, pv_par=PVP)
    k.label("M_vx")
    workers.emit_vxgen(k, wcfg, "M_abort")
    k.label("M_xa")
    k(f"s_sub_u32 s{sRANK}, s{sRANK}, {t1}")
    workers.emit_xattn(k, wcfg, "M_abort")
    k.label("M_pv")
    k(f"s_sub_u32 s{sRANK}, s{sRANK}, {t2}")
    workers.emit_pvout(k, wcfg, "M_abort")
    k.label("M_ff")
    k(f"s_sub_u32 s{sRANK}, s{sRANK}, {t3}")
    workers.emit_ffn(k, wcfg, "M_abort")
    for t in ccfg.get("outofline", []) + wcfg.get("outofline", []): k(t)
    k.label("M_abort")
    k("v_mov_b32 v1, 0\nv_mov_b32 v2, 1\nglobal_atomic_add v1, v2, s[4:5] offset:12 sc1\ns_waitcnt vmcnt(0)")
    k.label("M_exit")
    k("s_endpgm")

def build(cfg):
    k = K()
    k(HEADER.rstrip())
    k("; @launch kernel=prep_kernel grid=(289,1,1) block=(256,1,1) lds=59392")
    k(f"; @launch kernel={NAME}_kernel grid=(256,1,1) block=(256,1,1) lds=114688")
    k('.amdgcn_target "amdgcn-amd-amdhsa--gfx950"\n.text')
    prepk.emit_prep(k)
    emit_main(k, cfg, NAME + "_kernel")
    k('.section .rodata,"a"')
    k(kd("prep_kernel", 256, 256))
    k(kd(NAME + "_kernel", 512, 256, 100))
    return k.text()

if __name__ == "__main__":
    import kfw
    cfg = {}
    t = build(cfg)
    out = sys.argv[1] if len(sys.argv) > 1 else "cdna_kernels/" + NAME + ".s"
    open(out, "w").write(t)
    print("bytes", len(t), "lines", t.count("\n"), "hazards", len(kfw.check(t)))
```

```python
from kfw import *
from layout import *

class Q:
    def __init__(self, k):
        self.k = k; self.lg = []; self.vm = []
    def ds(self, txt, tag=None):
        self.k(txt); self.lg.append(tag)
    def vmem(self, txt, tag=None):
        self.k(txt); self.vm.append(tag)
    def _n(self, lst, tag):
        idx = max(i for i, t in enumerate(lst) if t == tag)
        return len(lst) - 1 - idx
    def wait_lg(self, tag):
        n = min(self._n(self.lg, tag), 15)
        self.k(f"s_waitcnt lgkmcnt({n})")
    def wait_vm(self, tag):
        n = min(self._n(self.vm, tag), 63)
        self.k(f"s_waitcnt vmcnt({n})")
    def lg0(self):
        self.k("s_waitcnt lgkmcnt(0)"); self.lg = []
    def reset(self):
        self.lg = []; self.vm = []

sWS   = 8
sRANK = 12
sWAVE = 13
sSTEP = 14
sMS   = 15
sPS   = 16
sT0   = 17
sT1   = 18
sSPIN = 19
sMaskA = 20
sMaskB = 22
sXK   = 24
sMS1  = 25
sRST  = 26
sOUT  = 27
sFLG  = 50
sMODE = 51
sVXC  = 92
sTA   = 28
sTB   = 30
sPROF = 32
SPIN  = 200000

class Prof:
    def __init__(self, k, on, rawon=False): self.k, self.on, self.n, self.rawon = k, on, 0, rawon
    def start(self):
        if not self.on: return
        k = self.k
        for i in range(12): k(f"s_mov_b32 s{sPROF+i}, 0")
        k(f"s_memtime s[{sTA}:{sTA+1}]\ns_waitcnt lgkmcnt(0)")
    def stamp(self, i):
        if not self.on: return
        k = self.k
        k(f"s_memtime s[{sTB}:{sTB+1}]\ns_waitcnt lgkmcnt(0)")
        k(f"s_sub_u32 s{sT0}, s{sTB}, s{sTA}\ns_add_u32 s{sPROF+i}, s{sPROF+i}, s{sT0}\ns_mov_b32 s{sTA}, s{sTB}")
    def raw(self, i):
        if self.rawon: self.k(f"{'s_memrealtime' if self.rawon == 'rt' else 's_memtime'} s[{52+2*i}:{53+2*i}]")
    def raw_dump(self, tmpv, offv):
        if not self.rawon: return
        k = self.k
        k("s_waitcnt lgkmcnt(0)")
        k(f"s_lshl_b32 s{sT0}, s{sRANK}, 2\ns_add_u32 s{sT0}, s{sT0}, s{sWAVE}\ns_lshl_b32 s{sT0}, s{sT0}, 6\ns_add_u32 s{sT0}, s{sT0}, {PROF}")
        k(f"v_mov_b32 v{offv}, 0")
        for i in range(16):
            k(f"v_mov_b32 v{tmpv}, s{52+2*i}")
            k(f"buffer_store_dword v{tmpv}, v{offv}, s[{sWS}:{sWS+3}], s{sT0} offen offset:{4*i}")
        k("s_waitcnt vmcnt(0)")
    def tot_start(self, on):
        if on: self.k(f"s_mov_b32 s{sPROF+11}, 0\ns_memtime s[{sTA}:{sTA+1}]\ns_memrealtime s[44:45]\ns_waitcnt lgkmcnt(0)")
    def tot_dump(self, on, tmpv, offv):
        if not on: return
        k = self.k
        k(f"s_memtime s[{sTB}:{sTB+1}]\ns_memrealtime s[46:47]\ns_waitcnt lgkmcnt(0)")
        k(f"s_sub_u32 s{sPROF}, s{sTB}, s{sTA}\ns_sub_u32 s{sPROF+1}, s46, s44\ns_sub_u32 s{sPROF+2}, s44, s96")
        k(f"s_lshl_b32 s{sT0}, s{sRANK}, 2\ns_add_u32 s{sT0}, s{sT0}, s{sWAVE}\ns_lshl_b32 s{sT0}, s{sT0}, 6\ns_add_u32 s{sT0}, s{sT0}, {PROF}")
        k(f"v_mov_b32 v{offv}, 0")
        k(f"s_mov_b32 s{sPROF+3}, s{sPROF+11}")
        for i in range(4):
            k(f"v_mov_b32 v{tmpv}, s{sPROF+i}")
            k(f"buffer_store_dword v{tmpv}, v{offv}, s[{sWS}:{sWS+3}], s{sT0} offen offset:{4*i}")
        k("s_waitcnt vmcnt(0)")
    def dump(self, tmpv, offv):
        if not self.on: return
        k = self.k
        k(f"s_lshl_b32 s{sT0}, s{sRANK}, 2\ns_add_u32 s{sT0}, s{sT0}, s{sWAVE}\ns_lshl_b32 s{sT0}, s{sT0}, 6\ns_add_u32 s{sT0}, s{sT0}, {PROF}")
        k(f"v_mov_b32 v{offv}, 0")
        for i in range(12):
            k(f"v_mov_b32 v{tmpv}, s{sPROF+i}")
            k(f"buffer_store_dword v{tmpv}, v{offv}, s[{sWS}:{sWS+3}], s{sT0} offen offset:{4*i}")
        k("s_waitcnt vmcnt(0)")


SP_L = 0
SP_STRIDE = 3200
TR_L = 12800
MKP_L = 27136
MEM_L = 0
OP_L = 7168
WL = 12288

def retry_block(cfg, label, body, abort, target):
    cfg.setdefault("outofline", []).append(
        f"{label}:\ns_sub_u32 s{sSPIN}, s{sSPIN}, 1\ns_cbranch_scc1 {abort}\n{body}s_branch {target}")

def emit_flag_poll(k, cfg, vAddr, vD0, sExp, off, abort):
    WSR = f"s[{sWS}:{sWS+3}]"
    top = k.uid("FP"); done = k.uid("FPD")
    k(f"s_mov_b32 s{sT0}, {off}" if isinstance(off, int) else f"s_mov_b32 s{sT0}, {off}")
    k(f"buffer_load_dword v{vD0}, v{vAddr}, {WSR}, s{sT0} offen sc1")
    k.label(top)
    k(f"buffer_load_dword v{vD0+1}, v{vAddr}, {WSR}, s{sT0} offen sc1")
    k("s_waitcnt vmcnt(1)")
    k(f"v_cmp_gt_u32 vcc, s{sExp}, v{vD0}")
    k(f"s_cbranch_vccz {done}")
    k(f"buffer_load_dword v{vD0}, v{vAddr}, {WSR}, s{sT0} offen sc1")
    k("s_waitcnt vmcnt(1)")
    k(f"v_cmp_gt_u32 vcc, s{sExp}, v{vD0+1}")
    k(f"s_cbranch_vccz {done}")
    k(f"s_sub_u32 s{sSPIN}, s{sSPIN}, 1\ns_cbranch_scc0 {top}\ns_branch {abort}")
    k.label(done)

def blockregA(b):
    return Reg("a", 8 * b) if b < 28 else Reg("v", 88 + 8 * (b - 28))

def emit_ring_advance(k):
    k(f"s_add_u32 s{sSTEP}, s{sSTEP}, 1")
    k(f"s_and_b32 s{sT0}, s{sSTEP}, 3")
    k(f"s_mul_i32 s{sMS}, s{sT0}, 7168\ns_add_u32 s{sMS}, s{sMS}, {MEMRING}")
    k(f"s_mul_i32 s{sPS}, s{sT0}, 10240\ns_add_u32 s{sPS}, s{sPS}, {PRING}")

def emit_chain_A(k, cfg, abort):
    prof = Prof(k, cfg.get("prof"), cfg.get("raw"))
    q = Q(k)
    WSR = f"s[{sWS}:{sWS+3}]"
    modes = cfg.get("modes", [cfg.get("st", "")])
    ST = modes[0]
    vL16, vL8, vTRw, vTRr, vMKg, vSR, vSR2, vPst, vIdx, vX, vT, vDet, vSW = range(1, 14)
    vLane = 0
    TMP, ACC, TR, MEM = 16, 20, 48, 60
    SACC = ACC
    XK = 224
    def TRr(tile): return (A(252, 2) if tile == 6 else V(TR + 2 * tile, 2))
    if cfg.get("tot"): k("s_memrealtime s[86:87]")
    k("v_and_b32 v0, 63, v0")
    k(f"v_lshlrev_b32 v{vL16}, 4, v{vLane}")
    k(f"v_lshlrev_b32 v{vL8}, 3, v{vLane}")
    k(f"v_and_b32 v{vX}, 15, v{vLane}")
    k(f"v_lshrrev_b32 v{vT}, 4, v{vLane}")
    k(f"v_min_u32 v{vDet}, 13, v{vX}\nv_lshlrev_b32 v{vDet}, 2, v{vDet}")
    k(f"s_mul_i32 s{sT1}, s{sWAVE}, 3584\ns_add_u32 s{sT1}, s{sT1}, {TR_L}")
    k(f"v_lshrrev_b32 v{vTRw}, 3, v{vX}\nv_lshlrev_b32 v{vTRw}, 8, v{vTRw}")
    k(f"v_lshl_add_u32 v{vTRw}, v{vT}, 6, v{vTRw}")
    k(f"v_and_b32 v{TMP}, 7, v{vX}\nv_lshl_add_u32 v{vTRw}, v{TMP}, 3, v{vTRw}")
    k(f"v_add_u32 v{vTRw}, s{sT1}, v{vTRw}")
    k(f"v_lshrrev_b32 v{vTRr}, 1, v{vT}\nv_lshlrev_b32 v{vTRr}, 8, v{vTRr}")
    k(f"v_and_b32 v{TMP}, 3, v{vLane}\nv_lshl_add_u32 v{vTRr}, v{TMP}, 6, v{vTRr}")
    k(f"v_and_b32 v{TMP}, 1, v{vT}\nv_lshl_add_u32 v{vTRr}, v{TMP}, 5, v{vTRr}")
    k(f"v_bfe_u32 v{TMP}, v{vLane}, 2, 2\nv_lshl_add_u32 v{vTRr}, v{TMP}, 3, v{vTRr}")
    k(f"v_add_u32 v{vTRr}, s{sT1}, v{vTRr}")
    k(f"v_lshrrev_b32 v{vMKg}, 1, v{vT}\nv_lshlrev_b32 v{vMKg}, 7, v{vMKg}")
    k(f"v_and_b32 v{TMP}, 7, v{vLane}\nv_lshl_add_u32 v{vMKg}, v{TMP}, 4, v{vMKg}")
    k(f"v_and_b32 v{TMP+1}, 1, v{vT}\nv_lshl_add_u32 v{vMKg}, v{TMP+1}, 3, v{vMKg}")
    k(f"s_mul_i32 s{sT1}, s{sWAVE}, {SP_STRIDE}\ns_add_u32 s{sT1}, s{sT1}, {SP_L}")
    for kap in range(3):
        pbase = 0 if kap == 2 else 2 + 4 * kap
        k(f"v_add_u32 v{TMP}, v{vX}, v{vT}\nv_add_u32 v{TMP}, {pbase}, v{TMP}\nv_and_b32 v{TMP}, 15, v{TMP}")
        k(f"v_lshlrev_b32 v{vSW+kap}, 4, v{TMP}\nv_lshl_add_u32 v{vSW+kap}, v{vT}, 8, v{vSW+kap}")
        k(f"v_add_u32 v{vSW+kap}, s{sT1}, v{vSW+kap}")
        if kap: k(f"v_add_u32 v{vSW+kap}, {kap*1024}, v{vSW+kap}")
    k(f"s_lshl_b32 s{sT1}, s{sWAVE}, 2")
    k(f"v_add_u32 v{TMP}, s{sT1}, v{vT}")
    k(f"v_subrev_u32 v{TMP+1}, 2, v{vX}")
    k(f"v_lshrrev_b32 v{TMP+2}, 2, v{TMP+1}\nv_and_b32 v{TMP+3}, 3, v{TMP+1}")
    k(f"v_cmp_gt_u32 vcc, 2, v{vX}\ns_nop 1")
    k(f"v_cndmask_b32 v{TMP+2}, v{TMP+2}, 2, vcc\nv_cndmask_b32 v{TMP+3}, v{TMP+3}, v{vX}, vcc")
    k(f"v_lshlrev_b32 v{vSR}, 10, v{TMP+2}\nv_lshl_add_u32 v{vSR}, v{TMP+3}, 8, v{vSR}")
    k(f"v_add_u32 v{TMP+2}, v{TMP}, v{vX}")
    k(f"v_and_b32 v{TMP+3}, 15, v{TMP+2}\nv_lshl_add_u32 v{vSR2}, v{TMP+3}, 4, v{vSR}")
    k(f"v_add_u32 v{TMP+2}, 8, v{TMP+2}\nv_and_b32 v{TMP+3}, 15, v{TMP+2}\nv_lshl_add_u32 v{vSR}, v{TMP+3}, 4, v{vSR}")
    k(f"v_add_u32 v{vSR}, {SP_L}, v{vSR}\nv_add_u32 v{vSR2}, {SP_L}, v{vSR2}")
    k(f"v_cmp_gt_u32 vcc, 10, v{vX}\nv_mov_b32 v{TMP+3}, {SP_L+3072}\ns_nop 0")
    k(f"v_cndmask_b32 v{vSR}, v{TMP+3}, v{vSR}, vcc\nv_cndmask_b32 v{vSR2}, v{TMP+3}, v{vSR2}, vcc")
    k(f"v_cmp_gt_u32 s[{sMaskA}:{sMaskA+1}], 10, v{vX}")
    k(f"v_cmp_gt_u32 s[{sMaskB}:{sMaskB+1}], 40, v{vLane}")
    k(f"v_mov_b32 v{vIdx}, 0x44444444\nv_mov_b32 v{TMP+2}, 0xeeeeeeee")
    k(f"v_and_b32 v{TMP+1}, 8, v{vLane}\nv_cmp_ne_u32 vcc, 0, v{TMP+1}\ns_nop 1\nv_cndmask_b32 v{vIdx}, v{vIdx}, v{TMP+2}, vcc")
    k(f"s_lshr_b32 s{sT0}, s{sRANK}, 2\ns_mul_i32 s{sT0}, s{sT0}, 2560")
    k(f"s_bfe_u32 s{sT1}, s{sRANK}, 0x10001\ns_lshl_b32 s{sMS}, s{sT1}, 10\ns_lshl_b32 s{sPS}, s{sT1}, 8")
    k(f"s_and_b32 s{sT1}, s{sRANK}, 1\ns_lshl_b32 s{sMS1}, s{sT1}, 9\ns_add_u32 s{sMS}, s{sMS}, s{sMS1}")
    k(f"s_lshl_b32 s{sMS1}, s{sT1}, 7\ns_add_u32 s{sPS}, s{sPS}, s{sMS1}\ns_add_u32 s{sPS}, s{sPS}, 2048")
    k(f"s_add_u32 s{sMS}, s{sMS}, s{sT0}\ns_add_u32 s{sPS}, s{sPS}, s{sT0}")
    k(f"v_subrev_u32 v{TMP+1}, 2, v{vX}\nv_lshrrev_b32 v{TMP+1}, 1, v{TMP+1}")
    k(f"v_lshrrev_b32 v{TMP+2}, 1, v{TMP+1}\nv_lshlrev_b32 v{TMP+2}, 8, v{TMP+2}")
    k(f"v_and_b32 v{TMP+1}, 1, v{TMP+1}\nv_lshl_add_u32 v{TMP+2}, v{TMP+1}, 7, v{TMP+2}\nv_add_u32 v{TMP+2}, s{sMS}, v{TMP+2}")
    k(f"v_mov_b32 v{TMP+1}, s{sPS}\nv_cmp_gt_u32 vcc, 2, v{vX}\ns_nop 1\nv_cndmask_b32 v{TMP+2}, v{TMP+2}, v{TMP+1}, vcc")
    k(f"v_lshl_add_u32 v{vPst}, v{TMP}, 4, v{TMP+2}")
    k(f"v_and_b32 v{TMP+1}, 1, v{vX}\nv_lshl_add_u32 v{vPst}, v{TMP+1}, 3, v{vPst}")
    k(f"v_add_u32 v{TMP+1}, s{sMS}, v{vL16}\nv_add_u32 v{TMP+2}, s{sPS}, v{vL16}\nv_subrev_u32 v{TMP+2}, 512, v{TMP+2}")
    k(f"v_cmp_gt_u32 vcc, 32, v{vLane}\ns_nop 1\nv_cndmask_b32 v0, v{TMP+2}, v{TMP+1}, vcc")
    k(f"s_lshr_b32 s{sT0}, s{sRANK}, 2\ns_lshl_b32 s{sT0}, s{sT0}, 7\ns_and_b32 s{sT1}, s{sRANK}, 3\ns_lshl_b32 s{sT1}, s{sT1}, 2")
    k(f"s_add_u32 s{sFLG}, s{sT0}, s{sT1}\ns_add_u32 s{sFLG}, s{sFLG}, {FLAGP}")
    k(f"s_mul_i32 s{sT0}, s{sRANK}, 401408\ns_mul_i32 s{sT1}, s{sWAVE}, 100352\ns_add_u32 s{sT0}, s{sT0}, s{sT1}")
    if WA_OFF: k(f"s_add_u32 s{sT0}, s{sT0}, {WA_OFF}")
    for b in range(49):
        R = blockregA(b)
        for a in range(2):
            off = (b * 2 + a) * 1024
            if off and off % 4096 == 0: k(f"s_add_u32 s{sT0}, s{sT0}, 4096")
            k(f"buffer_load_dwordx4 {R.r(4*a,4)}, v{vL16}, {WSR}, s{sT0} offen offset:{off%4096}")
    def xk_prefetch():
        for kap in range(2):
            for p in range(3):
                off = kap * 3584 + p * 1024
                so = sXK if off < 4096 else sT1
                if off >= 4096 and p == 1: k(f"s_add_u32 s{sT1}, s{sXK}, 4096")
                k(f"buffer_load_dwordx4 {A(XK+kap*14+4*p,4)}, v{vL16}, {WSR}, s{so} offen offset:{off%4096}")
            off = kap * 3584 + 3072
            so = sXK if off < 4096 else sT1
            k(f"buffer_load_dwordx2 {A(XK+kap*14+12,2)}, v{vL8}, {WSR}, s{so} offen offset:{off%4096}")
    k(f"s_mul_i32 s{sXK}, s{sWAVE}, 7168\ns_add_u32 s{sXK}, s{sXK}, {XK_OFF}")
    xk_prefetch()
    def zero_acc():
        for i in range(0, 28, 2): k(f"v_mov_b64 {V(ACC+i,2)}, 0")
    zero_acc()
    for i in range(4): k(f"v_mov_b32 v{TR+i}, 0xff800000")
    k(f"s_mul_i32 s{sT1}, s{sWAVE}, {SP_STRIDE}\ns_add_u32 s{sT1}, s{sT1}, {SP_L+3072}\nv_mov_b32 v{TMP}, s{sT1}")
    k(f"ds_write_b128 v{TMP}, {V(TR,4)}")
    k("s_waitcnt vmcnt(0) lgkmcnt(0)")
    if cfg.get("tot"): k("s_memrealtime s[88:89]\ns_waitcnt lgkmcnt(0)")
    k(f"s_mov_b32 s{sSTEP}, 0\ns_mov_b32 s{sMS}, {MEMRING}\ns_mov_b32 s{sPS}, {PRING}")
    def softmax(q, W, ST):
        X = TR
        dst = [TR, MEM, MEM+4, MEM+8, MEM+12, MEM+16, MEM+20, MEM+24]
        for u in range(8):
            w_, hf = u >> 1, u & 1
            q.ds(f"ds_read_b128 {V(dst[u],4)}, v{vSR if hf else vSR2} offset:{w_*SP_STRIDE}", f"sp{u}")
        def pflag():
            if W != 0: return
            k(f"s_add_u32 s{sT0}, s{sSTEP}, 1\nv_mov_b32 v{TMP}, s{sT0}\nv_mov_b32 v{TMP+1}, 0")
            k(f"s_mov_b64 exec, 1\nbuffer_store_dword v{TMP}, v{TMP+1}, {WSR}, s{sFLG} offen {ST}\ns_mov_b64 exec, -1")
        fpos = cfg.get("pflag_pos", 2)
        if fpos == 0: pflag()
        def pk(d, a, b):
            k(f"v_pk_add_f32 {V(d,2)}, {V(a,2)}, {V(b,2)}\nv_pk_add_f32 {V(d+2,2)}, {V(a+2,2)}, {V(b+2,2)}")
        q.wait_lg("sp1"); pk(dst[0], dst[0], dst[1])
        q.wait_lg("sp3"); pk(dst[2], dst[2], dst[3])
        q.wait_lg("sp5"); pk(dst[4], dst[4], dst[5]); pk(dst[0], dst[0], dst[2])
        q.wait_lg("sp7"); pk(dst[6], dst[6], dst[7]); pk(dst[4], dst[4], dst[6]); pk(dst[0], dst[0], dst[4])
        q.reset()
        prof.raw(8)
        if fpos == 1: pflag()
        M = vX; L = vT
        k(f"v_max3_f32 v{M}, v{X}, v{X+1}, v{X+2}")
        k(f"v_max_f32 v{M}, v{M}, v{X+3}")
        for ror in (8, 4, 2, 1):
            k("s_nop 1")
            k(f"v_max_f32_dpp v{M}, v{M}, v{M} row_ror:{ror} row_mask:0xf bank_mask:0xf")
        if fpos == 2: pflag()
        k(f"v_sub_f32 v{X}, v{X}, v{M}\nv_sub_f32 v{X+1}, v{X+1}, v{M}\nv_sub_f32 v{X+2}, v{X+2}, v{M}\nv_sub_f32 v{X+3}, v{X+3}, v{M}")
        for i in range(4): k(f"v_exp_f32 v{X+i}, v{X+i}")
        if fpos == 3: pflag()
        k(f"v_add_f32 v{L}, v{X}, v{X+1}")
        k(f"v_add_f32 v{M}, v{X+2}, v{X+3}")
        k(f"v_add_f32 v{L}, v{L}, v{M}")
        for ror in (8, 4, 2, 1):
            k("s_nop 1")
            k(f"v_add_f32_dpp v{L}, v{L}, v{L} row_ror:{ror} row_mask:0xf bank_mask:0xf")
        if fpos == 4: pflag()
        k(f"v_rcp_f32 v{L}, v{L}")
        k("s_nop 0")
        for i in range(4): k(f"v_mul_f32 v{X+i}, v{X+i}, v{L}")
        k(f"v_cvt_pk_bf16_f32 v{X}, v{X}, v{X+1}\nv_cvt_pk_bf16_f32 v{X+1}, v{X+2}, v{X+3}")
        k(f"v_min_u32 v{X}, -2, v{X}\nv_min_u32 v{X+1}, -2, v{X+1}")
        k(f"s_mov_b64 exec, s[{sMaskA}:{sMaskA+1}]")
        k(f"buffer_store_dwordx2 {V(X,2)}, v{vPst}, {WSR}, s{sPS} offen {ST}")
        k("s_mov_b64 exec, -1")
        prof.raw(9)
        if fpos == 5: pflag()
        prof.raw(11)
    def preset(ST):
        X = TR
        k(f"s_add_u32 s{sRST}, s{sSTEP}, 2\ns_and_b32 s{sRST}, s{sRST}, 3\ns_mul_i32 s{sRST}, s{sRST}, 10240\ns_add_u32 s{sRST}, s{sRST}, {PRING}")
        for i in range(4): k(f"v_mov_b32 v{X+i}, -1")
        k(f"s_mov_b64 exec, s[{sMaskB}:{sMaskB+1}]")
        k(f"buffer_store_dwordx4 {V(X,4)}, v0, {WSR}, s{sRST} offen {ST}")
        k("s_mov_b64 exec, -1")
    def wave_loop(W, ST):
        q = Q(k)
        prof.start(); prof.tot_start(cfg.get("tot"))
        loop = k.uid("A_loop")
        k.label(loop)
        prof.stamp(0); prof.raw(0)
        if W == 2: emit_flag_poll(k, cfg, vDet, TMP, sSTEP, FLAGM, abort)
        k("s_barrier")
        prof.stamp(1); prof.raw(1)
        if cfg.get("trace"): k(f"s_memtime s[90:91]")
        q.reset()
        def mem_load(t):
            so = sMS if t < 4 else sMS1
            q.vmem(f"buffer_load_dwordx4 {V(MEM+4*t,4)}, v{vL16}, {WSR}, s{so} offen offset:{(t*1024)%4096} sc1", f"mem{t}")
        mem_load(0)
        k(f"s_add_u32 s{sMS1}, s{sMS}, 4096")
        for i in range(0, 14, 2): k(f"v_mov_b64 {V(ACC+i,2)}, 0")
        for i in range(cfg.get("pace", 5)): k("s_nop 0")
        mem_load(1)
        for i in range(14, 28, 2): k(f"v_mov_b64 {V(ACC+i,2)}, 0")
        for i in range(cfg.get("pace", 5)): k("s_nop 0")
        mem_load(2)
        k(f"s_nop {cfg.get('pace2', 12)}")
        mem_load(3)
        k(f"s_nop {cfg.get('pace2', 12)}")
        mem_load(4)
        again = k.uid("A_again"); retry = k.uid("A_retry")
        t0w, t1w = (112 * W) >> 6, (112 * W + 111) >> 6
        def stage(t, out=None):
            txt = f"ds_write_b128 v{vL16}, {V(MEM+4*t,4)} offset:{MKP_L + W*3072 + (t-t0w)*1024}"
            if out is None: q.ds(txt, f"st{t}")
            else: out(txt)
        def smf(tt, t):
            R = blockregA(7 * tt + t)
            k(f"v_smfmac_f32_16x16x64_bf16 {V(ACC+4*tt,4)}, {V(MEM+4*t,4)}, {R.r(0,8)}, v{vIdx}")
        k("s_waitcnt vmcnt(4)")
        prof.raw(2)
        for t in range(7):
            m0 = MEM + 4 * t
            fl = [[], [], [], []]
            if t < 2: fl[0].append(lambda t=t: mem_load(t + 5))
            fl[1 if t < 2 else 0].append(lambda t=t, m0=m0: k(f"v_max_u32 v{vX}, v{m0}, v{m0+1}" if t == 0 else f"v_max3_u32 v{vX}, v{vX}, v{m0}, v{m0+1}"))
            fl[2 if t < 2 else 1].append(lambda m0=m0: k(f"v_max3_u32 v{vX}, v{vX}, v{m0+2}, v{m0+3}"))
            if t0w <= t <= t1w: fl[3 if t < 2 else 2].append(lambda t=t: stage(t))
            if t == 6: fl[3].append(lambda: k(f"v_cmp_eq_u32 vcc, -1, v{vX}"))
            else: fl[3].append(lambda t=t: k(f"s_waitcnt vmcnt({[4,4,3,2,1,0][t]})"))
            for tt in range(4):
                smf(tt, t)
                for f in fl[tt]: f()
        k(f"s_cbranch_vccnz {retry}")
        prof.raw(3)
        rb = K()
        lab = k.uid("A_rl")
        rb(f"{lab}:")
        rb(f"s_add_u32 s{sMS1}, s{sMS}, 4096")
        for t in range(7):
            so = sMS if t < 4 else sMS1
            rb(f"buffer_load_dwordx4 {V(MEM+4*t,4)}, v{vL16}, {WSR}, s{so} offen offset:{(t*1024)%4096} sc1")
        rb("s_waitcnt vmcnt(0)")
        rb(f"v_max3_u32 v{vX}, v{MEM}, v{MEM+1}, v{MEM+2}")
        for i in range(3, 27, 2): rb(f"v_max3_u32 v{vX}, v{vX}, v{MEM+i}, v{MEM+i+1}")
        rb(f"v_max_u32 v{vX}, v{vX}, v{MEM+27}")
        rb(f"v_cmp_eq_u32 vcc, -1, v{vX}")
        ok_ = k.uid("A_rok")
        rb(f"s_cbranch_vccz {ok_}")
        rb(f"s_sub_u32 s{sSPIN}, s{sSPIN}, 1\ns_cbranch_scc0 {lab}\ns_branch {abort}")
        rb(f"{ok_}:")
        for i in range(0, 16, 2): rb(f"v_mov_b64 {V(ACC+i,2)}, 0")
        if cfg.get("cnt_retry"): rb(f"s_add_u32 s{sPROF+11}, s{sPROF+11}, 1")
        for t in range(t0w, t1w + 1): stage(t, rb)
        rb("s_nop 1")
        for t in range(7):
            for tt in range(4):
                R = blockregA(7 * tt + t)
                rb(f"v_smfmac_f32_16x16x64_bf16 {V(ACC+4*tt,4)}, {V(MEM+4*t,4)}, {R.r(0,8)}, v{vIdx}")
        rb(f"s_branch {again}")
        cfg.setdefault("outofline", []).append(f"{retry}:\ns_nop 7\n" + rb.text())
        k.label(again)
        q.vm = []
        def cvt(tile, hi):
            pa = ACC + 4 * tile + 2 * hi
            k(f"v_cvt_pk_bf16_f32 v{TMP+2*(tile&1)+hi}, v{pa}, v{pa+1}")
        def wr(tile): q.ds(f"ds_write_b64 v{vTRw}, {V(TMP+2*(tile&1),2)} offset:{tile*512}", f"w{tile}")
        def tr(tile): q.ds(f"ds_read_b64_tr_b16 {TRr(tile)}, v{vTRr} offset:{tile*512}", f"tr{tile}")
        def mk(tt): q.ds(f"ds_read_b64 {V(MEM+2*tt,2)}, v{vMKg} offset:{MKP_L + W*3072 + 256*(7*W+tt-4*t0w)}", f"mk{tt}")
        fill = []
        for tile in range(4): fill += [("c", tile, 0), ("c", tile, 1), ("w", tile), ("t", tile)]
        fill_after = {}
        slot = 1
        for f in fill: fill_after.setdefault(slot, []).append(f); slot += 1
        for j, f in enumerate([("c", 4, 0), ("c", 4, 1), ("w", 4), ("t", 4)]): fill_after.setdefault(17 + j, []).append(f)
        def dofill(f):
            if f[0] == "c": cvt(f[1], f[2])
            elif f[0] == "w": wr(f[1])
            elif f[0] == "t": tr(f[1])
        sl = 0
        for tt in (4, 5, 6):
            for t in range(7):
                smf(tt, t)
                for f in fill_after.get(sl, []): dofill(f)
                sl += 1
        prof.raw(4)
        def smm(kap, p, first=False):
            D = V(SACC + 4 * kap, 4)
            C = "0" if first else D
            if p < 3:
                Aop = A(XK + kap * 14 + 4 * p, 4) if kap < 2 else V(MEM + 4 * p, 4)
                k(f"v_mfma_f32_16x16x32_bf16 {D}, {Aop}, {V(TR+4*p,4)}, {C}")
            else:
                Aop = A(XK + kap * 14 + 12, 2) if kap < 2 else V(MEM + 12, 2)
                k(f"v_mfma_f32_16x16x16_bf16 {D}, {Aop}, {TRr(6)}, {C}")
        cvt(5, 0); cvt(5, 1)
        q.wait_lg("tr3")
        smm(0, 0, True)
        wr(5); tr(5)
        smm(1, 0, True)
        mk(0); mk(1)
        smm(0, 1)
        cvt(6, 0); cvt(6, 1)
        smm(1, 1)
        wr(6); tr(6)
        mk(2); mk(3); mk(4); mk(5); mk(6)
        q.wait_lg("mk1")
        smm(0, 2); smm(1, 2)
        smm(2, 0, True)
        q.wait_lg("mk5")
        smm(2, 1); smm(2, 2)
        q.wait_lg("mk6")
        smm(0, 3); smm(1, 3); smm(2, 3)
        prof.raw(5)
        k(f"s_add_u32 s{sXK}, s{sXK}, 28672")
        k("s_nop 4")
        q.ds(f"ds_write_b128 v{vSW}, {V(SACC,4)}")
        k("s_nop 1")
        q.ds(f"ds_write_b128 v{vSW+1}, {V(SACC+4,4)}")
        q.ds(f"ds_write_b128 v{vSW+2}, {V(SACC+8,4)}")
        q.lg0()
        prof.stamp(3); prof.raw(6)
        k("s_barrier")
        prof.stamp(4); prof.raw(7)
        X = TR
        if W < 2: softmax(q, W, ST)
        if cfg.get("bar3", True): k("s_barrier")
        if W == 3: preset(ST)
        if cfg.get("trace") and W == 3:
            k(f"s_waitcnt lgkmcnt(0)\ns_lshl_b32 s{sT0}, s{sRANK}, 6\ns_add_u32 s{sT0}, s{sT0}, s{sSTEP}\ns_lshl_b32 s{sT0}, s{sT0}, 2\ns_add_u32 s{sT0}, s{sT0}, {PROF+8192}")
            k(f"v_mov_b32 v{TR+4}, s90\nv_mov_b32 v{TR+5}, 0\ns_mov_b64 exec, 1\nbuffer_store_dword v{TR+4}, v{TR+5}, {WSR}, s{sT0} offen\ns_mov_b64 exec, -1")
        xk_prefetch()
        prof.stamp(5); prof.raw(10)
        emit_ring_advance(k)
        k("s_waitcnt vmcnt(0)")
        k(f"s_cmp_lt_u32 s{sSTEP}, {cfg['nsteps']}\ns_cbranch_scc1 {loop}")
        prof.raw_dump(TR, TR + 1); prof.dump(TR, TR + 1); prof.tot_dump(cfg.get("tot"), TR, TR + 1)
        k("s_endpgm")
    if cfg.get("mode_hook"): cfg["mode_hook"](k, TR)
    mlabs = [k.uid("A_m") for _ in modes]
    if len(modes) > 1: k(f"s_cmp_eq_u32 s{sMODE}, 1\ns_cbranch_scc1 {mlabs[1]}")
    for mi, st in enumerate(modes):
        k.label(mlabs[mi])
        labs = [k.uid("A_w") for _ in range(4)]
        for w in range(1, 4): k(f"s_cmp_eq_u32 s{sWAVE}, {w}\ns_cbranch_scc1 {labs[w]}")
        for w in range(4):
            k.label(labs[w])
            wave_loop(w, st)

def blockregB(tau, t):
    if t == 6 and tau < 6: return None
    b = 7 * tau + t - min(tau, 6)
    return Reg("a", 32 + 8 * b) if b < 28 else Reg("v", 80 + 8 * (b - 28))

def emit_chain_B(k, cfg, abort):
    prof = Prof(k, cfg.get("prof"), cfg.get("raw"))
    q = Q(k)
    WSR = f"s[{sWS}:{sWS+3}]"
    modes = cfg.get("modes", [cfg.get("st", "")])
    vL16, vPollA, vPollB, vP0, vPm, vOA, vOR, vMst, vIdx, vWL, vDet = range(1, 12)
    vLane = 0
    WT, ACC, VB, MEM = 12, 28, 36, 52
    vT = WT
    VXR = 0
    if cfg.get("tot"): k("s_memrealtime s[86:87]")
    k(f"s_sub_u32 s{sRANK}, s{sRANK}, 16")
    k("v_and_b32 v0, 63, v0")
    k(f"v_lshlrev_b32 v{vL16}, 4, v{vLane}")
    k(f"s_mul_i32 s{sT0}, s{sWAVE}, 1792")
    k(f"v_add_u32 v{vPollA}, s{sT0}, v{vL16}")
    k(f"v_min_u32 v{vT}, 47, v{vLane}")
    k(f"v_lshlrev_b32 v{vT}, 4, v{vT}")
    k(f"s_add_u32 s{sT1}, s{sT0}, 1024")
    k(f"v_add_u32 v{vPollB}, s{sT1}, v{vT}")
    I, SUB, GA, T2 = WT + 1, WT + 2, WT + 3, WT + 4
    k(f"v_and_b32 v{I}, 7, v{vLane}\nv_bfe_u32 v{SUB}, v{vLane}, 3, 1\nv_lshrrev_b32 v{GA}, 4, v{vLane}")
    k(f"v_and_b32 v{T2}, 3, v{vLane}\nv_lshlrev_b32 v{vDet}, 2, v{T2}\ns_lshl_b32 s{sT0}, s{sWAVE}, 7\nv_add_u32 v{vDet}, s{sT0}, v{vDet}")
    k(f"s_mul_i32 s{sT0}, s{sWAVE}, 2560")
    k(f"v_add_u32 v{vP0}, s{sT0}, v{vL16}")
    k(f"v_lshrrev_b32 v{T2}, 1, v{GA}\nv_lshlrev_b32 v{vPm}, 8, v{T2}")
    k(f"v_lshl_add_u32 v{vPm}, v{SUB}, 7, v{vPm}\nv_lshl_add_u32 v{vPm}, v{I}, 4, v{vPm}")
    k(f"s_add_u32 s{sT0}, s{sT0}, 2048\nv_add_u32 v{vPm}, s{sT0}, v{vPm}")
    C2, CG = WT + 5, WT + 6
    k(f"v_and_b32 v{C2}, 3, v{vLane}")
    k(f"v_bfe_u32 v{CG}, v{vLane}, 2, 2\nv_lshrrev_b32 v{T2}, 5, v{vLane}\nv_lshl_add_u32 v{CG}, v{T2}, 2, v{CG}")
    k(f"v_and_b32 v{T2}, 1, v{GA}\nv_lshl_add_u32 v{T2}, v{CG}, 1, v{T2}")
    k(f"v_lshlrev_b32 v{vOA}, 2, v{C2}\nv_xor_b32 v{T2}, v{T2}, v{vOA}\nv_and_b32 v{T2}, 15, v{T2}")
    k(f"v_lshlrev_b32 v{vOA}, 8, v{C2}\nv_lshl_add_u32 v{vOA}, v{T2}, 4, v{vOA}")
    k(f"s_lshl_b32 s{sT0}, s{sWAVE}, 10\ns_add_u32 s{sT0}, s{sT0}, {OP_L}\nv_add_u32 v{vOA}, s{sT0}, v{vOA}")
    k(f"v_lshlrev_b32 v{T2}, 2, v{GA}\nv_and_b32 v{vOR}, 15, v{vLane}\nv_xor_b32 v{vOR}, v{vOR}, v{T2}\nv_and_b32 v{vOR}, 15, v{vOR}")
    k(f"v_lshlrev_b32 v{vOR}, 4, v{vOR}\nv_lshl_add_u32 v{vOR}, v{GA}, 8, v{vOR}\nv_add_u32 v{vOR}, {OP_L}, v{vOR}")
    k(f"v_and_b32 v{T2}, 1, v{vLane}\nv_lshl_add_u32 v{T2}, v{T2}, 2, v{GA}")
    k(f"v_bfe_u32 v{vMst}, v{vLane}, 3, 1\nv_lshl_add_u32 v{T2}, v{vMst}, 4, v{T2}")
    k(f"v_bfe_u32 v{vMst}, v{vLane}, 2, 1\nv_lshl_add_u32 v{T2}, v{vMst}, 3, v{T2}")
    k(f"v_lshlrev_b32 v{T2}, 4, v{T2}")
    k(f"v_bfe_u32 v{vMst}, v{vLane}, 1, 1\nv_lshl_add_u32 v{vMst}, v{vMst}, 3, v{T2}")
    k(f"s_lshl_b32 s{sT0}, s{sRANK}, 9\nv_add_u32 v{vMst}, s{sT0}, v{vMst}")
    k(f"s_lshl_b32 s{sFLG}, s{sRANK}, 2\ns_add_u32 s{sFLG}, s{sFLG}, {FLAGM}")
    k(f"v_mov_b32 v{vIdx}, 0x44444444\nv_mov_b32 v{T2}, 0xeeeeeeee")
    k(f"v_cmp_ne_u32 vcc, 0, v{SUB}\ns_nop 1\nv_cndmask_b32 v{vIdx}, v{vIdx}, v{T2}, vcc")
    if cfg.get("warm", True):
        sk = k.uid("B_warm")
        k(f"s_cmp_lg_u32 s{sRANK}, 0\ns_cbranch_scc1 {sk}")
        k(f"s_lshl_b32 s{sT0}, s{sWAVE}, 6\nv_add_u32 v{WT}, s{sT0}, v{vLane}\nv_lshlrev_b32 v{WT}, 7, v{WT}")
        for u in range(3):
            k(f"s_mov_b32 s{sT0}, {MEMRING + u*32768}\nbuffer_load_dword v{WT+1}, v{WT}, {WSR}, s{sT0} offen sc1")
        k("s_waitcnt vmcnt(0)")
        k.label(sk)
    k(f"s_mul_i32 s{sT0}, s{sRANK}, 458752\ns_mul_i32 s{sT1}, s{sWAVE}, 114688\ns_add_u32 s{sT0}, s{sT0}, s{sT1}\ns_add_u32 s{sT0}, s{sT0}, {WB_OFF}")
    k(f"s_mul_i32 s{sT1}, s{sWAVE}, 12288\ns_add_u32 s{sT1}, s{sT1}, {WL}\nv_add_u32 v{vWL}, s{sT1}, v{vL16}")
    for tau in range(8):
        for t in range(7):
            R = blockregB(tau, t)
            for a in range(2):
                off = ((7 * tau + t) * 2 + a) * 1024
                if off and off % 4096 == 0: k(f"s_add_u32 s{sT0}, s{sT0}, 4096")
                if R is not None:
                    k(f"buffer_load_dwordx4 {R.r(4*a,4)}, v{vL16}, {WSR}, s{sT0} offen offset:{off%4096}")
                else:
                    k(f"s_mul_i32 s{sT1}, s{sWAVE}, 12288\ns_add_u32 m0, s{sT1}, {WL + tau*2048 + a*1024 - off%4096}\ns_nop 0")
                    k(f"buffer_load_dwordx4 v{vL16}, {WSR}, s{sT0} offen offset:{off%4096} lds")
    PX = WT + 15
    for i in range(8): k(f"v_mov_b32 v{ACC+i}, 0")
    k("s_waitcnt vmcnt(0) lgkmcnt(0)")
    if cfg.get("tot"): k("s_memrealtime s[88:89]\ns_waitcnt lgkmcnt(0)")
    k(f"s_mov_b32 s{sSTEP}, 0\ns_mov_b32 s{sMS}, {MEMRING}\ns_mov_b32 s{sPS}, {PRING}")
    k(f"s_mul_i32 s{sXK}, s{sRANK}, 32768\ns_lshl_b32 s{sT0}, s{sWAVE}, 13\ns_add_u32 s{sXK}, s{sXK}, s{sT0}\ns_add_u32 s{sXK}, s{sXK}, {VX_OFF}")
    k(f"s_mov_b32 s{sOUT}, {MEMOUT+7168}")
    k(f"s_mov_b32 s{sVXC}, {FLAGV}")
    def b_loop(ST):
        q = Q(k)
        prof.start(); prof.tot_start(cfg.get("tot"))
        loop = k.uid("B_loop")
        k.label(loop)
        prof.stamp(0); prof.raw(0)
        if cfg.get("b_sleep"): k(f"s_sleep {cfg['b_sleep']}")
        top = k.uid("PM"); retry = k.uid("PMR")
        k.label(top)
        k(f"buffer_load_dwordx4 {V(WT,4)}, v{vPollA}, {WSR}, s{sMS} offen sc1")
        k(f"buffer_load_dwordx4 {V(WT+4,4)}, v{vPollB}, {WSR}, s{sMS} offen sc1")
        if cfg.get("vxwait"): k(f"v_mov_b32 v{WT+9}, 0\nbuffer_load_dword v{WT+8}, v{WT+9}, {WSR}, s{sVXC} offen sc1")
        k("s_waitcnt vmcnt(0)")
        k(f"v_max3_u32 v{PX}, v{WT}, v{WT+1}, v{WT+2}")
        k(f"v_max3_u32 v{PX}, v{PX}, v{WT+3}, v{WT+4}")
        k(f"v_max3_u32 v{PX}, v{PX}, v{WT+5}, v{WT+6}")
        k(f"v_max_u32 v{PX}, v{PX}, v{WT+7}")
        k(f"v_cmp_eq_u32 vcc, -1, v{PX}")
        k(f"s_cbranch_vccnz {retry}")
        if cfg.get("vxwait"):
            k(f"v_cmp_ge_u32 vcc, s{sSTEP}, v{WT+8}")
            k(f"s_cbranch_vccnz {retry}")
        retry_block(cfg, retry, "", abort, top)
        q.reset()
        prof.stamp(1); prof.raw(1)
        q.ds(f"ds_write_b128 v{vPollA}, {V(WT,4)} offset:{MEM_L}")
        q.ds(f"ds_write_b128 v{vPollB}, {V(WT+4,4)} offset:{MEM_L}")
        q.lg0()
        k("s_barrier")
        prof.stamp(2)
        for t in range(7):
            q.ds(f"ds_read_b128 {V(MEM+4*t,4)}, v{vL16} offset:{MEM_L+t*1024}", f"mem{t}")
        nm = k.uid("B_nm")
        k(f"s_cmp_lg_u32 s{sWAVE}, 0\ns_cbranch_scc1 {nm}\ns_cmp_eq_u32 s{sSTEP}, 0\ns_cbranch_scc1 {nm}")
        k(f"s_sub_u32 s{sT1}, s{sOUT}, 7168\nbuffer_store_dwordx2 {V(VB+14,2)}, v{vMst}, {WSR}, s{sT1} offen sc1")
        k.label(nm)
        k(f"s_add_u32 s{sT1}, s{sXK}, 4096")
        def vx_load(u):
            off = u * 1024
            so = sXK if off < 4096 else sT1
            k(f"buffer_load_dwordx4 {A(VXR+4*u,4)}, v{vL16}, {WSR}, s{so} offen offset:{off%4096} sc1")
        def vb_dst(tau, rp):
            hh, c = tau >> 1, tau & 1
            a, sub = hh >> 1, hh & 1
            return VB + 8 * c + 4 * a + 2 * rp + sub
        for tau in range(8):
            for t in range(7):
                if tau == 0: q.wait_lg(f"mem{t}")
                R = blockregB(tau, t)
                if R is None:
                    q.wait_lg(f"wl{tau}b")
                    Bop = V(WT + 8 * (tau & 1), 8)
                else:
                    Bop = R.r(0, 8)
                k(f"v_smfmac_f32_16x16x64_bf16 {V(ACC+4*(tau&1),4)}, {V(MEM+4*t,4)}, {Bop}, v{vIdx}")
                if tau < 6:
                    if t == 0: q.ds(f"ds_read_b128 {V(WT+8*(tau&1),4)}, v{vWL} offset:{tau*2048}", f"wl{tau}a")
                    if t == 1: q.ds(f"ds_read_b128 {V(WT+8*(tau&1)+4,4)}, v{vWL} offset:{tau*2048+1024}", f"wl{tau}b")
                if tau < 4 and t in (5, 6): vx_load(2 * tau + (t - 5))
                if tau >= 1:
                    pa = ACC + 4 * ((tau - 1) & 1)
                    if t == 2: k(f"v_cvt_pk_bf16_f32 v{vb_dst(tau-1,0)}, v{pa}, v{pa+1}")
                    if t == 3: k(f"v_cvt_pk_bf16_f32 v{vb_dst(tau-1,1)}, v{pa+2}, v{pa+3}")
                    if t == 4: k(f"v_mov_b64 {V(pa,2)}, 0")
                    if t == 5: k(f"v_mov_b64 {V(pa+2,2)}, 0")
        k(f"s_add_u32 s{sXK}, s{sXK}, 458752")
        k("s_nop 6")
        pa = ACC + 4
        k(f"v_cvt_pk_bf16_f32 v{vb_dst(7,0)}, v{pa}, v{pa+1}")
        k(f"v_cvt_pk_bf16_f32 v{vb_dst(7,1)}, v{pa+2}, v{pa+3}")
        k(f"v_mov_b64 {V(pa,2)}, 0\nv_mov_b64 {V(pa+2,2)}, 0")
        prof.raw(2)
        k("s_waitcnt vmcnt(0)")
        prof.stamp(3); prof.raw(3)
        k(f"s_add_u32 s{sMS1}, s{sSTEP}, 1")
        emit_flag_poll(k, cfg, vDet, WT, sMS1, FLAGP, abort)
        prof.stamp(4); prof.raw(4)
        P0, P1, PM = MEM, MEM + 4, MEM + 8
        q.reset()
        def p_loads(qq):
            qq(f"buffer_load_dwordx4 {V(P0,4)}, v{vP0}, {WSR}, s{sPS} offen sc1", "p0")
            qq(f"buffer_load_dwordx4 {V(P1,4)}, v{vP0}, {WSR}, s{sPS} offen offset:1024 sc1", "p1")
            qq(f"buffer_load_dwordx4 {V(PM,4)}, v{vPm}, {WSR}, s{sPS} offen sc1", "pm")
        p_loads(q.vmem)
        again = k.uid("B_again"); retry = k.uid("B_retry")
        k.label(again)
        for (Pr, src, tag) in ((P0, "x0", "p0"), (P1, "x1", "p1"), (PM, "m", "pm")):
            q.wait_vm(tag)
            if tag == "p0": prof.raw(5)
            if tag == "pm": prof.raw(6)
            for c in range(2):
                Bop = {"x0": A(VXR + c * 8, 8), "x1": A(VXR + 16 + c * 8, 8), "m": V(VB + 8 * c, 8)}[src]
                k(f"v_smfmac_f32_16x16x64_bf16 {V(ACC+4*c,4)}, {V(Pr,4)}, {Bop}, v{vIdx}")
                if c == 0: k(f"v_max_u32 v{PX}, v{Pr}, v{Pr+1}" if src == "x0" else f"v_max3_u32 v{PX}, v{PX}, v{Pr}, v{Pr+1}")
                else: k(f"v_max3_u32 v{PX}, v{PX}, v{Pr+2}, v{Pr+3}")
        k(f"v_cmp_eq_u32 vcc, -1, v{PX}")
        k(f"s_cbranch_vccnz {retry}")
        rb = K(); lab = k.uid("B_rl"); ok_ = k.uid("B_rok")
        rb(f"{lab}:")
        p_loads(lambda txt, tag: rb(txt))
        rb("s_waitcnt vmcnt(0)")
        rb(f"v_max3_u32 v{PX}, v{P0}, v{P0+1}, v{P0+2}")
        for i in range(3, 11, 2): rb(f"v_max3_u32 v{PX}, v{PX}, v{P0+i}, v{P0+i+1}")
        rb(f"v_max_u32 v{PX}, v{PX}, v{P0+11}")
        rb(f"v_cmp_eq_u32 vcc, -1, v{PX}")
        rb(f"s_cbranch_vccz {ok_}")
        rb(f"s_sub_u32 s{sSPIN}, s{sSPIN}, 1\ns_cbranch_scc0 {lab}\ns_branch {abort}")
        rb(f"{ok_}:")
        for i in range(0, 8, 2): rb(f"v_mov_b64 {V(ACC+i,2)}, 0")
        if cfg.get("cnt_retry"): rb(f"s_add_u32 s{sPROF+11}, s{sPROF+11}, 1")
        rb(f"s_nop 1\ns_branch {again}")
        cfg.setdefault("outofline", []).append(f"{retry}:\ns_nop 7\n" + rb.text())
        def mflag():
            k(f"s_add_u32 s{sT0}, s{sSTEP}, 1\nv_mov_b32 v{PX}, s{sT0}\nv_mov_b32 v{PX-1}, 0")
            k(f"s_mov_b64 exec, 1\nbuffer_store_dword v{PX}, v{PX-1}, {WSR}, s{sFLG} offen {ST}\ns_mov_b64 exec, -1")
        mpos = cfg.get("mflag_pos", 1)
        k("s_nop 5")
        for r in range(4): k(f"v_permlane32_swap_b32 v{ACC+r}, v{ACC+4+r}")
        k(f"v_pk_add_f32 {V(ACC,2)}, {V(ACC,2)}, {V(ACC+4,2)}\nv_pk_add_f32 {V(ACC+2,2)}, {V(ACC+2,2)}, {V(ACC+6,2)}")
        q.ds(f"ds_write_b128 v{vOA}, {V(ACC,4)}")
        nofin = k.uid("B_nofin"); join = k.uid("B_join")
        if mpos == 0:
            sk = k.uid("B_f0"); k(f"s_cmp_lg_u32 s{sWAVE}, 0\ns_cbranch_scc1 {sk}"); mflag(); k.label(sk)
        q.lg0()
        prof.stamp(5); prof.raw(7)
        k("s_barrier")
        prof.stamp(6); prof.raw(8)
        k(f"s_cmp_lg_u32 s{sWAVE}, 0\ns_cbranch_scc1 {nofin}")
        X = WT
        for w_ in range(4): q.ds(f"ds_read_b128 {V(X+4*w_,4)}, v{vOR} offset:{w_*1024}", f"o{w_}")
        def mflag2():
            k(f"s_mov_b64 exec, 1\nbuffer_store_dword v{ACC+4}, v{ACC+5}, {WSR}, s{sFLG} offen {ST}\ns_mov_b64 exec, -1")
        k(f"s_add_u32 s{sT0}, s{sSTEP}, 1\nv_mov_b32 v{ACC+4}, s{sT0}\nv_mov_b32 v{ACC+5}, 0")
        if mpos == 1: mflag2()
        k(f"s_add_u32 s{sT0}, s{sSTEP}, 1\ns_and_b32 s{sT0}, s{sT0}, 3\ns_mul_i32 s{sMS1}, s{sT0}, 7168\ns_add_u32 s{sMS1}, s{sMS1}, {MEMRING}")
        def pk(d, a, b):
            k(f"v_pk_add_f32 {V(d,2)}, {V(a,2)}, {V(b,2)}\nv_pk_add_f32 {V(d+2,2)}, {V(a+2,2)}, {V(b+2,2)}")
        q.wait_lg("o1")
        if mpos == 11: mflag2()
        pk(X, X, X+4)
        q.wait_lg("o3"); pk(X+8, X+8, X+12); pk(X, X, X+8)
        q.reset()
        prof.raw(9)
        if mpos == 12: mflag2()
        else: k("s_nop 1")
        k(f"v_permlane32_swap_b32 v{X}, v{X+2}\nv_permlane32_swap_b32 v{X+1}, v{X+3}")
        k("s_nop 1")
        k(f"v_permlane16_swap_b32 v{X}, v{X+1}\nv_permlane16_swap_b32 v{X+2}, v{X+3}")
        if mpos == 13: mflag2()
        k(f"v_cvt_pk_bf16_f32 v{X}, v{X}, v{X+1}\nv_cvt_pk_bf16_f32 v{X+1}, v{X+2}, v{X+3}")
        k(f"v_min_u32 v{X}, -2, v{X}\nv_min_u32 v{X+1}, -2, v{X+1}")
        k(f"buffer_store_dwordx2 {V(X,2)}, v{vMst}, {WSR}, s{sMS1} offen {ST}")
        prof.raw(10)
        if mpos == 2: mflag2()
        k(f"v_mov_b64 {V(VB+14,2)}, {V(X,2)}")
        k.label(nofin)
        if cfg.get("bar4", True): k("s_barrier")
        k(f"s_cmp_lg_u32 s{sWAVE}, 1\ns_cbranch_scc1 {join}")
        X = WT
        k(f"s_add_u32 s{sRST}, s{sSTEP}, 3\ns_and_b32 s{sRST}, s{sRST}, 3\ns_mul_i32 s{sRST}, s{sRST}, 7168\ns_add_u32 s{sRST}, s{sRST}, {MEMRING}")
        k(f"v_mov_b32 v{X}, -1\nv_mov_b32 v{X+1}, -1")
        k(f"buffer_store_dwordx2 {V(X,2)}, v{vMst}, {WSR}, s{sRST} offen {ST}")
        k.label(join)
        for i in range(0, 8, 2): k(f"v_mov_b64 {V(ACC+i,2)}, 0")
        prof.stamp(7)
        k(f"s_add_u32 s{sOUT}, s{sOUT}, 7168")
        emit_ring_advance(k)
        k(f"s_cmp_lt_u32 s{sSTEP}, {cfg['nsteps']}\ns_cbranch_scc1 {loop}")
        nm2 = k.uid("B_nm2")
        k(f"s_cmp_lg_u32 s{sWAVE}, 0\ns_cbranch_scc1 {nm2}")
        k(f"s_sub_u32 s{sT1}, s{sOUT}, 7168\nbuffer_store_dwordx2 {V(VB+14,2)}, v{vMst}, {WSR}, s{sT1} offen sc1\ns_waitcnt vmcnt(0)")
        k.label(nm2)
        k(f"s_add_u32 s{sRANK}, s{sRANK}, 16")
        prof.raw_dump(WT, WT + 1); prof.dump(WT, WT + 1); prof.tot_dump(cfg.get("tot"), WT, WT + 1)
        k("s_endpgm")
    if cfg.get("mode_hook"): cfg["mode_hook"](k, WT)
    mlabs = [k.uid("B_m") for _ in modes]
    if len(modes) > 1: k(f"s_cmp_eq_u32 s{sMODE}, 1\ns_cbranch_scc1 {mlabs[1]}")
    for mi, st in enumerate(modes):
        k.label(mlabs[mi])
        b_loop(st)

def emit_helper(k, cfg, abort):
    WSR = f"s[{sWS}:{sWS+3}]"
    modes = cfg.get("modes", [cfg.get("st", "")])
    dist = cfg.get("pf_dist", 3)
    k("v_lshlrev_b32 v1, 7, v0")
    k("v_mov_b32 v2, 0")
    if cfg.get("mode_hook"): cfg["mode_hook"](k, 40)
    mlabs = [k.uid("H_m") for _ in modes]
    if len(modes) > 1: k(f"s_cmp_eq_u32 s{sMODE}, 1\ns_cbranch_scc1 {mlabs[1]}")
    for mi, ST in enumerate(modes):
        k.label(mlabs[mi])
        k(f"s_mov_b32 s{sSTEP}, 0\ns_mov_b32 s{sXK}, {VX_OFF}\ns_mov_b32 s{sOUT}, {XK_OFF}\ns_mov_b32 s{sVXC}, {C_VX}")
        loop = k.uid("PF_loop"); p2 = k.uid("PF_p2"); g2 = k.uid("PF_g2")
        k(f"s_cmp_lg_u32 s{sWAVE}, 0\ns_cbranch_scc1 {g2}_end")
        k.label(loop)
        k.label(p2)
        k(f"buffer_load_dword v3, v2, {WSR}, s{sVXC} offen sc1\ns_waitcnt vmcnt(0)")
        k(f"v_cmp_gt_u32 vcc, 28, v3\ns_cbranch_vccz {g2}")
        k(f"s_sleep 1\ns_sub_u32 s{sSPIN}, s{sSPIN}, 1\ns_cbranch_scc0 {p2}\ns_branch {abort}")
        k.label(g2)
        k(f"s_add_u32 s{sT0}, s{sSTEP}, 1\nv_mov_b32 v3, s{sT0}\ns_mov_b32 s{sT0}, {FLAGV}")
        k(f"s_mov_b64 exec, 1\nbuffer_store_dword v3, v2, {WSR}, s{sT0} offen {ST}\ns_mov_b64 exec, -1")
        k(f"s_add_u32 s{sSTEP}, s{sSTEP}, 1\ns_add_u32 s{sVXC}, s{sVXC}, 16")
        k(f"s_cmp_lt_u32 s{sSTEP}, {cfg['nsteps']}\ns_cbranch_scc1 {loop}")
        k.label(f"{g2}_end")
        k("s_waitcnt vmcnt(0)")
        k("s_endpgm")

def gen_chain_test(cfg):
    k = K()
    name = "chain_kernel"
    k(f'.amdgcn_target "amdgcn-amd-amdhsa--gfx950"\n.text\n.globl {name}\n.p2align 8\n.type {name},@function\n{name}:')
    k("s_load_dwordx4 s[4:7], s[0:1], 0")
    if cfg.get("tot"): k("s_memrealtime s[96:97]")
    k("s_getreg_b32 s3, hwreg(HW_REG_XCC_ID)\ns_and_b32 s3, s3, 15")
    k("s_waitcnt lgkmcnt(0)")
    k(f"s_mov_b32 s{sWS}, s4\ns_mov_b32 s{sWS+1}, s5\ns_mov_b32 s{sWS+2}, {WS_BYTES}\ns_mov_b32 s{sWS+3}, 0x20000")
    if cfg.get("same_xcd", True):
        k("s_cmp_lg_u32 s3, 0\ns_cbranch_scc1 L_exit")
    k("v_mov_b32 v1, 0\nv_mov_b32 v2, 1")
    k("v_cmp_eq_u32 vcc, 0, v0\ns_and_saveexec_b64 s[20:21], vcc\ns_cbranch_execz L_t")
    k("global_atomic_add v3, v1, v2, s[6:7] sc0\ns_waitcnt vmcnt(0)\nds_write_b32 v1, v3\ns_waitcnt lgkmcnt(0)")
    k.label("L_t")
    k("s_mov_b64 exec, s[20:21]\ns_barrier\nds_read_b32 v3, v1\ns_waitcnt lgkmcnt(0)\ns_nop 0")
    k(f"v_readfirstlane_b32 s{sRANK}, v3")
    k(f"v_lshrrev_b32 v3, 6, v0\ns_nop 0\nv_readfirstlane_b32 s{sWAVE}, v3")
    k("s_barrier")
    k(f"s_mov_b32 s{sSPIN}, {SPIN}")

    k(f"s_cmp_ge_u32 s{sRANK}, 30\ns_cbranch_scc1 L_exit")
    k(f"s_cmp_ge_u32 s{sRANK}, 16\ns_cbranch_scc1 L_roleB")
    emit_chain_A(k, cfg, "L_abort")
    k.label("L_roleB")
    emit_chain_B(k, cfg, "L_abort")
    for t in cfg.get("outofline", []): k(t)
    k.label("L_abort")
    k(f"v_mov_b32 v1, 0\nv_mov_b32 v2, 1\nglobal_atomic_add v1, v2, s[6:7] offset:4\ns_waitcnt vmcnt(0)")
    k.label("L_exit")
    k("s_endpgm")
    k(f""".section .rodata,"a"
.p2align 6
.amdhsa_kernel {name}
  .amdhsa_next_free_vgpr 512
  .amdhsa_next_free_sgpr 102
  .amdhsa_accum_offset 256
  .amdhsa_group_segment_fixed_size 0
  .amdhsa_kernarg_size 16
  .amdhsa_user_sgpr_count 2
  .amdhsa_user_sgpr_kernarg_segment_ptr 1
  .amdhsa_system_sgpr_workgroup_id_x 1
.end_amdhsa_kernel""")
    return k.text()

if __name__ == "__main__":
    import sys, kfw
    cfg = dict(nsteps=63, prof=("prof" in sys.argv))
    t = gen_chain_test(cfg)
    open("chain_test.s", "w").write(t)
    p = kfw.check(t); w = kfw.check_waits(t)
    print("hazards", len(p), "waits", len(w))
```

```python
from kfw import *
from layout import *
import math

KARG = dict(x=0, mem0=8, Wq=16, Wk=24, Wv=32, Wo=40, seg=48, Bx=56, Wg=64, Wu=72, Wd=80, out=88, dbg=96, ws=104)

def srd(k, s, koff, nbytes):
    k(f"s_load_dwordx2 s[{s}:{s+1}], s[0:1], {koff}")
    k(f"s_mov_b32 s{s+2}, {nbytes}\ns_mov_b32 s{s+3}, 0x20000")

LOG2E_16 = math.log2(math.e) / 16.0
import struct
def fbits(x): return struct.unpack("<I", struct.pack("<f", x))[0]

def emit_prep(k, name="prep_kernel", diag=False, ST="sc1"):
    k(f".globl {name}\n.p2align 8\n.type {name},@function\n{name}:")
    n0 = len(k.lines)
    if diag: k("s_memrealtime s[90:91]")
    sWS, sA, sB = 8, 12, 16
    def stamp(i):
        if diag: k(f"s_memrealtime s[{60+2*i}:{61+2*i}]")
    if diag:
        for i in range(12): k(f"s_mov_b32 s{60+2*i}, 0")
    k(f"s_cmp_ge_u32 s2, 256\ns_cbranch_scc1 P_exit")
    srd(k, sWS, KARG["ws"], WS_BYTES)
    k("v_lshrrev_b32 v1, 6, v0\ns_nop 0\nv_readfirstlane_b32 s3, v1")
    k("v_and_b32 v1, 63, v0")
    k("s_cmp_ge_u32 s2, 224\ns_cbranch_scc1 P_ln")
    WSR = f"s[{sWS}:{sWS+3}]"
    sMat, sH, sT, sTmp, sTmp2 = 20, 21, 22, 23, 24
    sTile = 28
    sCol = 32
    sOut = 40
    k(f"s_and_b32 s{sTmp}, s2, 7\ns_lshr_b32 s{sTmp2}, s2, 3")
    k(f"s_mul_i32 s{sH}, s{sTmp2}, 9363\ns_lshr_b32 s{sH}, s{sH}, 16")
    k(f"s_mul_i32 s{sT}, s{sH}, 7\ns_sub_u32 s{sT}, s{sTmp2}, s{sT}")
    k(f"s_lshl_b32 s{sTmp}, s{sTmp}, 2\ns_add_u32 s{sH}, s{sH}, s{sTmp}")
    k(f"s_and_b32 s{sMat}, s{sH}, 1\ns_lshr_b32 s{sH}, s{sH}, 1")
    vLane, vN, vG, vD, vF, vT, vL16, vT2_ = 1, 2, 3, 4, 5, 6, 7, 8
    k(f"v_and_b32 v{vN}, 15, v{vLane}\nv_lshrrev_b32 v{vG}, 4, v{vLane}\nv_lshlrev_b32 v{vL16}, 4, v{vLane}")
    k(f"v_lshrrev_b32 v{vT}, 5, v{vLane}\nv_and_b32 v{vD}, 31, v{vLane}\nv_xor_b32 v{vD}, v{vD}, v{vT}\nv_lshlrev_b32 v{vD}, 4, v{vD}")
    k(f"v_lshl_add_u32 v{vD}, v{vT}, 13, v{vD}")
    k(f"v_xor_b32 v{vF}, v{vG}, v{vN}\nv_lshlrev_b32 v{vF}, 4, v{vF}\nv_lshl_add_u32 v{vF}, v{vN}, 9, v{vF}")
    SA = f"s[{sA}:{sA+3}]"; SB = f"s[{sB}:{sB+3}]"
    A_L = 0
    sRow = 28
    def dma_rows(SR, sbase, rowconst, ldsbase_sgpr, ldsoff):
        for u in range(8):
            k(f"v_xor_b32 v{vT2_}, {u << 5}, v{vD}")
            k(f"s_add_u32 m0, s{ldsbase_sgpr}, {ldsoff + u*1024}\ns_add_u32 s{sTmp}, s{sbase}, {rowconst(u)*8192}")
            k(f"buffer_load_dwordx4 v{vT2_}, {SR}, s{sTmp} offen lds")
    def a_rows():
        k(f"s_lshr_b32 s{sTmp}, s3, 1\ns_lshl_b32 s{sTmp}, s{sTmp}, 5\ns_and_b32 s{sTmp2}, s3, 1\ns_lshl_b32 s{sTmp2}, s{sTmp2}, 1\ns_add_u32 s{sTmp}, s{sTmp}, s{sTmp2}")
        k(f"s_lshl_b32 s{sRow}, s{sT}, 6\ns_add_u32 s{sRow}, s{sRow}, s{sTmp}\ns_lshl_b32 s{sRow}, s{sRow}, 13\ns_lshl_b32 s{sTmp}, s{sH}, 9\ns_add_u32 s{sRow}, s{sRow}, s{sTmp}")
        k(f"s_lshl_b32 s42, s3, 13")
        dma_rows(SA, sRow, lambda u: 16 * ((u >> 2) & 1) + 8 * (u & 1) + 4 * ((u >> 1) & 1), 42, A_L)
    def AFr(kk, r4): return A((kk * 4 + r4) * 4, 4)
    def a_frags():
        for kk in range(8):
            k(f"v_xor_b32 v{vT2_}, {kk << 6}, v{vF}")
            for r4 in range(4): k(f"ds_read_b128 {AFr(kk,r4)}, v{vT2_} offset:{A_L + r4*8192}")
            if kk % 2 == 1: k("s_waitcnt lgkmcnt(0)")
    ACC = 132
    def tile_epilogue(tt, scale, addr_of_tile):
        base = ACC + 16 * tt
        if scale:
            for i in range(0, 16, 2): k(f"v_pk_mul_f32 {V(base+i,2)}, {V(base+i,2)}, s[44:45]")
        for i in range(8): k(f"v_cvt_pk_bf16_f32 v{base+i}, v{base+2*i}, v{base+2*i+1}")
        addr_of_tile(tt)
        for a in range(2):
            k(f"buffer_store_dwordx4 {V(base+4*a,4)}, v{vL16}, {WSR}, s{sOut} offen offset:{a*1024} {ST}")
    k(f"s_cmp_eq_u32 s{sMat}, 1\ns_cbranch_scc1 P_wb")
    srd(k, sA, KARG["Wq"], 3670016); srd(k, sB, KARG["Wk"], 3670016)
    k(f"s_mov_b32 s44, {fbits(LOG2E_16):#x}\ns_mov_b32 s45, {fbits(LOG2E_16):#x}")
    k(f"s_mul_i32 s{sCol}, s3, {7*16*8192}\ns_lshl_b32 s{sTmp}, s{sH}, 9\ns_add_u32 s{sCol}, s{sCol}, s{sTmp}")
    k(f"s_mul_i32 s43, s3, 24576\ns_add_u32 s43, s43, 32768")
    k("s_waitcnt lgkmcnt(0)")
    k(f"v_lshrrev_b32 v10, 2, v0\nv_lshlrev_b32 v10, 13, v10\nv_and_b32 v11, 3, v0\nv_lshl_add_u32 v10, v11, 7, v10")
    k(f"s_lshl_b32 s{sTmp}, s{sT}, 19\ns_lshl_b32 s{sTmp2}, s{sH}, 9\ns_add_u32 s{sTmp}, s{sTmp}, s{sTmp2}")
    k(f"buffer_load_dword v11, v10, {SB}, s{sTmp} offen")
    a_rows()
    def b_tile(tt): dma_rows(SB, sCol, lambda u: 16 * tt + 2 * u, 43, (tt % 3) * 8192)
    stamp(0)
    for tt in range(3): b_tile(tt)
    stamp(1)
    k("s_waitcnt vmcnt(24)\ns_barrier")
    stamp(2)
    a_frags()
    stamp(3)
    BF = 16
    vFB = 9
    k(f"v_add_u32 v{vFB}, s43, v{vF}")
    def wa_addr(tt):
        k(f"s_mul_i32 s{sOut}, s{sH}, 401408\ns_mul_i32 s{sTmp}, s3, 100352\ns_add_u32 s{sOut}, s{sOut}, s{sTmp}")
        k(f"s_add_u32 s{sTmp}, s{sT}, {7*tt}\ns_lshl_b32 s{sTmp}, s{sTmp}, 11\ns_add_u32 s{sOut}, s{sOut}, s{sTmp}")
        if WA_OFF: k(f"s_add_u32 s{sOut}, s{sOut}, {WA_OFF}")
    seq = [("B", 0)] * 8 + [("B", 1)] * 8 + [("B", 2)] * 8
    for tt in range(7):
        last = max(i for i, e in enumerate(seq) if e == ("B", tt))
        k(f"s_waitcnt vmcnt({min(63, len(seq) - 1 - last)})")
        bf = BF + 32 * (tt & 1)
        for kk in range(8):
            k(f"v_xor_b32 v{vT2_}, {kk << 6}, v{vFB}")
            k(f"ds_read_b128 {V(bf+4*kk,4)}, v{vT2_} offset:{(tt % 3)*8192}")
        k("s_waitcnt lgkmcnt(0)")
        if tt + 3 < 7:
            b_tile(tt + 3); seq += [("B", tt + 3)] * 8
        for kk in range(8):
            for r4 in range(4):
                D = V(ACC + 4 * (4 * tt + r4), 4)
                k(f"v_mfma_f32_16x16x32_bf16 {D}, {AFr(kk,r4)}, {V(bf+4*kk,4)}, {'0' if kk == 0 else D}")
        if tt >= 1:
            tile_epilogue(tt - 1, True, wa_addr); seq += [("S", tt - 1)] * 2
        stamp(4 + tt)
    k("s_nop 7")
    tile_epilogue(6, True, wa_addr)
    k("s_endpgm")
    k.label("P_wb")
    srd(k, sA, KARG["Wv"], 3670016); srd(k, sB, KARG["Wo"], 3670016)
    LS = 928; SLAB = 32 * LS; NSL = 4; S_L = 32768
    vR = 9
    k(f"v_bfe_u32 v{vT}, v{vLane}, 2, 2\nv_lshl_add_u32 v{vT}, v{vG}, 3, v{vT}\nv_mul_u32_u24 v{vR}, {LS}, v{vT}")
    k(f"v_and_b32 v{vT}, 3, v{vLane}\nv_lshl_add_u32 v{vR}, v{vT}, 3, v{vR}")
    k(f"s_mul_i32 s{sTmp}, s3, 224\ns_add_u32 s{sTmp}, s{sTmp}, {S_L}\nv_add_u32 v{vR}, s{sTmp}, v{vR}")
    k(f"s_mul_i32 s46, s{sH}, 229376\ns_mul_i32 s{sTmp}, s3, {8*896}\ns_add_u32 s48, s46, s{sTmp}")
    k(f"s_mul_i32 s41, s3, {8*LS}\ns_add_u32 s41, s41, {S_L}")
    k(f"v_cmp_gt_u32 s[46:47], 56, v{vLane}")
    k("s_waitcnt lgkmcnt(0)")
    k(f"v_lshlrev_b32 v10, 7, v0\ns_mul_i32 s{sTmp}, s{sH}, 229376\ns_lshl_b32 s{sTmp2}, s{sT}, 15\ns_add_u32 s{sTmp}, s{sTmp}, s{sTmp2}")
    k(f"buffer_load_dword v11, v10, {SB}, s{sTmp} offen")
    a_rows()
    def slab(kk):
        k("s_mov_b64 exec, s[46:47]")
        for r in range(8):
            k(f"s_add_u32 m0, s41, {(kk % NSL)*SLAB + r*LS}\ns_add_u32 s{sTmp}, s48, {kk*28672 + r*896}")
            k(f"buffer_load_dwordx4 v{vL16}, {SB}, s{sTmp} offen lds")
        k("s_mov_b64 exec, -1")
    issued = []
    for kk in range(NSL):
        slab(kk); issued += [("S", kk)] * 8
    k(f"s_waitcnt vmcnt({8*NSL})\ns_barrier")
    a_frags()
    BFW = 16
    for kk in range(8):
        last = max(i for i, e in enumerate(issued) if e == ("S", kk))
        k(f"s_waitcnt vmcnt({min(63, len(issued) - 1 - last)})\ns_barrier")
        off0 = (kk % NSL) * SLAB
        ad = vR
        if off0 + 4 * LS + 6 * 32 > 65535:
            k(f"v_add_u32 v{vT}, {off0}, v{vR}"); ad = vT; off0 = 0
        for tt in range(7):
            for u in range(2):
                k(f"ds_read_b64_tr_b16 {V(BFW+4*tt+2*u,2)}, v{ad} offset:{off0 + u*4*LS + tt*32}")
        k("s_waitcnt lgkmcnt(0)")
        for tt in range(7):
            for r4 in range(4):
                D = V(ACC + 4 * (4 * tt + r4), 4)
                k(f"v_mfma_f32_16x16x32_bf16 {D}, {AFr(kk,r4)}, {V(BFW+4*tt,4)}, {'0' if kk == 0 else D}")
        if kk + NSL < 8:
            k("s_barrier")
            slab(kk + NSL); issued += [("S", kk + NSL)] * 8
    sTmp2 = 24
    def wb_addr(tt):
        k(f"s_mul_i32 s{sTmp}, s3, 7\ns_add_u32 s{sTmp}, s{sTmp}, {tt}")
        k(f"s_lshr_b32 s{sOut}, s{sTmp}, 1\ns_mul_i32 s{sOut}, s{sOut}, 458752")
        k(f"s_and_b32 s{sTmp}, s{sTmp}, 1\ns_and_b32 s{sTmp2}, s{sH}, 3\ns_lshl_b32 s{sTmp2}, s{sTmp2}, 1\ns_add_u32 s{sTmp}, s{sTmp}, s{sTmp2}")
        k(f"s_mul_i32 s{sTmp}, s{sTmp}, 7\ns_add_u32 s{sTmp}, s{sTmp}, s{sT}\ns_lshl_b32 s{sTmp}, s{sTmp}, 11\ns_add_u32 s{sOut}, s{sOut}, s{sTmp}")
        k(f"s_lshr_b32 s{sTmp}, s{sH}, 2\ns_mul_i32 s{sTmp}, s{sTmp}, 114688\ns_add_u32 s{sOut}, s{sOut}, s{sTmp}\ns_add_u32 s{sOut}, s{sOut}, {WB_OFF}")
    k("s_nop 7")
    for tt in range(7): tile_epilogue(tt, False, wb_addr)
    k("s_endpgm")
    k.label("P_ln")
    srd(k, sA, KARG["x"], 1835008); srd(k, sB, KARG["mem0"], 7168)
    sSeg, sI = 20, 26
    k(f"s_sub_u32 s{sI}, s2, 224\ns_lshl_b32 s{sSeg}, s{sI}, 1")
    RS = 912
    vRow, vPart, vAd, vM, vT2 = 2, 3, 4, 6, 8
    X, F, X2 = 16, 48, 112
    k(f"v_lshrrev_b32 v{vRow}, 3, v1\ns_lshl_b32 s21, s3, 3\nv_add_u32 v{vRow}, s21, v{vRow}\nv_and_b32 v{vPart}, 7, v1")
    k(f"v_mul_u32_u24 v{vAd}, 896, v{vRow}\nv_lshl_add_u32 v{vAd}, v{vPart}, 4, v{vAd}")
    k(f"s_mul_i32 s21, s{sSeg}, 28672\ns_add_u32 s22, s21, 28672")
    k("s_waitcnt lgkmcnt(0)")
    for u in range(7): k(f"buffer_load_dwordx4 {V(X+4*u,4)}, v{vAd}, s[{sA}:{sA+3}], s21 offen offset:{u*128}")
    for u in range(7): k(f"buffer_load_dwordx4 {V(X2+4*u,4)}, v{vAd}, s[{sA}:{sA+3}], s22 offen offset:{u*128}")
    vI = 144
    for i in range(4): k(f"v_mov_b32 v{vI+i}, -1\nv_mov_b32 v{vI+4+i}, 0")
    k(f"v_lshlrev_b32 v{vI+8}, 4, v0")
    k(f"s_mul_i32 s23, s{sI}, {122*16}\ns_add_u32 s23, s23, {MEMRING + 7168}")
    k(f"v_cmp_gt_u32 vcc, 122, v0\ns_and_saveexec_b64 s[24:25], vcc")
    k(f"buffer_store_dwordx4 {V(vI,4)}, v{vI+8}, {WSR}, s23 offen {ST}\ns_mov_b64 exec, s[24:25]")
    nz = k.uid("P_nz")
    k(f"s_cmp_lg_u32 s{sI}, 0\ns_cbranch_scc1 {nz}")
    k(f"s_mov_b32 s23, {FLAGM}\nbuffer_store_dwordx4 {V(vI+4,4)}, v{vI+8}, {WSR}, s23 offen {ST}")
    k(f"v_cmp_gt_u32 vcc, {(128 + 512 + CNT_BYTES - 4096)//16}, v0\ns_and_saveexec_b64 s[24:25], vcc")
    k(f"s_mov_b32 s23, {FLAGM + 4096}\nbuffer_store_dwordx4 {V(vI+4,4)}, v{vI+8}, {WSR}, s23 offen {ST}\ns_mov_b64 exec, s[24:25]")
    k.label(nz)
    nm = k.uid("P_nm")
    k(f"s_cmp_lg_u32 s{sI}, 1\ns_cbranch_scc1 {nm}")
    for u in range(2):
        g_, o_, t_ = vI + 9, vI + 10, vI + 11
        k(f"v_add_u32 v{g_}, {256*u}, v0")
        k(f"v_and_b32 v{o_}, 7, v{g_}\nv_mul_u32_u24 v{o_}, 896, v{o_}")
        k(f"v_lshrrev_b32 v{t_}, 6, v{g_}\nv_lshl_add_u32 v{o_}, v{t_}, 7, v{o_}")
        k(f"v_bfe_u32 v{t_}, v{g_}, 4, 2\nv_lshl_add_u32 v{o_}, v{t_}, 5, v{o_}")
        k(f"v_bfe_u32 v{t_}, v{g_}, 3, 1\nv_lshl_add_u32 v{o_}, v{t_}, 4, v{o_}")
        k(f"v_lshlrev_b32 v{t_}, 4, v{g_}")
        if u == 1: k(f"v_cmp_gt_u32 vcc, 448, v{g_}\ns_and_saveexec_b64 s[24:25], vcc")
        k(f"buffer_load_dwordx4 {V(vI+12,4)}, v{o_}, s[{sB}:{sB+3}], 0 offen\ns_waitcnt vmcnt(0)")
        k(f"s_mov_b32 s23, {MEMRING}\nbuffer_store_dwordx4 {V(vI+12,4)}, v{t_}, {WSR}, s23 offen {ST}")
        k(f"s_mov_b32 s23, {MEMOUT}\nbuffer_store_dwordx4 {V(vI+12,4)}, v{t_}, {WSR}, s23 offen {ST}")
        if u == 1: k("s_mov_b64 exec, s[24:25]")
        k("s_nop 1")
    k.label(nm)
    def red8(r):
        for m in ("quad_perm:[1,0,3,2]", "quad_perm:[2,3,0,1]", "row_half_mirror"):
            k(f"s_nop 1\nv_add_f32_dpp v{r}, v{r}, v{r} {m} row_mask:0xf bank_mask:0xf")
    for half in range(2):
        XX = X if half == 0 else X2
        if half == 0:
            stamp(0); k("s_waitcnt vmcnt(0)"); stamp(1)
        else:
            k(f"s_add_u32 s{sSeg}, s{sSeg}, 1\ns_barrier")
            k(f"v_lshrrev_b32 v{vRow}, 3, v1\ns_lshl_b32 s21, s3, 3\nv_add_u32 v{vRow}, s21, v{vRow}\nv_and_b32 v{vPart}, 7, v1")
        for j in range(28):
            k(f"v_lshlrev_b32 v{F+2*j}, 16, v{XX+j}\nv_and_b32 v{F+2*j+1}, 0xffff0000, v{XX+j}")
        k(f"v_pk_add_f32 {V(vM,2)}, {V(F,2)}, {V(F+2,2)}")
        for j in range(2, 28): k(f"v_pk_add_f32 {V(vM,2)}, {V(vM,2)}, {V(F+2*j,2)}")
        k(f"v_add_f32 v{vM}, v{vM}, v{vM+1}")
        red8(vM)
        k(f"v_mul_f32 v{vM}, {fbits(1/448.):#x}, v{vM}\nv_mov_b32 v{vM+1}, v{vM}")
        for j in range(28): k(f"v_pk_add_f32 {V(F+2*j,2)}, {V(F+2*j,2)}, {V(vM,2)} neg_lo:[0,1] neg_hi:[0,1]")
        k(f"v_pk_mul_f32 {V(vT2,2)}, {V(F,2)}, {V(F,2)}")
        for j in range(1, 28): k(f"v_pk_fma_f32 {V(vT2,2)}, {V(F+2*j,2)}, {V(F+2*j,2)}, {V(vT2,2)}")
        k(f"v_add_f32 v{vT2}, v{vT2}, v{vT2+1}")
        red8(vT2)
        k(f"v_mov_b32 v{vT2+1}, {fbits(1e-5):#x}\nv_mov_b32 v{vT2+2}, {fbits(1/448.):#x}")
        k(f"v_fma_f32 v{vT2}, v{vT2}, v{vT2+2}, v{vT2+1}")
        k(f"v_rsq_f32 v{vT2}, v{vT2}\ns_nop 0\nv_mov_b32 v{vT2+1}, v{vT2}")
        for j in range(28):
            k(f"v_pk_mul_f32 {V(F+2*j,2)}, {V(F+2*j,2)}, {V(vT2,2)}")
            k(f"v_cvt_pk_bf16_f32 v{X+j}, v{F+2*j}, v{F+2*j+1}")
        k(f"v_mul_u32_u24 v{vAd}, {RS}, v{vRow}\nv_lshl_add_u32 v{vAd}, v{vPart}, 4, v{vAd}")
        for u in range(7): k(f"ds_write_b128 v{vAd}, {V(X+4*u,4)} offset:{u*128}")
        k("s_waitcnt lgkmcnt(0)\ns_barrier")
        stamp(2 + 3*half)
        vm, vg, vKey, vL16, vL8, vR0 = 2, 3, 4, 5, 12, 13
        k(f"v_and_b32 v{vm}, 15, v1\nv_lshrrev_b32 v{vg}, 4, v1\nv_lshlrev_b32 v{vL16}, 4, v1\nv_lshlrev_b32 v{vL8}, 3, v1")
        k(f"v_bfe_u32 v{vT2}, v{vm}, 3, 1\nv_lshlrev_b32 v{vKey}, 4, v{vT2}")
        k(f"v_bfe_u32 v{vT2}, v{vm}, 1, 1\nv_lshl_add_u32 v{vKey}, v{vT2}, 3, v{vKey}")
        k(f"v_bfe_u32 v{vT2}, v{vm}, 2, 1\nv_lshl_add_u32 v{vKey}, v{vT2}, 2, v{vKey}")
        k(f"v_and_b32 v{vT2}, 1, v{vm}\nv_add_u32 v{vKey}, v{vKey}, v{vT2}")
        k(f"s_lshr_b32 s21, s3, 1\ns_lshl_b32 s22, s21, 1\nv_add_u32 v{vR0}, s22, v{vKey}\nv_mul_u32_u24 v{vR0}, {RS}, v{vR0}")
        k(f"v_lshrrev_b32 v{vT2}, 1, v{vg}\nv_lshl_add_u32 v{vR0}, v{vT2}, 5, v{vR0}")
        k(f"v_and_b32 v{vT2}, 1, v{vg}\nv_lshl_add_u32 v{vR0}, v{vT2}, 3, v{vR0}")
        k(f"s_and_b32 s22, s3, 1\ns_mul_i32 s22, s22, 448\nv_add_u32 v{vR0}, s22, v{vR0}")
        for u in range(7):
            k(f"ds_read2_b32 {V(X+4*u,2)}, v{vR0} offset0:{16*u} offset1:{16*u+4}")
            k(f"ds_read2_b32 {V(X+4*u+2,2)}, v{vR0} offset0:{16*u+1} offset1:{16*u+5}")
        k(f"s_mul_i32 s22, s{sSeg}, 28672\ns_mul_i32 s23, s3, 7168\ns_add_u32 s22, s22, s23")
        k(f"s_add_u32 s24, s22, {XNA_OFF}")
        k("s_waitcnt lgkmcnt(0)")
        for u in range(7):
            if u == 4: k("s_add_u32 s24, s24, 4096")
            k(f"buffer_store_dwordx4 {V(X+4*u,4)}, v{vL16}, {WSR}, s24 offen offset:{(u*1024)%4096} {ST}")
        stamp(3 + 3*half)
        for perm, off in ((0, XK_OFF), (1, XKP_OFF)):
            Y = F if perm == 0 else F + 28
            for kap in range(2):
                if perm == 0: k(f"v_add_u32 v{vR0}, {16*kap}, v{vm}")
                else: k(f"v_add_u32 v{vR0}, {2*kap}, v{vKey}")
                k(f"v_mul_u32_u24 v{vR0}, {RS}, v{vR0}\nv_lshl_add_u32 v{vR0}, v{vg}, 3, v{vR0}")
                k(f"s_mul_i32 s23, s3, 224\nv_add_u32 v{vR0}, s23, v{vR0}")
                for p in range(3):
                    k(f"ds_read2_b64 {V(Y+14*kap+4*p,4)}, v{vR0} offset0:{8*p} offset1:{8*p+4}")
                k(f"ds_read_b64 {V(Y+14*kap+12,2)}, v{vR0} offset:192")
            k("s_waitcnt lgkmcnt(0)")
            k(f"s_add_u32 s24, s22, {off}\ns_add_u32 s25, s24, 4096")
            for kap in range(2):
                for p in range(3):
                    o = kap * 3584 + p * 1024
                    k(f"buffer_store_dwordx4 {V(Y+14*kap+4*p,4)}, v{vL16}, {WSR}, s{24 if o < 4096 else 25} offen offset:{o%4096} {ST}")
                o = kap * 3584 + 3072
                k(f"buffer_store_dwordx2 {V(Y+14*kap+12,2)}, v{vL8}, {WSR}, s{24 if o < 4096 else 25} offen offset:{o%4096} {ST}")
        stamp(4 + 3*half)
        sk = k.uid("P_nos")
        k(f"s_cmp_eq_u32 s{sSeg}, 0\ns_cbranch_scc1 {sk}")
        k(f"s_mul_i32 s24, s{sSeg}, 7168\ns_add_u32 s24, s24, {MEMOUT}")
        k(f"buffer_store_dwordx4 {V(vI,4)}, v{vI+8}, {WSR}, s24 offen {ST}")
        k(f"v_cmp_gt_u32 vcc, 192, v0\ns_and_saveexec_b64 s[26:27], vcc")
        k(f"s_add_u32 s24, s24, 4096\nbuffer_store_dwordx4 {V(vI,4)}, v{vI+8}, {WSR}, s24 offen {ST}")
        k("s_mov_b64 exec, s[26:27]")
        k.label(sk)
    k("s_endpgm")
    if diag:
        body = "\n".join(k.lines[n0:]).replace("s_endpgm", "s_branch P_diag")
        k.lines = k.lines[:n0] + body.split("\n")
        k.label("P_diag")
        k("s_waitcnt vmcnt(0)\ns_memrealtime s[92:93]\ns_waitcnt lgkmcnt(0)")
        k(f"s_lshl_b32 s20, s2, 3\ns_add_u32 s20, s20, {PROF+32768}\nv_mov_b32 v1, 0\nv_mov_b32 v2, s90\nv_mov_b32 v3, s92")
        k("buffer_store_dwordx2 v[2:3], v1, s[8:11], s20 offen\ns_waitcnt vmcnt(0)")
        k(f"s_lshl_b32 s20, s2, 6\ns_add_u32 s20, s20, {PROF+36864}")
        for i in range(12):
            k(f"v_mov_b32 v2, s{60+2*i}\nbuffer_store_dword v2, v1, s[8:11], s20 offen offset:{4*i}")
        k("s_waitcnt vmcnt(0)")
    k.label("P_exit")
    k("s_endpgm")

def kd(name, vgpr, accum, sgpr=96):
    return f""".p2align 6
.amdhsa_kernel {name}
  .amdhsa_next_free_vgpr {vgpr}
  .amdhsa_next_free_sgpr {sgpr}
  .amdhsa_accum_offset {accum}
  .amdhsa_group_segment_fixed_size 0
  .amdhsa_kernarg_size 112
  .amdhsa_user_sgpr_count 2
  .amdhsa_user_sgpr_kernarg_segment_ptr 1
  .amdhsa_system_sgpr_workgroup_id_x 1
.end_amdhsa_kernel"""

if __name__ == "__main__":
    import kfw
    k = K()
    k('.amdgcn_target "amdgcn-amd-amdhsa--gfx950"\n.text')
    emit_prep(k)
    k('.section .rodata,"a"')
    k(kd("prep_kernel", 512, 256))
    t = k.text()
    open("prep_test.s", "w").write(t)
    print("hazards", len(kfw.check(t)), "waits", len(kfw.check_waits(t)))
```

```python
from kfw import *
from layout import *
from chain import Q, sWS, sRANK, sWAVE, sT0, sT1, sSPIN, SPIN
from prepk import srd, KARG, fbits

WSR = f"s[{sWS}:{sWS+3}]"

def wait_counter(k, off_sgpr, target, vtmp, vzero, abort, sleep=2):
    top = k.uid("WC"); done = k.uid("WCD")
    k.label(top)
    k(f"buffer_load_dword v{vtmp}, v{vzero}, {WSR}, s{off_sgpr} offen sc1\ns_waitcnt vmcnt(0)")
    k(f"v_cmp_gt_u32 vcc, {target}, v{vtmp}" if isinstance(target, int) else f"v_cmp_gt_u32 vcc, {target}, v{vtmp}")
    k(f"s_cbranch_vccz {done}")
    k(f"s_sleep {sleep}\ns_sub_u32 s{sSPIN}, s{sSPIN}, 1\ns_cbranch_scc0 {top}\ns_branch {abort}")
    k.label(done)

def signal(k, off_sgpr, vone, vzero):
    k(f"s_mov_b64 exec, 1\nbuffer_atomic_add v{vone}, v{vzero}, {WSR}, s{off_sgpr} offen sc1\ns_mov_b64 exec, -1")

def dma(k, vaddr, soff, ldsoff_m0, imm=0):
    k(f"s_mov_b32 m0, {ldsoff_m0}\ns_nop 0\nbuffer_load_dwordx4 v{vaddr}, {WSR}, s{soff} offen offset:{imm} lds")

def emit_vxgen(k, cfg, abort, what="vx"):
    NPAR = cfg.get("vx_par", 2) if what == "vx" else cfg.get("vm_par", 1)
    sJ, sWp, sPar, sSeg, sSrc, sDst, sCnt, sBuf, sM = 20, 21, 22, 23, 24, 25, 26, 27, 28
    vL16, vZ, vOne, vT, vRd = 1, 2, 3, 4, 5
    XF, ACC = 8, 32
    k("v_and_b32 v0, 63, v0")
    k(f"v_lshlrev_b32 v{vL16}, 4, v0\nv_mov_b32 v{vZ}, 0\nv_mov_b32 v{vOne}, 1")
    k(f"s_mul_i32 s{sPar}, s{sRANK}, 2341\ns_lshr_b32 s{sPar}, s{sPar}, 16")
    k(f"s_mul_i32 s{sT0}, s{sPar}, 28\ns_sub_u32 s{sT0}, s{sRANK}, s{sT0}")
    k(f"s_lshr_b32 s{sJ}, s{sT0}, 1\ns_and_b32 s{sWp}, s{sT0}, 1")
    sW, sKs = 29, 30
    k(f"s_lshr_b32 s{sW}, s{sWAVE}, 1\ns_lshl_b32 s{sT0}, s{sWp}, 1\ns_add_u32 s{sW}, s{sW}, s{sT0}\ns_and_b32 s{sKs}, s{sWAVE}, 1")
    k(f"s_mul_i32 s{sSrc}, s{sJ}, 458752\ns_mul_i32 s{sT0}, s{sW}, 114688\ns_add_u32 s{sSrc}, s{sSrc}, s{sT0}")
    k(f"s_mul_i32 s{sT0}, s{sKs}, {4*14336}\ns_add_u32 s{sSrc}, s{sSrc}, s{sT0}\ns_add_u32 s{sSrc}, s{sSrc}, {WB_OFF}")
    def Wreg(c, a, kk): return ((a * 2 + c) * 14 + kk) * 4
    for a in range(2):
        for c in range(2):
            for kk in range(14):
                off = ((2 * a + c) * 14 + kk) * 1024
                if off and off % 4096 == 0: k(f"s_add_u32 s{sSrc}, s{sSrc}, 4096")
                k(f"buffer_load_dwordx4 {A(Wreg(c,a,kk),4)}, v{vL16}, {WSR}, s{sSrc} offen offset:{off%4096}")
    if what == "vm":
        k("s_waitcnt vmcnt(0)")
        emit_vm_phase(k, cfg, abort, locals())
        k("s_waitcnt vmcnt(0)")
        k("s_endpgm")
        return
    k(f"s_mul_i32 s{sDst}, s{sJ}, 32768\ns_lshl_b32 s{sT0}, s{sW}, 13\ns_add_u32 s{sDst}, s{sDst}, s{sT0}")
    k(f"s_lshl_b32 s{sT0}, s{sKs}, 12\ns_add_u32 s{sDst}, s{sDst}, s{sT0}\ns_add_u32 s{sDst}, s{sDst}, {VX_OFF}")
    k(f"s_mul_i32 s{sT0}, s{sPar}, 458752\ns_add_u32 s{sDst}, s{sDst}, s{sT0}")
    k(f"s_mov_b32 s{sSeg}, s{sPar}")
    k(f"s_lshl_b32 s{sCnt}, s{sPar}, 4\ns_add_u32 s{sCnt}, s{sCnt}, {C_VX}")
    k(f"s_mul_i32 s{sSrc}, s{sPar}, 28672\ns_mul_i32 s{sT0}, s{sWAVE}, 7168\ns_add_u32 s{sSrc}, s{sSrc}, s{sT0}\ns_add_u32 s{sSrc}, s{sSrc}, {XNA_OFF}")
    k(f"s_mul_i32 s{sM}, s{sWAVE}, 7168")
    k(f"s_mov_b32 s{sBuf}, 0")
    def issue_dma(bufreg):
        k(f"s_add_u32 s{sT1}, s{sM}, s{bufreg}")
        for u in range(7):
            k(f"s_add_u32 m0, s{sT1}, {u*1024}")
            if u == 4: k(f"s_add_u32 s{sT0}, s{sSrc}, 4096")
            else: k("s_nop 0")
            k(f"buffer_load_dwordx4 v{vL16}, {WSR}, s{sSrc if u < 4 else sT0} offen offset:{(u*1024)%4096} lds")
    def issue_dma(bufreg):
        k(f"s_add_u32 s{sT1}, s{sM}, s{bufreg}")
        k(f"s_mov_b32 m0, s{sT1}\ns_nop 0")
        for u in range(4):
            k(f"buffer_load_dwordx4 v{vL16}, {WSR}, s{sSrc} offen offset:{u*1024} lds")
        k(f"s_add_u32 m0, s{sT1}, 4096\ns_add_u32 s{sT0}, s{sSrc}, 4096")
        for u in range(3):
            k(f"buffer_load_dwordx4 v{vL16}, {WSR}, s{sT0} offen offset:{u*1024} lds")
    issue_dma(sBuf)
    loop = k.uid("VX_loop"); last = k.uid("VX_nopf")
    k.label(loop)
    k("s_waitcnt vmcnt(0)\ns_barrier")
    k(f"v_add_u32 v{vRd}, s{sBuf}, v{vL16}")
    k(f"s_xor_b32 s{sBuf}, s{sBuf}, 28672")
    k(f"s_add_u32 s{sSrc}, s{sSrc}, {28672*NPAR}")
    k(f"s_add_u32 s{sT0}, s{sSeg}, {NPAR}\ns_cmp_ge_u32 s{sT0}, 64\ns_cbranch_scc1 {last}")
    issue_dma(sBuf)
    k.label(last)
    q = Q(k)
    def rd(kk):
        for rho in range(2):
            q.ds(f"ds_read_b128 {V(XF+8*(kk&1)+4*rho,4)}, v{vRd} offset:{(rho*14+kk)*1024}", f"x{kk}_{rho}")
    rd(0)
    for kk in range(14):
        if kk < 13: rd(kk + 1)
        q.wait_lg(f"x{kk}_1")
        for a in range(2):
            for c in range(2):
                for rho in range(2):
                    D = V(ACC + ((c * 2 + a) * 2 + rho) * 4, 4)
                    k(f"v_mfma_f32_16x16x32_bf16 {D}, {V(XF+8*(kk&1)+4*rho,4)}, {A(Wreg(c,a,kk),4)}, {'0' if kk == 0 else D}")
    k("s_nop 7")
    for c in range(2):
        for a in range(2):
            b = ACC + (c * 2 + a) * 8
            for i in range(4): k(f"v_cvt_pk_bf16_f32 v{b+i}, v{b+2*i}, v{b+2*i+1}")
            k(f"buffer_store_dwordx4 {V(b,4)}, v{vL16}, {WSR}, s{sDst} offen offset:{(c*2+a)*1024} sc1")
    k("s_waitcnt vmcnt(0)\ns_barrier")
    sk = k.uid("VX_ns")
    k(f"s_cmp_lg_u32 s{sWAVE}, 0\ns_cbranch_scc1 {sk}")
    signal(k, sCnt, vOne, vZ)
    k.label(sk)
    k(f"s_add_u32 s{sDst}, s{sDst}, {458752*NPAR}\ns_add_u32 s{sCnt}, s{sCnt}, {16*NPAR}\ns_add_u32 s{sSeg}, s{sSeg}, {NPAR}")
    k(f"s_cmp_lt_u32 s{sSeg}, 64\ns_cbranch_scc1 {loop}")
    if cfg.get("vm_inline"): emit_vm_phase(k, cfg, abort, locals())
    k("s_waitcnt vmcnt(0)")
    k("s_endpgm")

def emit_vm_phase(k, cfg, abort, L):
    NPAR = L["NPAR"]; Wreg = L["Wreg"]
    sJ, sPar, sSeg, sSrc, sDst, sCnt, sW, sKs = L["sJ"], L["sPar"], L["sSeg"], L["sSrc"], L["sDst"], L["sCnt"], L["sW"], L["sKs"]
    vL16, vZ, vOne, vT = L["vL16"], L["vZ"], L["vOne"], L["vT"]
    vPA, vPB, vRd, vX = 5, 6, 7, 64
    MF, ACC, TA = 72, 32, 8
    k("; ---- V_m phase")
    k(f"s_mul_i32 s{sT0}, s{sWAVE}, 1792\nv_add_u32 v{vPA}, s{sT0}, v{vL16}")
    k(f"v_min_u32 v{vT}, 47, v0\nv_lshlrev_b32 v{vT}, 4, v{vT}\ns_add_u32 s{sT0}, s{sT0}, 1024\nv_add_u32 v{vPB}, s{sT0}, v{vT}")
    k(f"v_lshrrev_b32 v{vT}, 5, v0\nv_lshlrev_b32 v{vRd}, 8, v{vT}")
    k(f"v_and_b32 v{vT}, 7, v0\nv_lshl_add_u32 v{vRd}, v{vT}, 4, v{vRd}")
    k(f"v_bfe_u32 v{vT}, v0, 4, 1\nv_lshl_add_u32 v{vRd}, v{vT}, 3, v{vRd}")
    k(f"s_mov_b32 s{sSeg}, s{sPar}")
    k(f"s_mul_i32 s{sSrc}, s{sPar}, 7168\ns_add_u32 s{sSrc}, s{sSrc}, {MEMOUT}")
    k(f"s_mul_i32 s{sDst}, s{sJ}, 16384\ns_lshl_b32 s{sT0}, s{sW}, 12\ns_add_u32 s{sDst}, s{sDst}, s{sT0}")
    k(f"s_lshl_b32 s{sT0}, s{sKs}, 11\ns_add_u32 s{sDst}, s{sDst}, s{sT0}\ns_add_u32 s{sDst}, s{sDst}, {VM_OFF}")
    k(f"s_mul_i32 s{sT0}, s{sPar}, 229376\ns_add_u32 s{sDst}, s{sDst}, s{sT0}")
    k(f"s_lshl_b32 s{sCnt}, s{sPar}, 4\ns_add_u32 s{sCnt}, s{sCnt}, {C_VM}")
    loop = k.uid("VM_loop"); top = k.uid("VM_poll"); ok_ = k.uid("VM_ok")
    k.label(loop)
    k.label(top)
    k(f"buffer_load_dwordx4 {V(TA,4)}, v{vPA}, {WSR}, s{sSrc} offen sc1")
    k(f"buffer_load_dwordx4 {V(TA+4,4)}, v{vPB}, {WSR}, s{sSrc} offen sc1")
    k("s_waitcnt vmcnt(0)")
    k(f"v_max3_u32 v{vX}, v{TA}, v{TA+1}, v{TA+2}\nv_max3_u32 v{vX}, v{vX}, v{TA+3}, v{TA+4}")
    k(f"v_max3_u32 v{vX}, v{vX}, v{TA+5}, v{TA+6}\nv_max_u32 v{vX}, v{vX}, v{TA+7}")
    k(f"v_cmp_eq_u32 vcc, -1, v{vX}\ns_cbranch_vccz {ok_}")
    k(f"s_sleep 4\ns_sub_u32 s{sSPIN}, s{sSPIN}, 1\ns_cbranch_scc0 {top}\ns_branch {abort}")
    k.label(ok_)
    k(f"ds_write_b128 v{vPA}, {V(TA,4)}\nds_write_b128 v{vPB}, {V(TA+4,4)}")
    k("s_waitcnt lgkmcnt(0)\ns_barrier")
    for t in range(7):
        if t: k(f"v_add_u32 v{vX}, {t*1024}, v{vRd}")
        ad = vRd if t == 0 else vX
        for a in range(2):
            k(f"ds_read2_b64 {V(MF+4*(2*t+a),4)}, v{ad} offset0:{a*64} offset1:{a*64+16}")
    k(f"s_add_u32 s{sSrc}, s{sSrc}, {7168*NPAR}")
    k("s_waitcnt lgkmcnt(0)")
    for kk in range(14): k(f"v_swap_b32 v{MF+4*kk+1}, v{MF+4*kk+2}")
    k("s_nop 1")
    for kk in range(14):
        for c in range(2):
            for a in range(2):
                D = V(ACC + (c * 2 + a) * 4, 4)
                k(f"v_mfma_f32_16x16x32_bf16 {D}, {V(MF+4*kk,4)}, {A(Wreg(c,a,kk),4)}, {'0' if kk == 0 else D}")
    k("s_nop 7")
    for c in range(2):
        b = ACC + c * 8
        for i in range(4): k(f"v_cvt_pk_bf16_f32 v{b+i}, v{b+2*i}, v{b+2*i+1}")
        k(f"buffer_store_dwordx4 {V(b,4)}, v{vL16}, {WSR}, s{sDst} offen offset:{c*1024} sc1")
    k("s_waitcnt vmcnt(0)\ns_barrier")
    sk = k.uid("VM_ns")
    k(f"s_cmp_lg_u32 s{sWAVE}, 0\ns_cbranch_scc1 {sk}")
    signal(k, sCnt, vOne, vZ)
    k.label(sk)
    k(f"s_add_u32 s{sDst}, s{sDst}, {229376*NPAR}\ns_add_u32 s{sCnt}, s{sCnt}, {16*NPAR}\ns_add_u32 s{sSeg}, s{sSeg}, {NPAR}")
    k(f"s_cmp_lt_u32 s{sSeg}, 64\ns_cbranch_scc1 {loop}")

def test_kernel(role_emit, name, cfg, nroles):
    k = K()
    k(f'.amdgcn_target "amdgcn-amd-amdhsa--gfx950"\n.text\n.globl {name}\n.p2align 8\n.type {name},@function\n{name}:')
    k(f"s_cmp_ge_u32 s2, {nroles}\ns_cbranch_scc1 L_exit")
    srd(k, sWS, KARG["ws"], WS_BYTES)
    k(f"s_mov_b32 s{sRANK}, s2\ns_mov_b32 s{sSPIN}, {SPIN}")
    k(f"v_lshrrev_b32 v3, 6, v0\ns_nop 0\nv_readfirstlane_b32 s{sWAVE}, v3")
    k("s_waitcnt lgkmcnt(0)")
    role_emit(k, cfg, "L_abort")
    for t in cfg.get("outofline", []): k(t)
    k.label("L_abort")
    k("s_load_dwordx2 s[4:5], s[0:1], 96\ns_waitcnt lgkmcnt(0)\nv_mov_b32 v1, 0\nv_mov_b32 v2, 1\nglobal_atomic_add v1, v2, s[4:5] offset:4\ns_waitcnt vmcnt(0)")
    k.label("L_exit")
    k("s_endpgm")
    from prepk import kd
    k('.section .rodata,"a"')
    k(kd(name, 512, 256))
    return k.text()

if __name__ == "__main__":
    import sys, kfw
    t = test_kernel(emit_vxgen, "vx_kernel", {}, 56)
    open("vx_test.s", "w").write(t)
    print("hazards", len(kfw.check(t)), "waits", len(kfw.check_waits(t)))

def blockregA(b):
    return Reg("a", 8 * b) if b < 28 else Reg("v", 88 + 8 * (b - 28))

def emit_xattn(k, cfg, abort):
    NPAR = cfg.get("xa_par", 2)
    sH, sPar, sSeg, sSrc, sBuf, sM, sKey, sMem, sPx, sCnt = 20, 21, 22, 23, 24, 25, 26, 27, 28, 29
    sMask = 32
    sLo = 48
    vL16, vL8, vZ, vOne, vRd, vMK, vSW, vSR, vX, vT, vNeg = 1, 2, 3, 4, 5, 6, 7, 8, 9, 10, 11
    XF, QT1, ACC, EX = 12, 28, 44, 76
    SACC = 56
    XK = 224
    SP_L = 57344
    k("v_and_b32 v0, 63, v0")
    k(f"v_lshlrev_b32 v{vL16}, 4, v0\nv_lshlrev_b32 v{vL8}, 3, v0\nv_mov_b32 v{vZ}, 0\nv_mov_b32 v{vOne}, 1\nv_mov_b32 v{vNeg}, 0xff800000")
    k(f"s_and_b32 s{sH}, s{sRANK}, 15\ns_lshr_b32 s{sPar}, s{sRANK}, 4")
    N_, G_ = XF, XF + 1
    k(f"v_and_b32 v{N_}, 15, v0\nv_lshrrev_b32 v{G_}, 4, v0")
    k(f"s_mul_i32 s{sT0}, s{sWAVE}, 1792")
    k(f"v_lshrrev_b32 v{vT}, 1, v{G_}\nv_lshlrev_b32 v{vMK}, 7, v{vT}")
    k(f"v_and_b32 v{vT}, 7, v0\nv_lshl_add_u32 v{vMK}, v{vT}, 4, v{vMK}")
    k(f"v_and_b32 v{vT}, 1, v{G_}\nv_lshl_add_u32 v{vMK}, v{vT}, 3, v{vMK}\nv_add_u32 v{vMK}, s{sT0}, v{vMK}")
    k(f"s_mul_i32 s{sT0}, s{sWAVE}, 6144\ns_add_u32 s{sT0}, s{sT0}, {SP_L}\nv_add_u32 v{vSW}, s{sT0}, v{vL16}")
    k(f"s_and_b32 s{sT0}, s{sWAVE}, 1\ns_lshl_b32 s{sT0}, s{sT0}, 10\ns_add_u32 s{sT0}, s{sT0}, {SP_L}\nv_add_u32 v{vSR}, s{sT0}, v{vL16}")
    k(f"v_bfe_u32 v{vT}, v{N_}, 3, 1\nv_lshlrev_b32 v{vX}, 4, v{vT}")
    k(f"v_bfe_u32 v{vT}, v{N_}, 1, 1\nv_lshl_add_u32 v{vX}, v{vT}, 3, v{vX}")
    k(f"v_bfe_u32 v{vT}, v{N_}, 2, 1\nv_lshl_add_u32 v{vX}, v{vT}, 2, v{vX}")
    k(f"v_and_b32 v{vT}, 1, v{N_}\nv_add_u32 v{vX}, v{vX}, v{vT}")
    k(f"s_and_b32 s{sT0}, s{sWAVE}, 1\ns_lshl_b32 s{sT0}, s{sT0}, 1\nv_add_u32 v{vX}, s{sT0}, v{vX}")
    k(f"v_lshrrev_b32 v{vT}, 1, v{G_}\nv_lshlrev_b32 v{vT}, 4, v{vT}\nv_sub_u32 v{vX}, v{vX}, v{vT}")
    k(f"v_and_b32 v{vT}, 1, v{G_}\nv_lshlrev_b32 v{vT}, 2, v{vT}\nv_sub_u32 v{vX}, v{vX}, v{vT}")
    for kap in range(2):
        for r in range(4):
            c = 8 * (r >> 1) + 2 * kap + (r & 1)
            m = sMask + 2 * (4 * kap + r)
            k(f"v_cmp_le_i32 s[{m}:{m+1}], {c}, v{vX}")
    k(f"v_cmp_gt_u32 s[{sLo}:{sLo+1}], 2, v{G_}")
    k(f"s_mul_i32 s{sT0}, s{sH}, 401408\ns_mul_i32 s{sT1}, s{sWAVE}, 100352\ns_add_u32 s{sT0}, s{sT0}, s{sT1}")
    if WA_OFF: k(f"s_add_u32 s{sT0}, s{sT0}, {WA_OFF}")
    for b in range(49):
        R = blockregA(b)
        for a in range(2):
            off = (b * 2 + a) * 1024
            if off and off % 4096 == 0: k(f"s_add_u32 s{sT0}, s{sT0}, 4096")
            k(f"buffer_load_dwordx4 {R.r(4*a,4)}, v{vL16}, {WSR}, s{sT0} offen offset:{off%4096}")
    def Wf(tt, kk):
        return blockregA(7 * tt + (kk >> 1)).r(4 * (kk & 1), 4)
    k(f"s_mov_b32 s{sSeg}, s{sPar}")
    k(f"s_mul_i32 s{sSrc}, s{sPar}, 28672\ns_mul_i32 s{sT0}, s{sWAVE}, 7168\ns_add_u32 s{sSrc}, s{sSrc}, s{sT0}")
    k(f"s_add_u32 s{sKey}, s{sSrc}, {XKP_OFF}\ns_add_u32 s{sSrc}, s{sSrc}, {XNA_OFF}")
    k(f"s_mul_i32 s{sMem}, s{sPar}, 7168\ns_add_u32 s{sMem}, s{sMem}, {MEMOUT}")
    k(f"s_mul_i32 s{sPx}, s{sPar}, 49152\ns_mul_i32 s{sT0}, s{sH}, 3072\ns_add_u32 s{sPx}, s{sPx}, s{sT0}\ns_add_u32 s{sPx}, s{sPx}, {PX_OFF}")
    k(f"s_lshl_b32 s{sCnt}, s{sPar}, 4\ns_add_u32 s{sCnt}, s{sCnt}, {C_PX}")
    k(f"s_mul_i32 s{sM}, s{sWAVE}, 7168\ns_mov_b32 s{sBuf}, 0")
    def issue_dma(bufreg):
        k(f"s_add_u32 s{sT1}, s{sM}, s{bufreg}")
        k(f"s_mov_b32 m0, s{sT1}\ns_nop 0")
        for u in range(4):
            k(f"buffer_load_dwordx4 v{vL16}, {WSR}, s{sSrc} offen offset:{u*1024} lds")
        k(f"s_add_u32 m0, s{sT1}, 4096\ns_add_u32 s{sT0}, s{sSrc}, 4096")
        for u in range(3):
            k(f"buffer_load_dwordx4 v{vL16}, {WSR}, s{sT0} offen offset:{u*1024} lds")
    issue_dma(sBuf)
    loop = k.uid("XA_loop"); last = k.uid("XA_nopf")
    k.label(loop)
    k("s_waitcnt vmcnt(0)\ns_barrier")
    k(f"v_add_u32 v{vRd}, s{sBuf}, v{vL16}")
    k(f"s_xor_b32 s{sBuf}, s{sBuf}, 28672")
    for kap in range(2):
        for p in range(3):
            off = kap * 3584 + p * 1024
            so = sKey if off < 4096 else sT1
            if off >= 4096 and p == 1: k(f"s_add_u32 s{sT1}, s{sKey}, 4096")
            k(f"buffer_load_dwordx4 {A(XK+kap*14+4*p,4)}, v{vL16}, {WSR}, s{so} offen offset:{off%4096}")
        off = kap * 3584 + 3072
        so = sKey if off < 4096 else sT1
        k(f"buffer_load_dwordx2 {A(XK+kap*14+12,2)}, v{vL8}, {WSR}, s{so} offen offset:{off%4096}")
    k(f"s_add_u32 s{sSrc}, s{sSrc}, {28672*NPAR}\ns_add_u32 s{sKey}, s{sKey}, {28672*NPAR}")
    k(f"s_add_u32 s{sT0}, s{sSeg}, {NPAR}\ns_cmp_ge_u32 s{sT0}, 64\ns_cbranch_scc1 {last}")
    issue_dma(sBuf)
    k.label(last)
    q = Q(k)
    def qx_pass(tiles):
        def rd(kk):
            for rho in range(2):
                q.ds(f"ds_read_b128 {V(XF+8*(kk&1)+4*rho,4)}, v{vRd} offset:{(rho*14+kk)*1024}", f"x{kk}_{rho}")
        rd(0)
        for kk in range(14):
            if kk < 13: rd(kk + 1)
            q.wait_lg(f"x{kk}_1")
            for i, tt in enumerate(tiles):
                for rho in range(2):
                    D = V(ACC + (i * 2 + rho) * 4, 4)
                    k(f"v_mfma_f32_16x16x32_bf16 {D}, {Wf(tt,kk)}, {V(XF+8*(kk&1)+4*rho,4)}, {'0' if kk == 0 else D}")
        q.reset()
        k("s_nop 7")
    qx_pass([0, 1, 2, 3])
    for i in range(4):
        for rho in range(2):
            src = ACC + (i * 2 + rho) * 4; dst = QT1 + rho * 8 + (i >> 1) * 4 + (i & 1) * 2
            k(f"v_cvt_pk_bf16_f32 v{dst}, v{src}, v{src+1}\nv_cvt_pk_bf16_f32 v{dst+1}, v{src+2}, v{src+3}")
    qx_pass([4, 5, 6])
    for (i, rho, dst) in ((0, 0, 0), (1, 0, 2), (0, 1, 4), (1, 1, 6), (2, 0, 8), (2, 1, 10)):
        src = ACC + (i * 2 + rho) * 4
        k(f"v_cvt_pk_bf16_f32 v{ACC+dst}, v{src}, v{src+1}\nv_cvt_pk_bf16_f32 v{ACC+dst+1}, v{src+2}, v{src+3}")
    def QTr(p, rho):
        if p < 2: return V(QT1 + rho * 8 + p * 4, 4)
        if p == 2: return V(ACC + rho * 4, 4)
        return V(ACC + 8 + rho * 2, 2)
    def smm(kap, p, rho):
        D = V(SACC + (kap * 2 + rho) * 4, 4)
        C = "0" if p == 0 else D
        if p < 3:
            Aop = A(XK + kap * 14 + 4 * p, 4) if kap < 2 else V(XF + 4 * p, 4)
            k(f"v_mfma_f32_16x16x32_bf16 {D}, {Aop}, {QTr(p,rho)}, {C}")
        else:
            Aop = A(XK + kap * 14 + 12, 2) if kap < 2 else V(XF + 12, 2)
            k(f"v_mfma_f32_16x16x16_bf16 {D}, {Aop}, {QTr(p,rho)}, {C}")
    k("s_waitcnt vmcnt(0)")
    for kap in range(2):
        for p in range(4):
            for rho in range(2): smm(kap, p, rho)
    top = k.uid("XA_mk"); ok_ = k.uid("XA_mkok")
    k.label(top)
    for tt in range(7):
        k(f"buffer_load_dwordx2 {V(XF+2*tt,2)}, v{vMK}, {WSR}, s{sMem} offen offset:{256*tt} sc1")
    k("s_waitcnt vmcnt(0)")
    k(f"v_max3_u32 v{vX}, v{XF}, v{XF+1}, v{XF+2}")
    for i in range(3, 13, 2): k(f"v_max3_u32 v{vX}, v{vX}, v{XF+i}, v{XF+i+1}")
    k(f"v_max_u32 v{vX}, v{vX}, v{XF+13}")
    k(f"v_cmp_eq_u32 vcc, -1, v{vX}\ns_cbranch_vccz {ok_}")
    k(f"s_sleep 2\ns_sub_u32 s{sSPIN}, s{sSPIN}, 1\ns_cbranch_scc0 {top}\ns_branch {abort}")
    k.label(ok_)
    for p in range(4):
        for rho in range(2): smm(2, p, rho)
    k("s_nop 7")
    for u in range(6): k(f"ds_write_b128 v{vSW}, {V(SACC+4*u,4)} offset:{u*1024}")
    k("s_waitcnt lgkmcnt(0)\ns_barrier")
    fin = k.uid("XA_fin")
    k(f"s_cmp_ge_u32 s{sWAVE}, 2\ns_cbranch_scc1 {fin}")
    S = 44
    T_ = 56
    for src in range(4):
        dst = S if src == 0 else (T_ if src & 1 else T_ + 12)
        for kap in range(3):
            k(f"ds_read_b128 {V(dst+4*kap,4)}, v{vSR} offset:{src*6144+kap*2048}")
        if src >= 1:
            k("s_waitcnt lgkmcnt(0)")
            for i in range(0, 12, 2): k(f"v_pk_add_f32 {V(S+i,2)}, {V(S+i,2)}, {V(dst+i,2)}")
    for kap in range(2):
        for r in range(4):
            m = sMask + 2 * (4 * kap + r)
            k(f"v_cndmask_b32 v{S+4*kap+r}, v{vNeg}, v{S+4*kap+r}, s[{m}:{m+1}]")
    M = vX; T2 = vT
    k(f"v_max3_f32 v{M}, v{S}, v{S+1}, v{S+2}")
    for i in range(3, 11, 2): k(f"v_max3_f32 v{M}, v{M}, v{S+i}, v{S+i+1}")
    k(f"v_max_f32 v{M}, v{M}, v{S+11}")
    def xg(op):
        for sw in ("v_permlane32_swap_b32", "v_permlane16_swap_b32"):
            k(f"v_mov_b32 v{T2}, v{M}\ns_nop 1\n{sw} v{M}, v{T2}\n{op} v{M}, v{M}, v{T2}")
    xg("v_max_f32")
    for i in range(12): k(f"v_sub_f32 v{S+i}, v{S+i}, v{M}")
    for i in range(12): k(f"v_exp_f32 v{S+i}, v{S+i}")
    k("s_nop 0")
    for i in range(8, 12): k(f"v_cndmask_b32 v{S+i}, 0, v{S+i}, s[{sLo}:{sLo+1}]")
    k(f"v_add_f32 v{M}, v{S}, v{S+1}")
    for i in range(2, 12): k(f"v_add_f32 v{M}, v{M}, v{S+i}")
    xg("v_add_f32")
    k(f"v_rcp_f32 v{M}, v{M}\ns_nop 0")
    for i in range(12): k(f"v_mul_f32 v{S+i}, v{S+i}, v{M}")
    for i in range(6): k(f"v_cvt_pk_bf16_f32 v{S+i}, v{S+2*i}, v{S+2*i+1}")
    k(f"s_and_b32 s{sT0}, s{sWAVE}, 1\ns_lshl_b32 s{sT1}, s{sT0}, 10\ns_add_u32 s{sT1}, s{sT1}, s{sPx}")
    k(f"buffer_store_dwordx4 {V(S,4)}, v{vL16}, {WSR}, s{sT1} offen sc1")
    k(f"s_lshl_b32 s{sT1}, s{sT0}, 9\ns_add_u32 s{sT1}, s{sT1}, s{sPx}")
    k(f"buffer_store_dwordx2 {V(S+4,2)}, v{vL8}, {WSR}, s{sT1} offen offset:2048 sc1")
    k("s_waitcnt vmcnt(0)")
    k.label(fin)
    k("s_barrier")
    sk = k.uid("XA_ns")
    k(f"s_cmp_lg_u32 s{sWAVE}, 0\ns_cbranch_scc1 {sk}")
    signal(k, sCnt, vOne, vZ)
    k.label(sk)
    k(f"s_add_u32 s{sMem}, s{sMem}, {7168*NPAR}\ns_add_u32 s{sPx}, s{sPx}, {49152*NPAR}\ns_add_u32 s{sCnt}, s{sCnt}, {16*NPAR}\ns_add_u32 s{sSeg}, s{sSeg}, {NPAR}")
    k(f"s_cmp_lt_u32 s{sSeg}, 64\ns_cbranch_scc1 {loop}")
    k("s_waitcnt vmcnt(0)")
    k("s_endpgm")

def emit_pvout(k, cfg, abort):
    NPAR = cfg.get("pv_par", 2)
    sX, sO = 36, 40
    sCg, sPar, sSeg, sVX, sVM, sPX, sG, sXo, sC = 20, 21, 22, 23, 24, 25, 26, 27, 28
    vL16, vL8, vZ, vT, vRow, vRd, vRm = 1, 2, 3, 4, 5, 7, 8
    PF, D, GV, XV = 12, 44, 52, 60
    srd(k, sX, KARG["x"], 1835008); srd(k, sO, KARG["out"], 1835008)
    k("v_and_b32 v0, 63, v0")
    k(f"v_lshlrev_b32 v{vL16}, 4, v0\nv_lshlrev_b32 v{vL8}, 3, v0\nv_mov_b32 v{vZ}, 0")
    k(f"s_mul_i32 s{sPar}, s{sRANK}, 9363\ns_lshr_b32 s{sPar}, s{sPar}, 16\ns_mul_i32 s{sT0}, s{sPar}, 7\ns_sub_u32 s{sCg}, s{sRANK}, s{sT0}")
    k(f"v_and_b32 v{vT}, 15, v0")
    k(f"v_bfe_u32 v{vRow}, v{vT}, 3, 1\nv_lshlrev_b32 v{vRow}, 4, v{vRow}")
    k(f"v_bfe_u32 v{vRow+1}, v{vT}, 1, 1\nv_lshl_add_u32 v{vRow}, v{vRow+1}, 3, v{vRow}")
    k(f"v_bfe_u32 v{vRow+1}, v{vT}, 2, 1\nv_lshl_add_u32 v{vRow}, v{vRow+1}, 2, v{vRow}")
    k(f"v_and_b32 v{vRow+1}, 1, v{vT}\nv_add_u32 v{vRow}, v{vRow}, v{vRow+1}")
    k(f"v_mul_u32_u24 v{vRow}, 896, v{vRow}")
    k(f"v_lshrrev_b32 v{vT}, 4, v0\nv_lshl_add_u32 v{vRow}, v{vT}, 3, v{vRow}")
    k(f"s_lshl_b32 s{sT0}, s{sCg}, 2\ns_add_u32 s{sT0}, s{sT0}, s{sWAVE}")
    k(f"s_lshl_b32 s{sT1}, s{sT0}, 5\nv_add_u32 v{vRow}, s{sT1}, v{vRow}\nv_add_u32 v{vRow+1}, {2*896}, v{vRow}")
    k(f"s_mul_i32 s{sG}, s{sT0}, 2048\ns_mul_i32 s{sT1}, s{sPar}, 57344\ns_add_u32 s{sG}, s{sG}, s{sT1}\ns_add_u32 s{sG}, s{sG}, {G_OFF}")
    k(f"s_lshr_b32 s{sT0}, s{sT0}, 1")
    k(f"s_mul_i32 s{sVX}, s{sT0}, 32768\ns_mul_i32 s{sVM}, s{sT0}, 16384")
    k(f"s_and_b32 s{sT0}, s{sWAVE}, 1\ns_lshl_b32 s{sT1}, s{sT0}, 11\ns_add_u32 s{sVX}, s{sVX}, s{sT1}\ns_lshl_b32 s{sT1}, s{sT0}, 10\ns_add_u32 s{sVM}, s{sVM}, s{sT1}")
    k(f"s_mul_i32 s{sT1}, s{sPar}, 458752\ns_add_u32 s{sVX}, s{sVX}, s{sT1}\ns_add_u32 s{sVX}, s{sVX}, {VX_OFF}")
    k(f"s_mul_i32 s{sT1}, s{sPar}, 229376\ns_add_u32 s{sVM}, s{sVM}, s{sT1}\ns_add_u32 s{sVM}, s{sVM}, {VM_OFF}")
    k(f"s_mul_i32 s{sPX}, s{sPar}, 49152\ns_mul_i32 s{sT1}, s{sWAVE}, 12288\ns_add_u32 s{sPX}, s{sPX}, s{sT1}\ns_add_u32 s{sPX}, s{sPX}, {PX_OFF}")
    k(f"s_mul_i32 s{sXo}, s{sPar}, 28672\ns_lshl_b32 s{sC}, s{sPar}, 4\ns_mov_b32 s{sSeg}, s{sPar}")
    k("s_waitcnt lgkmcnt(0)")
    VXR, VMR = 0, 64
    loop = k.uid("PV_loop")
    k.label(loop)
    REC = 64
    def waitrec(checks):
        top = k.uid("PV_w"); done = k.uid("PV_wd")
        k(f"s_add_u32 s{sT0}, s{sC}, {CSEG}")
        k.label(top)
        k(f"buffer_load_dwordx4 {V(REC,4)}, v{vZ}, {WSR}, s{sT0} offen sc1\ns_waitcnt vmcnt(0)")
        first = True
        for idx, target in checks:
            k(f"v_cmp_gt_u32 vcc, {target}, v{REC+idx}")
            if first: k(f"s_mov_b64 s[30:31], vcc"); first = False
            else: k(f"s_or_b64 s[30:31], s[30:31], vcc")
        k(f"s_cmp_eq_u64 s[30:31], 0\ns_cbranch_scc1 {done}")
        k(f"s_sleep 2\ns_sub_u32 s{sSPIN}, s{sSPIN}, 1\ns_cbranch_scc0 {top}\ns_branch {abort}")
        k.label(done)
    S0 = cfg.get("s0", 32)
    late = k.uid("PV_late"); go = k.uid("PV_go")
    k(f"s_cmp_ge_u32 s{sSeg}, {S0}\ns_cbranch_scc1 {late}")
    waitrec([(0, 28), (1, 28)])
    k(f"s_branch {go}")
    k.label(late)
    waitrec([(0, 28), (1, 28), (3, 1)])
    k.label(go)
    for w in range(4):
        for ks in range(2):
            k(f"s_add_u32 s{sT0}, s{sVX}, {w*8192+ks*4096}")
            for a in range(2):
                k(f"buffer_load_dwordx4 {A(VXR+((w*2+ks)*2+a)*4,4)}, v{vL16}, {WSR}, s{sT0} offen offset:{a*1024} sc1")
    early1 = k.uid("PV_e1")
    k(f"s_cmp_lt_u32 s{sSeg}, {S0}\ns_cbranch_scc1 {early1}")
    for rho in range(2): k(f"buffer_load_dwordx2 {V(XV+2*rho,2)}, v{vRow+rho}, s[{sX}:{sX+3}], s{sXo} offen")
    for rho in range(2): k(f"buffer_load_dwordx4 {V(GV+4*rho,4)}, v{vL16}, {WSR}, s{sG} offen offset:{rho*1024} sc1")
    k.label(early1)
    for w in range(4):
        k(f"s_add_u32 s{sT0}, s{sVM}, {w*4096}")
        for ks in range(2):
            k(f"buffer_load_dwordx4 {A(VMR+(w*2+ks)*4,4)}, v{vL16}, {WSR}, s{sT0} offen offset:{ks*2048} sc1")
    waitrec([(2, 16)])
    k("s_barrier")
    k(f"s_mul_i32 s{sT1}, s{sWAVE}, 12288")
    for u4 in range(3):
        k(f"s_add_u32 m0, s{sT1}, {u4*4096}\ns_add_u32 s{sT0}, s{sPX}, {u4*4096}")
        for u in range(4): k(f"buffer_load_dwordx4 v{vL16}, {WSR}, s{sT0} offen offset:{u*1024} sc1 lds")
    k("s_waitcnt vmcnt(0)\ns_barrier")
    q = Q(k)
    steps = []
    for h in range(16):
        for rho in range(2): steps.append(("x", h, rho))
    for pr in range(8):
        for rho in range(2): steps.append(("m", pr, rho))
    def rd(i):
        kind, a_, rho = steps[i]
        dst = V(PF + 4 * (i % 8), 4)
        if kind == "x": q.ds(f"ds_read_b128 {dst}, v{vL16} offset:{a_*3072+rho*1024}", f"p{i}")
        else: q.ds(f"ds_read2st64_b64 {dst}, v{vL8} offset0:{(2*a_*3072+2048+rho*512)//512} offset1:{((2*a_+1)*3072+2048+rho*512)//512}", f"p{i}")
    for i in range(6): rd(i)
    first = [True, True]
    for i, (kind, a_, rho) in enumerate(steps):
        if i + 6 < len(steps): rd(i + 6)
        q.wait_lg(f"p{i}")
        Aop = A(VXR + a_ * 4, 4) if kind == "x" else A(VMR + a_ * 4, 4)
        Dr = V(D + 4 * rho, 4)
        k(f"v_mfma_f32_16x16x32_bf16 {Dr}, {Aop}, {V(PF+4*(i%8),4)}, {'0' if first[rho] else Dr}")
        first[rho] = False
    k("s_nop 7")
    fin = k.uid("PV_fin"); nxt = k.uid("PV_nxt")
    k(f"s_cmp_ge_u32 s{sSeg}, {S0}\ns_cbranch_scc1 {fin}")
    for rho in range(2): k(f"buffer_store_dwordx4 {V(D+4*rho,4)}, v{vL16}, {WSR}, s{sG} offen offset:{rho*1024} sc1")
    k("s_waitcnt vmcnt(0)\ns_barrier")
    k(f"s_cmp_lg_u32 s{sWAVE}, 0\ns_cbranch_scc1 {nxt}")
    k(f"s_add_u32 s{sT0}, s{sC}, {C_G}\nv_mov_b32 v{vT}, 1")
    signal(k, sT0, vT, vZ)
    k(f"s_branch {nxt}")
    k.label(fin)
    for rho in range(2):
        T = PF
        k(f"v_lshlrev_b32 v{T}, 16, v{XV+2*rho}\nv_and_b32 v{T+1}, 0xffff0000, v{XV+2*rho}")
        k(f"v_lshlrev_b32 v{T+2}, 16, v{XV+2*rho+1}\nv_and_b32 v{T+3}, 0xffff0000, v{XV+2*rho+1}")
        for r in range(4): k(f"v_fma_f32 v{T+r}, v{D+4*rho+r}, v{GV+4*rho+r}, v{T+r}")
        k(f"v_cvt_pk_bf16_f32 v{T+4+2*rho}, v{T}, v{T+1}\nv_cvt_pk_bf16_f32 v{T+5+2*rho}, v{T+2}, v{T+3}")
        k(f"buffer_store_dwordx2 {V(T+4+2*rho,2)}, v{vRow+rho}, s[{sO}:{sO+3}], s{sXo} offen")
    k.label(nxt)
    k(f"s_add_u32 s{sVX}, s{sVX}, {458752*NPAR}\ns_add_u32 s{sVM}, s{sVM}, {229376*NPAR}\ns_add_u32 s{sPX}, s{sPX}, {49152*NPAR}")
    k(f"s_add_u32 s{sG}, s{sG}, {57344*NPAR}\ns_add_u32 s{sXo}, s{sXo}, {28672*NPAR}\ns_add_u32 s{sC}, s{sC}, {16*NPAR}\ns_add_u32 s{sSeg}, s{sSeg}, {NPAR}")
    k(f"s_cmp_lt_u32 s{sSeg}, 64\ns_cbranch_scc1 {loop}")
    k("s_waitcnt vmcnt(0)")
    k("s_endpgm")

import math
def emit_ffn(k, cfg, abort):
    k("; ================= FFN =================")
    sA = 36
    sU, sGu, sTt, sFg, sSrc, sDst, sCnt = 20, 21, 22, 23, 24, 25, 26
    vL16, vZ, vOne, vT, vN, vG, vLd, vR = 1, 2, 3, 4, 5, 6, 7, 8
    k("v_mov_b32 v9, v0")
    k("v_and_b32 v0, 63, v0")
    k(f"v_lshlrev_b32 v{vL16}, 4, v0\nv_mov_b32 v{vZ}, 0\nv_mov_b32 v{vOne}, 1")
    k(f"v_and_b32 v{vN}, 15, v0\nv_lshrrev_b32 v{vG}, 4, v0")
    if cfg.get("relayout", True):
        STG = 16
        OUT = 48
        uloop = k.uid("FF_u"); isd = k.uid("FF_d"); nxt = k.uid("FF_n"); done = k.uid("FF_rd")
        k(f"s_mov_b32 s{sU}, s{sRANK}")
        k.label(uloop)
        k(f"s_cmp_ge_u32 s{sU}, 154\ns_cbranch_scc1 {done}")
        k(f"s_cmp_ge_u32 s{sU}, 98\ns_cbranch_scc1 {isd}")
        LS = 544
        k(f"s_cmp_ge_u32 s{sU}, 49\ns_cselect_b32 s{sGu}, 1, 0\ns_mul_i32 s{sT0}, s{sGu}, 49\ns_sub_u32 s{sT0}, s{sU}, s{sT0}")
        k(f"s_mul_i32 s{sTt}, s{sT0}, 9363\ns_lshr_b32 s{sTt}, s{sTt}, 16\ns_mul_i32 s{sT1}, s{sTt}, 7\ns_sub_u32 s{sFg}, s{sT0}, s{sT1}")
        g_ = k.uid("FF_g"); gu_ = k.uid("FF_gu")
        k(f"s_cmp_eq_u32 s{sGu}, 1\ns_cbranch_scc1 {g_}")
        srd(k, sA, KARG["Wg"], 1605632)
        k(f"s_branch {gu_}")
        k.label(g_)
        srd(k, sA, KARG["Wu"], 1605632)
        k.label(gu_)
        k(f"v_lshrrev_b32 v{vT}, 5, v9\nv_mul_u32_u24 v{vLd}, 3584, v{vT}\nv_mul_u32_u24 v{vR}, {LS}, v{vT}")
        k(f"v_and_b32 v{vT}, 31, v9\nv_lshl_add_u32 v{vLd}, v{vT}, 4, v{vLd}\nv_lshl_add_u32 v{vR}, v{vT}, 4, v{vR}")
        k(f"s_mul_i32 s{sSrc}, s{sTt}, {64*3584}\ns_lshl_b32 s{sT0}, s{sFg}, 9\ns_add_u32 s{sSrc}, s{sSrc}, s{sT0}")
        k("s_waitcnt lgkmcnt(0)")
        for u in range(8):
            k(f"buffer_load_dwordx4 {V(STG+4*u,4)}, v{vLd}, s[{sA}:{sA+3}], s{sSrc} offen")
            if u < 7: k(f"s_add_u32 s{sSrc}, s{sSrc}, {8*3584}")
        k("s_barrier")
        k("s_waitcnt vmcnt(0)")
        for u in range(8): k(f"ds_write_b128 v{vR}, {V(STG+4*u,4)} offset:{u*8*LS}")
        k(f"v_lshrrev_b32 v{vT}, 1, v{vG}\nv_lshlrev_b32 v{vR}, 4, v{vT}")
        k(f"v_and_b32 v{vT}, 1, v{vG}\nv_lshl_add_u32 v{vR}, v{vT}, 2, v{vR}")
        k(f"v_bfe_u32 v{vT}, v0, 2, 1\nv_add_u32 v{vR}, v{vR}, v{vT}")
        k(f"v_bfe_u32 v{vT}, v0, 3, 1\nv_lshl_add_u32 v{vR}, v{vT}, 3, v{vR}")
        k(f"v_mul_u32_u24 v{vR}, {LS}, v{vR}\nv_and_b32 v{vT}, 3, v0\nv_lshl_add_u32 v{vR}, v{vT}, 3, v{vR}")
        k(f"s_lshl_b32 s{sT0}, s{sWAVE}, 7\nv_add_u32 v{vR}, s{sT0}, v{vR}")
        k("s_waitcnt lgkmcnt(0)\ns_barrier")
        for ftl in range(4):
            for a in range(2):
                for u in range(2):
                    k(f"ds_read_b64_tr_b16 {V(OUT+(ftl*2+a)*4+2*u,2)}, v{vR} offset:{(32*a+2*u)*LS+ftl*32}")
        k("s_waitcnt lgkmcnt(0)")
        for ftl in range(4):
            k(f"s_lshl_b32 s{sT0}, s{sFg}, 4\ns_lshl_b32 s{sT1}, s{sWAVE}, 2\ns_add_u32 s{sT0}, s{sT0}, s{sT1}\ns_add_u32 s{sT0}, s{sT0}, {ftl}")
            k(f"s_lshl_b32 s{sT0}, s{sT0}, 1\ns_add_u32 s{sT0}, s{sT0}, s{sGu}\ns_mul_i32 s{sT0}, s{sT0}, 14\ns_lshl_b32 s{sT1}, s{sTt}, 1\ns_add_u32 s{sT0}, s{sT0}, s{sT1}")
            k(f"s_lshl_b32 s{sDst}, s{sT0}, 10\ns_add_u32 s{sDst}, s{sDst}, {WG_OFF}")
            for a in range(2):
                k(f"buffer_store_dwordx4 {V(OUT+(ftl*2+a)*4,4)}, v{vL16}, {WSR}, s{sDst} offen offset:{a*1024} sc1")
        k(f"s_branch {nxt}")
        k.label(isd)
        LS = 928
        srd(k, sA, KARG["Wd"], 1605632)
        k(f"s_sub_u32 s{sFg}, s{sU}, 98")
        k(f"s_mul_i32 s{sSrc}, s{sFg}, 28672")
        k(f"v_lshlrev_b32 v{vLd}, 4, v9")
        k("s_waitcnt lgkmcnt(0)")
        for u in range(7):
            k(f"buffer_load_dwordx4 {V(STG+4*u,4)}, v{vLd}, s[{sA}:{sA+3}], s{sSrc} offen")
            if u < 6: k(f"s_add_u32 s{sSrc}, s{sSrc}, 4096")
        k("s_barrier")
        for u in range(7):
            k(f"v_add_u32 v{vT}, {256*u}, v9\nv_mul_u32_u24 v{vR}, 2341, v{vT}\nv_lshrrev_b32 v{vR}, 17, v{vR}")
            k(f"v_mul_u32_u24 v{vLd}, 56, v{vR}\nv_sub_u32 v{vLd}, v{vT}, v{vLd}\nv_lshlrev_b32 v{vLd}, 4, v{vLd}")
            k(f"v_mul_u32_u24 v{vR}, {LS}, v{vR}\nv_add_u32 v{vLd}, v{vLd}, v{vR}")
            if u == 0: k("s_waitcnt vmcnt(0)")
            k(f"ds_write_b128 v{vLd}, {V(STG+4*u,4)}")
        k(f"v_bfe_u32 v{vT}, v0, 2, 2\nv_lshl_add_u32 v{vT}, v{vG}, 2, v{vT}\nv_mul_u32_u24 v{vR}, {LS}, v{vT}")
        k(f"v_and_b32 v{vT}, 3, v0\nv_lshl_add_u32 v{vR}, v{vT}, 3, v{vR}")
        k(f"s_mul_i32 s{sT0}, s{sWAVE}, 224\nv_add_u32 v{vR}, s{sT0}, v{vR}")
        k("s_waitcnt lgkmcnt(0)\ns_barrier")
        for i in range(7):
            for u in range(2):
                k(f"ds_read_b64_tr_b16 {V(OUT+i*4+2*u,2)}, v{vR} offset:{16*u*LS+i*32}")
        k(f"s_mul_i32 s{sDst}, s{sFg}, 28\ns_mul_i32 s{sT0}, s{sWAVE}, 7\ns_add_u32 s{sDst}, s{sDst}, s{sT0}\ns_lshl_b32 s{sDst}, s{sDst}, 10\ns_add_u32 s{sDst}, s{sDst}, {WD_OFF}")
        k("s_waitcnt lgkmcnt(0)")
        for i in range(7):
            if i == 4: k(f"s_add_u32 s{sDst}, s{sDst}, 4096")
            k(f"buffer_store_dwordx4 {V(OUT+i*4,4)}, v{vL16}, {WSR}, s{sDst} offen offset:{(i*1024)%4096} sc1")
        k.label(nxt)
        k(f"s_add_u32 s{sU}, s{sU}, 64\ns_branch {uloop}")
        k.label(done)
        k("s_waitcnt vmcnt(0)\ns_barrier")
        sk = k.uid("FF_ns")
        k(f"s_mov_b32 s{sCnt}, {C_RL}")
        k(f"s_cmp_lg_u32 s{sWAVE}, 0\ns_cbranch_scc1 {sk}")
        signal(k, sCnt, vOne, vZ)
        k.label(sk)
    XF, GU, HB, RING = 12, 124, 156, 164
    R, DEP = 28, 27
    def slotreg(i):
        j = i % R
        return V(RING + 4 * j, 4) if j < 21 else A(224 + 4 * (j - 21), 4)
    k(f"s_mul_i32 s{sSrc}, s{sRANK}, 28672\ns_add_u32 s{sSrc}, s{sSrc}, {XNA_OFF}")
    for f in range(28):
        if f and f % 4 == 0: k(f"s_add_u32 s{sSrc}, s{sSrc}, 4096")
        k(f"buffer_load_dwordx4 {V(XF+4*f,4)}, v{vL16}, {WSR}, s{sSrc} offen offset:{(f*1024)%4096}")
    for i in range(224): k(f"v_accvgpr_write_b32 a{i}, 0")
    if cfg.get("relayout", True):
        k(f"s_mov_b32 s{sCnt}, {C_RL}")
        wait_counter(k, sCnt, 64, vT, vZ, abort)
    else:
        k("s_waitcnt vmcnt(0)")
    sGU, sWD, sIt, sGUn, sWDn, sA0 = 27, 28, 29, 30, 31, 32
    k(f"s_mul_i32 s{sGU}, s{sWAVE}, {14*57344}\ns_add_u32 s{sGU}, s{sGU}, {WG_OFF}")
    k(f"s_mul_i32 s{sWD}, s{sWAVE}, {14*28672}\ns_add_u32 s{sWD}, s{sWD}, {WD_OFF}")
    seq = []
    for kk in range(14):
        for gu, ftl in ((0, 0), (0, 1), (1, 0), (1, 1)): seq.append(("gu", gu, ftl, kk))
    for ct in range(28): seq.append(("d", ct))
    NS = len(seq)
    def issue(i, nxt_iter):
        e = seq[i % NS]
        slot = slotreg(i)
        if e[0] == "gu":
            off = e[2] * 28672 + e[1] * 14336 + e[3] * 1024
            base = sGUn if nxt_iter else sGU
        else:
            off = e[1] * 1024
            base = sWDn if nxt_iter else sWD
        hi = off - off % 4096
        if hi: k(f"s_add_u32 s{sA0}, s{base}, {hi}")
        k(f"buffer_load_dwordx4 {slot}, v{vL16}, {WSR}, s{sA0 if hi else base} offen offset:{off%4096} sc1")
    for i in range(DEP): issue(i, False)
    k(f"s_mov_b32 s{sIt}, 0")
    loop = k.uid("FF_loop")
    k.label(loop)
    k(f"s_cmp_lt_u32 s{sIt}, 13\ns_cselect_b32 s{sT0}, 57344, 0\ns_add_u32 s{sGUn}, s{sGU}, s{sT0}\ns_cselect_b32 s{sT0}, 0, 0")
    k(f"s_cmp_lt_u32 s{sIt}, 13\ns_cselect_b32 s{sT0}, 28672, 0\ns_add_u32 s{sWDn}, s{sWD}, s{sT0}")
    for i, e in enumerate(seq):
        k(f"s_waitcnt vmcnt({DEP-1})")
        slot = slotreg(i)
        if e[0] == "gu":
            _, gu, ftl, kk = e
            for rho in range(2):
                D = V(GU + ((gu * 2 + ftl) * 2 + rho) * 4, 4)
                k(f"v_mfma_f32_16x16x32_bf16 {D}, {slot}, {V(XF+(rho*14+kk)*4,4)}, {'0' if kk == 0 else D}")
        else:
            if e[1] == 0:
                k("s_nop 7")
                for ftl in range(2):
                    for rho in range(2):
                        g0 = GU + ((0 * 2 + ftl) * 2 + rho) * 4; u0 = GU + ((1 * 2 + ftl) * 2 + rho) * 4
                        for r in range(4): k(f"v_max_f32 v{g0+r}, 0, v{g0+r}")
                        for r in range(4): k(f"v_mul_f32 v{g0+r}, v{g0+r}, v{u0+r}")
                        k(f"v_cvt_pk_bf16_f32 v{HB+4*rho+2*ftl}, v{g0}, v{g0+1}\nv_cvt_pk_bf16_f32 v{HB+4*rho+2*ftl+1}, v{g0+2}, v{g0+3}")
                k("s_nop 1")
            ct = e[1]
            for rho in range(2):
                D = A((ct * 2 + rho) * 4, 4)
                k(f"v_mfma_f32_16x16x32_bf16 {D}, {slot}, {V(HB+4*rho,4)}, {D}")
        j = i + DEP
        issue(j, j >= NS)
    k(f"s_mov_b32 s{sGU}, s{sGUn}\ns_mov_b32 s{sWD}, s{sWDn}\ns_add_u32 s{sIt}, s{sIt}, 1")
    k(f"s_cmp_lt_u32 s{sIt}, 14\ns_cbranch_scc1 {loop}")
    k("s_waitcnt vmcnt(0)\ns_nop 7")
    S0 = cfg.get("s0", 32)
    vW, vRd, vRow = 7, 8, 11
    k(f"s_mul_i32 s{sT0}, s{sWAVE}, 28672\nv_add_u32 v{vW}, s{sT0}, v{vL16}")
    k(f"s_mul_i32 s{sT0}, s{sWAVE}, 7168\nv_add_u32 v{vRd}, s{sT0}, v{vL16}\nv_add_u32 v10, 57344, v{vRd}")
    k(f"s_mul_i32 s{sDst}, s{sRANK}, 57344\ns_mul_i32 s{sT0}, s{sWAVE}, 7168\ns_add_u32 s{sDst}, s{sDst}, s{sT0}\ns_add_u32 s{sDst}, s{sDst}, {G_OFF}")
    k(f"s_mov_b32 s33, {fbits(-math.log2(math.e)):#x}")
    k(f"s_lshl_b32 s{sCnt}, s{sRANK}, 4\ns_add_u32 s{sCnt}, s{sCnt}, {C_G}")
    k(f"v_bfe_u32 v{vRow}, v{vN}, 3, 1\nv_lshlrev_b32 v{vRow}, 4, v{vRow}")
    k(f"v_bfe_u32 v{vT}, v{vN}, 1, 1\nv_lshl_add_u32 v{vRow}, v{vT}, 3, v{vRow}")
    k(f"v_bfe_u32 v{vT}, v{vN}, 2, 1\nv_lshl_add_u32 v{vRow}, v{vT}, 2, v{vRow}")
    k(f"v_and_b32 v{vT}, 1, v{vN}\nv_add_u32 v{vRow}, v{vRow}, v{vT}")
    k(f"v_mul_u32_u24 v{vRow}, 896, v{vRow}\nv_lshl_add_u32 v{vRow}, v{vG}, 3, v{vRow}")
    sX, sO = 36, 40
    srd(k, sX, KARG["x"], 1835008); srd(k, sO, KARG["out"], 1835008)
    k(f"s_mul_i32 s34, s{sRANK}, 28672")
    k("s_waitcnt lgkmcnt(0)")
    T = 16
    def reduce_tile(i):
        for src in range(4): k(f"ds_read_b128 {V(T+4*src,4)}, v{vRd if src < 2 else 10} offset:{(src&1)*28672+i*1024}")
        k("s_waitcnt lgkmcnt(0)")
        for p in (0, 2):
            k(f"v_pk_add_f32 {V(T+p,2)}, {V(T+p,2)}, {V(T+4+p,2)}\nv_pk_add_f32 {V(T+8+p,2)}, {V(T+8+p,2)}, {V(T+12+p,2)}")
            k(f"v_pk_add_f32 {V(T+p,2)}, {V(T+p,2)}, {V(T+8+p,2)}")
        for r in range(4): k(f"v_mul_f32 v{T+4+r}, s33, v{T+r}")
        for r in range(4): k(f"v_exp_f32 v{T+4+r}, v{T+4+r}")
        k("s_nop 0")
        for r in range(4): k(f"v_add_f32 v{T+4+r}, 1.0, v{T+4+r}")
        for r in range(4): k(f"v_rcp_f32 v{T+4+r}, v{T+4+r}")
        k("s_nop 0")
        for r in range(4): k(f"v_mul_f32 v{T+20+r}, v{T+r}, v{T+4+r}")
    late = k.uid("FF_late"); endl = k.uid("FF_end")
    k(f"s_cmp_ge_u32 s{sRANK}, {S0}\ns_cbranch_scc1 {late}")
    wait_counter(k, sCnt, 7, vT, vZ, abort, sleep=4)
    OV, XV = 48, 80
    for rnd in range(2):
        k("s_barrier")
        for u in range(28): k(f"ds_write_b128 v{vW}, {A((rnd*28+u)*4,4)} offset:{u*1024}")
        for i in range(7):
            off = rnd * 28672 + i * 1024
            k(f"s_add_u32 s{sT0}, s{sDst}, {off - off%4096}")
            k(f"buffer_load_dwordx4 {V(OV+4*i,4)}, v{vL16}, {WSR}, s{sT0} offen offset:{off%4096} sc1")
            k(f"s_mul_i32 s{sT0}, s{sWAVE}, 7\ns_add_u32 s{sT0}, s{sT0}, {rnd*28+i}\ns_and_b32 s{sT1}, s{sT0}, 1\ns_mul_i32 s{sT1}, s{sT1}, 1792")
            k(f"s_lshr_b32 s{sT0}, s{sT0}, 1\ns_lshl_b32 s{sT0}, s{sT0}, 5\ns_add_u32 s{sT0}, s{sT0}, s{sT1}\ns_add_u32 s{60+i}, s{sT0}, s34")
            k(f"buffer_load_dwordx2 {V(XV+2*i,2)}, v{vRow}, s[{sX}:{sX+3}], s{60+i} offen")
        k("s_waitcnt lgkmcnt(0)\ns_barrier\ns_waitcnt vmcnt(0)")
        for i in range(7):
            reduce_tile(i)
            k(f"v_lshlrev_b32 v{T}, 16, v{XV+2*i}\nv_and_b32 v{T+1}, 0xffff0000, v{XV+2*i}")
            k(f"v_lshlrev_b32 v{T+2}, 16, v{XV+2*i+1}\nv_and_b32 v{T+3}, 0xffff0000, v{XV+2*i+1}")
            for r in range(4): k(f"v_fma_f32 v{T+r}, v{OV+4*i+r}, v{T+20+r}, v{T+r}")
            k(f"v_cvt_pk_bf16_f32 v{T+24}, v{T}, v{T+1}\nv_cvt_pk_bf16_f32 v{T+25}, v{T+2}, v{T+3}")
            k(f"buffer_store_dwordx2 {V(T+24,2)}, v{vRow}, s[{sO}:{sO+3}], s{60+i} offen")
    k(f"s_branch {endl}")
    k.label(late)
    for rnd in range(2):
        k("s_barrier")
        for u in range(28): k(f"ds_write_b128 v{vW}, {A((rnd*28+u)*4,4)} offset:{u*1024}")
        k("s_waitcnt lgkmcnt(0)\ns_barrier")
        for i in range(7):
            reduce_tile(i)
            off = rnd * 28672 + i * 1024
            k(f"s_add_u32 s{sT0}, s{sDst}, {off - off%4096}")
            k(f"buffer_store_dwordx4 {V(T+20,4)}, v{vL16}, {WSR}, s{sT0} offen offset:{off%4096} sc1")
            k("s_nop 1")
    k("s_waitcnt vmcnt(0)\ns_barrier")
    sk = k.uid("FF_gs")
    k(f"s_cmp_lg_u32 s{sWAVE}, 0\ns_cbranch_scc1 {sk}")
    signal(k, sCnt, vOne, vZ)
    k.label(sk)
    k.label(endl)
    k("s_waitcnt vmcnt(0)")
    k("s_endpgm")
```

```python
import sys
from kfw import *
from layout import *
import chain, workers, prepk
from chain import sWS, sRANK, sWAVE, sT0, sT1, sSPIN, SPIN, sMODE
from prepk import srd, KARG, kd

NAME = "recurrent_scan__memory_aug_recurrent_mem_tr__glu_gated_reglu__prompt"
HEADER = open("cdna_kernels/" + NAME + ".s.ref").read().split("; Override launch geometry")[0]

def emit_main(k, cfg, name):
    VXP, XAP, PVP = cfg.get("vx_par", 2), cfg.get("xa_par", 3), cfg.get("pv_par", 4)
    VMP = cfg.get("vm_par", 1)
    nVX, nXA, nPV, nFF, nVM = 28 * VXP, 16 * XAP, 7 * PVP, 64, 28 * VMP
    t1, t2, t3, t4 = nVX, nVX + nXA, nVX + nXA + nPV, nVX + nXA + nPV + nFF
    t5 = t4 + nVM
    assert t5 <= 224
    k(f".globl {name}\n.p2align 8\n.type {name},@function\n{name}:")
    k("s_cmp_ge_u32 s2, 256\ns_cbranch_scc1 M_exit")
    diag = cfg.get("diag")
    if diag: k("s_memrealtime s[96:97]\ns_mov_b32 s98, 0\ns_mov_b32 s44, 0")
    srd(k, sWS, KARG["ws"], WS_BYTES)
    k(f"s_load_dwordx2 s[4:5], s[0:1], {KARG['dbg']}")
    k("s_getreg_b32 s3, hwreg(HW_REG_XCC_ID)\ns_and_b32 s3, s3, 15")
    k(f"s_mov_b32 s{sSPIN}, {SPIN}")
    k(f"v_lshrrev_b32 v3, 6, v0\ns_nop 0\nv_readfirstlane_b32 s{sWAVE}, v3")
    k("s_waitcnt lgkmcnt(0)")
    k("s_and_b32 s3, s3, 7")
    k(f"s_lshl_b32 s{sT0}, s3, 7\ns_add_u32 s{sT0}, s{sT0}, {REG}")
    k("v_mov_b32 v1, 0\nv_mov_b32 v2, 1")
    k("v_cmp_eq_u32 vcc, 0, v0\ns_and_saveexec_b64 s[20:21], vcc\ns_cbranch_execz M_reg_done")
    k(f"buffer_atomic_add v2, v1, s[{sWS}:{sWS+3}], s{sT0} offen sc0 sc1\ns_waitcnt vmcnt(0)")
    k("ds_write_b32 v1, v2\ns_waitcnt lgkmcnt(0)")
    k.label("M_reg_done")
    k("s_mov_b64 exec, s[20:21]\ns_barrier\nds_read_b32 v3, v1\ns_waitcnt lgkmcnt(0)\ns_nop 0")
    k(f"v_readfirstlane_b32 s{sRANK}, v3")
    k("s_barrier")
    def load_counts(k, vt):
        k(f"v_and_b32 v{vt}, 7, v0\nv_lshlrev_b32 v{vt}, 7, v{vt}\ns_mov_b32 s{sT0}, {REG}")
        k(f"buffer_load_dword v{vt+1}, v{vt}, s[{sWS}:{sWS+3}], s{sT0} offen sc1\ns_waitcnt vmcnt(0)")
        k(f"v_readlane_b32 s{sT1}, v{vt+1}, 0")
        for x in range(1, 8):
            k(f"v_readlane_b32 s{sT0}, v{vt+1}, {x}\ns_add_u32 s{sT1}, s{sT1}, s{sT0}")
    def wait_all(k, vt):
        top = k.uid("M_wa"); done = k.uid("M_wad")
        k.label(top)
        load_counts(k, vt)
        k(f"s_cmp_ge_u32 s{sT1}, 256\ns_cbranch_scc1 {done}")
        k(f"s_sleep 4\ns_sub_u32 s{sSPIN}, s{sSPIN}, 1\ns_cbranch_scc0 {top}\ns_branch M_abort")
        k.label(done)
    def delay(k, seg):
        if seg is None: return
        k(f"s_mov_b32 s{sT0}, {C_VX + 16*seg}\nv_mov_b32 v8, 0")
        workers.wait_counter(k, sT0, 28, 9, 8, "M_abort", sleep=8)
    def mode_hook(k, vt):
        top = k.uid("M_md"); done = k.uid("M_mdd")
        k.label(top)
        load_counts(k, vt)
        k(f"v_readlane_b32 s{sT0}, v{vt+1}, 0\ns_mov_b32 s{sMODE}, 0\ns_cmp_ge_u32 s{sT0}, {31 if cfg.get('force_slow') is None else 999}\ns_cbranch_scc1 {done}")
        k(f"s_mov_b32 s{sMODE}, 1\ns_cmp_ge_u32 s{sT1}, 256\ns_cbranch_scc1 {done}")
        k(f"s_sleep 4\ns_sub_u32 s{sSPIN}, s{sSPIN}, 1\ns_cbranch_scc0 {top}\ns_branch M_abort")
        k.label(done)
    k(f"s_cmp_lt_u32 s{sRANK}, 32\ns_cbranch_scc0 M_overflow")
    k(f"s_lshl_b32 s{sT0}, s3, 5\ns_add_u32 s{sRANK}, s{sRANK}, s{sT0}")
    k.label("M_dispatch")
    k(f"s_cmp_lt_u32 s{sRANK}, 30\ns_cbranch_scc1 M_chain")
    k(f"s_cmp_eq_u32 s{sRANK}, 30\ns_cbranch_scc1 M_helper")
    k(f"s_cmp_lt_u32 s{sRANK}, 32\ns_cbranch_scc1 M_exit")
    k(f"s_sub_u32 s{sRANK}, s{sRANK}, 32")
    k(f"s_cmp_lt_u32 s{sRANK}, {t1}\ns_cbranch_scc1 M_vx")
    k(f"s_cmp_lt_u32 s{sRANK}, {t2}\ns_cbranch_scc1 M_xa")
    k(f"s_cmp_lt_u32 s{sRANK}, {t3}\ns_cbranch_scc1 M_pv")
    k(f"s_cmp_lt_u32 s{sRANK}, {t4}\ns_cbranch_scc1 M_ff")
    k(f"s_cmp_lt_u32 s{sRANK}, {t5}\ns_cbranch_scc1 M_vm")
    k("s_branch M_exit")
    k.label("M_overflow")
    wait_all(k, 8)
    k(f"s_sub_u32 s20, s{sRANK}, 32")
    for x in range(7):
        k(f"v_readlane_b32 s{sT0}, v9, {x}\ns_max_u32 s{sT0}, s{sT0}, 32\ns_sub_u32 s{sT0}, s{sT0}, 32")
        k(f"s_cmp_gt_u32 s3, {x}\ns_cselect_b32 s{sT0}, s{sT0}, 0\ns_add_u32 s20, s20, s{sT0}")
    for x in range(8):
        nx = k.uid("M_es")
        k(f"v_readlane_b32 s{sT0}, v9, {x}\ns_min_u32 s{sT0}, s{sT0}, 32\ns_sub_u32 s21, 32, s{sT0}")
        k(f"s_cmp_lt_u32 s20, s21\ns_cbranch_scc0 {nx}")
        k(f"s_add_u32 s{sRANK}, s20, s{sT0}\ns_add_u32 s{sRANK}, s{sRANK}, {32*x}\ns_branch M_dispatch")
        k.label(nx)
        k("s_sub_u32 s20, s20, s21")
    k("s_branch M_exit")
    k.label("M_chain")
    ccfg = dict(nsteps=63, modes=["", "sc1"], mode_hook=mode_hook, vxwait=True, pflag_pos=2, mflag_pos=1)
    if diag: ccfg.update(dict(tot=True, trace=True))
    ccfg.update(cfg.get("chain", {}))
    k(f"s_cmp_ge_u32 s{sRANK}, 16\ns_cbranch_scc1 M_chainB")
    chain.emit_chain_A(k, ccfg, "M_abort")
    k.label("M_chainB")
    if diag: k("s_mov_b32 s98, 1")
    chain.emit_chain_B(k, ccfg, "M_abort")
    wcfg = dict(vx_par=VXP, xa_par=XAP, pv_par=PVP, vm_par=VMP, s0=cfg.get('s0', 32))
    k.label("M_helper")
    if diag: k("s_mov_b32 s98, 6")
    chain.emit_helper(k, ccfg, "M_abort")
    k.label("M_vx")
    if diag: k("s_mov_b32 s98, 2")
    workers.emit_vxgen(k, wcfg, "M_abort")
    k.label("M_vm")
    if diag: k("s_mov_b32 s98, 7")
    k(f"s_sub_u32 s{sRANK}, s{sRANK}, {t4}")
    delay(k, cfg.get("vm_delay", 0))
    workers.emit_vxgen(k, wcfg, "M_abort", "vm")
    k.label("M_xa")
    if diag: k("s_mov_b32 s98, 3")
    k(f"s_sub_u32 s{sRANK}, s{sRANK}, {t1}")
    delay(k, cfg.get("xa_delay", 0))
    workers.emit_xattn(k, wcfg, "M_abort")
    k.label("M_pv")
    if diag: k("s_mov_b32 s98, 4")
    k(f"s_sub_u32 s{sRANK}, s{sRANK}, {t2}")
    workers.emit_pvout(k, wcfg, "M_abort")
    k.label("M_ff")
    if diag: k("s_mov_b32 s98, 5")
    k(f"s_sub_u32 s{sRANK}, s{sRANK}, {t3}")
    delay(k, cfg.get("ff_delay", 0))
    workers.emit_ffn(k, wcfg, "M_abort")
    for t in ccfg.get("outofline", []) + wcfg.get("outofline", []): k(t)
    if diag:
        txt = "\n".join(k.lines)
        head, body = txt.split("M_chain:", 1)
        body = body.replace("s_endpgm", "s_branch M_diag")
        k.lines = (head + "M_chain:" + body).split("\n")
        k.label("M_diag")
        k(f"s_cmp_lg_u32 s{sWAVE}, 0\ns_cbranch_scc1 M_exit")
        k("s_memrealtime s[94:95]\ns_waitcnt lgkmcnt(0)")
        k(f"s_lshl_b32 s{sT0}, s2, 5\ns_add_u32 s{sT0}, s{sT0}, {PROF+16384}")
        k("v_mov_b32 v1, 0")
        for i, r in enumerate(("s2" if False else "s86", f"s{sRANK}", "s96", "s94", "s44", "s88", "s98")):
            k(f"v_mov_b32 v2, {r}\nbuffer_store_dword v2, v1, s[{sWS}:{sWS+3}], s{sT0} offen offset:{4*i}")
        k("s_waitcnt vmcnt(0)\ns_endpgm")
    k.label("M_abort")
    k("v_mov_b32 v1, 0\nv_mov_b32 v2, 1\nglobal_atomic_add v1, v2, s[4:5] offset:12 sc1\ns_waitcnt vmcnt(0)")
    k.label("M_exit")
    k("s_endpgm")

def build(cfg):
    k = K()
    k(HEADER.rstrip())
    k("; @launch kernel=prep_kernel grid=(256,1,1) block=(256,1,1) lds=151552")
    k(f"; @launch kernel={NAME}_kernel grid=(256,1,1) block=(256,1,1) lds=114688")
    k('.amdgcn_target "amdgcn-amd-amdhsa--gfx950"\n.text')
    prepk.emit_prep(k, diag=cfg.get('diag'), ST=cfg.get('prep_st', 'sc1'))
    emit_main(k, cfg, NAME + "_kernel")
    k('.section .rodata,"a"')
    k(kd("prep_kernel", 512, 256))
    k(kd(NAME + "_kernel", 512, 256, 102))
    return k.text()

if __name__ == "__main__":
    import kfw
    cfg = {}
    if "diag" in sys.argv: cfg["diag"] = True; sys.argv.remove("diag")
    for a in list(sys.argv[1:]):
        if "=" in a:
            kk_, vv = a.split("="); cfg[kk_] = eval(vv); sys.argv.remove(a)
    t = build(cfg)
    out = sys.argv[1] if len(sys.argv) > 1 else "cdna_kernels/" + NAME + ".s"
    open(out, "w").write(t)
    print("bytes", len(t), "lines", t.count("\n"), "hazards", len(kfw.check(t)))
```

```python
from kfw import *
from layout import *

class Q:
    def __init__(self, k):
        self.k = k; self.lg = []; self.vm = []
    def ds(self, txt, tag=None):
        self.k(txt); self.lg.append(tag)
    def vmem(self, txt, tag=None):
        self.k(txt); self.vm.append(tag)
    def _n(self, lst, tag):
        idx = max(i for i, t in enumerate(lst) if t == tag)
        return len(lst) - 1 - idx
    def wait_lg(self, tag):
        n = min(self._n(self.lg, tag), 15)
        self.k(f"s_waitcnt lgkmcnt({n})")
    def wait_vm(self, tag):
        n = min(self._n(self.vm, tag), 63)
        self.k(f"s_waitcnt vmcnt({n})")
    def lg0(self):
        self.k("s_waitcnt lgkmcnt(0)"); self.lg = []
    def reset(self):
        self.lg = []; self.vm = []

sWS   = 8
sRANK = 12
sWAVE = 13
sSTEP = 14
sMS   = 15
sPS   = 16
sT0   = 17
sT1   = 18
sSPIN = 19
sMaskA = 20
sMaskB = 22
sXK   = 24
sMS1  = 25
sRST  = 26
sOUT  = 27
sFLG  = 50
sMODE = 51
sVXC  = 92
sTA   = 28
sTB   = 30
sPROF = 32
SPIN  = 200000

class Prof:
    def __init__(self, k, on, rawon=False): self.k, self.on, self.n, self.rawon = k, on, 0, rawon
    def start(self):
        if not self.on: return
        k = self.k
        for i in range(12): k(f"s_mov_b32 s{sPROF+i}, 0")
        k(f"s_memtime s[{sTA}:{sTA+1}]\ns_waitcnt lgkmcnt(0)")
    def stamp(self, i):
        if not self.on: return
        k = self.k
        k(f"s_memtime s[{sTB}:{sTB+1}]\ns_waitcnt lgkmcnt(0)")
        k(f"s_sub_u32 s{sT0}, s{sTB}, s{sTA}\ns_add_u32 s{sPROF+i}, s{sPROF+i}, s{sT0}\ns_mov_b32 s{sTA}, s{sTB}")
    def raw(self, i):
        if self.rawon: self.k(f"{'s_memrealtime' if self.rawon == 'rt' else 's_memtime'} s[{52+2*i}:{53+2*i}]")
    def raw_dump(self, tmpv, offv):
        if not self.rawon: return
        k = self.k
        k("s_waitcnt lgkmcnt(0)")
        k(f"s_lshl_b32 s{sT0}, s{sRANK}, 2\ns_add_u32 s{sT0}, s{sT0}, s{sWAVE}\ns_lshl_b32 s{sT0}, s{sT0}, 6\ns_add_u32 s{sT0}, s{sT0}, {PROF}")
        k(f"v_mov_b32 v{offv}, 0")
        for i in range(16):
            k(f"v_mov_b32 v{tmpv}, s{52+2*i}")
            k(f"buffer_store_dword v{tmpv}, v{offv}, s[{sWS}:{sWS+3}], s{sT0} offen offset:{4*i}")
        k("s_waitcnt vmcnt(0)")
    def tot_start(self, on):
        if on: self.k(f"s_mov_b32 s{sPROF+11}, 0\ns_memtime s[{sTA}:{sTA+1}]\ns_memrealtime s[44:45]\ns_waitcnt lgkmcnt(0)")
    def tot_dump(self, on, tmpv, offv):
        if not on: return
        k = self.k
        k(f"s_memtime s[{sTB}:{sTB+1}]\ns_memrealtime s[46:47]\ns_waitcnt lgkmcnt(0)")
        k(f"s_sub_u32 s{sPROF}, s{sTB}, s{sTA}\ns_sub_u32 s{sPROF+1}, s46, s44\ns_sub_u32 s{sPROF+2}, s44, s96")
        k(f"s_lshl_b32 s{sT0}, s{sRANK}, 2\ns_add_u32 s{sT0}, s{sT0}, s{sWAVE}\ns_lshl_b32 s{sT0}, s{sT0}, 6\ns_add_u32 s{sT0}, s{sT0}, {PROF}")
        k(f"v_mov_b32 v{offv}, 0")
        k(f"s_mov_b32 s{sPROF+3}, s{sPROF+11}")
        for i in range(4):
            k(f"v_mov_b32 v{tmpv}, s{sPROF+i}")
            k(f"buffer_store_dword v{tmpv}, v{offv}, s[{sWS}:{sWS+3}], s{sT0} offen offset:{4*i}")
        k("s_waitcnt vmcnt(0)")
    def dump(self, tmpv, offv):
        if not self.on: return
        k = self.k
        k(f"s_lshl_b32 s{sT0}, s{sRANK}, 2\ns_add_u32 s{sT0}, s{sT0}, s{sWAVE}\ns_lshl_b32 s{sT0}, s{sT0}, 6\ns_add_u32 s{sT0}, s{sT0}, {PROF}")
        k(f"v_mov_b32 v{offv}, 0")
        for i in range(12):
            k(f"v_mov_b32 v{tmpv}, s{sPROF+i}")
            k(f"buffer_store_dword v{tmpv}, v{offv}, s[{sWS}:{sWS+3}], s{sT0} offen offset:{4*i}")
        k("s_waitcnt vmcnt(0)")


SP_L = 0
SP_STRIDE = 3200
TR_L = 12800
MKP_L = 27136
SH_L = 39424
MEM_L = 0
OP_L = 7168
WL = 12288

def retry_block(cfg, label, body, abort, target):
    cfg.setdefault("outofline", []).append(
        f"{label}:\ns_sub_u32 s{sSPIN}, s{sSPIN}, 1\ns_cbranch_scc1 {abort}\n{body}s_branch {target}")

def emit_flag_poll(k, cfg, vAddr, vD0, sExp, off, abort):
    WSR = f"s[{sWS}:{sWS+3}]"
    top = k.uid("FP"); done = k.uid("FPD")
    k(f"s_mov_b32 s{sT0}, {off}" if isinstance(off, int) else f"s_mov_b32 s{sT0}, {off}")
    k(f"buffer_load_dword v{vD0}, v{vAddr}, {WSR}, s{sT0} offen sc1")
    k.label(top)
    k(f"buffer_load_dword v{vD0+1}, v{vAddr}, {WSR}, s{sT0} offen sc1")
    k("s_waitcnt vmcnt(1)")
    k(f"v_cmp_gt_u32 vcc, s{sExp}, v{vD0}")
    k(f"s_cbranch_vccz {done}")
    k(f"buffer_load_dword v{vD0}, v{vAddr}, {WSR}, s{sT0} offen sc1")
    k("s_waitcnt vmcnt(1)")
    k(f"v_cmp_gt_u32 vcc, s{sExp}, v{vD0+1}")
    k(f"s_cbranch_vccz {done}")
    k(f"s_sub_u32 s{sSPIN}, s{sSPIN}, 1\ns_cbranch_scc0 {top}\ns_branch {abort}")
    k.label(done)

def blockregA(b):
    return Reg("a", 8 * b) if b < 28 else Reg("v", 88 + 8 * (b - 28))

def emit_ring_advance(k):
    k(f"s_add_u32 s{sSTEP}, s{sSTEP}, 1")
    k(f"s_and_b32 s{sT0}, s{sSTEP}, 3")
    k(f"s_mul_i32 s{sMS}, s{sT0}, 7168\ns_add_u32 s{sMS}, s{sMS}, {MEMRING}")
    k(f"s_mul_i32 s{sPS}, s{sT0}, 10240\ns_add_u32 s{sPS}, s{sPS}, {PRING}")

def emit_chain_A(k, cfg, abort):
    prof = Prof(k, cfg.get("prof"), cfg.get("raw"))
    q = Q(k)
    WSR = f"s[{sWS}:{sWS+3}]"
    modes = cfg.get("modes", [cfg.get("st", "")])
    ST = modes[0]
    vL16, vL8, vTRw, vTRr, vMKg, vSR, vTRw2, vPst, vIdx, vX, vT, vDet, vSWx, vSWm, vTRr2 = range(1, 16)
    vLane = 0
    TMP, ACC, TR, MEM = 16, 20, 48, 60
    SACC = ACC
    XK = 224
    def TRr(tile): return (A(252, 2) if tile == 6 else V(TR + 2 * tile, 2))
    if cfg.get("tot"): k("s_memrealtime s[86:87]")
    k("v_and_b32 v0, 63, v0")
    k(f"v_lshlrev_b32 v{vL16}, 4, v{vLane}")
    k(f"v_lshlrev_b32 v{vL8}, 3, v{vLane}")
    k(f"v_and_b32 v{vX}, 15, v{vLane}")
    k(f"v_lshrrev_b32 v{vT}, 4, v{vLane}")
    k(f"v_min_u32 v{vDet}, 13, v{vX}\nv_lshlrev_b32 v{vDet}, 2, v{vDet}")
    k(f"s_mul_i32 s{sT1}, s{sWAVE}, 3584\ns_add_u32 s{sT1}, s{sT1}, {TR_L}\ns_add_u32 s{sT0}, s{sT1}, {3072 if cfg.get('pairs', False) else 0}")
    k(f"v_lshrrev_b32 v{vTRw2}, 3, v{vX}\nv_lshlrev_b32 v{vTRw2}, 9, v{vTRw2}\nv_lshl_add_u32 v{vTRw2}, v{vT}, 7, v{vTRw2}")
    k(f"v_and_b32 v{TMP}, 7, v{vX}\nv_lshl_add_u32 v{vTRw2}, v{TMP}, 4, v{vTRw2}\nv_add_u32 v{vTRw2}, s{sT1}, v{vTRw2}")
    k(f"v_lshrrev_b32 v{vTRr2}, 1, v{vT}\nv_lshlrev_b32 v{vTRr2}, 9, v{vTRr2}")
    k(f"v_and_b32 v{TMP}, 3, v{vLane}\nv_lshl_add_u32 v{vTRr2}, v{TMP}, 7, v{vTRr2}")
    k(f"v_and_b32 v{TMP}, 1, v{vT}\nv_lshl_add_u32 v{vTRr2}, v{TMP}, 6, v{vTRr2}")
    k(f"v_bfe_u32 v{TMP}, v{vLane}, 2, 2\nv_lshl_add_u32 v{vTRr2}, v{TMP}, 4, v{vTRr2}\nv_add_u32 v{vTRr2}, s{sT1}, v{vTRr2}")
    k(f"v_lshrrev_b32 v{vTRw}, 3, v{vX}\nv_lshlrev_b32 v{vTRw}, 8, v{vTRw}")
    k(f"v_lshl_add_u32 v{vTRw}, v{vT}, 6, v{vTRw}")
    k(f"v_and_b32 v{TMP}, 7, v{vX}\nv_lshl_add_u32 v{vTRw}, v{TMP}, 3, v{vTRw}")
    k(f"v_add_u32 v{vTRw}, s{sT0}, v{vTRw}")
    k(f"v_lshrrev_b32 v{vTRr}, 1, v{vT}\nv_lshlrev_b32 v{vTRr}, 8, v{vTRr}")
    k(f"v_and_b32 v{TMP}, 3, v{vLane}\nv_lshl_add_u32 v{vTRr}, v{TMP}, 6, v{vTRr}")
    k(f"v_and_b32 v{TMP}, 1, v{vT}\nv_lshl_add_u32 v{vTRr}, v{TMP}, 5, v{vTRr}")
    k(f"v_bfe_u32 v{TMP}, v{vLane}, 2, 2\nv_lshl_add_u32 v{vTRr}, v{TMP}, 3, v{vTRr}")
    k(f"v_add_u32 v{vTRr}, s{sT0}, v{vTRr}")
    k(f"v_lshrrev_b32 v{vMKg}, 1, v{vT}\nv_lshlrev_b32 v{vMKg}, 7, v{vMKg}")
    k(f"v_and_b32 v{TMP}, 7, v{vLane}\nv_lshl_add_u32 v{vMKg}, v{TMP}, 4, v{vMKg}")
    k(f"v_and_b32 v{TMP+1}, 1, v{vT}\nv_lshl_add_u32 v{vMKg}, v{TMP+1}, 3, v{vMKg}")
    k(f"s_mul_i32 s{sT1}, s{sWAVE}, {SP_STRIDE}\ns_add_u32 s{sT1}, s{sT1}, {SP_L}")
    k(f"v_add_u32 v{TMP}, v{vX}, v{vT}\nv_and_b32 v{TMP+1}, 15, v{TMP}\nv_lshlrev_b32 v{vSWx}, 4, v{TMP+1}")
    k(f"v_lshl_add_u32 v{vSWx}, v{vT}, 8, v{vSWx}\nv_add_u32 v{vSWx}, s{sT1}, v{vSWx}")
    k(f"v_add_u32 v{TMP}, 4, v{TMP}\nv_and_b32 v{TMP+1}, 15, v{TMP}\nv_lshlrev_b32 v{vSWm}, 4, v{TMP+1}")
    k(f"v_lshl_add_u32 v{vSWm}, v{vT}, 8, v{vSWm}\nv_add_u32 v{vSWm}, s{sT1}, v{vSWm}\nv_add_u32 v{vSWm}, 1024, v{vSWm}")
    k(f"s_lshl_b32 s{sT1}, s{sWAVE}, 2")
    k(f"v_add_u32 v{TMP}, s{sT1}, v{vT}")
    k(f"v_add_u32 v{TMP+1}, 2, v{vX}\nv_and_b32 v{TMP+1}, 3, v{TMP+1}")
    k(f"v_cmp_gt_u32 vcc, 2, v{vX}\ns_nop 1\nv_cndmask_b32 v{TMP+1}, v{TMP+1}, v{vX}, vcc")
    k(f"v_add_u32 v{TMP+2}, v{TMP}, v{TMP+1}")
    k(f"v_add_u32 v{TMP+3}, 4, v{TMP+2}\nv_cndmask_b32 v{TMP+2}, v{TMP+2}, v{TMP+3}, vcc")
    k(f"v_lshlrev_b32 v{vSR}, 8, v{TMP+1}\nv_add_u32 v{TMP+3}, 1024, v{vSR}\nv_cndmask_b32 v{vSR}, v{vSR}, v{TMP+3}, vcc")
    k(f"v_cmp_le_u32 vcc, 6, v{vX}\nv_add_u32 v{TMP+3}, 8, v{TMP+2}\ns_nop 0\nv_cndmask_b32 v{TMP+2}, v{TMP+2}, v{TMP+3}, vcc")
    k(f"v_and_b32 v{TMP+2}, 15, v{TMP+2}\nv_lshl_add_u32 v{vSR}, v{TMP+2}, 4, v{vSR}\nv_add_u32 v{vSR}, {SP_L}, v{vSR}")
    k(f"v_cmp_gt_u32 vcc, 10, v{vX}\nv_mov_b32 v{TMP+3}, {SP_L+3072}\ns_nop 0\nv_cndmask_b32 v{vSR}, v{TMP+3}, v{vSR}, vcc")
    k(f"v_cmp_gt_u32 s[{sMaskA}:{sMaskA+1}], 10, v{vX}")
    k(f"v_cmp_gt_u32 s[{sMaskB}:{sMaskB+1}], 40, v{vLane}")
    k(f"v_mov_b32 v{vIdx}, 0x44444444\nv_mov_b32 v{TMP+2}, 0xeeeeeeee")
    k(f"v_and_b32 v{TMP+1}, 8, v{vLane}\nv_cmp_ne_u32 vcc, 0, v{TMP+1}\ns_nop 1\nv_cndmask_b32 v{vIdx}, v{vIdx}, v{TMP+2}, vcc")
    k(f"s_lshr_b32 s{sT0}, s{sRANK}, 2\ns_mul_i32 s{sT0}, s{sT0}, 2560")
    k(f"s_bfe_u32 s{sT1}, s{sRANK}, 0x10001\ns_lshl_b32 s{sMS}, s{sT1}, 10\ns_lshl_b32 s{sPS}, s{sT1}, 8")
    k(f"s_and_b32 s{sT1}, s{sRANK}, 1\ns_lshl_b32 s{sMS1}, s{sT1}, 9\ns_add_u32 s{sMS}, s{sMS}, s{sMS1}")
    k(f"s_lshl_b32 s{sMS1}, s{sT1}, 7\ns_add_u32 s{sPS}, s{sPS}, s{sMS1}\ns_add_u32 s{sPS}, s{sPS}, 2048")
    k(f"s_add_u32 s{sMS}, s{sMS}, s{sT0}\ns_add_u32 s{sPS}, s{sPS}, s{sT0}")
    k(f"v_subrev_u32 v{TMP+1}, 2, v{vX}\nv_lshrrev_b32 v{TMP+1}, 1, v{TMP+1}")
    k(f"v_lshrrev_b32 v{TMP+2}, 1, v{TMP+1}\nv_lshlrev_b32 v{TMP+2}, 8, v{TMP+2}")
    k(f"v_and_b32 v{TMP+1}, 1, v{TMP+1}\nv_lshl_add_u32 v{TMP+2}, v{TMP+1}, 7, v{TMP+2}\nv_add_u32 v{TMP+2}, s{sMS}, v{TMP+2}")
    k(f"v_mov_b32 v{TMP+1}, s{sPS}\nv_cmp_gt_u32 vcc, 2, v{vX}\ns_nop 1\nv_cndmask_b32 v{TMP+2}, v{TMP+2}, v{TMP+1}, vcc")
    k(f"v_lshl_add_u32 v{vPst}, v{TMP}, 4, v{TMP+2}")
    k(f"v_and_b32 v{TMP+1}, 1, v{vX}\nv_lshl_add_u32 v{vPst}, v{TMP+1}, 3, v{vPst}")
    k(f"v_add_u32 v{TMP+1}, s{sMS}, v{vL16}\nv_add_u32 v{TMP+2}, s{sPS}, v{vL16}\nv_subrev_u32 v{TMP+2}, 512, v{TMP+2}")
    k(f"v_cmp_gt_u32 vcc, 32, v{vLane}\ns_nop 1\nv_cndmask_b32 v0, v{TMP+2}, v{TMP+1}, vcc")
    k(f"s_lshr_b32 s{sT0}, s{sRANK}, 2\ns_lshl_b32 s{sT0}, s{sT0}, 7\ns_and_b32 s{sT1}, s{sRANK}, 3\ns_lshl_b32 s{sT1}, s{sT1}, 2")
    k(f"s_add_u32 s{sFLG}, s{sT0}, s{sT1}\ns_add_u32 s{sFLG}, s{sFLG}, {FLAGP}")
    k(f"s_mul_i32 s{sT0}, s{sRANK}, 401408\ns_mul_i32 s{sT1}, s{sWAVE}, 100352\ns_add_u32 s{sT0}, s{sT0}, s{sT1}")
    if WA_OFF: k(f"s_add_u32 s{sT0}, s{sT0}, {WA_OFF}")
    FUSED = cfg.get("fused")
    LDF = "sc1" if FUSED else ""
    def wload(i):
        b, a = i >> 1, i & 1
        R = blockregA(b)
        off = i * 1024
        if off and off % 4096 == 0: k(f"s_add_u32 s{sT0}, s{sT0}, 4096")
        k(f"buffer_load_dwordx4 {R.r(4*a,4)}, v{vL16}, {WSR}, s{sT0} offen offset:{off%4096} {LDF}")
    if not FUSED:
        for i in range(98): wload(i)
    else:
        k(f"s_lshl_b32 s{sMS}, s{sRANK}, 2\ns_add_u32 s{sMS}, s{sMS}, s{sWAVE}\ns_lshl_b32 s{sMS}, s{sMS}, 7\ns_add_u32 s{sMS}, s{sMS}, {C_WA}")
        k(f"v_min_u32 v{TMP}, 6, v{vLane}\nv_lshlrev_b32 v{TMP}, 2, v{TMP}")
        def poll_tiles(mask_lo, inflight):
            top = k.uid("A_wp"); ok_ = k.uid("A_wpo")
            k(f"buffer_load_dword v{TMP+1}, v{TMP}, {WSR}, s{sMS} offen sc1")
            for f in inflight: f()
            k(f"s_waitcnt vmcnt({len(inflight)})")
            k.label(top)
            k(f"v_cmp_gt_u32 vcc, 7, v{TMP+1}\ns_and_b32 vcc_lo, vcc_lo, {(1 << mask_lo) - 1}\ns_mov_b32 vcc_hi, 0\ns_cbranch_vccz {ok_}")
            k(f"s_sleep 1\nbuffer_load_dword v{TMP+1}, v{TMP}, {WSR}, s{sMS} offen sc1\ns_waitcnt vmcnt(0)")
            k(f"s_sub_u32 s{sSPIN}, s{sSPIN}, 1\ns_cbranch_scc0 {top}\ns_branch {abort}")
            k.label(ok_)
        poll_tiles(4, [])
        for i in range(40): wload(i)
        poll_tiles(7, [lambda i=i: wload(i) for i in range(40, 56)])
        for i in range(56, 98): wload(i)
        k(f"s_mov_b32 s{sMS}, {C_LN}\nv_mov_b32 v{TMP}, 0")
        top = k.uid("A_ln"); ok_ = k.uid("A_lno")
        k.label(top)
        k(f"buffer_load_dword v{TMP+1}, v{TMP}, {WSR}, s{sMS} offen sc1\ns_waitcnt vmcnt(0)")
        k(f"v_cmp_gt_u32 vcc, 64, v{TMP+1}\ns_cbranch_vccz {ok_}")
        k(f"s_sleep 1\ns_sub_u32 s{sSPIN}, s{sSPIN}, 1\ns_cbranch_scc0 {top}\ns_branch {abort}")
        k.label(ok_)
    def xk_prefetch():
        for kap in range(2):
            for p in range(3):
                off = kap * 3584 + p * 1024
                so = sXK if off < 4096 else sT1
                if off >= 4096 and p == 1: k(f"s_add_u32 s{sT1}, s{sXK}, 4096")
                k(f"buffer_load_dwordx4 {A(XK+kap*14+4*p,4)}, v{vL16}, {WSR}, s{so} offen offset:{off%4096} {LDF}")
            off = kap * 3584 + 3072
            so = sXK if off < 4096 else sT1
            k(f"buffer_load_dwordx2 {A(XK+kap*14+12,2)}, v{vL8}, {WSR}, s{so} offen offset:{off%4096} {LDF}")
    k(f"s_mul_i32 s{sXK}, s{sWAVE}, 7168\ns_add_u32 s{sXK}, s{sXK}, {XK_OFF}")
    xk_prefetch()
    def zero_acc():
        for i in range(0, 28, 2): k(f"v_mov_b64 {V(ACC+i,2)}, 0")
    zero_acc()
    for i in range(4): k(f"v_mov_b32 v{TR+i}, 0xff800000")
    k(f"s_mul_i32 s{sT1}, s{sWAVE}, {SP_STRIDE}\ns_add_u32 s{sT1}, s{sT1}, {SP_L+3072}\nv_mov_b32 v{TMP}, s{sT1}")
    k(f"ds_write_b128 v{TMP}, {V(TR,4)}")
    k("s_waitcnt vmcnt(0) lgkmcnt(0)")
    if cfg.get("tot"): k("s_memrealtime s[88:89]\ns_waitcnt lgkmcnt(0)")
    k(f"s_mov_b32 s{sSTEP}, 0\ns_mov_b32 s{sMS}, {MEMRING}\ns_mov_b32 s{sPS}, {PRING}")
    def softmax(q, W, ST):
        X = TR
        dst = [TR, MEM, MEM+4, MEM+8]
        for u in range(4):
            q.ds(f"ds_read_b128 {V(dst[u],4)}, v{vSR} offset:{u*SP_STRIDE}", f"sp{u}")
        def pflag():
            if W != 0: return
            k(f"s_add_u32 s{sT0}, s{sSTEP}, 1\nv_mov_b32 v{TMP}, s{sT0}\nv_mov_b32 v{TMP+1}, 0")
            k(f"s_mov_b64 exec, 1\nbuffer_store_dword v{TMP}, v{TMP+1}, {WSR}, s{sFLG} offen {ST}\ns_mov_b64 exec, -1")
        fpos = cfg.get("pflag_pos", 2)
        if fpos == 0: pflag()
        def pk(d, a, b):
            k(f"v_pk_add_f32 {V(d,2)}, {V(a,2)}, {V(b,2)}\nv_pk_add_f32 {V(d+2,2)}, {V(a+2,2)}, {V(b+2,2)}")
        q.wait_lg("sp1"); pk(dst[0], dst[0], dst[1])
        q.wait_lg("sp3"); pk(dst[2], dst[2], dst[3]); pk(dst[0], dst[0], dst[2])
        q.reset()
        prof.raw(8)
        if fpos == 1: pflag()
        M = vX; L = MEM + 12
        k(f"v_max3_f32 v{M}, v{X}, v{X+1}, v{X+2}")
        k(f"v_max_f32 v{M}, v{M}, v{X+3}")
        for ror in (8, 4, 2, 1):
            k("s_nop 1")
            k(f"v_max_f32_dpp v{M}, v{M}, v{M} row_ror:{ror} row_mask:0xf bank_mask:0xf")
        if fpos == 2: pflag()
        k(f"v_pk_add_f32 {V(X,2)}, {V(X,2)}, {V(M,2)} op_sel_hi:[1,0] neg_lo:[0,1] neg_hi:[0,1]")
        k(f"v_pk_add_f32 {V(X+2,2)}, {V(X+2,2)}, {V(M,2)} op_sel_hi:[1,0] neg_lo:[0,1] neg_hi:[0,1]")
        for i in range(4): k(f"v_exp_f32 v{X+i}, v{X+i}")
        if fpos == 3: pflag()
        k(f"s_nop 0\nv_pk_add_f32 {V(TMP+2,2)}, {V(X,2)}, {V(X+2,2)}")
        k(f"v_add_f32 v{L}, v{TMP+2}, v{TMP+3}")
        for ror in (8, 4, 2, 1):
            k("s_nop 1")
            k(f"v_add_f32_dpp v{L}, v{L}, v{L} row_ror:{ror} row_mask:0xf bank_mask:0xf")
        if fpos == 4: pflag()
        k(f"v_rcp_f32 v{L}, v{L}")
        k("s_nop 0")
        k(f"v_pk_mul_f32 {V(X,2)}, {V(X,2)}, {V(L,2)} op_sel_hi:[1,0]")
        k(f"v_pk_mul_f32 {V(X+2,2)}, {V(X+2,2)}, {V(L,2)} op_sel_hi:[1,0]")
        k(f"v_cvt_pk_bf16_f32 v{X}, v{X}, v{X+1}\nv_cvt_pk_bf16_f32 v{X+1}, v{X+2}, v{X+3}")
        k(f"v_min_u32 v{X}, -2, v{X}\nv_min_u32 v{X+1}, -2, v{X+1}")
        k(f"s_mov_b64 exec, s[{sMaskA}:{sMaskA+1}]")
        k(f"buffer_store_dwordx2 {V(X,2)}, v{vPst}, {WSR}, s{sPS} offen {ST}")
        k("s_mov_b64 exec, -1")
        prof.raw(9)
        if fpos == 5: pflag()
        prof.raw(11)
    def preset(ST):
        X = TR
        k(f"s_add_u32 s{sRST}, s{sSTEP}, 2\ns_and_b32 s{sRST}, s{sRST}, 3\ns_mul_i32 s{sRST}, s{sRST}, 10240\ns_add_u32 s{sRST}, s{sRST}, {PRING}")
        for i in range(4): k(f"v_mov_b32 v{X+i}, -1")
        k(f"s_mov_b64 exec, s[{sMaskB}:{sMaskB+1}]")
        k(f"buffer_store_dwordx4 {V(X,4)}, v0, {WSR}, s{sRST} offen {ST}")
        k("s_mov_b64 exec, -1")
    def wave_loop(W, ST):
        q = Q(k)
        prof.start(); prof.tot_start(cfg.get("tot"))
        loop = k.uid("A_loop")
        k.label(loop)
        prof.stamp(0); prof.raw(0)
        if W == 2: emit_flag_poll(k, cfg, vDet, TMP, sSTEP, FLAGM, abort)
        k("s_barrier")
        prof.stamp(1); prof.raw(1)
        if cfg.get("trace"): k(f"s_memtime s[90:91]")
        q.reset()
        def mem_load(t):
            so = sMS if t < 4 else sMS1
            q.vmem(f"buffer_load_dwordx4 {V(MEM+4*t,4)}, v{vL16}, {WSR}, s{so} offen offset:{(t*1024)%4096} sc1", f"mem{t}")
        t0w, t1w = (112 * W) >> 6, (112 * W + 111) >> 6
        rot = cfg.get("rot", 2)
        ko = [(rot * W + i) % 7 for i in range(7)]
        def lds_of(t): return MKP_L + W * 3072 + (t - t0w) * 1024
        def stage(t, out=None):
            txt = f"ds_write_b128 v{vL16}, {V(MEM+4*t,4)} offset:{lds_of(t)}"
            if out is None: q.ds(txt, f"st{t}")
            else: out(txt)
        k(f"s_add_u32 s{sMS1}, s{sMS}, 4096") if ko[0] >= 4 else None
        mem_load(ko[0])
        if ko[0] < 4: k(f"s_add_u32 s{sMS1}, s{sMS}, 4096")
        for i in range(0, 14, 2): k(f"v_mov_b64 {V(ACC+i,2)}, 0")
        for i in range(cfg.get("pace", 5)): k("s_nop 0")
        mem_load(ko[1])
        for i in range(14, 28, 2): k(f"v_mov_b64 {V(ACC+i,2)}, 0")
        for i in range(cfg.get("pace", 5)): k("s_nop 0")
        mem_load(ko[2])
        k(f"s_nop {cfg.get('pace2', 12)}")
        mem_load(ko[3])
        k(f"s_nop {cfg.get('pace2', 12)}")
        mem_load(ko[4])
        again = k.uid("A_again"); retry = k.uid("A_retry")
        def smf(tt, t):
            R = blockregA(7 * tt + t)
            k(f"v_smfmac_f32_16x16x64_bf16 {V(ACC+4*tt,4)}, {V(MEM+4*t,4)}, {R.r(0,8)}, v{vIdx}")
        def cvt(tile, hi):
            pa = ACC + 4 * tile + 2 * hi
            k(f"v_cvt_pk_bf16_f32 v{TMP+2*(tile&1)+hi}, v{pa}, v{pa+1}")
        k("s_waitcnt vmcnt(4)")
        prof.raw(2)
        for i, t in enumerate(ko):
            m0 = MEM + 4 * t
            fl = [[], [], [], []]
            if i < 2: fl[0].append(lambda i=i: mem_load(ko[i + 5]))
            fl[1 if i < 2 else 0].append(lambda i=i, m0=m0: k(f"v_max_u32 v{vX}, v{m0}, v{m0+1}" if i == 0 else f"v_max3_u32 v{vX}, v{vX}, v{m0}, v{m0+1}"))
            fl[2 if i < 2 else 1].append(lambda m0=m0: k(f"v_max3_u32 v{vX}, v{vX}, v{m0+2}, v{m0+3}"))
            if t0w <= t <= t1w: fl[3 if i < 2 or i == 6 else 2].append(lambda t=t: stage(t))
            if i == 6:
                fl[2].append(lambda: k(f"v_cmp_eq_u32 vcc, -1, v{vX}"))
                if not cfg.get("pairs", False): fl[3].append(lambda: cvt(0, 0))
            else: fl[3].append(lambda i=i: k(f"s_waitcnt vmcnt({[4,4,3,2,1,0][i]})"))
            for tt in range(4):
                smf(tt, t)
                for f in fl[tt]: f()
            if cfg.get("raw2") and i < 5: prof.raw(11 + i)
        k(f"s_cbranch_vccnz {retry}")
        prof.raw(3)
        rb = K()
        lab = k.uid("A_rl")
        rb(f"{lab}:")
        rb(f"s_add_u32 s{sMS1}, s{sMS}, 4096")
        for t in range(7):
            so = sMS if t < 4 else sMS1
            rb(f"buffer_load_dwordx4 {V(MEM+4*t,4)}, v{vL16}, {WSR}, s{so} offen offset:{(t*1024)%4096} sc1")
        rb("s_waitcnt vmcnt(0)")
        rb(f"v_max3_u32 v{vX}, v{MEM}, v{MEM+1}, v{MEM+2}")
        for i in range(3, 27, 2): rb(f"v_max3_u32 v{vX}, v{vX}, v{MEM+i}, v{MEM+i+1}")
        rb(f"v_max_u32 v{vX}, v{vX}, v{MEM+27}")
        rb(f"v_cmp_eq_u32 vcc, -1, v{vX}")
        ok_ = k.uid("A_rok")
        rb(f"s_cbranch_vccz {ok_}")
        rb(f"s_sub_u32 s{sSPIN}, s{sSPIN}, 1\ns_cbranch_scc0 {lab}\ns_branch {abort}")
        rb(f"{ok_}:")
        for i in range(0, 16, 2): rb(f"v_mov_b64 {V(ACC+i,2)}, 0")
        if cfg.get("cnt_retry"): rb(f"s_add_u32 s{sPROF+11}, s{sPROF+11}, 1")
        for t in range(t0w, t1w + 1): stage(t, rb)
        rb("s_nop 1")
        for t in range(7):
            for tt in range(4):
                R = blockregA(7 * tt + t)
                rb(f"v_smfmac_f32_16x16x64_bf16 {V(ACC+4*tt,4)}, {V(MEM+4*t,4)}, {R.r(0,8)}, v{vIdx}")
        if not cfg.get("pairs", False): rb(f"v_cvt_pk_bf16_f32 v{TMP}, v{ACC}, v{ACC+1}")
        rb(f"s_branch {again}")
        cfg.setdefault("outofline", []).append(f"{retry}:\ns_nop 7\n" + rb.text())
        k.label(again)
        q.vm = []
        def wr2(pair): q.ds(f"ds_write_b128 v{vTRw2}, {V(TMP,4)} offset:{pair*1024}", f"w{pair}")
        PAIRS = cfg.get("pairs", False)
        def wr6(): q.ds(f"ds_write_b64 v{vTRw}, {V(TMP,2)} offset:{0 if PAIRS else 3072}", "w6")
        def wr1(tile): q.ds(f"ds_write_b64 v{vTRw}, {V(TMP+2*(tile&1),2)} offset:{tile*512}", f"w{tile}")
        def tr(tile):
            if tile == 6: q.ds(f"ds_read_b64_tr_b16 {TRr(6)}, v{vTRr} offset:{0 if PAIRS else 3072}", "tr6")
            elif not PAIRS: q.ds(f"ds_read_b64_tr_b16 {TRr(tile)}, v{vTRr} offset:{tile*512}", f"tr{tile}")
            else: q.ds(f"ds_read_b64_tr_b16 {TRr(tile)}, v{vTRr2} offset:{(tile>>1)*1024+(tile&1)*8}", f"tr{tile}")
        def mk(tt):
            tau = 7 * W + tt
            q.ds(f"ds_read_b64 {V(MEM+2*tt,2)}, v{vMKg} offset:{lds_of(tau >> 2) + 256 * (tau & 3)}", f"mk{tt}")
        fill_after = {}
        if PAIRS:
            slot = 0
            for pair in range(3):
                for f in [("c", 2*pair, 0), ("c", 2*pair, 1), ("c", 2*pair+1, 0), ("c", 2*pair+1, 1), ("w", pair), ("t", 2*pair), ("t", 2*pair+1)]:
                    fill_after.setdefault(slot, []).append(f); slot += 1
        else:
            if W < 2 or not cfg.get("stagger", True):
                seq_ = [("c", 0, 1), ("w1", 0), ("t", 0)]
                for tile in range(1, 5): seq_ += [("c", tile, 0), ("c", tile, 1), ("w1", tile), ("t", tile)]
                seq_ += [("c", 5, 0), ("c", 5, 1)]
            else:
                seq_ = [("c", 0, 1), ("c", 1, 0), ("c", 1, 1)]
                for tile in range(0, 4): seq_ += [("w1", tile), ("t", tile), ("c", tile + 2, 0), ("c", tile + 2, 1)]
                seq_ += [("w1", 4), ("t", 4)]
            for slot, f in enumerate(seq_): fill_after.setdefault(slot, []).append(f)
        def dofill(f):
            if f[0] == "c": cvt(f[1], f[2])
            elif f[0] == "w":
                if PAIRS: wr2(f[1])
                else: wr1(2*f[1]); wr1(2*f[1]+1)
            elif f[0] == "w1": wr1(f[1])
            elif f[0] == "t": tr(f[1])
        sl = 0
        for tt in (4, 5, 6):
            for t in range(7):
                smf(tt, t)
                for f in fill_after.get(sl, []): dofill(f)
                sl += 1
        prof.raw(4)
        def smm(kap, p, first=False):
            D = V(SACC + 4 * kap, 4)
            C = "0" if first else D
            if p < 3:
                Aop = A(XK + kap * 14 + 4 * p, 4) if kap < 2 else V(MEM + 4 * p, 4)
                k(f"v_mfma_f32_16x16x32_bf16 {D}, {Aop}, {V(TR+4*p,4)}, {C}")
            else:
                Aop = A(XK + kap * 14 + 12, 2) if kap < 2 else V(MEM + 12, 2)
                k(f"v_mfma_f32_16x16x16_bf16 {D}, {Aop}, {TRr(6)}, {C}")
        if not PAIRS: wr1(5); tr(5)
        q.wait_lg("tr3")
        smm(0, 0, True)
        mk(0); mk(1)
        smm(1, 0, True)
        mk(2); mk(3)
        smm(0, 1)
        cvt(6, 0); cvt(6, 1)
        smm(1, 1)
        wr6(); tr(6)
        q.wait_lg("tr5")
        smm(0, 2)
        mk(4); mk(5)
        smm(1, 2)
        mk(6)
        q.wait_lg("mk3")
        smm(2, 0, True); smm(2, 1)
        q.wait_lg("mk5")
        smm(2, 2)
        smm(0, 3); smm(1, 3)
        q.wait_lg("mk6")
        smm(2, 3)
        prof.raw(5)
        k(f"s_add_u32 s{sXK}, s{sXK}, 28672")
        k("s_nop 3")
        for r in range(4): k(f"v_add_f32_dpp v{SACC+r}, v{SACC+r}, v{SACC+r} row_ror:8 row_mask:0xf bank_mask:0x3")
        for r in range(4): k(f"v_add_f32_dpp v{SACC+r}, v{SACC+4+r}, v{SACC+4+r} row_ror:8 row_mask:0xf bank_mask:0xc")
        q.ds(f"ds_write_b128 v{vSWx}, {V(SACC,4)}")
        for r in range(4): k(f"v_add_f32_dpp v{SACC+8+r}, v{SACC+8+r}, v{SACC+8+r} row_ror:8 row_mask:0xf bank_mask:0xf")
        q.ds(f"ds_write_b128 v{vSWm}, {V(SACC+8,4)}")
        q.lg0()
        prof.stamp(3); prof.raw(6)
        k("s_barrier")
        prof.stamp(4); prof.raw(7)
        X = TR
        if W < 2: softmax(q, W, ST)
        if cfg.get("bar3", True): k("s_barrier")
        if W == 3: preset(ST)
        if cfg.get("trace") and W == 3:
            k(f"s_waitcnt lgkmcnt(0)\ns_lshl_b32 s{sT0}, s{sRANK}, 6\ns_add_u32 s{sT0}, s{sT0}, s{sSTEP}\ns_lshl_b32 s{sT0}, s{sT0}, 2\ns_add_u32 s{sT0}, s{sT0}, {PROF+8192}")
            k(f"v_mov_b32 v{TR+4}, s90\nv_mov_b32 v{TR+5}, 0\ns_mov_b64 exec, 1\nbuffer_store_dword v{TR+4}, v{TR+5}, {WSR}, s{sT0} offen\ns_mov_b64 exec, -1")
        xk_prefetch()
        prof.stamp(5); prof.raw(10)
        emit_ring_advance(k)
        k("s_waitcnt vmcnt(0)")
        k(f"s_cmp_lt_u32 s{sSTEP}, {cfg['nsteps']}\ns_cbranch_scc1 {loop}")
        prof.raw_dump(TR, TR + 1); prof.dump(TR, TR + 1); prof.tot_dump(cfg.get("tot"), TR, TR + 1)
        k("s_endpgm")
    if cfg.get("mode_hook"): cfg["mode_hook"](k, TR)
    mlabs = [k.uid("A_m") for _ in modes]
    if len(modes) > 1: k(f"s_cmp_eq_u32 s{sMODE}, 1\ns_cbranch_scc1 {mlabs[1]}")
    for mi, st in enumerate(modes):
        k.label(mlabs[mi])
        labs = [k.uid("A_w") for _ in range(4)]
        for w in range(1, 4): k(f"s_cmp_eq_u32 s{sWAVE}, {w}\ns_cbranch_scc1 {labs[w]}")
        for w in range(4):
            k.label(labs[w])
            wave_loop(w, st)

def blockregB(tau, t):
    if t == 6 and tau < 6: return None
    b = 7 * tau + t - min(tau, 6)
    return Reg("a", 32 + 8 * b) if b < 28 else Reg("v", 80 + 8 * (b - 28))

def emit_chain_B(k, cfg, abort):
    prof = Prof(k, cfg.get("prof"), cfg.get("raw"))
    q = Q(k)
    WSR = f"s[{sWS}:{sWS+3}]"
    modes = cfg.get("modes", [cfg.get("st", "")])
    vL16, vPollA, vPollB, vP0, vPm, vOA, vOR, vMst, vIdx, vWL, vDet = range(1, 12)
    vLane = 0
    WT, ACC, VB, MEM = 12, 28, 36, 52
    vT = WT
    VXR = 0
    if cfg.get("tot"): k("s_memrealtime s[86:87]")
    k(f"s_sub_u32 s{sRANK}, s{sRANK}, 16")
    k("v_and_b32 v0, 63, v0")
    k(f"v_lshlrev_b32 v{vL16}, 4, v{vLane}")
    k(f"s_mul_i32 s{sT0}, s{sWAVE}, 1792")
    k(f"v_add_u32 v{vPollA}, s{sT0}, v{vL16}")
    k(f"v_min_u32 v{vT}, 47, v{vLane}")
    k(f"v_lshlrev_b32 v{vT}, 4, v{vT}")
    k(f"s_add_u32 s{sT1}, s{sT0}, 1024")
    k(f"v_add_u32 v{vPollB}, s{sT1}, v{vT}")
    I, SUB, GA, T2 = WT + 1, WT + 2, WT + 3, WT + 4
    k(f"v_and_b32 v{I}, 7, v{vLane}\nv_bfe_u32 v{SUB}, v{vLane}, 3, 1\nv_lshrrev_b32 v{GA}, 4, v{vLane}")
    k(f"v_and_b32 v{T2}, 3, v{vLane}\nv_lshlrev_b32 v{vDet}, 2, v{T2}\ns_lshl_b32 s{sT0}, s{sWAVE}, 7\nv_add_u32 v{vDet}, s{sT0}, v{vDet}")
    k(f"s_mul_i32 s{sT0}, s{sWAVE}, 2560")
    k(f"v_add_u32 v{vP0}, s{sT0}, v{vL16}")
    k(f"v_lshrrev_b32 v{T2}, 1, v{GA}\nv_lshlrev_b32 v{vPm}, 8, v{T2}")
    k(f"v_lshl_add_u32 v{vPm}, v{SUB}, 7, v{vPm}\nv_lshl_add_u32 v{vPm}, v{I}, 4, v{vPm}")
    k(f"s_add_u32 s{sT0}, s{sT0}, 2048\nv_add_u32 v{vPm}, s{sT0}, v{vPm}")
    C2, CG = WT + 5, WT + 6
    k(f"v_and_b32 v{C2}, 3, v{vLane}")
    k(f"v_bfe_u32 v{CG}, v{vLane}, 2, 2\nv_lshrrev_b32 v{T2}, 5, v{vLane}\nv_lshl_add_u32 v{CG}, v{T2}, 2, v{CG}")
    k(f"v_and_b32 v{T2}, 1, v{GA}\nv_lshl_add_u32 v{T2}, v{CG}, 1, v{T2}")
    k(f"v_lshlrev_b32 v{vOA}, 2, v{C2}\nv_xor_b32 v{T2}, v{T2}, v{vOA}\nv_and_b32 v{T2}, 15, v{T2}")
    k(f"v_lshlrev_b32 v{vOA}, 8, v{C2}\nv_lshl_add_u32 v{vOA}, v{T2}, 4, v{vOA}")
    k(f"s_lshl_b32 s{sT0}, s{sWAVE}, 10\ns_add_u32 s{sT0}, s{sT0}, {OP_L}\nv_add_u32 v{vOA}, s{sT0}, v{vOA}")
    k(f"v_lshlrev_b32 v{T2}, 2, v{GA}\nv_and_b32 v{vOR}, 15, v{vLane}\nv_xor_b32 v{vOR}, v{vOR}, v{T2}\nv_and_b32 v{vOR}, 15, v{vOR}")
    k(f"v_lshlrev_b32 v{vOR}, 4, v{vOR}\nv_lshl_add_u32 v{vOR}, v{GA}, 8, v{vOR}\nv_add_u32 v{vOR}, {OP_L}, v{vOR}")
    k(f"v_and_b32 v{T2}, 1, v{vLane}\nv_lshl_add_u32 v{T2}, v{T2}, 2, v{GA}")
    k(f"v_bfe_u32 v{vMst}, v{vLane}, 3, 1\nv_lshl_add_u32 v{T2}, v{vMst}, 4, v{T2}")
    k(f"v_bfe_u32 v{vMst}, v{vLane}, 2, 1\nv_lshl_add_u32 v{T2}, v{vMst}, 3, v{T2}")
    k(f"v_lshlrev_b32 v{T2}, 4, v{T2}")
    k(f"v_bfe_u32 v{vMst}, v{vLane}, 1, 1\nv_lshl_add_u32 v{vMst}, v{vMst}, 3, v{T2}")
    k(f"s_lshl_b32 s{sT0}, s{sRANK}, 9\nv_add_u32 v{vMst}, s{sT0}, v{vMst}")
    k(f"s_lshl_b32 s{sFLG}, s{sRANK}, 2\ns_add_u32 s{sFLG}, s{sFLG}, {FLAGM}")
    k(f"v_mov_b32 v{vIdx}, 0x44444444\nv_mov_b32 v{T2}, 0xeeeeeeee")
    k(f"v_cmp_ne_u32 vcc, 0, v{SUB}\ns_nop 1\nv_cndmask_b32 v{vIdx}, v{vIdx}, v{T2}, vcc")
    if cfg.get("warm", True):
        sk = k.uid("B_warm")
        k(f"s_cmp_lg_u32 s{sRANK}, 0\ns_cbranch_scc1 {sk}")
        k(f"s_lshl_b32 s{sT0}, s{sWAVE}, 6\nv_add_u32 v{WT}, s{sT0}, v{vLane}\nv_lshlrev_b32 v{WT}, 7, v{WT}")
        for u in range(3):
            k(f"s_mov_b32 s{sT0}, {MEMRING + u*32768}\nbuffer_load_dword v{WT+1}, v{WT}, {WSR}, s{sT0} offen sc1")
        k("s_waitcnt vmcnt(0)")
        k.label(sk)
    FUSED = cfg.get("fused")
    LDF = "sc1" if FUSED else ""
    if FUSED:
        k(f"v_and_b32 v{WT}, 3, v{vLane}\nv_lshlrev_b32 v{WT}, 7, v{WT}\ns_lshl_b32 s{sT0}, s{sWAVE}, 9\ns_add_u32 s{sT0}, s{sT0}, {C_WB}")
        top = k.uid("B_wp"); ok_ = k.uid("B_wpo")
        k.label(top)
        k(f"buffer_load_dword v{WT+1}, v{WT}, {WSR}, s{sT0} offen sc1\ns_waitcnt vmcnt(0)")
        k(f"v_cmp_gt_u32 vcc, 7, v{WT+1}\ns_cbranch_vccz {ok_}")
        k(f"s_sleep 1\ns_sub_u32 s{sSPIN}, s{sSPIN}, 1\ns_cbranch_scc0 {top}\ns_branch {abort}")
        k.label(ok_)
    k(f"s_mul_i32 s{sT0}, s{sRANK}, 458752\ns_mul_i32 s{sT1}, s{sWAVE}, 114688\ns_add_u32 s{sT0}, s{sT0}, s{sT1}\ns_add_u32 s{sT0}, s{sT0}, {WB_OFF}")
    k(f"s_mul_i32 s{sT1}, s{sWAVE}, 12288\ns_add_u32 s{sT1}, s{sT1}, {WL}\nv_add_u32 v{vWL}, s{sT1}, v{vL16}")
    for tau in range(8):
        for t in range(7):
            R = blockregB(tau, t)
            for a in range(2):
                off = ((7 * tau + t) * 2 + a) * 1024
                if off and off % 4096 == 0: k(f"s_add_u32 s{sT0}, s{sT0}, 4096")
                if R is not None:
                    k(f"buffer_load_dwordx4 {R.r(4*a,4)}, v{vL16}, {WSR}, s{sT0} offen offset:{off%4096} {LDF}")
                else:
                    k(f"s_mul_i32 s{sT1}, s{sWAVE}, 12288\ns_add_u32 m0, s{sT1}, {WL + tau*2048 + a*1024 - off%4096}\ns_nop 0")
                    k(f"buffer_load_dwordx4 v{vL16}, {WSR}, s{sT0} offen offset:{off%4096} {LDF} lds")
    PX = WT + 15
    for i in range(8): k(f"v_mov_b32 v{ACC+i}, 0")
    k("s_waitcnt vmcnt(0) lgkmcnt(0)")
    if cfg.get("tot"): k("s_memrealtime s[88:89]\ns_waitcnt lgkmcnt(0)")
    k(f"s_mov_b32 s{sSTEP}, 0\ns_mov_b32 s{sMS}, {MEMRING}\ns_mov_b32 s{sPS}, {PRING}")
    k(f"s_mul_i32 s{sXK}, s{sRANK}, 32768\ns_lshl_b32 s{sT0}, s{sWAVE}, 13\ns_add_u32 s{sXK}, s{sXK}, s{sT0}\ns_add_u32 s{sXK}, s{sXK}, {VX_OFF}")
    k(f"s_mov_b32 s{sOUT}, {MEMOUT+7168}")
    k(f"s_mov_b32 s{sVXC}, {FLAGV}")
    def b_loop(ST):
        q = Q(k)
        prof.start(); prof.tot_start(cfg.get("tot"))
        loop = k.uid("B_loop")
        k.label(loop)
        prof.stamp(0); prof.raw(0)
        if cfg.get("b_sleep"): k(f"s_sleep {cfg['b_sleep']}")
        top = k.uid("PM"); retry = k.uid("PMR")
        k.label(top)
        k(f"buffer_load_dwordx4 {V(WT,4)}, v{vPollA}, {WSR}, s{sMS} offen sc1")
        k(f"buffer_load_dwordx4 {V(WT+4,4)}, v{vPollB}, {WSR}, s{sMS} offen sc1")
        if cfg.get("vxwait"): k(f"v_mov_b32 v{WT+9}, 0\nbuffer_load_dword v{WT+8}, v{WT+9}, {WSR}, s{sVXC} offen sc1")
        k("s_waitcnt vmcnt(0)")
        k(f"v_max3_u32 v{PX}, v{WT}, v{WT+1}, v{WT+2}")
        k(f"v_max3_u32 v{PX}, v{PX}, v{WT+3}, v{WT+4}")
        k(f"v_max3_u32 v{PX}, v{PX}, v{WT+5}, v{WT+6}")
        k(f"v_max_u32 v{PX}, v{PX}, v{WT+7}")
        k(f"v_cmp_eq_u32 vcc, -1, v{PX}")
        k(f"s_cbranch_vccnz {retry}")
        if cfg.get("vxwait"):
            k(f"v_cmp_ge_u32 vcc, s{sSTEP}, v{WT+8}")
            k(f"s_cbranch_vccnz {retry}")
        retry_block(cfg, retry, "", abort, top)
        q.reset()
        prof.stamp(1); prof.raw(1)
        q.ds(f"ds_write_b128 v{vPollA}, {V(WT,4)} offset:{MEM_L}")
        q.ds(f"ds_write_b128 v{vPollB}, {V(WT+4,4)} offset:{MEM_L}")
        q.lg0()
        k("s_barrier")
        prof.stamp(2)
        for t in range(7):
            q.ds(f"ds_read_b128 {V(MEM+4*t,4)}, v{vL16} offset:{MEM_L+t*1024}", f"mem{t}")
        nm = k.uid("B_nm")
        k(f"s_cmp_lg_u32 s{sWAVE}, 0\ns_cbranch_scc1 {nm}\ns_cmp_eq_u32 s{sSTEP}, 0\ns_cbranch_scc1 {nm}")
        k(f"s_sub_u32 s{sT1}, s{sOUT}, 7168\nbuffer_store_dwordx2 {V(VB+14,2)}, v{vMst}, {WSR}, s{sT1} offen sc1")
        k.label(nm)
        k(f"s_add_u32 s{sT1}, s{sXK}, 4096")
        def vx_load(u):
            off = u * 1024
            so = sXK if off < 4096 else sT1
            k(f"buffer_load_dwordx4 {A(VXR+4*u,4)}, v{vL16}, {WSR}, s{so} offen offset:{off%4096} sc1")
        def vb_dst(tau, rp):
            hh, c = tau >> 1, tau & 1
            a, sub = hh >> 1, hh & 1
            return VB + 8 * c + 4 * a + 2 * rp + sub
        for tau in range(8):
            for t in range(7):
                if tau == 0: q.wait_lg(f"mem{t}")
                R = blockregB(tau, t)
                if R is None:
                    q.wait_lg(f"wl{tau}b")
                    Bop = V(WT + 8 * (tau & 1), 8)
                else:
                    Bop = R.r(0, 8)
                k(f"v_smfmac_f32_16x16x64_bf16 {V(ACC+4*(tau&1),4)}, {V(MEM+4*t,4)}, {Bop}, v{vIdx}")
                if tau < 6:
                    if t == 0: q.ds(f"ds_read_b128 {V(WT+8*(tau&1),4)}, v{vWL} offset:{tau*2048}", f"wl{tau}a")
                    if t == 1: q.ds(f"ds_read_b128 {V(WT+8*(tau&1)+4,4)}, v{vWL} offset:{tau*2048+1024}", f"wl{tau}b")
                if tau < 4 and t in (5, 6): vx_load(2 * tau + (t - 5))
                if tau >= 1:
                    pa = ACC + 4 * ((tau - 1) & 1)
                    if t == 2: k(f"v_cvt_pk_bf16_f32 v{vb_dst(tau-1,0)}, v{pa}, v{pa+1}")
                    if t == 3: k(f"v_cvt_pk_bf16_f32 v{vb_dst(tau-1,1)}, v{pa+2}, v{pa+3}")
                    if t == 4: k(f"v_mov_b64 {V(pa,2)}, 0")
                    if t == 5: k(f"v_mov_b64 {V(pa+2,2)}, 0")
        k(f"s_add_u32 s{sXK}, s{sXK}, 458752")
        k("s_nop 6")
        pa = ACC + 4
        k(f"v_cvt_pk_bf16_f32 v{vb_dst(7,0)}, v{pa}, v{pa+1}")
        k(f"v_cvt_pk_bf16_f32 v{vb_dst(7,1)}, v{pa+2}, v{pa+3}")
        k(f"v_mov_b64 {V(pa,2)}, 0\nv_mov_b64 {V(pa+2,2)}, 0")
        prof.raw(2)
        k("s_waitcnt vmcnt(0)")
        prof.stamp(3); prof.raw(3)
        k(f"s_add_u32 s{sMS1}, s{sSTEP}, 1")
        emit_flag_poll(k, cfg, vDet, WT, sMS1, FLAGP, abort)
        prof.stamp(4); prof.raw(4)
        P0, P1, PM = MEM, MEM + 4, MEM + 8
        q.reset()
        def p_loads(qq):
            qq(f"buffer_load_dwordx4 {V(P0,4)}, v{vP0}, {WSR}, s{sPS} offen sc1", "p0")
            qq(f"buffer_load_dwordx4 {V(P1,4)}, v{vP0}, {WSR}, s{sPS} offen offset:1024 sc1", "p1")
            qq(f"buffer_load_dwordx4 {V(PM,4)}, v{vPm}, {WSR}, s{sPS} offen sc1", "pm")
        p_loads(q.vmem)
        again = k.uid("B_again"); retry = k.uid("B_retry")
        k.label(again)
        for (Pr, src, tag) in ((P0, "x0", "p0"), (P1, "x1", "p1"), (PM, "m", "pm")):
            q.wait_vm(tag)
            if tag == "p0": prof.raw(5)
            if tag == "pm": prof.raw(6)
            for c in range(2):
                Bop = {"x0": A(VXR + c * 8, 8), "x1": A(VXR + 16 + c * 8, 8), "m": V(VB + 8 * c, 8)}[src]
                k(f"v_smfmac_f32_16x16x64_bf16 {V(ACC+4*c,4)}, {V(Pr,4)}, {Bop}, v{vIdx}")
                if c == 0: k(f"v_max_u32 v{PX}, v{Pr}, v{Pr+1}" if src == "x0" else f"v_max3_u32 v{PX}, v{PX}, v{Pr}, v{Pr+1}")
                else: k(f"v_max3_u32 v{PX}, v{PX}, v{Pr+2}, v{Pr+3}")
        k(f"v_cmp_eq_u32 vcc, -1, v{PX}")
        k(f"s_cbranch_vccnz {retry}")
        rb = K(); lab = k.uid("B_rl"); ok_ = k.uid("B_rok")
        rb(f"{lab}:")
        p_loads(lambda txt, tag: rb(txt))
        rb("s_waitcnt vmcnt(0)")
        rb(f"v_max3_u32 v{PX}, v{P0}, v{P0+1}, v{P0+2}")
        for i in range(3, 11, 2): rb(f"v_max3_u32 v{PX}, v{PX}, v{P0+i}, v{P0+i+1}")
        rb(f"v_max_u32 v{PX}, v{PX}, v{P0+11}")
        rb(f"v_cmp_eq_u32 vcc, -1, v{PX}")
        rb(f"s_cbranch_vccz {ok_}")
        rb(f"s_sub_u32 s{sSPIN}, s{sSPIN}, 1\ns_cbranch_scc0 {lab}\ns_branch {abort}")
        rb(f"{ok_}:")
        for i in range(0, 8, 2): rb(f"v_mov_b64 {V(ACC+i,2)}, 0")
        if cfg.get("cnt_retry"): rb(f"s_add_u32 s{sPROF+11}, s{sPROF+11}, 1")
        rb(f"s_nop 1\ns_branch {again}")
        cfg.setdefault("outofline", []).append(f"{retry}:\ns_nop 7\n" + rb.text())
        def mflag():
            k(f"s_add_u32 s{sT0}, s{sSTEP}, 1\nv_mov_b32 v{PX}, s{sT0}\nv_mov_b32 v{PX-1}, 0")
            k(f"s_mov_b64 exec, 1\nbuffer_store_dword v{PX}, v{PX-1}, {WSR}, s{sFLG} offen {ST}\ns_mov_b64 exec, -1")
        mpos = cfg.get("mflag_pos", 1)
        k("s_nop 5")
        for r in range(4): k(f"v_permlane32_swap_b32 v{ACC+r}, v{ACC+4+r}")
        k(f"v_pk_add_f32 {V(ACC,2)}, {V(ACC,2)}, {V(ACC+4,2)}\nv_pk_add_f32 {V(ACC+2,2)}, {V(ACC+2,2)}, {V(ACC+6,2)}")
        q.ds(f"ds_write_b128 v{vOA}, {V(ACC,4)}")
        nofin = k.uid("B_nofin"); join = k.uid("B_join")
        if mpos == 0:
            sk = k.uid("B_f0"); k(f"s_cmp_lg_u32 s{sWAVE}, 0\ns_cbranch_scc1 {sk}"); mflag(); k.label(sk)
        q.lg0()
        prof.stamp(5); prof.raw(7)
        k("s_barrier")
        prof.stamp(6); prof.raw(8)
        k(f"s_cmp_lg_u32 s{sWAVE}, 0\ns_cbranch_scc1 {nofin}")
        X = WT
        for w_ in range(4): q.ds(f"ds_read_b128 {V(X+4*w_,4)}, v{vOR} offset:{w_*1024}", f"o{w_}")
        def mflag2():
            k(f"s_mov_b64 exec, 1\nbuffer_store_dword v{ACC+4}, v{ACC+5}, {WSR}, s{sFLG} offen {ST}\ns_mov_b64 exec, -1")
        k(f"s_add_u32 s{sT0}, s{sSTEP}, 1\nv_mov_b32 v{ACC+4}, s{sT0}\nv_mov_b32 v{ACC+5}, 0")
        if mpos == 1: mflag2()
        k(f"s_add_u32 s{sT0}, s{sSTEP}, 1\ns_and_b32 s{sT0}, s{sT0}, 3\ns_mul_i32 s{sMS1}, s{sT0}, 7168\ns_add_u32 s{sMS1}, s{sMS1}, {MEMRING}")
        def pk(d, a, b):
            k(f"v_pk_add_f32 {V(d,2)}, {V(a,2)}, {V(b,2)}\nv_pk_add_f32 {V(d+2,2)}, {V(a+2,2)}, {V(b+2,2)}")
        q.wait_lg("o1")
        if mpos == 11: mflag2()
        pk(X, X, X+4)
        q.wait_lg("o3"); pk(X+8, X+8, X+12); pk(X, X, X+8)
        q.reset()
        prof.raw(9)
        if mpos == 12: mflag2()
        else: k("s_nop 1")
        k(f"v_permlane32_swap_b32 v{X}, v{X+2}\nv_permlane32_swap_b32 v{X+1}, v{X+3}")
        k("s_nop 1")
        k(f"v_permlane16_swap_b32 v{X}, v{X+1}\nv_permlane16_swap_b32 v{X+2}, v{X+3}")
        if mpos == 13: mflag2()
        k(f"v_cvt_pk_bf16_f32 v{X}, v{X}, v{X+1}\nv_cvt_pk_bf16_f32 v{X+1}, v{X+2}, v{X+3}")
        k(f"v_min_u32 v{X}, -2, v{X}\nv_min_u32 v{X+1}, -2, v{X+1}")
        k(f"buffer_store_dwordx2 {V(X,2)}, v{vMst}, {WSR}, s{sMS1} offen {ST}")
        prof.raw(10)
        if mpos == 2: mflag2()
        k(f"v_mov_b64 {V(VB+14,2)}, {V(X,2)}")
        k.label(nofin)
        if cfg.get("bar4", True): k("s_barrier")
        k(f"s_cmp_lg_u32 s{sWAVE}, 1\ns_cbranch_scc1 {join}")
        X = WT
        k(f"s_add_u32 s{sRST}, s{sSTEP}, 3\ns_and_b32 s{sRST}, s{sRST}, 3\ns_mul_i32 s{sRST}, s{sRST}, 7168\ns_add_u32 s{sRST}, s{sRST}, {MEMRING}")
        k(f"v_mov_b32 v{X}, -1\nv_mov_b32 v{X+1}, -1")
        k(f"buffer_store_dwordx2 {V(X,2)}, v{vMst}, {WSR}, s{sRST} offen {ST}")
        k.label(join)
        for i in range(0, 8, 2): k(f"v_mov_b64 {V(ACC+i,2)}, 0")
        prof.stamp(7)
        k(f"s_add_u32 s{sOUT}, s{sOUT}, 7168")
        emit_ring_advance(k)
        k(f"s_cmp_lt_u32 s{sSTEP}, {cfg['nsteps']}\ns_cbranch_scc1 {loop}")
        nm2 = k.uid("B_nm2")
        k(f"s_cmp_lg_u32 s{sWAVE}, 0\ns_cbranch_scc1 {nm2}")
        k(f"s_sub_u32 s{sT1}, s{sOUT}, 7168\nbuffer_store_dwordx2 {V(VB+14,2)}, v{vMst}, {WSR}, s{sT1} offen sc1\ns_waitcnt vmcnt(0)")
        k.label(nm2)
        k(f"s_add_u32 s{sRANK}, s{sRANK}, 16")
        prof.raw_dump(WT, WT + 1); prof.dump(WT, WT + 1); prof.tot_dump(cfg.get("tot"), WT, WT + 1)
        k("s_endpgm")
    if cfg.get("mode_hook"): cfg["mode_hook"](k, WT)
    mlabs = [k.uid("B_m") for _ in modes]
    if len(modes) > 1: k(f"s_cmp_eq_u32 s{sMODE}, 1\ns_cbranch_scc1 {mlabs[1]}")
    for mi, st in enumerate(modes):
        k.label(mlabs[mi])
        b_loop(st)

def emit_helper(k, cfg, abort):
    WSR = f"s[{sWS}:{sWS+3}]"
    modes = cfg.get("modes", [cfg.get("st", "")])
    dist = cfg.get("pf_dist", 3)
    k("v_lshlrev_b32 v1, 7, v0")
    k("v_mov_b32 v2, 0")
    if cfg.get("mode_hook"): cfg["mode_hook"](k, 40)
    mlabs = [k.uid("H_m") for _ in modes]
    if len(modes) > 1: k(f"s_cmp_eq_u32 s{sMODE}, 1\ns_cbranch_scc1 {mlabs[1]}")
    for mi, ST in enumerate(modes):
        k.label(mlabs[mi])
        k(f"s_mov_b32 s{sSTEP}, 0\ns_mov_b32 s{sXK}, {VX_OFF}\ns_mov_b32 s{sOUT}, {XK_OFF}\ns_mov_b32 s{sVXC}, {C_VX}")
        loop = k.uid("PF_loop"); p2 = k.uid("PF_p2"); g2 = k.uid("PF_g2")
        k(f"s_cmp_lg_u32 s{sWAVE}, 0\ns_cbranch_scc1 {g2}_end")
        k.label(loop)
        k.label(p2)
        k(f"buffer_load_dword v3, v2, {WSR}, s{sVXC} offen sc1\ns_waitcnt vmcnt(0)")
        k(f"v_cmp_gt_u32 vcc, 28, v3\ns_cbranch_vccz {g2}")
        k(f"s_sleep 1\ns_sub_u32 s{sSPIN}, s{sSPIN}, 1\ns_cbranch_scc0 {p2}\ns_branch {abort}")
        k.label(g2)
        k(f"s_add_u32 s{sT0}, s{sSTEP}, 1\nv_mov_b32 v3, s{sT0}\ns_mov_b32 s{sT0}, {FLAGV}")
        k(f"s_mov_b64 exec, 1\nbuffer_store_dword v3, v2, {WSR}, s{sT0} offen {ST}\ns_mov_b64 exec, -1")
        k(f"s_add_u32 s{sSTEP}, s{sSTEP}, 1\ns_add_u32 s{sVXC}, s{sVXC}, 16")
        k(f"s_cmp_lt_u32 s{sSTEP}, {cfg['nsteps']}\ns_cbranch_scc1 {loop}")
        k.label(f"{g2}_end")
        k("s_waitcnt vmcnt(0)")
        k("s_endpgm")

def gen_chain_test(cfg):
    k = K()
    name = "chain_kernel"
    k(f'.amdgcn_target "amdgcn-amd-amdhsa--gfx950"\n.text\n.globl {name}\n.p2align 8\n.type {name},@function\n{name}:')
    k("s_load_dwordx4 s[4:7], s[0:1], 0")
    if cfg.get("tot"): k("s_memrealtime s[96:97]")
    k("s_getreg_b32 s3, hwreg(HW_REG_XCC_ID)\ns_and_b32 s3, s3, 15")
    k("s_waitcnt lgkmcnt(0)")
    k(f"s_mov_b32 s{sWS}, s4\ns_mov_b32 s{sWS+1}, s5\ns_mov_b32 s{sWS+2}, {WS_BYTES}\ns_mov_b32 s{sWS+3}, 0x20000")
    if cfg.get("same_xcd", True):
        k("s_cmp_lg_u32 s3, 0\ns_cbranch_scc1 L_exit")
    k("v_mov_b32 v1, 0\nv_mov_b32 v2, 1")
    k("v_cmp_eq_u32 vcc, 0, v0\ns_and_saveexec_b64 s[20:21], vcc\ns_cbranch_execz L_t")
    k("global_atomic_add v3, v1, v2, s[6:7] sc0\ns_waitcnt vmcnt(0)\nds_write_b32 v1, v3\ns_waitcnt lgkmcnt(0)")
    k.label("L_t")
    k("s_mov_b64 exec, s[20:21]\ns_barrier\nds_read_b32 v3, v1\ns_waitcnt lgkmcnt(0)\ns_nop 0")
    k(f"v_readfirstlane_b32 s{sRANK}, v3")
    k(f"v_lshrrev_b32 v3, 6, v0\ns_nop 0\nv_readfirstlane_b32 s{sWAVE}, v3")
    k("s_barrier")
    k(f"s_mov_b32 s{sSPIN}, {SPIN}")

    k(f"s_cmp_ge_u32 s{sRANK}, 30\ns_cbranch_scc1 L_exit")
    k(f"s_cmp_ge_u32 s{sRANK}, 16\ns_cbranch_scc1 L_roleB")
    emit_chain_A(k, cfg, "L_abort")
    k.label("L_roleB")
    emit_chain_B(k, cfg, "L_abort")
    for t in cfg.get("outofline", []): k(t)
    k.label("L_abort")
    k(f"v_mov_b32 v1, 0\nv_mov_b32 v2, 1\nglobal_atomic_add v1, v2, s[6:7] offset:4\ns_waitcnt vmcnt(0)")
    k.label("L_exit")
    k("s_endpgm")
    k(f""".section .rodata,"a"
.p2align 6
.amdhsa_kernel {name}
  .amdhsa_next_free_vgpr 512
  .amdhsa_next_free_sgpr 102
  .amdhsa_accum_offset 256
  .amdhsa_group_segment_fixed_size 0
  .amdhsa_kernarg_size 16
  .amdhsa_user_sgpr_count 2
  .amdhsa_user_sgpr_kernarg_segment_ptr 1
  .amdhsa_system_sgpr_workgroup_id_x 1
.end_amdhsa_kernel""")
    return k.text()

if __name__ == "__main__":
    import sys, kfw
    cfg = dict(nsteps=63, prof=("prof" in sys.argv))
    t = gen_chain_test(cfg)
    open("chain_test.s", "w").write(t)
    p = kfw.check(t); w = kfw.check_waits(t)
    print("hazards", len(p), "waits", len(w))
```

```python
NSEG = 64
WA_OFF   = 0
WB_OFF   = WA_OFF + 16 * 401408
VX_OFF   = WB_OFF + 14 * 458752
XK_OFF   = VX_OFF + 64 * 458752
MEMRING  = XK_OFF + 64 * 28672
PRING    = MEMRING + 4 * 7168
FLAGM    = PRING + 4 * 10240
FLAGP    = FLAGM + 128
CNT      = FLAGP + 512
CNT_BYTES = 24576
MEMOUT   = CNT + CNT_BYTES
XKP_OFF  = MEMOUT + 64 * 7168
XNA_OFF  = XKP_OFF + 64 * 28672
VM_OFF   = XNA_OFF + 64 * 28672
PX_OFF   = VM_OFF + 64 * 229376
G_OFF    = PX_OFF + 64 * 49152
WG_OFF   = G_OFF + 64 * 57344
WD_OFF   = WG_OFF + 112 * 2 * 14 * 1024
PROF     = WD_OFF + 56 * 28 * 1024
WS_END   = PROF + 65536
WS_BYTES = 268435456
CSEG   = CNT + 16384
CSTR   = 128
C_VX, C_VM, C_PX, C_G = CSEG, CSEG + 4, CSEG + 8, CSEG + 12
C_RL   = CNT + 1024
REG    = CNT + 2048
C_LN   = CNT + 1152
C_WB   = CNT + 4096
C_WA   = CNT + 8192
FLAGE  = CNT + 3328
FLAGV2 = CNT + 3200
FLAGV  = CNT + 3072
if __name__ == "__main__":
    for k_,v in list(globals().items()):
        if k_.isupper(): print(k_, v)
```

```python
from kfw import *
from layout import *
from prepk import srd, KARG, fbits, LOG2E_16
from chain import sWS, sWAVE, sSPIN, sT0, sT1

WSR = f"s[{sWS}:{sWS+3}]"
DIAG = False
def stamp(k, i):
    if DIAG: k(f"s_memrealtime s[{60+2*i}:{61+2*i}]")
def dump_stamps(k):
    if not DIAG: return
    k("s_waitcnt lgkmcnt(0)")
    sk = k.uid("DS")
    k(f"s_cmp_lg_u32 s{sWAVE}, 0\ns_cbranch_scc1 {sk}")
    k(f"s_lshl_b32 s20, s2, 6\ns_add_u32 s20, s20, {PROF+36864}\nv_mov_b32 v1, 0")
    for i in range(12):
        k(f"v_mov_b32 v2, s{60+2*i}\nbuffer_store_dword v2, v1, {WSR}, s20 offen offset:{4*i}")
    k(f"v_mov_b32 v2, s96\nbuffer_store_dword v2, v1, {WSR}, s20 offen offset:48")
    k.label(sk)
DBG_INIT = 16

def wait_init(k, vt, abort, issue_only=False, check_only=False):
    if not check_only:
        k(f"v_mov_b32 v{vt}, 0\nglobal_load_dword v{vt+1}, v{vt}, s[4:5] offset:{DBG_INIT} sc1")
    if issue_only: return
    top = k.uid("WI"); done = k.uid("WID")
    if not check_only: k("s_waitcnt vmcnt(0)")
    k.label(top)
    k(f"v_cmp_gt_u32 vcc, 32, v{vt+1}\ns_cbranch_vccz {done}")
    k(f"s_sleep 8\nglobal_load_dword v{vt+1}, v{vt}, s[4:5] offset:{DBG_INIT} sc1\ns_waitcnt vmcnt(0)")
    k(f"s_sub_u32 s{sSPIN}, s{sSPIN}, 1\ns_cbranch_scc0 {top}\ns_branch {abort}")
    k.label(done)

def wait_init_wg(k, vt, abort):
    sk = k.uid("WIW")
    k(f"s_cmp_lg_u32 s{sWAVE}, 0\ns_cbranch_scc1 {sk}")
    wait_init(k, vt, abort)
    k.label(sk)
    k("s_barrier")

def emit_gemm_task(k, sTask, done_label, abort, ST="sc1"):
    sA, sB = 36, 40
    sMat, sH, sT, sTmp, sTmp2 = 20, 21, 22, 23, 24
    sRow, sCol, sOut, sRing, sATile, sSlab, sCnt = 28, 32, 49, 50, 52, 53, 54
    k(f"s_mul_i32 s{sH}, s{sTask}, 9363\ns_lshr_b32 s{sH}, s{sH}, 16")
    k(f"s_mul_i32 s{sT}, s{sH}, 7\ns_sub_u32 s{sT}, s{sTask}, s{sT}")
    k(f"s_and_b32 s{sMat}, s{sH}, 1\ns_lshr_b32 s{sH}, s{sH}, 1")
    vLane, vN, vG, vD, vF, vT, vL16, vT2_, vX9, vI0 = 1, 2, 3, 4, 5, 6, 7, 8, 9, 12
    k(f"v_and_b32 v{vLane}, 63, v0")
    k(f"v_and_b32 v{vN}, 15, v{vLane}\nv_lshrrev_b32 v{vG}, 4, v{vLane}\nv_lshlrev_b32 v{vL16}, 4, v{vLane}")
    k(f"v_lshrrev_b32 v{vT}, 5, v{vLane}\nv_and_b32 v{vD}, 31, v{vLane}\nv_xor_b32 v{vD}, v{vD}, v{vT}\nv_lshlrev_b32 v{vD}, 4, v{vD}")
    k(f"v_lshl_add_u32 v{vD}, v{vT}, 13, v{vD}")
    k(f"v_xor_b32 v{vF}, v{vG}, v{vN}\nv_lshlrev_b32 v{vF}, 4, v{vF}\nv_lshl_add_u32 v{vF}, v{vN}, 9, v{vF}")
    SA = f"s[{sA}:{sA+3}]"; SB = f"s[{sB}:{sB+3}]"
    A_L = 0
    def RAW(i):
        return A(128 + 4 * i, 4) if i < 32 else V(16 + 4 * (i - 32), 4)
    def row_pair_load(SR, sbase, rowconst, dst, u):
        k(f"v_xor_b32 v{vT2_}, {u << 5}, v{vD}\ns_add_u32 s{sTmp}, s{sbase}, {rowconst*8192}")
        k(f"buffer_load_dwordx4 {dst}, v{vT2_}, {SR}, s{sTmp} offen")
    def a_loads(ARAW):
        k(f"s_lshr_b32 s{sTmp}, s{sWAVE}, 1\ns_lshl_b32 s{sTmp}, s{sTmp}, 5\ns_and_b32 s{sTmp2}, s{sWAVE}, 1\ns_lshl_b32 s{sTmp2}, s{sTmp2}, 1\ns_add_u32 s{sTmp}, s{sTmp}, s{sTmp2}")
        k(f"s_lshl_b32 s{sRow}, s{sT}, 6\ns_add_u32 s{sRow}, s{sRow}, s{sTmp}\ns_lshl_b32 s{sRow}, s{sRow}, 13\ns_lshl_b32 s{sTmp}, s{sH}, 9\ns_add_u32 s{sRow}, s{sRow}, s{sTmp}")
        for u in range(8): row_pair_load(SA, sRow, 16 * ((u >> 2) & 1) + 8 * (u & 1) + 4 * ((u >> 1) & 1), V(ARAW + 4 * u, 4), u)
    def AFr(kk, r4): return A((kk * 4 + r4) * 4, 4)
    def a_stage(ARAW):
        k(f"s_lshl_b32 s{sATile}, s{sWAVE}, 13\nv_add_u32 v{vT2_}, s{sATile}, v{vL16}")
        for u in range(8): k(f"ds_write_b128 v{vT2_}, {V(ARAW + 4*u, 4)} offset:{A_L + u*1024}")
        k("s_waitcnt lgkmcnt(0)\ns_barrier")
        for kk in range(8):
            k(f"v_xor_b32 v{vT2_}, {kk << 6}, v{vF}")
            for r4 in range(4): k(f"ds_read_b128 {AFr(kk,r4)}, v{vT2_} offset:{A_L + r4*8192}")
            if kk % 2 == 1: k("s_waitcnt lgkmcnt(0)")
    def epi_ops(base, tt, scale, addr_of_tile):
        ops = []
        if scale:
            for i in range(0, 16, 2): ops.append(lambda i=i: k(f"v_pk_mul_f32 {V(base+i,2)}, {V(base+i,2)}, s[44:45]"))
        for i in range(8): ops.append(lambda i=i: k(f"v_cvt_pk_bf16_f32 v{base+i}, v{base+2*i}, v{base+2*i+1}"))
        ops.append(lambda: addr_of_tile(tt))
        for a in range(2): ops.append(lambda a=a: k(f"buffer_store_dwordx4 {V(base+4*a,4)}, v{vL16}, {WSR}, s{sOut} offen offset:{a*1024} {ST}"))
        return ops
    wb = k.uid("G_wb")
    k(f"s_cmp_eq_u32 s{sMat}, 1\ns_cbranch_scc1 {wb}")
    srd(k, sA, KARG["Wq"], 3670016); srd(k, sB, KARG["Wk"], 3670016)
    k(f"s_mov_b32 s44, {fbits(LOG2E_16):#x}\ns_mov_b32 s45, {fbits(LOG2E_16):#x}")
    k(f"s_mul_i32 s{sCol}, s{sWAVE}, {7*16*8192}\ns_lshl_b32 s{sTmp}, s{sH}, 9\ns_add_u32 s{sCol}, s{sCol}, s{sTmp}")
    k(f"s_mul_i32 s{sRing}, s{sWAVE}, 16384\ns_add_u32 s{sRing}, s{sRing}, 32768")
    k(f"s_lshl_b32 s{sCnt}, s{sH}, 2\ns_add_u32 s{sCnt}, s{sCnt}, s{sWAVE}\ns_lshl_b32 s{sCnt}, s{sCnt}, 7\ns_add_u32 s{sCnt}, s{sCnt}, {C_WA}")
    k("s_waitcnt lgkmcnt(0)")
    ACC, BF, ARAW = 112, 144, 208
    stamp(k, 0)
    k(f"v_lshrrev_b32 v10, 2, v0\nv_lshlrev_b32 v10, 13, v10\nv_and_b32 v11, 3, v0\nv_lshl_add_u32 v10, v11, 7, v10")
    k(f"s_lshl_b32 s{sTmp}, s{sT}, 19\ns_lshl_b32 s{sTmp2}, s{sH}, 9\ns_add_u32 s{sTmp}, s{sTmp}, s{sTmp2}")
    k(f"buffer_load_dword v11, v10, {SB}, s{sTmp} offen")
    a_loads(ARAW)
    stamp(k, 1)
    k("s_waitcnt vmcnt(0)")
    stamp(k, 2)
    for tt in range(7):
        for u in range(8): row_pair_load(SB, sCol, 16 * tt + 2 * u, RAW(tt * 8 + u), u)
        if tt == 1: a_stage(ARAW)
    stamp(k, 3)
    k(f"v_add_u32 v{vX9}, s{sRing}, v{vF}\nv_add_u32 v14, s{sRing}, v{vL16}")
    k(f"v_mov_b32 v10, 0\nv_mov_b32 v11, 1")
    def wa_addr(tt):
        k(f"s_mul_i32 s{sOut}, s{sH}, 401408\ns_mul_i32 s{sTmp2}, s{sWAVE}, 100352\ns_add_u32 s{sOut}, s{sOut}, s{sTmp2}")
        k(f"s_add_u32 s{sTmp2}, s{sT}, {7*tt}\ns_lshl_b32 s{sTmp2}, s{sTmp2}, 11\ns_add_u32 s{sOut}, s{sOut}, s{sTmp2}")
        if WA_OFF: k(f"s_add_u32 s{sOut}, s{sOut}, {WA_OFF}")
    seq = []
    for tt in range(7): seq += [("B", tt)] * 8
    def wait_tag(tag):
        last = max(i for i, e in enumerate(seq) if e == tag)
        k(f"s_waitcnt vmcnt({min(63, len(seq) - 1 - last)})")
    def sig(tt):
        wait_tag(("S", tt))
        k(f"s_mov_b64 exec, 1\nbuffer_atomic_add v11, v10, {WSR}, s{sCnt} offen offset:{4*tt} sc1\ns_mov_b64 exec, -1")
        seq.append(("A", tt))
    def stage_ops(tt):
        return [lambda u=u: k(f"ds_write_b128 v14, {RAW(tt*8+u)} offset:{(tt & 1)*8192 + u*1024}") for u in range(8)]
    def frag_ops(tt):
        bf = BF + 32 * (tt & 1); ops = []
        for kk in range(8):
            ops.append(lambda kk=kk: k(f"v_xor_b32 v{vT2_}, {kk << 6}, v{vX9}\nds_read_b128 {V(bf+4*kk,4)}, v{vT2_} offset:{(tt & 1)*8192}"))
        return ops
    wait_tag(("B", 0))
    for f in stage_ops(0): f()
    for f in frag_ops(0): f()
    for tt in range(7):
        if tt + 1 < 7: wait_tag(("B", tt + 1))
        k("s_waitcnt lgkmcnt(0)")
        st = stage_ops(tt + 1) if tt + 1 < 7 else []
        fr = frag_ops(tt + 1) if tt + 1 < 7 else []
        ep = epi_ops(ACC + 16 * ((tt - 1) & 1), tt - 1, True, wa_addr) if tt >= 1 else []
        n = 0
        bf = BF + 32 * (tt & 1)
        for kk in range(8):
            for r4 in range(4):
                D = V(ACC + 16 * (tt & 1) + 4 * r4, 4)
                k(f"v_mfma_f32_16x16x32_bf16 {D}, {AFr(kk,r4)}, {V(bf+4*kk,4)}, {'0' if kk == 0 else D}")
                if n < 16:
                    if n % 2 == 0 and st: st.pop(0)()
                    elif n >= 3 and ep: ep.pop(0)()
                else:
                    if n % 2 == 0 and fr: fr.pop(0)()
                    elif ep: ep.pop(0)()
                n += 1
        for f in st + fr + ep: f()
        if tt >= 1: seq.extend([("S", tt - 1)] * 2)
        if tt == 0:
            wait_init(k, vI0, abort, issue_only=True); seq.append(("I", 0))
        if tt == 1:
            wait_tag(("I", 0))
            wait_init(k, vI0, abort, check_only=True)
        if tt >= 2: sig(tt - 2)
        stamp(k, 4 + tt)
    k("s_nop 7")
    for f in epi_ops(ACC, 6, True, wa_addr): f()
    seq.extend([("S", 6)] * 2)
    for tt in range(5, 7): sig(tt)
    k(f"s_branch {done_label}")
    k.label(wb)
    srd(k, sA, KARG["Wv"], 3670016); srd(k, sB, KARG["Wo"], 3670016)
    LS = 928; SLAB = 32 * LS; S_L = 32768
    ACC, BFW, ARAW = 112, 224, 112
    vR, vW = vX9, 10
    WREG = [10, 11, 12, 13, 14, 15, 6]
    k(f"s_mul_i32 s46, s{sH}, 229376")
    k(f"v_lshlrev_b32 v{vT2_}, 4, v0")
    k(f"s_lshl_b32 s{sCnt}, s{sH}, 7\ns_add_u32 s{sCnt}, s{sCnt}, {C_WB}")
    k("s_waitcnt lgkmcnt(0)")
    stamp(k, 0)
    k(f"v_lshlrev_b32 v10, 7, v0\ns_lshl_b32 s{sTmp2}, s{sT}, 15\ns_add_u32 s{sTmp}, s46, s{sTmp2}")
    k(f"buffer_load_dword v11, v10, {SB}, s{sTmp} offen")
    a_loads(ARAW)
    stamp(k, 1)
    k("s_waitcnt vmcnt(0)")
    k(f"v_lshlrev_b32 v{vR}, 4, v0")
    for kk in range(8):
        for u in range(7):
            k(f"s_add_u32 s{sTmp}, s46, {kk*28672 + u*4096}")
            k(f"buffer_load_dwordx4 {RAW(kk*7+u)}, v{vR}, {SB}, s{sTmp} offen")
    for u in range(7):
        w_ = WREG[u]
        k(f"v_add_u32 v{vT2_}, {256*u}, v0\nv_mul_u32_u24 v{vD}, 2341, v{vT2_}\nv_lshrrev_b32 v{vD}, 17, v{vD}")
        k(f"v_mul_u32_u24 v{w_}, 56, v{vD}\nv_sub_u32 v{w_}, v{vT2_}, v{w_}\nv_lshlrev_b32 v{w_}, 4, v{w_}")
        k(f"v_mul_u32_u24 v{vD}, {LS}, v{vD}\nv_add_u32 v{w_}, v{w_}, v{vD}\nv_add_u32 v{w_}, {S_L}, v{w_}")
    k(f"v_bfe_u32 v{vT2_}, v{vLane}, 2, 2\nv_lshl_add_u32 v{vT2_}, v{vG}, 3, v{vT2_}\nv_mul_u32_u24 v{vR}, {LS}, v{vT2_}")
    k(f"v_and_b32 v{vT2_}, 3, v{vLane}\nv_lshl_add_u32 v{vR}, v{vT2_}, 3, v{vR}")
    k(f"s_mul_i32 s{sTmp}, s{sWAVE}, 224\ns_add_u32 s{sTmp}, s{sTmp}, {S_L}\nv_add_u32 v{vR}, s{sTmp}, v{vR}")
    stamp(k, 2)
    a_stage(ARAW)
    stamp(k, 3)
    def slab_write(kk): return [lambda u=u: k(f"ds_write_b128 v{WREG[u]}, {RAW(kk*7+u)} offset:{(kk & 1)*SLAB}") for u in range(7)]
    k("s_waitcnt vmcnt(49)")
    for f in slab_write(0): f()
    for kk in range(8):
        k("s_waitcnt lgkmcnt(0)\ns_barrier")
        for tt in range(7):
            for u in range(2):
                k(f"ds_read_b64_tr_b16 {V(BFW+4*tt+2*u,2)}, v{vR} offset:{(kk & 1)*SLAB + u*4*LS + tt*32}")
        sw = []
        if kk < 7:
            k(f"s_waitcnt vmcnt({max(0, 56 - 7*(kk+2))})")
            sw = slab_write(kk + 1)
        n = 0
        for tt in range(7):
            if tt == 0: k(f"s_waitcnt lgkmcnt(12)")
            elif tt < 7: pass
            for r4 in range(4):
                D = V(ACC + 4 * (4 * tt + r4), 4)
                if r4 == 0 and tt >= 1: k(f"s_waitcnt lgkmcnt({min(15, max(0, 12 - 2*tt) + (7 - len(sw) if kk < 7 else 0))})")
                k(f"v_mfma_f32_16x16x32_bf16 {D}, {AFr(kk,r4)}, {V(BFW+4*tt,4)}, {'0' if kk == 0 else D}")
                if r4 == 1 and sw: sw.pop(0)()
        if kk < 7: stamp(k, 4 + kk)
    def wb_addr(tt):
        k(f"s_mul_i32 s{sTmp}, s{sWAVE}, 7\ns_add_u32 s{sTmp}, s{sTmp}, {tt}")
        k(f"s_lshr_b32 s{sOut}, s{sTmp}, 1\ns_mul_i32 s{sOut}, s{sOut}, 458752")
        k(f"s_and_b32 s{sTmp}, s{sTmp}, 1\ns_and_b32 s{sTmp2}, s{sH}, 3\ns_lshl_b32 s{sTmp2}, s{sTmp2}, 1\ns_add_u32 s{sTmp}, s{sTmp}, s{sTmp2}")
        k(f"s_mul_i32 s{sTmp}, s{sTmp}, 7\ns_add_u32 s{sTmp}, s{sTmp}, s{sT}\ns_lshl_b32 s{sTmp}, s{sTmp}, 11\ns_add_u32 s{sOut}, s{sOut}, s{sTmp}")
        k(f"s_lshr_b32 s{sTmp}, s{sH}, 2\ns_mul_i32 s{sTmp}, s{sTmp}, 114688\ns_add_u32 s{sOut}, s{sOut}, s{sTmp}\ns_add_u32 s{sOut}, s{sOut}, {WB_OFF}")
    k("s_nop 7")
    wait_init(k, 8, abort, issue_only=True)
    for tt in range(7):
        for f in epi_ops(ACC + 16 * tt, tt, False, wb_addr): f()
    k("s_waitcnt vmcnt(0)")
    wait_init(k, 8, abort, check_only=True)
    k("s_barrier")
    sk = k.uid("G_ns")
    k(f"s_cmp_lg_u32 s{sWAVE}, 0\ns_cbranch_scc1 {sk}")
    k(f"v_mov_b32 v10, 0\nv_mov_b32 v11, 1\ns_mov_b64 exec, 1\nbuffer_atomic_add v11, v10, {WSR}, s{sCnt} offen sc1\ns_mov_b64 exec, -1")
    k.label(sk)
    k(f"s_branch {done_label}")

def emit_ln_segment(k, sSeg, ST="sc1", need_init=None, pre=None, X0=16, last=True, nsig=1):
    sA = 36
    if pre in (None, "load"): srd(k, sA, KARG["x"], 1835008)
    RS = 912
    vLn, vRow, vPart, vAd, vM, vT2 = 1, 2, 3, 4, 6, 8
    X, F = 16, 48
    k(f"v_and_b32 v{vLn}, 63, v0")
    k(f"v_lshrrev_b32 v{vRow}, 3, v{vLn}\ns_lshl_b32 s21, s{sWAVE}, 3\nv_add_u32 v{vRow}, s21, v{vRow}\nv_and_b32 v{vPart}, 7, v{vLn}")
    k(f"v_mul_u32_u24 v{vAd}, 896, v{vRow}\nv_lshl_add_u32 v{vAd}, v{vPart}, 4, v{vAd}")
    k(f"s_mul_i32 s21, s{sSeg}, 28672")
    if pre == "load":
        k("s_add_u32 s22, s21, 28672\ns_waitcnt lgkmcnt(0)")
        for u in range(7): k(f"buffer_load_dwordx4 {V(112+4*u,4)}, v{vAd}, s[{sA}:{sA+3}], s21 offen offset:{u*128}")
        for u in range(7): k(f"buffer_load_dwordx4 {V(144+4*u,4)}, v{vAd}, s[{sA}:{sA+3}], s22 offen offset:{u*128}")
        return
    k("s_waitcnt lgkmcnt(0)\ns_barrier")
    if pre is None:
        for u in range(7): k(f"buffer_load_dwordx4 {V(X+4*u,4)}, v{vAd}, s[{sA}:{sA+3}], s21 offen offset:{u*128}")
    def red8(r):
        for m in ("quad_perm:[1,0,3,2]", "quad_perm:[2,3,0,1]", "row_half_mirror"):
            k(f"s_nop 1\nv_add_f32_dpp v{r}, v{r}, v{r} {m} row_mask:0xf bank_mask:0xf")
    XS = X if pre is None else X0
    if pre is None: k("s_waitcnt vmcnt(0)")
    for j in range(28):
        k(f"v_lshlrev_b32 v{F+2*j}, 16, v{XS+j}\nv_and_b32 v{F+2*j+1}, 0xffff0000, v{XS+j}")
    k(f"v_pk_add_f32 {V(vM,2)}, {V(F,2)}, {V(F+2,2)}")
    for j in range(2, 28): k(f"v_pk_add_f32 {V(vM,2)}, {V(vM,2)}, {V(F+2*j,2)}")
    k(f"v_add_f32 v{vM}, v{vM}, v{vM+1}")
    red8(vM)
    k(f"v_mul_f32 v{vM}, {fbits(1/448.):#x}, v{vM}\nv_mov_b32 v{vM+1}, v{vM}")
    for j in range(28): k(f"v_pk_add_f32 {V(F+2*j,2)}, {V(F+2*j,2)}, {V(vM,2)} neg_lo:[0,1] neg_hi:[0,1]")
    k(f"v_pk_mul_f32 {V(vT2,2)}, {V(F,2)}, {V(F,2)}")
    for j in range(1, 28): k(f"v_pk_fma_f32 {V(vT2,2)}, {V(F+2*j,2)}, {V(F+2*j,2)}, {V(vT2,2)}")
    k(f"v_add_f32 v{vT2}, v{vT2}, v{vT2+1}")
    red8(vT2)
    k(f"v_mov_b32 v{vT2+1}, {fbits(1e-5):#x}\nv_mov_b32 v{vT2+2}, {fbits(1/448.):#x}")
    k(f"v_fma_f32 v{vT2}, v{vT2}, v{vT2+2}, v{vT2+1}")
    k(f"v_rsq_f32 v{vT2}, v{vT2}\ns_nop 0\nv_mov_b32 v{vT2+1}, v{vT2}")
    for j in range(28):
        k(f"v_pk_mul_f32 {V(F+2*j,2)}, {V(F+2*j,2)}, {V(vT2,2)}")
        k(f"v_cvt_pk_bf16_f32 v{X+j}, v{F+2*j}, v{F+2*j+1}")
    k(f"v_mul_u32_u24 v{vAd}, {RS}, v{vRow}\nv_lshl_add_u32 v{vAd}, v{vPart}, 4, v{vAd}")
    for u in range(7): k(f"ds_write_b128 v{vAd}, {V(X+4*u,4)} offset:{u*128}")
    k("s_waitcnt lgkmcnt(0)\ns_barrier")
    vm, vg, vKey, vL16, vL8, vR0 = 2, 3, 4, 5, 12, 13
    k(f"v_and_b32 v{vm}, 15, v{vLn}\nv_lshrrev_b32 v{vg}, 4, v{vLn}\nv_lshlrev_b32 v{vL16}, 4, v{vLn}\nv_lshlrev_b32 v{vL8}, 3, v{vLn}")
    k(f"v_bfe_u32 v{vT2}, v{vm}, 3, 1\nv_lshlrev_b32 v{vKey}, 4, v{vT2}")
    k(f"v_bfe_u32 v{vT2}, v{vm}, 1, 1\nv_lshl_add_u32 v{vKey}, v{vT2}, 3, v{vKey}")
    k(f"v_bfe_u32 v{vT2}, v{vm}, 2, 1\nv_lshl_add_u32 v{vKey}, v{vT2}, 2, v{vKey}")
    k(f"v_and_b32 v{vT2}, 1, v{vm}\nv_add_u32 v{vKey}, v{vKey}, v{vT2}")
    k(f"s_lshr_b32 s21, s{sWAVE}, 1\ns_lshl_b32 s22, s21, 1\nv_add_u32 v{vR0}, s22, v{vKey}\nv_mul_u32_u24 v{vR0}, {RS}, v{vR0}")
    k(f"v_lshrrev_b32 v{vT2}, 1, v{vg}\nv_lshl_add_u32 v{vR0}, v{vT2}, 5, v{vR0}")
    k(f"v_and_b32 v{vT2}, 1, v{vg}\nv_lshl_add_u32 v{vR0}, v{vT2}, 3, v{vR0}")
    k(f"s_and_b32 s22, s{sWAVE}, 1\ns_mul_i32 s22, s22, 448\nv_add_u32 v{vR0}, s22, v{vR0}")
    for u in range(7):
        k(f"ds_read2_b32 {V(X+4*u,2)}, v{vR0} offset0:{16*u} offset1:{16*u+4}")
        k(f"ds_read2_b32 {V(X+4*u+2,2)}, v{vR0} offset0:{16*u+1} offset1:{16*u+5}")
    k(f"s_mul_i32 s22, s{sSeg}, 28672\ns_mul_i32 s23, s{sWAVE}, 7168\ns_add_u32 s22, s22, s23")
    k(f"s_add_u32 s24, s22, {XNA_OFF}")
    k("s_waitcnt lgkmcnt(0)")
    for u in range(7):
        if u == 4: k("s_add_u32 s24, s24, 4096")
        k(f"buffer_store_dwordx4 {V(X+4*u,4)}, v{vL16}, {WSR}, s24 offen offset:{(u*1024)%4096} {ST}")
    for perm, off in ((0, XK_OFF), (1, XKP_OFF)):
        Y = F if perm == 0 else F + 28
        for kap in range(2):
            if perm == 0: k(f"v_add_u32 v{vR0}, {16*kap}, v{vm}")
            else: k(f"v_add_u32 v{vR0}, {2*kap}, v{vKey}")
            k(f"v_mul_u32_u24 v{vR0}, {RS}, v{vR0}\nv_lshl_add_u32 v{vR0}, v{vg}, 3, v{vR0}")
            k(f"s_mul_i32 s23, s{sWAVE}, 224\nv_add_u32 v{vR0}, s23, v{vR0}")
            for p in range(3):
                k(f"ds_read2_b64 {V(Y+14*kap+4*p,4)}, v{vR0} offset0:{8*p} offset1:{8*p+4}")
            k(f"ds_read_b64 {V(Y+14*kap+12,2)}, v{vR0} offset:192")
        k("s_waitcnt lgkmcnt(0)")
        k(f"s_add_u32 s24, s22, {off}\ns_add_u32 s25, s24, 4096")
        for kap in range(2):
            for p in range(3):
                o = kap * 3584 + p * 1024
                k(f"buffer_store_dwordx4 {V(Y+14*kap+4*p,4)}, v{vL16}, {WSR}, s{24 if o < 4096 else 25} offen offset:{o%4096} {ST}")
            o = kap * 3584 + 3072
            k(f"buffer_store_dwordx2 {V(Y+14*kap+12,2)}, v{vL8}, {WSR}, s{24 if o < 4096 else 25} offen offset:{o%4096} {ST}")
    if not last: return
    k("s_waitcnt vmcnt(0)\ns_barrier")
    sk = k.uid("LN_ns")
    k(f"s_cmp_lg_u32 s{sWAVE}, 0\ns_cbranch_scc1 {sk}")
    if need_init: wait_init(k, 14, need_init)
    k(f"v_mov_b32 v10, 0\nv_mov_b32 v11, {nsig}\ns_mov_b32 s23, {C_LN}\ns_mov_b64 exec, 1\nbuffer_atomic_add v11, v10, {WSR}, s23 offen sc1\ns_mov_b64 exec, -1")
    k.label(sk)

def emit_init(k, sSlot, ST="sc1"):
    sB = 40
    srd(k, sB, KARG["mem0"], 7168)
    vI = 16
    for i in range(4): k(f"v_mov_b32 v{vI+i}, -1\nv_mov_b32 v{vI+4+i}, 0")
    k(f"v_lshlrev_b32 v{vI+8}, 4, v0")
    k(f"s_mul_i32 s23, s{sSlot}, {122*16}\ns_add_u32 s23, s23, {MEMRING + 7168}")
    k(f"v_cmp_gt_u32 vcc, 122, v0\ns_and_saveexec_b64 s[24:25], vcc")
    k(f"buffer_store_dwordx4 {V(vI,4)}, v{vI+8}, {WSR}, s23 offen {ST}\ns_mov_b64 exec, s[24:25]")
    nz = (128 + 512 + CNT_BYTES) // 16
    per = (nz + 31) // 32
    k(f"s_mul_i32 s23, s{sSlot}, {per}\nv_add_u32 v{vI+9}, s23, v0\ns_mul_i32 s23, s23, 16\ns_add_u32 s23, s23, {FLAGM}")
    k(f"v_cmp_gt_u32 vcc, {per}, v0\nv_cmp_gt_u32 s[26:27], {nz}, v{vI+9}" if nz <= 64 else f"v_cmp_gt_u32 vcc, {per}, v0\ns_mov_b32 s28, {nz}\nv_cmp_gt_u32 s[26:27], s28, v{vI+9}")
    k("s_and_b64 vcc, vcc, s[26:27]\ns_and_saveexec_b64 s[24:25], vcc")
    k(f"buffer_store_dwordx4 {V(vI+4,4)}, v{vI+8}, {WSR}, s23 offen {ST}\ns_mov_b64 exec, s[24:25]")
    for hf in range(2):
        sk = k.uid("I_nos")
        k(f"s_lshl_b32 s23, s{sSlot}, 1\ns_add_u32 s23, s23, {hf}\ns_cmp_eq_u32 s23, 0\ns_cbranch_scc1 {sk}")
        k(f"s_mul_i32 s23, s23, 7168\ns_add_u32 s23, s23, {MEMOUT}")
        k(f"buffer_store_dwordx4 {V(vI,4)}, v{vI+8}, {WSR}, s23 offen {ST}")
        k(f"v_cmp_gt_u32 vcc, 192, v0\ns_and_saveexec_b64 s[24:25], vcc")
        k(f"s_add_u32 s23, s23, 4096\nbuffer_store_dwordx4 {V(vI,4)}, v{vI+8}, {WSR}, s23 offen {ST}")
        k("s_mov_b64 exec, s[24:25]")
        k.label(sk)
    nm = k.uid("I_nm")
    k(f"s_cmp_lg_u32 s{sSlot}, 31\ns_cbranch_scc1 {nm}")
    k("s_waitcnt lgkmcnt(0)")
    for u in range(2):
        g_, o_, t_ = vI + 9, vI + 10, vI + 11
        k(f"v_add_u32 v{g_}, {256*u}, v0")
        k(f"v_and_b32 v{o_}, 7, v{g_}\nv_mul_u32_u24 v{o_}, 896, v{o_}")
        k(f"v_lshrrev_b32 v{t_}, 6, v{g_}\nv_lshl_add_u32 v{o_}, v{t_}, 7, v{o_}")
        k(f"v_bfe_u32 v{t_}, v{g_}, 4, 2\nv_lshl_add_u32 v{o_}, v{t_}, 5, v{o_}")
        k(f"v_bfe_u32 v{t_}, v{g_}, 3, 1\nv_lshl_add_u32 v{o_}, v{t_}, 4, v{o_}")
        k(f"v_lshlrev_b32 v{t_}, 4, v{g_}")
        if u == 1: k(f"v_cmp_gt_u32 vcc, 448, v{g_}\ns_and_saveexec_b64 s[24:25], vcc")
        k(f"buffer_load_dwordx4 {V(vI+12,4)}, v{o_}, s[{sB}:{sB+3}], 0 offen\ns_waitcnt vmcnt(0)")
        k(f"s_mov_b32 s23, {MEMRING}\nbuffer_store_dwordx4 {V(vI+12,4)}, v{t_}, {WSR}, s23 offen {ST}")
        k(f"s_mov_b32 s23, {MEMOUT}\nbuffer_store_dwordx4 {V(vI+12,4)}, v{t_}, {WSR}, s23 offen {ST}")
        if u == 1: k("s_mov_b64 exec, s[24:25]")
        k("s_nop 1")
    k.label(nm)
    k("s_waitcnt vmcnt(0) lgkmcnt(0)\ns_barrier")
    sk = k.uid("I_ns")
    k(f"s_cmp_lg_u32 s{sWAVE}, 0\ns_cbranch_scc1 {sk}")
    k(f"v_mov_b32 v{vI}, 0\nv_mov_b32 v{vI+1}, 1\ns_mov_b64 exec, 1\nglobal_atomic_add v{vI}, v{vI+1}, s[4:5] offset:{DBG_INIT} sc1\ns_mov_b64 exec, -1")
    k.label(sk)
```

```python
from kfw import *
from layout import *
from chain import Q, sWS, sRANK, sWAVE, sT0, sT1, sSPIN, SPIN
from prepk import srd, KARG, fbits

WSR = f"s[{sWS}:{sWS+3}]"

def wait_counter(k, off_sgpr, target, vtmp, vzero, abort, sleep=2):
    top = k.uid("WC"); done = k.uid("WCD")
    k.label(top)
    k(f"buffer_load_dword v{vtmp}, v{vzero}, {WSR}, s{off_sgpr} offen sc1\ns_waitcnt vmcnt(0)")
    k(f"v_cmp_gt_u32 vcc, {target}, v{vtmp}" if isinstance(target, int) else f"v_cmp_gt_u32 vcc, {target}, v{vtmp}")
    k(f"s_cbranch_vccz {done}")
    k(f"s_sleep {sleep}\ns_sub_u32 s{sSPIN}, s{sSPIN}, 1\ns_cbranch_scc0 {top}\ns_branch {abort}")
    k.label(done)

def signal(k, off_sgpr, vone, vzero):
    k(f"s_mov_b64 exec, 1\nbuffer_atomic_add v{vone}, v{vzero}, {WSR}, s{off_sgpr} offen sc1\ns_mov_b64 exec, -1")

def dma(k, vaddr, soff, ldsoff_m0, imm=0):
    k(f"s_mov_b32 m0, {ldsoff_m0}\ns_nop 0\nbuffer_load_dwordx4 v{vaddr}, {WSR}, s{soff} offen offset:{imm} lds")

def emit_vxgen(k, cfg, abort, what="vx"):
    NPAR = cfg.get("vx_par", 2) if what == "vx" else cfg.get("vm_par", 1)
    sJ, sWp, sPar, sSeg, sSrc, sDst, sCnt, sBuf, sM = 20, 21, 22, 23, 24, 25, 26, 27, 28
    vL16, vZ, vOne, vT, vRd = 1, 2, 3, 4, 5
    XF, ACC = 8, 32
    k("v_and_b32 v0, 63, v0")
    k(f"v_lshlrev_b32 v{vL16}, 4, v0\nv_mov_b32 v{vZ}, 0\nv_mov_b32 v{vOne}, 1")
    k(f"s_mul_i32 s{sPar}, s{sRANK}, 2341\ns_lshr_b32 s{sPar}, s{sPar}, 16")
    k(f"s_mul_i32 s{sT0}, s{sPar}, 28\ns_sub_u32 s{sT0}, s{sRANK}, s{sT0}")
    k(f"s_lshr_b32 s{sJ}, s{sT0}, 1\ns_and_b32 s{sWp}, s{sT0}, 1")
    sW, sKs = 29, 30
    k(f"s_lshr_b32 s{sW}, s{sWAVE}, 1\ns_lshl_b32 s{sT0}, s{sWp}, 1\ns_add_u32 s{sW}, s{sW}, s{sT0}\ns_and_b32 s{sKs}, s{sWAVE}, 1")
    k(f"s_mul_i32 s{sSrc}, s{sJ}, 458752\ns_mul_i32 s{sT0}, s{sW}, 114688\ns_add_u32 s{sSrc}, s{sSrc}, s{sT0}")
    k(f"s_mul_i32 s{sT0}, s{sKs}, {4*14336}\ns_add_u32 s{sSrc}, s{sSrc}, s{sT0}\ns_add_u32 s{sSrc}, s{sSrc}, {WB_OFF}")
    def Wreg(c, a, kk): return ((a * 2 + c) * 14 + kk) * 4
    FUSED = cfg.get("fused"); LDF = "sc1" if FUSED else ""
    if FUSED:
        k(f"s_lshl_b32 s{sT0}, s{sW}, 2\ns_lshl_b32 s{sT1}, s{sKs}, 1\ns_add_u32 s{sT0}, s{sT0}, s{sT1}\ns_lshl_b32 s{sT0}, s{sT0}, 7\ns_add_u32 s{sT0}, s{sT0}, {C_WB}")
        k(f"v_and_b32 v{vT}, 1, v0\nv_lshlrev_b32 v{vT}, 7, v{vT}")
        wait_counter(k, sT0, 7, 6, vT, abort, sleep=1)
    for a in range(2):
        for c in range(2):
            for kk in range(14):
                off = ((2 * a + c) * 14 + kk) * 1024
                if off and off % 4096 == 0: k(f"s_add_u32 s{sSrc}, s{sSrc}, 4096")
                k(f"buffer_load_dwordx4 {A(Wreg(c,a,kk),4)}, v{vL16}, {WSR}, s{sSrc} offen offset:{off%4096} {LDF}")
    if what == "vm":
        k("s_waitcnt vmcnt(0)")
        emit_vm_phase(k, cfg, abort, locals())
        k("s_waitcnt vmcnt(0)")
        k("s_endpgm")
        return
    k(f"s_mul_i32 s{sDst}, s{sJ}, 32768\ns_lshl_b32 s{sT0}, s{sW}, 13\ns_add_u32 s{sDst}, s{sDst}, s{sT0}")
    k(f"s_lshl_b32 s{sT0}, s{sKs}, 12\ns_add_u32 s{sDst}, s{sDst}, s{sT0}\ns_add_u32 s{sDst}, s{sDst}, {VX_OFF}")
    k(f"s_mul_i32 s{sT0}, s{sPar}, 458752\ns_add_u32 s{sDst}, s{sDst}, s{sT0}")
    k(f"s_mov_b32 s{sSeg}, s{sPar}")
    k(f"s_lshl_b32 s{sCnt}, s{sPar}, 4\ns_add_u32 s{sCnt}, s{sCnt}, {C_VX}")
    k(f"s_mul_i32 s{sSrc}, s{sPar}, 28672\ns_mul_i32 s{sT0}, s{sWAVE}, 7168\ns_add_u32 s{sSrc}, s{sSrc}, s{sT0}\ns_add_u32 s{sSrc}, s{sSrc}, {XNA_OFF}")
    k(f"s_mul_i32 s{sM}, s{sWAVE}, 7168")
    k(f"s_mov_b32 s{sBuf}, 0")
    def issue_dma(bufreg):
        k(f"s_add_u32 s{sT1}, s{sM}, s{bufreg}")
        for u in range(7):
            k(f"s_add_u32 m0, s{sT1}, {u*1024}")
            if u == 4: k(f"s_add_u32 s{sT0}, s{sSrc}, 4096")
            else: k("s_nop 0")
            k(f"buffer_load_dwordx4 v{vL16}, {WSR}, s{sSrc if u < 4 else sT0} offen offset:{(u*1024)%4096} lds")
    def issue_dma(bufreg):
        k(f"s_add_u32 s{sT1}, s{sM}, s{bufreg}")
        k(f"s_mov_b32 m0, s{sT1}\ns_nop 0")
        for u in range(4):
            k(f"buffer_load_dwordx4 v{vL16}, {WSR}, s{sSrc} offen offset:{u*1024} {LDF} lds")
        k(f"s_add_u32 m0, s{sT1}, 4096\ns_add_u32 s{sT0}, s{sSrc}, 4096")
        for u in range(3):
            k(f"buffer_load_dwordx4 v{vL16}, {WSR}, s{sT0} offen offset:{u*1024} {LDF} lds")
    if FUSED:
        k(f"s_mov_b32 s{sT0}, {C_LN}")
        wait_counter(k, sT0, 64, 6, vZ, abort, sleep=1)
    issue_dma(sBuf)
    loop = k.uid("VX_loop"); last = k.uid("VX_nopf")
    k.label(loop)
    k("s_waitcnt vmcnt(0)\ns_barrier")
    k(f"v_add_u32 v{vRd}, s{sBuf}, v{vL16}")
    k(f"s_xor_b32 s{sBuf}, s{sBuf}, 28672")
    k(f"s_add_u32 s{sSrc}, s{sSrc}, {28672*NPAR}")
    k(f"s_add_u32 s{sT0}, s{sSeg}, {NPAR}\ns_cmp_ge_u32 s{sT0}, 64\ns_cbranch_scc1 {last}")
    issue_dma(sBuf)
    k.label(last)
    q = Q(k)
    def rd(kk):
        for rho in range(2):
            q.ds(f"ds_read_b128 {V(XF+8*(kk&1)+4*rho,4)}, v{vRd} offset:{(rho*14+kk)*1024}", f"x{kk}_{rho}")
    rd(0)
    for kk in range(14):
        if kk < 13: rd(kk + 1)
        q.wait_lg(f"x{kk}_1")
        for a in range(2):
            for c in range(2):
                for rho in range(2):
                    D = V(ACC + ((c * 2 + a) * 2 + rho) * 4, 4)
                    k(f"v_mfma_f32_16x16x32_bf16 {D}, {V(XF+8*(kk&1)+4*rho,4)}, {A(Wreg(c,a,kk),4)}, {'0' if kk == 0 else D}")
    k("s_nop 7")
    for c in range(2):
        for a in range(2):
            b = ACC + (c * 2 + a) * 8
            for i in range(4): k(f"v_cvt_pk_bf16_f32 v{b+i}, v{b+2*i}, v{b+2*i+1}")
            k(f"buffer_store_dwordx4 {V(b,4)}, v{vL16}, {WSR}, s{sDst} offen offset:{(c*2+a)*1024} sc1")
    k("s_waitcnt vmcnt(0)\ns_barrier")
    sk = k.uid("VX_ns")
    k(f"s_cmp_lg_u32 s{sWAVE}, 0\ns_cbranch_scc1 {sk}")
    signal(k, sCnt, vOne, vZ)
    k.label(sk)
    k(f"s_add_u32 s{sDst}, s{sDst}, {458752*NPAR}\ns_add_u32 s{sCnt}, s{sCnt}, {16*NPAR}\ns_add_u32 s{sSeg}, s{sSeg}, {NPAR}")
    k(f"s_cmp_lt_u32 s{sSeg}, 64\ns_cbranch_scc1 {loop}")
    if cfg.get("vm_inline"): emit_vm_phase(k, cfg, abort, locals())
    k("s_waitcnt vmcnt(0)")
    k("s_endpgm")

def emit_vm_phase(k, cfg, abort, L):
    NPAR = L["NPAR"]; Wreg = L["Wreg"]
    sJ, sPar, sSeg, sSrc, sDst, sCnt, sW, sKs = L["sJ"], L["sPar"], L["sSeg"], L["sSrc"], L["sDst"], L["sCnt"], L["sW"], L["sKs"]
    vL16, vZ, vOne, vT = L["vL16"], L["vZ"], L["vOne"], L["vT"]
    vPA, vPB, vRd, vX = 5, 6, 7, 64
    MF, ACC, TA = 72, 32, 8
    k("; ---- V_m phase")
    k(f"s_mul_i32 s{sT0}, s{sWAVE}, 1792\nv_add_u32 v{vPA}, s{sT0}, v{vL16}")
    k(f"v_min_u32 v{vT}, 47, v0\nv_lshlrev_b32 v{vT}, 4, v{vT}\ns_add_u32 s{sT0}, s{sT0}, 1024\nv_add_u32 v{vPB}, s{sT0}, v{vT}")
    k(f"v_lshrrev_b32 v{vT}, 5, v0\nv_lshlrev_b32 v{vRd}, 8, v{vT}")
    k(f"v_and_b32 v{vT}, 7, v0\nv_lshl_add_u32 v{vRd}, v{vT}, 4, v{vRd}")
    k(f"v_bfe_u32 v{vT}, v0, 4, 1\nv_lshl_add_u32 v{vRd}, v{vT}, 3, v{vRd}")
    k(f"s_mov_b32 s{sSeg}, s{sPar}")
    k(f"s_mul_i32 s{sSrc}, s{sPar}, 7168\ns_add_u32 s{sSrc}, s{sSrc}, {MEMOUT}")
    k(f"s_mul_i32 s{sDst}, s{sJ}, 16384\ns_lshl_b32 s{sT0}, s{sW}, 12\ns_add_u32 s{sDst}, s{sDst}, s{sT0}")
    k(f"s_lshl_b32 s{sT0}, s{sKs}, 11\ns_add_u32 s{sDst}, s{sDst}, s{sT0}\ns_add_u32 s{sDst}, s{sDst}, {VM_OFF}")
    k(f"s_mul_i32 s{sT0}, s{sPar}, 229376\ns_add_u32 s{sDst}, s{sDst}, s{sT0}")
    k(f"s_lshl_b32 s{sCnt}, s{sPar}, 4\ns_add_u32 s{sCnt}, s{sCnt}, {C_VM}")
    loop = k.uid("VM_loop"); top = k.uid("VM_poll"); ok_ = k.uid("VM_ok")
    k.label(loop)
    k.label(top)
    k(f"buffer_load_dwordx4 {V(TA,4)}, v{vPA}, {WSR}, s{sSrc} offen sc1")
    k(f"buffer_load_dwordx4 {V(TA+4,4)}, v{vPB}, {WSR}, s{sSrc} offen sc1")
    k("s_waitcnt vmcnt(0)")
    k(f"v_max3_u32 v{vX}, v{TA}, v{TA+1}, v{TA+2}\nv_max3_u32 v{vX}, v{vX}, v{TA+3}, v{TA+4}")
    k(f"v_max3_u32 v{vX}, v{vX}, v{TA+5}, v{TA+6}\nv_max_u32 v{vX}, v{vX}, v{TA+7}")
    k(f"v_cmp_eq_u32 vcc, -1, v{vX}\ns_cbranch_vccz {ok_}")
    k(f"s_sleep 4\ns_sub_u32 s{sSPIN}, s{sSPIN}, 1\ns_cbranch_scc0 {top}\ns_branch {abort}")
    k.label(ok_)
    k(f"ds_write_b128 v{vPA}, {V(TA,4)}\nds_write_b128 v{vPB}, {V(TA+4,4)}")
    k("s_waitcnt lgkmcnt(0)\ns_barrier")
    for t in range(7):
        if t: k(f"v_add_u32 v{vX}, {t*1024}, v{vRd}")
        ad = vRd if t == 0 else vX
        for a in range(2):
            k(f"ds_read2_b64 {V(MF+4*(2*t+a),4)}, v{ad} offset0:{a*64} offset1:{a*64+16}")
    k(f"s_add_u32 s{sSrc}, s{sSrc}, {7168*NPAR}")
    k("s_waitcnt lgkmcnt(0)")
    for kk in range(14): k(f"v_swap_b32 v{MF+4*kk+1}, v{MF+4*kk+2}")
    k("s_nop 1")
    for kk in range(14):
        for c in range(2):
            for a in range(2):
                D = V(ACC + (c * 2 + a) * 4, 4)
                k(f"v_mfma_f32_16x16x32_bf16 {D}, {V(MF+4*kk,4)}, {A(Wreg(c,a,kk),4)}, {'0' if kk == 0 else D}")
    k("s_nop 7")
    for c in range(2):
        b = ACC + c * 8
        for i in range(4): k(f"v_cvt_pk_bf16_f32 v{b+i}, v{b+2*i}, v{b+2*i+1}")
        k(f"buffer_store_dwordx4 {V(b,4)}, v{vL16}, {WSR}, s{sDst} offen offset:{c*1024} sc1")
    k("s_waitcnt vmcnt(0)\ns_barrier")
    sk = k.uid("VM_ns")
    k(f"s_cmp_lg_u32 s{sWAVE}, 0\ns_cbranch_scc1 {sk}")
    signal(k, sCnt, vOne, vZ)
    k.label(sk)
    k(f"s_add_u32 s{sDst}, s{sDst}, {229376*NPAR}\ns_add_u32 s{sCnt}, s{sCnt}, {16*NPAR}\ns_add_u32 s{sSeg}, s{sSeg}, {NPAR}")
    k(f"s_cmp_lt_u32 s{sSeg}, 64\ns_cbranch_scc1 {loop}")

def test_kernel(role_emit, name, cfg, nroles):
    k = K()
    k(f'.amdgcn_target "amdgcn-amd-amdhsa--gfx950"\n.text\n.globl {name}\n.p2align 8\n.type {name},@function\n{name}:')
    k(f"s_cmp_ge_u32 s2, {nroles}\ns_cbranch_scc1 L_exit")
    srd(k, sWS, KARG["ws"], WS_BYTES)
    k(f"s_mov_b32 s{sRANK}, s2\ns_mov_b32 s{sSPIN}, {SPIN}")
    k(f"v_lshrrev_b32 v3, 6, v0\ns_nop 0\nv_readfirstlane_b32 s{sWAVE}, v3")
    k("s_waitcnt lgkmcnt(0)")
    role_emit(k, cfg, "L_abort")
    for t in cfg.get("outofline", []): k(t)
    k.label("L_abort")
    k("s_load_dwordx2 s[4:5], s[0:1], 96\ns_waitcnt lgkmcnt(0)\nv_mov_b32 v1, 0\nv_mov_b32 v2, 1\nglobal_atomic_add v1, v2, s[4:5] offset:4\ns_waitcnt vmcnt(0)")
    k.label("L_exit")
    k("s_endpgm")
    from prepk import kd
    k('.section .rodata,"a"')
    k(kd(name, 512, 256))
    return k.text()

if __name__ == "__main__":
    import sys, kfw
    t = test_kernel(emit_vxgen, "vx_kernel", {}, 56)
    open("vx_test.s", "w").write(t)
    print("hazards", len(kfw.check(t)), "waits", len(kfw.check_waits(t)))

def blockregA(b):
    return Reg("a", 8 * b) if b < 28 else Reg("v", 88 + 8 * (b - 28))

def emit_xattn(k, cfg, abort):
    NPAR = cfg.get("xa_par", 2)
    sH, sPar, sSeg, sSrc, sBuf, sM, sKey, sMem, sPx, sCnt = 20, 21, 22, 23, 24, 25, 26, 27, 28, 29
    sMask = 32
    sLo = 48
    vL16, vL8, vZ, vOne, vRd, vMK, vSW, vSR, vX, vT, vNeg = 1, 2, 3, 4, 5, 6, 7, 8, 9, 10, 11
    XF, QT1, ACC, EX = 12, 28, 44, 76
    SACC = 56
    XK = 224
    SP_L = 57344
    k("v_and_b32 v0, 63, v0")
    k(f"v_lshlrev_b32 v{vL16}, 4, v0\nv_lshlrev_b32 v{vL8}, 3, v0\nv_mov_b32 v{vZ}, 0\nv_mov_b32 v{vOne}, 1\nv_mov_b32 v{vNeg}, 0xff800000")
    k(f"s_and_b32 s{sH}, s{sRANK}, 15\ns_lshr_b32 s{sPar}, s{sRANK}, 4")
    N_, G_ = XF, XF + 1
    k(f"v_and_b32 v{N_}, 15, v0\nv_lshrrev_b32 v{G_}, 4, v0")
    k(f"s_mul_i32 s{sT0}, s{sWAVE}, 1792")
    k(f"v_lshrrev_b32 v{vT}, 1, v{G_}\nv_lshlrev_b32 v{vMK}, 7, v{vT}")
    k(f"v_and_b32 v{vT}, 7, v0\nv_lshl_add_u32 v{vMK}, v{vT}, 4, v{vMK}")
    k(f"v_and_b32 v{vT}, 1, v{G_}\nv_lshl_add_u32 v{vMK}, v{vT}, 3, v{vMK}\nv_add_u32 v{vMK}, s{sT0}, v{vMK}")
    k(f"s_mul_i32 s{sT0}, s{sWAVE}, 6144\ns_add_u32 s{sT0}, s{sT0}, {SP_L}\nv_add_u32 v{vSW}, s{sT0}, v{vL16}")
    k(f"s_and_b32 s{sT0}, s{sWAVE}, 1\ns_lshl_b32 s{sT0}, s{sT0}, 10\ns_add_u32 s{sT0}, s{sT0}, {SP_L}\nv_add_u32 v{vSR}, s{sT0}, v{vL16}")
    k(f"v_bfe_u32 v{vT}, v{N_}, 3, 1\nv_lshlrev_b32 v{vX}, 4, v{vT}")
    k(f"v_bfe_u32 v{vT}, v{N_}, 1, 1\nv_lshl_add_u32 v{vX}, v{vT}, 3, v{vX}")
    k(f"v_bfe_u32 v{vT}, v{N_}, 2, 1\nv_lshl_add_u32 v{vX}, v{vT}, 2, v{vX}")
    k(f"v_and_b32 v{vT}, 1, v{N_}\nv_add_u32 v{vX}, v{vX}, v{vT}")
    k(f"s_and_b32 s{sT0}, s{sWAVE}, 1\ns_lshl_b32 s{sT0}, s{sT0}, 1\nv_add_u32 v{vX}, s{sT0}, v{vX}")
    k(f"v_lshrrev_b32 v{vT}, 1, v{G_}\nv_lshlrev_b32 v{vT}, 4, v{vT}\nv_sub_u32 v{vX}, v{vX}, v{vT}")
    k(f"v_and_b32 v{vT}, 1, v{G_}\nv_lshlrev_b32 v{vT}, 2, v{vT}\nv_sub_u32 v{vX}, v{vX}, v{vT}")
    for kap in range(2):
        for r in range(4):
            c = 8 * (r >> 1) + 2 * kap + (r & 1)
            m = sMask + 2 * (4 * kap + r)
            k(f"v_cmp_le_i32 s[{m}:{m+1}], {c}, v{vX}")
    k(f"v_cmp_gt_u32 s[{sLo}:{sLo+1}], 2, v{G_}")
    FUSED = cfg.get("fused"); LDF = "sc1" if FUSED else ""
    if FUSED:
        k(f"s_lshl_b32 s{sT0}, s{sH}, 2\ns_add_u32 s{sT0}, s{sT0}, s{sWAVE}\ns_lshl_b32 s{sT0}, s{sT0}, 7\ns_add_u32 s{sT0}, s{sT0}, {C_WA}")
        k(f"v_and_b32 v{vT}, 7, v0\nv_min_u32 v{vT}, 6, v{vT}\nv_lshlrev_b32 v{vT}, 2, v{vT}")
        wait_counter(k, sT0, 7, vX, vT, abort, sleep=4)
    k(f"s_mul_i32 s{sT0}, s{sH}, 401408\ns_mul_i32 s{sT1}, s{sWAVE}, 100352\ns_add_u32 s{sT0}, s{sT0}, s{sT1}")
    if WA_OFF: k(f"s_add_u32 s{sT0}, s{sT0}, {WA_OFF}")
    for b in range(49):
        R = blockregA(b)
        for a in range(2):
            off = (b * 2 + a) * 1024
            if off and off % 4096 == 0: k(f"s_add_u32 s{sT0}, s{sT0}, 4096")
            k(f"buffer_load_dwordx4 {R.r(4*a,4)}, v{vL16}, {WSR}, s{sT0} offen offset:{off%4096} {LDF}")
    def Wf(tt, kk):
        return blockregA(7 * tt + (kk >> 1)).r(4 * (kk & 1), 4)
    k(f"s_mov_b32 s{sSeg}, s{sPar}")
    k(f"s_mul_i32 s{sSrc}, s{sPar}, 28672\ns_mul_i32 s{sT0}, s{sWAVE}, 7168\ns_add_u32 s{sSrc}, s{sSrc}, s{sT0}")
    k(f"s_add_u32 s{sKey}, s{sSrc}, {XKP_OFF}\ns_add_u32 s{sSrc}, s{sSrc}, {XNA_OFF}")
    k(f"s_mul_i32 s{sMem}, s{sPar}, 7168\ns_add_u32 s{sMem}, s{sMem}, {MEMOUT}")
    k(f"s_mul_i32 s{sPx}, s{sPar}, 49152\ns_mul_i32 s{sT0}, s{sH}, 3072\ns_add_u32 s{sPx}, s{sPx}, s{sT0}\ns_add_u32 s{sPx}, s{sPx}, {PX_OFF}")
    k(f"s_lshl_b32 s{sCnt}, s{sPar}, 4\ns_add_u32 s{sCnt}, s{sCnt}, {C_PX}")
    k(f"s_mul_i32 s{sM}, s{sWAVE}, 7168\ns_mov_b32 s{sBuf}, 0")
    def issue_dma(bufreg):
        k(f"s_add_u32 s{sT1}, s{sM}, s{bufreg}")
        k(f"s_mov_b32 m0, s{sT1}\ns_nop 0")
        for u in range(4):
            k(f"buffer_load_dwordx4 v{vL16}, {WSR}, s{sSrc} offen offset:{u*1024} {LDF} lds")
        k(f"s_add_u32 m0, s{sT1}, 4096\ns_add_u32 s{sT0}, s{sSrc}, 4096")
        for u in range(3):
            k(f"buffer_load_dwordx4 v{vL16}, {WSR}, s{sT0} offen offset:{u*1024} {LDF} lds")
    if FUSED:
        k(f"s_mov_b32 s{sT0}, {C_LN}")
        wait_counter(k, sT0, 64, vX, vZ, abort, sleep=4)
    issue_dma(sBuf)
    loop = k.uid("XA_loop"); last = k.uid("XA_nopf")
    k.label(loop)
    k("s_waitcnt vmcnt(0)\ns_barrier")
    k(f"v_add_u32 v{vRd}, s{sBuf}, v{vL16}")
    k(f"s_xor_b32 s{sBuf}, s{sBuf}, 28672")
    for kap in range(2):
        for p in range(3):
            off = kap * 3584 + p * 1024
            so = sKey if off < 4096 else sT1
            if off >= 4096 and p == 1: k(f"s_add_u32 s{sT1}, s{sKey}, 4096")
            k(f"buffer_load_dwordx4 {A(XK+kap*14+4*p,4)}, v{vL16}, {WSR}, s{so} offen offset:{off%4096} {LDF}")
        off = kap * 3584 + 3072
        so = sKey if off < 4096 else sT1
        k(f"buffer_load_dwordx2 {A(XK+kap*14+12,2)}, v{vL8}, {WSR}, s{so} offen offset:{off%4096} {LDF}")
    k(f"s_add_u32 s{sSrc}, s{sSrc}, {28672*NPAR}\ns_add_u32 s{sKey}, s{sKey}, {28672*NPAR}")
    k(f"s_add_u32 s{sT0}, s{sSeg}, {NPAR}\ns_cmp_ge_u32 s{sT0}, 64\ns_cbranch_scc1 {last}")
    issue_dma(sBuf)
    k.label(last)
    q = Q(k)
    def qx_pass(tiles):
        def rd(kk):
            for rho in range(2):
                q.ds(f"ds_read_b128 {V(XF+8*(kk&1)+4*rho,4)}, v{vRd} offset:{(rho*14+kk)*1024}", f"x{kk}_{rho}")
        rd(0)
        for kk in range(14):
            if kk < 13: rd(kk + 1)
            q.wait_lg(f"x{kk}_1")
            for i, tt in enumerate(tiles):
                for rho in range(2):
                    D = V(ACC + (i * 2 + rho) * 4, 4)
                    k(f"v_mfma_f32_16x16x32_bf16 {D}, {Wf(tt,kk)}, {V(XF+8*(kk&1)+4*rho,4)}, {'0' if kk == 0 else D}")
        q.reset()
        k("s_nop 7")
    qx_pass([0, 1, 2, 3])
    for i in range(4):
        for rho in range(2):
            src = ACC + (i * 2 + rho) * 4; dst = QT1 + rho * 8 + (i >> 1) * 4 + (i & 1) * 2
            k(f"v_cvt_pk_bf16_f32 v{dst}, v{src}, v{src+1}\nv_cvt_pk_bf16_f32 v{dst+1}, v{src+2}, v{src+3}")
    qx_pass([4, 5, 6])
    for (i, rho, dst) in ((0, 0, 0), (1, 0, 2), (0, 1, 4), (1, 1, 6), (2, 0, 8), (2, 1, 10)):
        src = ACC + (i * 2 + rho) * 4
        k(f"v_cvt_pk_bf16_f32 v{ACC+dst}, v{src}, v{src+1}\nv_cvt_pk_bf16_f32 v{ACC+dst+1}, v{src+2}, v{src+3}")
    def QTr(p, rho):
        if p < 2: return V(QT1 + rho * 8 + p * 4, 4)
        if p == 2: return V(ACC + rho * 4, 4)
        return V(ACC + 8 + rho * 2, 2)
    def smm(kap, p, rho):
        D = V(SACC + (kap * 2 + rho) * 4, 4)
        C = "0" if p == 0 else D
        if p < 3:
            Aop = A(XK + kap * 14 + 4 * p, 4) if kap < 2 else V(XF + 4 * p, 4)
            k(f"v_mfma_f32_16x16x32_bf16 {D}, {Aop}, {QTr(p,rho)}, {C}")
        else:
            Aop = A(XK + kap * 14 + 12, 2) if kap < 2 else V(XF + 12, 2)
            k(f"v_mfma_f32_16x16x16_bf16 {D}, {Aop}, {QTr(p,rho)}, {C}")
    k("s_waitcnt vmcnt(0)")
    for kap in range(2):
        for p in range(4):
            for rho in range(2): smm(kap, p, rho)
    top = k.uid("XA_mk"); ok_ = k.uid("XA_mkok")
    k.label(top)
    for tt in range(7):
        k(f"buffer_load_dwordx2 {V(XF+2*tt,2)}, v{vMK}, {WSR}, s{sMem} offen offset:{256*tt} sc1")
    k("s_waitcnt vmcnt(0)")
    k(f"v_max3_u32 v{vX}, v{XF}, v{XF+1}, v{XF+2}")
    for i in range(3, 13, 2): k(f"v_max3_u32 v{vX}, v{vX}, v{XF+i}, v{XF+i+1}")
    k(f"v_max_u32 v{vX}, v{vX}, v{XF+13}")
    k(f"v_cmp_eq_u32 vcc, -1, v{vX}\ns_cbranch_vccz {ok_}")
    k(f"s_sleep 2\ns_sub_u32 s{sSPIN}, s{sSPIN}, 1\ns_cbranch_scc0 {top}\ns_branch {abort}")
    k.label(ok_)
    for p in range(4):
        for rho in range(2): smm(2, p, rho)
    k("s_nop 7")
    for u in range(6): k(f"ds_write_b128 v{vSW}, {V(SACC+4*u,4)} offset:{u*1024}")
    k("s_waitcnt lgkmcnt(0)\ns_barrier")
    fin = k.uid("XA_fin")
    k(f"s_cmp_ge_u32 s{sWAVE}, 2\ns_cbranch_scc1 {fin}")
    S = 44
    T_ = 56
    for src in range(4):
        dst = S if src == 0 else (T_ if src & 1 else T_ + 12)
        for kap in range(3):
            k(f"ds_read_b128 {V(dst+4*kap,4)}, v{vSR} offset:{src*6144+kap*2048}")
        if src >= 1:
            k("s_waitcnt lgkmcnt(0)")
            for i in range(0, 12, 2): k(f"v_pk_add_f32 {V(S+i,2)}, {V(S+i,2)}, {V(dst+i,2)}")
    for kap in range(2):
        for r in range(4):
            m = sMask + 2 * (4 * kap + r)
            k(f"v_cndmask_b32 v{S+4*kap+r}, v{vNeg}, v{S+4*kap+r}, s[{m}:{m+1}]")
    M = vX; T2 = vT
    k(f"v_max3_f32 v{M}, v{S}, v{S+1}, v{S+2}")
    for i in range(3, 11, 2): k(f"v_max3_f32 v{M}, v{M}, v{S+i}, v{S+i+1}")
    k(f"v_max_f32 v{M}, v{M}, v{S+11}")
    def xg(op):
        for sw in ("v_permlane32_swap_b32", "v_permlane16_swap_b32"):
            k(f"v_mov_b32 v{T2}, v{M}\ns_nop 1\n{sw} v{M}, v{T2}\n{op} v{M}, v{M}, v{T2}")
    xg("v_max_f32")
    for i in range(12): k(f"v_sub_f32 v{S+i}, v{S+i}, v{M}")
    for i in range(12): k(f"v_exp_f32 v{S+i}, v{S+i}")
    k("s_nop 0")
    for i in range(8, 12): k(f"v_cndmask_b32 v{S+i}, 0, v{S+i}, s[{sLo}:{sLo+1}]")
    k(f"v_add_f32 v{M}, v{S}, v{S+1}")
    for i in range(2, 12): k(f"v_add_f32 v{M}, v{M}, v{S+i}")
    xg("v_add_f32")
    k(f"v_rcp_f32 v{M}, v{M}\ns_nop 0")
    for i in range(12): k(f"v_mul_f32 v{S+i}, v{S+i}, v{M}")
    for i in range(6): k(f"v_cvt_pk_bf16_f32 v{S+i}, v{S+2*i}, v{S+2*i+1}")
    k(f"s_and_b32 s{sT0}, s{sWAVE}, 1\ns_lshl_b32 s{sT1}, s{sT0}, 10\ns_add_u32 s{sT1}, s{sT1}, s{sPx}")
    k(f"buffer_store_dwordx4 {V(S,4)}, v{vL16}, {WSR}, s{sT1} offen sc1")
    k(f"s_lshl_b32 s{sT1}, s{sT0}, 9\ns_add_u32 s{sT1}, s{sT1}, s{sPx}")
    k(f"buffer_store_dwordx2 {V(S+4,2)}, v{vL8}, {WSR}, s{sT1} offen offset:2048 sc1")
    k("s_waitcnt vmcnt(0)")
    k.label(fin)
    k("s_barrier")
    sk = k.uid("XA_ns")
    k(f"s_cmp_lg_u32 s{sWAVE}, 0\ns_cbranch_scc1 {sk}")
    signal(k, sCnt, vOne, vZ)
    k.label(sk)
    k(f"s_add_u32 s{sMem}, s{sMem}, {7168*NPAR}\ns_add_u32 s{sPx}, s{sPx}, {49152*NPAR}\ns_add_u32 s{sCnt}, s{sCnt}, {16*NPAR}\ns_add_u32 s{sSeg}, s{sSeg}, {NPAR}")
    k(f"s_cmp_lt_u32 s{sSeg}, 64\ns_cbranch_scc1 {loop}")
    k("s_waitcnt vmcnt(0)")
    k("s_endpgm")

def emit_pvout(k, cfg, abort):
    NPAR = cfg.get("pv_par", 2)
    sX, sO = 36, 40
    sCg, sPar, sSeg, sVX, sVM, sPX, sG, sXo, sC = 20, 21, 22, 23, 24, 25, 26, 27, 28
    vL16, vL8, vZ, vT, vRow, vRd, vRm = 1, 2, 3, 4, 5, 7, 8
    PF, D, GV, XV = 12, 44, 52, 60
    srd(k, sX, KARG["x"], 1835008); srd(k, sO, KARG["out"], 1835008)
    k("v_and_b32 v0, 63, v0")
    k(f"v_lshlrev_b32 v{vL16}, 4, v0\nv_lshlrev_b32 v{vL8}, 3, v0\nv_mov_b32 v{vZ}, 0")
    k(f"s_mul_i32 s{sPar}, s{sRANK}, 9363\ns_lshr_b32 s{sPar}, s{sPar}, 16\ns_mul_i32 s{sT0}, s{sPar}, 7\ns_sub_u32 s{sCg}, s{sRANK}, s{sT0}")
    k(f"v_and_b32 v{vT}, 15, v0")
    k(f"v_bfe_u32 v{vRow}, v{vT}, 3, 1\nv_lshlrev_b32 v{vRow}, 4, v{vRow}")
    k(f"v_bfe_u32 v{vRow+1}, v{vT}, 1, 1\nv_lshl_add_u32 v{vRow}, v{vRow+1}, 3, v{vRow}")
    k(f"v_bfe_u32 v{vRow+1}, v{vT}, 2, 1\nv_lshl_add_u32 v{vRow}, v{vRow+1}, 2, v{vRow}")
    k(f"v_and_b32 v{vRow+1}, 1, v{vT}\nv_add_u32 v{vRow}, v{vRow}, v{vRow+1}")
    k(f"v_mul_u32_u24 v{vRow}, 896, v{vRow}")
    k(f"v_lshrrev_b32 v{vT}, 4, v0\nv_lshl_add_u32 v{vRow}, v{vT}, 3, v{vRow}")
    k(f"s_lshl_b32 s{sT0}, s{sCg}, 2\ns_add_u32 s{sT0}, s{sT0}, s{sWAVE}")
    k(f"s_lshl_b32 s{sT1}, s{sT0}, 5\nv_add_u32 v{vRow}, s{sT1}, v{vRow}\nv_add_u32 v{vRow+1}, {2*896}, v{vRow}")
    k(f"s_mul_i32 s{sG}, s{sT0}, 2048\ns_mul_i32 s{sT1}, s{sPar}, 57344\ns_add_u32 s{sG}, s{sG}, s{sT1}\ns_add_u32 s{sG}, s{sG}, {G_OFF}")
    k(f"s_lshr_b32 s{sT0}, s{sT0}, 1")
    k(f"s_mul_i32 s{sVX}, s{sT0}, 32768\ns_mul_i32 s{sVM}, s{sT0}, 16384")
    k(f"s_and_b32 s{sT0}, s{sWAVE}, 1\ns_lshl_b32 s{sT1}, s{sT0}, 11\ns_add_u32 s{sVX}, s{sVX}, s{sT1}\ns_lshl_b32 s{sT1}, s{sT0}, 10\ns_add_u32 s{sVM}, s{sVM}, s{sT1}")
    k(f"s_mul_i32 s{sT1}, s{sPar}, 458752\ns_add_u32 s{sVX}, s{sVX}, s{sT1}\ns_add_u32 s{sVX}, s{sVX}, {VX_OFF}")
    k(f"s_mul_i32 s{sT1}, s{sPar}, 229376\ns_add_u32 s{sVM}, s{sVM}, s{sT1}\ns_add_u32 s{sVM}, s{sVM}, {VM_OFF}")
    k(f"s_mul_i32 s{sPX}, s{sPar}, 49152\ns_mul_i32 s{sT1}, s{sWAVE}, 12288\ns_add_u32 s{sPX}, s{sPX}, s{sT1}\ns_add_u32 s{sPX}, s{sPX}, {PX_OFF}")
    k(f"s_mul_i32 s{sXo}, s{sPar}, 28672\ns_lshl_b32 s{sC}, s{sPar}, 4\ns_mov_b32 s{sSeg}, s{sPar}")
    k("s_waitcnt lgkmcnt(0)")
    VXR, VMR = 0, 64
    loop = k.uid("PV_loop")
    k.label(loop)
    REC = 64
    def waitrec(checks):
        top = k.uid("PV_w"); done = k.uid("PV_wd")
        k(f"s_add_u32 s{sT0}, s{sC}, {CSEG}")
        k.label(top)
        k(f"buffer_load_dwordx4 {V(REC,4)}, v{vZ}, {WSR}, s{sT0} offen sc1\ns_waitcnt vmcnt(0)")
        first = True
        for idx, target in checks:
            k(f"v_cmp_gt_u32 vcc, {target}, v{REC+idx}")
            if first: k(f"s_mov_b64 s[30:31], vcc"); first = False
            else: k(f"s_or_b64 s[30:31], s[30:31], vcc")
        k(f"s_cmp_eq_u64 s[30:31], 0\ns_cbranch_scc1 {done}")
        k(f"s_sleep 2\ns_sub_u32 s{sSPIN}, s{sSPIN}, 1\ns_cbranch_scc0 {top}\ns_branch {abort}")
        k.label(done)
    S0 = cfg.get("s0", 32)
    late = k.uid("PV_late"); go = k.uid("PV_go")
    k(f"s_cmp_ge_u32 s{sSeg}, {S0}\ns_cbranch_scc1 {late}")
    waitrec([(0, 28), (1, 28)])
    k(f"s_branch {go}")
    k.label(late)
    waitrec([(0, 28), (1, 28), (3, 1)])
    k.label(go)
    for w in range(4):
        for ks in range(2):
            k(f"s_add_u32 s{sT0}, s{sVX}, {w*8192+ks*4096}")
            for a in range(2):
                k(f"buffer_load_dwordx4 {A(VXR+((w*2+ks)*2+a)*4,4)}, v{vL16}, {WSR}, s{sT0} offen offset:{a*1024} sc1")
    early1 = k.uid("PV_e1")
    k(f"s_cmp_lt_u32 s{sSeg}, {S0}\ns_cbranch_scc1 {early1}")
    for rho in range(2): k(f"buffer_load_dwordx2 {V(XV+2*rho,2)}, v{vRow+rho}, s[{sX}:{sX+3}], s{sXo} offen")
    for rho in range(2): k(f"buffer_load_dwordx4 {V(GV+4*rho,4)}, v{vL16}, {WSR}, s{sG} offen offset:{rho*1024} sc1")
    k.label(early1)
    for w in range(4):
        k(f"s_add_u32 s{sT0}, s{sVM}, {w*4096}")
        for ks in range(2):
            k(f"buffer_load_dwordx4 {A(VMR+(w*2+ks)*4,4)}, v{vL16}, {WSR}, s{sT0} offen offset:{ks*2048} sc1")
    waitrec([(2, 16)])
    k("s_barrier")
    k(f"s_mul_i32 s{sT1}, s{sWAVE}, 12288")
    for u4 in range(3):
        k(f"s_add_u32 m0, s{sT1}, {u4*4096}\ns_add_u32 s{sT0}, s{sPX}, {u4*4096}")
        for u in range(4): k(f"buffer_load_dwordx4 v{vL16}, {WSR}, s{sT0} offen offset:{u*1024} sc1 lds")
    k("s_waitcnt vmcnt(0)\ns_barrier")
    q = Q(k)
    steps = []
    for h in range(16):
        for rho in range(2): steps.append(("x", h, rho))
    for pr in range(8):
        for rho in range(2): steps.append(("m", pr, rho))
    def rd(i):
        kind, a_, rho = steps[i]
        dst = V(PF + 4 * (i % 8), 4)
        if kind == "x": q.ds(f"ds_read_b128 {dst}, v{vL16} offset:{a_*3072+rho*1024}", f"p{i}")
        else: q.ds(f"ds_read2st64_b64 {dst}, v{vL8} offset0:{(2*a_*3072+2048+rho*512)//512} offset1:{((2*a_+1)*3072+2048+rho*512)//512}", f"p{i}")
    for i in range(6): rd(i)
    first = [True, True]
    for i, (kind, a_, rho) in enumerate(steps):
        if i + 6 < len(steps): rd(i + 6)
        q.wait_lg(f"p{i}")
        Aop = A(VXR + a_ * 4, 4) if kind == "x" else A(VMR + a_ * 4, 4)
        Dr = V(D + 4 * rho, 4)
        k(f"v_mfma_f32_16x16x32_bf16 {Dr}, {Aop}, {V(PF+4*(i%8),4)}, {'0' if first[rho] else Dr}")
        first[rho] = False
    k("s_nop 7")
    fin = k.uid("PV_fin"); nxt = k.uid("PV_nxt")
    k(f"s_cmp_ge_u32 s{sSeg}, {S0}\ns_cbranch_scc1 {fin}")
    for rho in range(2): k(f"buffer_store_dwordx4 {V(D+4*rho,4)}, v{vL16}, {WSR}, s{sG} offen offset:{rho*1024} sc1")
    k("s_waitcnt vmcnt(0)\ns_barrier")
    k(f"s_cmp_lg_u32 s{sWAVE}, 0\ns_cbranch_scc1 {nxt}")
    k(f"s_add_u32 s{sT0}, s{sC}, {C_G}\nv_mov_b32 v{vT}, 1")
    signal(k, sT0, vT, vZ)
    k(f"s_branch {nxt}")
    k.label(fin)
    for rho in range(2):
        T = PF
        k(f"v_lshlrev_b32 v{T}, 16, v{XV+2*rho}\nv_and_b32 v{T+1}, 0xffff0000, v{XV+2*rho}")
        k(f"v_lshlrev_b32 v{T+2}, 16, v{XV+2*rho+1}\nv_and_b32 v{T+3}, 0xffff0000, v{XV+2*rho+1}")
        for r in range(4): k(f"v_fma_f32 v{T+r}, v{D+4*rho+r}, v{GV+4*rho+r}, v{T+r}")
        k(f"v_cvt_pk_bf16_f32 v{T+4+2*rho}, v{T}, v{T+1}\nv_cvt_pk_bf16_f32 v{T+5+2*rho}, v{T+2}, v{T+3}")
        k(f"buffer_store_dwordx2 {V(T+4+2*rho,2)}, v{vRow+rho}, s[{sO}:{sO+3}], s{sXo} offen")
    k.label(nxt)
    k(f"s_add_u32 s{sVX}, s{sVX}, {458752*NPAR}\ns_add_u32 s{sVM}, s{sVM}, {229376*NPAR}\ns_add_u32 s{sPX}, s{sPX}, {49152*NPAR}")
    k(f"s_add_u32 s{sG}, s{sG}, {57344*NPAR}\ns_add_u32 s{sXo}, s{sXo}, {28672*NPAR}\ns_add_u32 s{sC}, s{sC}, {16*NPAR}\ns_add_u32 s{sSeg}, s{sSeg}, {NPAR}")
    k(f"s_cmp_lt_u32 s{sSeg}, 64\ns_cbranch_scc1 {loop}")
    k("s_waitcnt vmcnt(0)")
    k("s_endpgm")

import math
def emit_ffn(k, cfg, abort):
    k("; ================= FFN =================")
    FUSED = cfg.get("fused"); LDF = "sc1" if FUSED else ""
    if FUSED and cfg.get("ln_in_ffn"):
        import prep2
        prep2.emit_ln_segment(k, sRANK)
    sA = 36
    sU, sGu, sTt, sFg, sSrc, sDst, sCnt = 20, 21, 22, 23, 24, 25, 26
    vL16, vZ, vOne, vT, vN, vG, vLd, vR = 1, 2, 3, 4, 5, 6, 7, 8
    k("v_mov_b32 v9, v0")
    k("v_and_b32 v0, 63, v0")
    k(f"v_lshlrev_b32 v{vL16}, 4, v0\nv_mov_b32 v{vZ}, 0\nv_mov_b32 v{vOne}, 1")
    k(f"v_and_b32 v{vN}, 15, v0\nv_lshrrev_b32 v{vG}, 4, v0")
    if cfg.get("relayout", True):
        STG = 16
        OUT = 48
        uloop = k.uid("FF_u"); isd = k.uid("FF_d"); nxt = k.uid("FF_n"); done = k.uid("FF_rd")
        k(f"s_mov_b32 s{sU}, s{sRANK}")
        k.label(uloop)
        k(f"s_cmp_ge_u32 s{sU}, 154\ns_cbranch_scc1 {done}")
        k(f"s_cmp_ge_u32 s{sU}, 98\ns_cbranch_scc1 {isd}")
        LS = 544
        k(f"s_cmp_ge_u32 s{sU}, 49\ns_cselect_b32 s{sGu}, 1, 0\ns_mul_i32 s{sT0}, s{sGu}, 49\ns_sub_u32 s{sT0}, s{sU}, s{sT0}")
        k(f"s_mul_i32 s{sTt}, s{sT0}, 9363\ns_lshr_b32 s{sTt}, s{sTt}, 16\ns_mul_i32 s{sT1}, s{sTt}, 7\ns_sub_u32 s{sFg}, s{sT0}, s{sT1}")
        g_ = k.uid("FF_g"); gu_ = k.uid("FF_gu")
        k(f"s_cmp_eq_u32 s{sGu}, 1\ns_cbranch_scc1 {g_}")
        srd(k, sA, KARG["Wg"], 1605632)
        k(f"s_branch {gu_}")
        k.label(g_)
        srd(k, sA, KARG["Wu"], 1605632)
        k.label(gu_)
        k(f"v_lshrrev_b32 v{vT}, 5, v9\nv_mul_u32_u24 v{vLd}, 3584, v{vT}\nv_mul_u32_u24 v{vR}, {LS}, v{vT}")
        k(f"v_and_b32 v{vT}, 31, v9\nv_lshl_add_u32 v{vLd}, v{vT}, 4, v{vLd}\nv_lshl_add_u32 v{vR}, v{vT}, 4, v{vR}")
        k(f"s_mul_i32 s{sSrc}, s{sTt}, {64*3584}\ns_lshl_b32 s{sT0}, s{sFg}, 9\ns_add_u32 s{sSrc}, s{sSrc}, s{sT0}")
        k("s_waitcnt lgkmcnt(0)")
        for u in range(8):
            k(f"buffer_load_dwordx4 {V(STG+4*u,4)}, v{vLd}, s[{sA}:{sA+3}], s{sSrc} offen")
            if u < 7: k(f"s_add_u32 s{sSrc}, s{sSrc}, {8*3584}")
        k("s_barrier")
        k("s_waitcnt vmcnt(0)")
        for u in range(8): k(f"ds_write_b128 v{vR}, {V(STG+4*u,4)} offset:{u*8*LS}")
        k(f"v_lshrrev_b32 v{vT}, 1, v{vG}\nv_lshlrev_b32 v{vR}, 4, v{vT}")
        k(f"v_and_b32 v{vT}, 1, v{vG}\nv_lshl_add_u32 v{vR}, v{vT}, 2, v{vR}")
        k(f"v_bfe_u32 v{vT}, v0, 2, 1\nv_add_u32 v{vR}, v{vR}, v{vT}")
        k(f"v_bfe_u32 v{vT}, v0, 3, 1\nv_lshl_add_u32 v{vR}, v{vT}, 3, v{vR}")
        k(f"v_mul_u32_u24 v{vR}, {LS}, v{vR}\nv_and_b32 v{vT}, 3, v0\nv_lshl_add_u32 v{vR}, v{vT}, 3, v{vR}")
        k(f"s_lshl_b32 s{sT0}, s{sWAVE}, 7\nv_add_u32 v{vR}, s{sT0}, v{vR}")
        k("s_waitcnt lgkmcnt(0)\ns_barrier")
        for ftl in range(4):
            for a in range(2):
                for u in range(2):
                    k(f"ds_read_b64_tr_b16 {V(OUT+(ftl*2+a)*4+2*u,2)}, v{vR} offset:{(32*a+2*u)*LS+ftl*32}")
        k("s_waitcnt lgkmcnt(0)")
        for ftl in range(4):
            k(f"s_lshl_b32 s{sT0}, s{sFg}, 4\ns_lshl_b32 s{sT1}, s{sWAVE}, 2\ns_add_u32 s{sT0}, s{sT0}, s{sT1}\ns_add_u32 s{sT0}, s{sT0}, {ftl}")
            k(f"s_lshl_b32 s{sT0}, s{sT0}, 1\ns_add_u32 s{sT0}, s{sT0}, s{sGu}\ns_mul_i32 s{sT0}, s{sT0}, 14\ns_lshl_b32 s{sT1}, s{sTt}, 1\ns_add_u32 s{sT0}, s{sT0}, s{sT1}")
            k(f"s_lshl_b32 s{sDst}, s{sT0}, 10\ns_add_u32 s{sDst}, s{sDst}, {WG_OFF}")
            for a in range(2):
                k(f"buffer_store_dwordx4 {V(OUT+(ftl*2+a)*4,4)}, v{vL16}, {WSR}, s{sDst} offen offset:{a*1024} sc1")
        k(f"s_branch {nxt}")
        k.label(isd)
        LS = 928
        srd(k, sA, KARG["Wd"], 1605632)
        k(f"s_sub_u32 s{sFg}, s{sU}, 98")
        k(f"s_mul_i32 s{sSrc}, s{sFg}, 28672")
        k(f"v_lshlrev_b32 v{vLd}, 4, v9")
        k("s_waitcnt lgkmcnt(0)")
        for u in range(7):
            k(f"buffer_load_dwordx4 {V(STG+4*u,4)}, v{vLd}, s[{sA}:{sA+3}], s{sSrc} offen")
            if u < 6: k(f"s_add_u32 s{sSrc}, s{sSrc}, 4096")
        k("s_barrier")
        for u in range(7):
            k(f"v_add_u32 v{vT}, {256*u}, v9\nv_mul_u32_u24 v{vR}, 2341, v{vT}\nv_lshrrev_b32 v{vR}, 17, v{vR}")
            k(f"v_mul_u32_u24 v{vLd}, 56, v{vR}\nv_sub_u32 v{vLd}, v{vT}, v{vLd}\nv_lshlrev_b32 v{vLd}, 4, v{vLd}")
            k(f"v_mul_u32_u24 v{vR}, {LS}, v{vR}\nv_add_u32 v{vLd}, v{vLd}, v{vR}")
            if u == 0: k("s_waitcnt vmcnt(0)")
            k(f"ds_write_b128 v{vLd}, {V(STG+4*u,4)}")
        k(f"v_bfe_u32 v{vT}, v0, 2, 2\nv_lshl_add_u32 v{vT}, v{vG}, 2, v{vT}\nv_mul_u32_u24 v{vR}, {LS}, v{vT}")
        k(f"v_and_b32 v{vT}, 3, v0\nv_lshl_add_u32 v{vR}, v{vT}, 3, v{vR}")
        k(f"s_mul_i32 s{sT0}, s{sWAVE}, 224\nv_add_u32 v{vR}, s{sT0}, v{vR}")
        k("s_waitcnt lgkmcnt(0)\ns_barrier")
        for i in range(7):
            for u in range(2):
                k(f"ds_read_b64_tr_b16 {V(OUT+i*4+2*u,2)}, v{vR} offset:{16*u*LS+i*32}")
        k(f"s_mul_i32 s{sDst}, s{sFg}, 28\ns_mul_i32 s{sT0}, s{sWAVE}, 7\ns_add_u32 s{sDst}, s{sDst}, s{sT0}\ns_lshl_b32 s{sDst}, s{sDst}, 10\ns_add_u32 s{sDst}, s{sDst}, {WD_OFF}")
        k("s_waitcnt lgkmcnt(0)")
        for i in range(7):
            if i == 4: k(f"s_add_u32 s{sDst}, s{sDst}, 4096")
            k(f"buffer_store_dwordx4 {V(OUT+i*4,4)}, v{vL16}, {WSR}, s{sDst} offen offset:{(i*1024)%4096} sc1")
        k.label(nxt)
        k(f"s_add_u32 s{sU}, s{sU}, 64\ns_branch {uloop}")
        k.label(done)
        k("s_waitcnt vmcnt(0)\ns_barrier")
        sk = k.uid("FF_ns")
        k(f"s_mov_b32 s{sCnt}, {C_RL}")
        k(f"s_cmp_lg_u32 s{sWAVE}, 0\ns_cbranch_scc1 {sk}")
        signal(k, sCnt, vOne, vZ)
        k.label(sk)
    XF, GU, HB, RING = 12, 124, 156, 164
    R, DEP = 28, 27
    def slotreg(i):
        j = i % R
        return V(RING + 4 * j, 4) if j < 21 else A(224 + 4 * (j - 21), 4)
    if FUSED:
        k(f"s_mov_b32 s{sCnt}, {C_LN}")
        wait_counter(k, sCnt, 64, vT, vZ, abort, sleep=4)
    k(f"s_mul_i32 s{sSrc}, s{sRANK}, 28672\ns_add_u32 s{sSrc}, s{sSrc}, {XNA_OFF}")
    for f in range(28):
        if f and f % 4 == 0: k(f"s_add_u32 s{sSrc}, s{sSrc}, 4096")
        k(f"buffer_load_dwordx4 {V(XF+4*f,4)}, v{vL16}, {WSR}, s{sSrc} offen offset:{(f*1024)%4096} {LDF}")
    for i in range(224): k(f"v_accvgpr_write_b32 a{i}, 0")
    if cfg.get("relayout", True):
        k(f"s_mov_b32 s{sCnt}, {C_RL}")
        wait_counter(k, sCnt, 64, vT, vZ, abort)
    else:
        k("s_waitcnt vmcnt(0)")
    sGU, sWD, sIt, sGUn, sWDn, sA0 = 27, 28, 29, 30, 31, 32
    k(f"s_mul_i32 s{sGU}, s{sWAVE}, {14*57344}\ns_add_u32 s{sGU}, s{sGU}, {WG_OFF}")
    k(f"s_mul_i32 s{sWD}, s{sWAVE}, {14*28672}\ns_add_u32 s{sWD}, s{sWD}, {WD_OFF}")
    seq = []
    for kk in range(14):
        for gu, ftl in ((0, 0), (0, 1), (1, 0), (1, 1)): seq.append(("gu", gu, ftl, kk))
    for ct in range(28): seq.append(("d", ct))
    NS = len(seq)
    def issue(i, nxt_iter):
        e = seq[i % NS]
        slot = slotreg(i)
        if e[0] == "gu":
            off = e[2] * 28672 + e[1] * 14336 + e[3] * 1024
            base = sGUn if nxt_iter else sGU
        else:
            off = e[1] * 1024
            base = sWDn if nxt_iter else sWD
        hi = off - off % 4096
        if hi: k(f"s_add_u32 s{sA0}, s{base}, {hi}")
        k(f"buffer_load_dwordx4 {slot}, v{vL16}, {WSR}, s{sA0 if hi else base} offen offset:{off%4096} sc1")
    for i in range(DEP): issue(i, False)
    k(f"s_mov_b32 s{sIt}, 0")
    loop = k.uid("FF_loop")
    k.label(loop)
    k(f"s_cmp_lt_u32 s{sIt}, 13\ns_cselect_b32 s{sT0}, 57344, 0\ns_add_u32 s{sGUn}, s{sGU}, s{sT0}\ns_cselect_b32 s{sT0}, 0, 0")
    k(f"s_cmp_lt_u32 s{sIt}, 13\ns_cselect_b32 s{sT0}, 28672, 0\ns_add_u32 s{sWDn}, s{sWD}, s{sT0}")
    for i, e in enumerate(seq):
        k(f"s_waitcnt vmcnt({DEP-1})")
        slot = slotreg(i)
        if e[0] == "gu":
            _, gu, ftl, kk = e
            for rho in range(2):
                D = V(GU + ((gu * 2 + ftl) * 2 + rho) * 4, 4)
                k(f"v_mfma_f32_16x16x32_bf16 {D}, {slot}, {V(XF+(rho*14+kk)*4,4)}, {'0' if kk == 0 else D}")
        else:
            if e[1] == 0:
                k("s_nop 7")
                for ftl in range(2):
                    for rho in range(2):
                        g0 = GU + ((0 * 2 + ftl) * 2 + rho) * 4; u0 = GU + ((1 * 2 + ftl) * 2 + rho) * 4
                        for r in range(4): k(f"v_max_f32 v{g0+r}, 0, v{g0+r}")
                        for r in range(4): k(f"v_mul_f32 v{g0+r}, v{g0+r}, v{u0+r}")
                        k(f"v_cvt_pk_bf16_f32 v{HB+4*rho+2*ftl}, v{g0}, v{g0+1}\nv_cvt_pk_bf16_f32 v{HB+4*rho+2*ftl+1}, v{g0+2}, v{g0+3}")
                k("s_nop 1")
            ct = e[1]
            for rho in range(2):
                D = A((ct * 2 + rho) * 4, 4)
                k(f"v_mfma_f32_16x16x32_bf16 {D}, {slot}, {V(HB+4*rho,4)}, {D}")
        j = i + DEP
        issue(j, j >= NS)
    k(f"s_mov_b32 s{sGU}, s{sGUn}\ns_mov_b32 s{sWD}, s{sWDn}\ns_add_u32 s{sIt}, s{sIt}, 1")
    k(f"s_cmp_lt_u32 s{sIt}, 14\ns_cbranch_scc1 {loop}")
    k("s_waitcnt vmcnt(0)\ns_nop 7")
    S0 = cfg.get("s0", 32)
    vW, vRd, vRow = 7, 8, 11
    k(f"s_mul_i32 s{sT0}, s{sWAVE}, 28672\nv_add_u32 v{vW}, s{sT0}, v{vL16}")
    k(f"s_mul_i32 s{sT0}, s{sWAVE}, 7168\nv_add_u32 v{vRd}, s{sT0}, v{vL16}\nv_add_u32 v10, 57344, v{vRd}")
    k(f"s_mul_i32 s{sDst}, s{sRANK}, 57344\ns_mul_i32 s{sT0}, s{sWAVE}, 7168\ns_add_u32 s{sDst}, s{sDst}, s{sT0}\ns_add_u32 s{sDst}, s{sDst}, {G_OFF}")
    k(f"s_mov_b32 s33, {fbits(-math.log2(math.e)):#x}")
    k(f"s_lshl_b32 s{sCnt}, s{sRANK}, 4\ns_add_u32 s{sCnt}, s{sCnt}, {C_G}")
    k(f"v_bfe_u32 v{vRow}, v{vN}, 3, 1\nv_lshlrev_b32 v{vRow}, 4, v{vRow}")
    k(f"v_bfe_u32 v{vT}, v{vN}, 1, 1\nv_lshl_add_u32 v{vRow}, v{vT}, 3, v{vRow}")
    k(f"v_bfe_u32 v{vT}, v{vN}, 2, 1\nv_lshl_add_u32 v{vRow}, v{vT}, 2, v{vRow}")
    k(f"v_and_b32 v{vT}, 1, v{vN}\nv_add_u32 v{vRow}, v{vRow}, v{vT}")
    k(f"v_mul_u32_u24 v{vRow}, 896, v{vRow}\nv_lshl_add_u32 v{vRow}, v{vG}, 3, v{vRow}")
    sX, sO = 36, 40
    srd(k, sX, KARG["x"], 1835008); srd(k, sO, KARG["out"], 1835008)
    k(f"s_mul_i32 s34, s{sRANK}, 28672")
    k("s_waitcnt lgkmcnt(0)")
    T = 16
    def reduce_tile(i):
        for src in range(4): k(f"ds_read_b128 {V(T+4*src,4)}, v{vRd if src < 2 else 10} offset:{(src&1)*28672+i*1024}")
        k("s_waitcnt lgkmcnt(0)")
        for p in (0, 2):
            k(f"v_pk_add_f32 {V(T+p,2)}, {V(T+p,2)}, {V(T+4+p,2)}\nv_pk_add_f32 {V(T+8+p,2)}, {V(T+8+p,2)}, {V(T+12+p,2)}")
            k(f"v_pk_add_f32 {V(T+p,2)}, {V(T+p,2)}, {V(T+8+p,2)}")
        for r in range(4): k(f"v_mul_f32 v{T+4+r}, s33, v{T+r}")
        for r in range(4): k(f"v_exp_f32 v{T+4+r}, v{T+4+r}")
        k("s_nop 0")
        for r in range(4): k(f"v_add_f32 v{T+4+r}, 1.0, v{T+4+r}")
        for r in range(4): k(f"v_rcp_f32 v{T+4+r}, v{T+4+r}")
        k("s_nop 0")
        for r in range(4): k(f"v_mul_f32 v{T+20+r}, v{T+r}, v{T+4+r}")
    late = k.uid("FF_late"); endl = k.uid("FF_end")
    k(f"s_cmp_ge_u32 s{sRANK}, {S0}\ns_cbranch_scc1 {late}")
    wait_counter(k, sCnt, 7, vT, vZ, abort, sleep=4)
    OV, XV = 48, 80
    for rnd in range(2):
        k("s_barrier")
        for u in range(28): k(f"ds_write_b128 v{vW}, {A((rnd*28+u)*4,4)} offset:{u*1024}")
        for i in range(7):
            off = rnd * 28672 + i * 1024
            k(f"s_add_u32 s{sT0}, s{sDst}, {off - off%4096}")
            k(f"buffer_load_dwordx4 {V(OV+4*i,4)}, v{vL16}, {WSR}, s{sT0} offen offset:{off%4096} sc1")
            k(f"s_mul_i32 s{sT0}, s{sWAVE}, 7\ns_add_u32 s{sT0}, s{sT0}, {rnd*28+i}\ns_and_b32 s{sT1}, s{sT0}, 1\ns_mul_i32 s{sT1}, s{sT1}, 1792")
            k(f"s_lshr_b32 s{sT0}, s{sT0}, 1\ns_lshl_b32 s{sT0}, s{sT0}, 5\ns_add_u32 s{sT0}, s{sT0}, s{sT1}\ns_add_u32 s{60+i}, s{sT0}, s34")
            k(f"buffer_load_dwordx2 {V(XV+2*i,2)}, v{vRow}, s[{sX}:{sX+3}], s{60+i} offen")
        k("s_waitcnt lgkmcnt(0)\ns_barrier\ns_waitcnt vmcnt(0)")
        for i in range(7):
            reduce_tile(i)
            k(f"v_lshlrev_b32 v{T}, 16, v{XV+2*i}\nv_and_b32 v{T+1}, 0xffff0000, v{XV+2*i}")
            k(f"v_lshlrev_b32 v{T+2}, 16, v{XV+2*i+1}\nv_and_b32 v{T+3}, 0xffff0000, v{XV+2*i+1}")
            for r in range(4): k(f"v_fma_f32 v{T+r}, v{OV+4*i+r}, v{T+20+r}, v{T+r}")
            k(f"v_cvt_pk_bf16_f32 v{T+24}, v{T}, v{T+1}\nv_cvt_pk_bf16_f32 v{T+25}, v{T+2}, v{T+3}")
            k(f"buffer_store_dwordx2 {V(T+24,2)}, v{vRow}, s[{sO}:{sO+3}], s{60+i} offen")
    k(f"s_branch {endl}")
    k.label(late)
    for rnd in range(2):
        k("s_barrier")
        for u in range(28): k(f"ds_write_b128 v{vW}, {A((rnd*28+u)*4,4)} offset:{u*1024}")
        k("s_waitcnt lgkmcnt(0)\ns_barrier")
        for i in range(7):
            reduce_tile(i)
            off = rnd * 28672 + i * 1024
            k(f"s_add_u32 s{sT0}, s{sDst}, {off - off%4096}")
            k(f"buffer_store_dwordx4 {V(T+20,4)}, v{vL16}, {WSR}, s{sT0} offen offset:{off%4096} sc1")
            k("s_nop 1")
    k("s_waitcnt vmcnt(0)\ns_barrier")
    sk = k.uid("FF_gs")
    k(f"s_cmp_lg_u32 s{sWAVE}, 0\ns_cbranch_scc1 {sk}")
    signal(k, sCnt, vOne, vZ)
    k.label(sk)
    k.label(endl)
    k("s_waitcnt vmcnt(0)")
    k("s_endpgm")
```

```python
import sys
from kfw import *
from layout import *
import chain, workers, prepk, prep2
from chain import sWS, sRANK, sWAVE, sT0, sT1, sSPIN, SPIN, sMODE
from prepk import srd, KARG, kd

NAME = "recurrent_scan__memory_aug_recurrent_mem_tr__glu_gated_reglu__prompt"
HEADER = open("cdna_kernels/" + NAME + ".s.ref").read().split("; Override launch geometry")[0]

def emit_main(k, cfg, name):
    VXP, XAP, PVP = cfg.get("vx_par", 2), cfg.get("xa_par", 3), cfg.get("pv_par", 4)
    VMP = cfg.get("vm_par", 1)
    nVX, nXA, nPV, nFF, nVM = 28 * VXP, 16 * XAP, 7 * PVP, 64, 28 * VMP
    t1, t2, t3, t4 = nVX, nVX + nXA, nVX + nXA + nPV, nVX + nXA + nPV + nFF
    t5 = t4 + nVM
    assert t5 <= 224
    k(f".globl {name}\n.p2align 8\n.type {name},@function\n{name}:")
    k("s_cmp_ge_u32 s2, 256\ns_cbranch_scc1 M_exit")
    diag = cfg.get("diag")
    prep2.DIAG = bool(diag)
    if diag:
        for i in range(12): k(f"s_mov_b32 s{60+2*i}, 0")
    if diag: k("s_memrealtime s[96:97]\ns_mov_b32 s98, 0\ns_mov_b32 s44, 0")
    srd(k, sWS, KARG["ws"], WS_BYTES)
    k(f"s_load_dwordx2 s[4:5], s[0:1], {KARG['dbg']}")
    k("s_getreg_b32 s3, hwreg(HW_REG_XCC_ID)\ns_and_b32 s3, s3, 15")
    k(f"s_mov_b32 s{sSPIN}, {SPIN}")
    k(f"v_lshrrev_b32 v3, 6, v0\ns_nop 0\nv_readfirstlane_b32 s{sWAVE}, v3")
    k("s_waitcnt lgkmcnt(0)")
    k("s_and_b32 s3, s3, 7")
    FUSED = True
    k(f"s_lshl_b32 s{sT0}, s3, 5")
    k(f"v_mov_b32 v254, 1\nv_mov_b32 v253, s{sT0}")
    k(f"v_cmp_eq_u32 vcc, {cfg.get('reg_tid', 192) - 192} + 192 if False else 0, v0" if False else f"v_mov_b32 v252, {cfg.get('reg_tid', 192)}\nv_cmp_eq_u32 vcc, v252, v0\ns_and_saveexec_b64 s[20:21], vcc\ns_cbranch_execz M_reg_issued")
    k("global_atomic_add v254, v253, v254, s[4:5] sc0 sc1")
    k.label("M_reg_issued")
    k("s_mov_b64 exec, s[20:21]")
    k("s_cmp_ge_u32 s2, 224\ns_cbranch_scc1 M_lninit")
    k("s_and_b32 s20, s2, 7\ns_lshr_b32 s21, s2, 3\ns_mul_i32 s22, s21, 9363\ns_lshr_b32 s22, s22, 16")
    k("s_lshl_b32 s20, s20, 2\ns_add_u32 s20, s20, s22\ns_mul_i32 s20, s20, 7")
    k("s_mul_i32 s22, s22, 7\ns_sub_u32 s21, s21, s22\ns_add_u32 s55, s20, s21")
    prep2.emit_gemm_task(k, 55, "M_phase0_done", "M_abort")
    k.label("M_lninit")
    k("s_sub_u32 s55, s2, 224")
    k("s_lshl_b32 s56, s55, 1")
    prep2.stamp(k, 0)
    prep2.emit_ln_segment(k, 56, pre="load")
    prep2.emit_init(k, 55)
    prep2.stamp(k, 1)
    prep2.emit_ln_segment(k, 56, pre="have", X0=112, last=False)
    prep2.stamp(k, 2)
    k("s_add_u32 s56, s56, 1")
    prep2.emit_ln_segment(k, 56, pre="have", X0=144, need_init="M_abort", nsig=2)
    prep2.stamp(k, 3)
    k.label("M_phase0_done")
    prep2.dump_stamps(k)
    if diag: k("s_memrealtime s[86:87]")
    k("s_waitcnt vmcnt(0)\nv_mov_b32 v1, 0")
    k("v_cmp_eq_u32 vcc, v252, v0\ns_and_saveexec_b64 s[20:21], vcc\ns_cbranch_execz M_reg_done")
    k("ds_write_b32 v1, v254\ns_waitcnt lgkmcnt(0)")
    k.label("M_reg_done")
    k("s_mov_b64 exec, s[20:21]\ns_barrier\nds_read_b32 v3, v1\ns_waitcnt lgkmcnt(0)\ns_nop 0")
    k(f"v_readfirstlane_b32 s{sRANK}, v3")
    k("s_barrier")
    prep2.wait_init_wg(k, 16, "M_abort")
    if diag: k("s_memrealtime s[84:85]")
    def load_counts(k, vt):
        k(f"v_mbcnt_lo_u32_b32 v{vt}, -1, 0\nv_mbcnt_hi_u32_b32 v{vt}, -1, v{vt}\nv_and_b32 v{vt}, 7, v{vt}\nv_lshlrev_b32 v{vt}, 5, v{vt}")
        k(f"global_load_dword v{vt+1}, v{vt}, s[4:5] sc1\ns_waitcnt vmcnt(0)")
        k(f"v_readlane_b32 s{sT1}, v{vt+1}, 0")
        for x in range(1, 8):
            k(f"v_readlane_b32 s{sT0}, v{vt+1}, {x}\ns_add_u32 s{sT1}, s{sT1}, s{sT0}")
    def wait_all(k, vt):
        top = k.uid("M_wa"); done = k.uid("M_wad")
        k.label(top)
        load_counts(k, vt)
        k(f"s_cmp_ge_u32 s{sT1}, 256\ns_cbranch_scc1 {done}")
        k(f"s_sleep 4\ns_sub_u32 s{sSPIN}, s{sSPIN}, 1\ns_cbranch_scc0 {top}\ns_branch M_abort")
        k.label(done)
    def delay(k, seg):
        if seg is None: return
        k(f"s_mov_b32 s{sT0}, {C_VX + 16*seg}\nv_mov_b32 v8, 0")
        workers.wait_counter(k, sT0, 28, 9, 8, "M_abort", sleep=8)
    def mode_hook(k, vt):
        top = k.uid("M_md"); done = k.uid("M_mdd")
        k.label(top)
        load_counts(k, vt)
        k(f"v_readlane_b32 s{sT0}, v{vt+1}, 0\ns_mov_b32 s{sMODE}, 0\ns_cmp_ge_u32 s{sT0}, {31 if cfg.get('force_slow') is None else 999}\ns_cbranch_scc1 {done}")
        k(f"s_mov_b32 s{sMODE}, 1\ns_cmp_ge_u32 s{sT1}, 256\ns_cbranch_scc1 {done}")
        k(f"s_sleep 4\ns_sub_u32 s{sSPIN}, s{sSPIN}, 1\ns_cbranch_scc0 {top}\ns_branch M_abort")
        k.label(done)
    k(f"s_cmp_lt_u32 s{sRANK}, 32\ns_cbranch_scc0 M_overflow")
    k(f"s_lshl_b32 s{sT0}, s3, 5\ns_add_u32 s{sRANK}, s{sRANK}, s{sT0}")
    k.label("M_dispatch")
    k(f"s_cmp_lt_u32 s{sRANK}, 30\ns_cbranch_scc1 M_chain")
    k(f"s_cmp_eq_u32 s{sRANK}, 30\ns_cbranch_scc1 M_helper")
    k(f"s_cmp_lt_u32 s{sRANK}, 32\ns_cbranch_scc1 M_exit")
    k(f"s_sub_u32 s{sRANK}, s{sRANK}, 32")
    k(f"s_cmp_lt_u32 s{sRANK}, {t1}\ns_cbranch_scc1 M_vx")
    k(f"s_cmp_lt_u32 s{sRANK}, {t2}\ns_cbranch_scc1 M_xa")
    k(f"s_cmp_lt_u32 s{sRANK}, {t3}\ns_cbranch_scc1 M_pv")
    k(f"s_cmp_lt_u32 s{sRANK}, {t4}\ns_cbranch_scc1 M_ff")
    k(f"s_cmp_lt_u32 s{sRANK}, {t5}\ns_cbranch_scc1 M_vm")
    k("s_branch M_exit")
    k.label("M_overflow")
    wait_all(k, 8)
    k(f"s_sub_u32 s20, s{sRANK}, 32")
    for x in range(7):
        k(f"v_readlane_b32 s{sT0}, v9, {x}\ns_max_u32 s{sT0}, s{sT0}, 32\ns_sub_u32 s{sT0}, s{sT0}, 32")
        k(f"s_cmp_gt_u32 s3, {x}\ns_cselect_b32 s{sT0}, s{sT0}, 0\ns_add_u32 s20, s20, s{sT0}")
    for x in range(8):
        nx = k.uid("M_es")
        k(f"v_readlane_b32 s{sT0}, v9, {x}\ns_min_u32 s{sT0}, s{sT0}, 32\ns_sub_u32 s21, 32, s{sT0}")
        k(f"s_cmp_lt_u32 s20, s21\ns_cbranch_scc0 {nx}")
        k(f"s_add_u32 s{sRANK}, s20, s{sT0}\ns_add_u32 s{sRANK}, s{sRANK}, {32*x}\ns_branch M_dispatch")
        k.label(nx)
        k("s_sub_u32 s20, s20, s21")
    k("s_branch M_exit")
    k.label("M_chain")
    ccfg = dict(nsteps=63, modes=["", "sc1"], mode_hook=mode_hook, vxwait=True, pflag_pos=2, mflag_pos=1, fused=True, stagger=False, pace=3, pace2=10)
    if diag: ccfg.update(dict(tot=True, trace=True))
    ccfg.update(cfg.get("chain", {}))
    k(f"s_cmp_ge_u32 s{sRANK}, 16\ns_cbranch_scc1 M_chainB")
    chain.emit_chain_A(k, ccfg, "M_abort")
    k.label("M_chainB")
    if diag: k("s_mov_b32 s98, 1")
    chain.emit_chain_B(k, ccfg, "M_abort")
    wcfg = dict(vx_par=VXP, xa_par=XAP, pv_par=PVP, vm_par=VMP, s0=cfg.get('s0', 32), fused=True, ln_in_ffn=False)
    k.label("M_helper")
    if diag: k("s_mov_b32 s98, 6")
    chain.emit_helper(k, ccfg, "M_abort")
    k.label("M_vx")
    if diag: k("s_mov_b32 s98, 2")
    workers.emit_vxgen(k, wcfg, "M_abort")
    k.label("M_vm")
    if diag: k("s_mov_b32 s98, 7")
    k(f"s_sub_u32 s{sRANK}, s{sRANK}, {t4}")
    delay(k, cfg.get("vm_delay", None))
    workers.emit_vxgen(k, wcfg, "M_abort", "vm")
    k.label("M_xa")
    if diag: k("s_mov_b32 s98, 3")
    k(f"s_sub_u32 s{sRANK}, s{sRANK}, {t1}")
    delay(k, cfg.get("xa_delay", None))
    workers.emit_xattn(k, wcfg, "M_abort")
    k.label("M_pv")
    if diag: k("s_mov_b32 s98, 4")
    k(f"s_sub_u32 s{sRANK}, s{sRANK}, {t2}")
    workers.emit_pvout(k, wcfg, "M_abort")
    k.label("M_ff")
    if diag: k("s_mov_b32 s98, 5")
    k(f"s_sub_u32 s{sRANK}, s{sRANK}, {t3}")
    delay(k, cfg.get("ff_delay", None))
    workers.emit_ffn(k, wcfg, "M_abort")
    for t in ccfg.get("outofline", []) + wcfg.get("outofline", []): k(t)
    if diag:
        txt = "\n".join(k.lines)
        head, body = txt.split("M_chain:", 1)
        body = body.replace("s_endpgm", "s_branch M_diag")
        k.lines = (head + "M_chain:" + body).split("\n")
        k.label("M_diag")
        k(f"s_cmp_lg_u32 s{sWAVE}, 0\ns_cbranch_scc1 M_exit")
        k("s_memrealtime s[94:95]\ns_waitcnt lgkmcnt(0)")
        k(f"s_lshl_b32 s{sT0}, s2, 5\ns_add_u32 s{sT0}, s{sT0}, {PROF+16384}")
        k("v_mov_b32 v1, 0")
        for i, r in enumerate(("s86", f"s{sRANK}", "s96", "s94", "s44", "s88", "s98", "s84")):
            k(f"v_mov_b32 v2, {r}\nbuffer_store_dword v2, v1, s[{sWS}:{sWS+3}], s{sT0} offen offset:{4*i}")
        k("s_waitcnt vmcnt(0)\ns_endpgm")
    k.label("M_abort")
    k("v_mov_b32 v1, 0\nv_mov_b32 v2, 1\nglobal_atomic_add v1, v2, s[4:5] offset:20 sc1\ns_waitcnt vmcnt(0)")
    k.label("M_exit")
    k("s_endpgm")

def build(cfg):
    k = K()
    k(HEADER.rstrip())
    k("; @launch grid=(256,1,1) block=(256,1,1) lds=151552")
    k('.amdgcn_target "amdgcn-amd-amdhsa--gfx950"\n.text')
    emit_main(k, cfg, NAME + "_kernel")
    k('.section .rodata,"a"')
    k(kd(NAME + "_kernel", 512, 256, 102))
    return k.text()

if __name__ == "__main__":
    import kfw
    cfg = {}
    if "diag" in sys.argv: cfg["diag"] = True; sys.argv.remove("diag")
    for a in list(sys.argv[1:]):
        if "=" in a:
            kk_, vv = a.split("="); cfg[kk_] = eval(vv); sys.argv.remove(a)
    t = build(cfg)
    out = sys.argv[1] if len(sys.argv) > 1 else "cdna_kernels/" + NAME + ".s"
    open(out, "w").write(t)
    print("bytes", len(t), "lines", t.count("\n"), "hazards", len(kfw.check(t)))
```

```python
from kfw import *
from layout import *

class Q:
    def __init__(self, k):
        self.k = k; self.lg = []; self.vm = []
    def ds(self, txt, tag=None):
        self.k(txt); self.lg.append(tag)
    def vmem(self, txt, tag=None):
        self.k(txt); self.vm.append(tag)
    def _n(self, lst, tag):
        idx = max(i for i, t in enumerate(lst) if t == tag)
        return len(lst) - 1 - idx
    def wait_lg(self, tag):
        n = min(self._n(self.lg, tag), 15)
        self.k(f"s_waitcnt lgkmcnt({n})")
    def wait_vm(self, tag):
        n = min(self._n(self.vm, tag), 63)
        self.k(f"s_waitcnt vmcnt({n})")
    def lg0(self):
        self.k("s_waitcnt lgkmcnt(0)"); self.lg = []
    def reset(self):
        self.lg = []; self.vm = []

sWS   = 8
sRANK = 12
sWAVE = 13
sSTEP = 14
sMS   = 15
sPS   = 16
sT0   = 17
sT1   = 18
sSPIN = 19
sMaskA = 20
sMaskB = 22
sXK   = 24
sMS1  = 25
sRST  = 26
sOUT  = 27
sFLG  = 50
sMODE = 51
sVXC  = 92
sTA   = 28
sTB   = 30
sPROF = 32
SPIN  = 200000

class Prof:
    def __init__(self, k, on, rawon=False): self.k, self.on, self.n, self.rawon = k, on, 0, rawon
    def start(self):
        if not self.on: return
        k = self.k
        for i in range(12): k(f"s_mov_b32 s{sPROF+i}, 0")
        k(f"s_memtime s[{sTA}:{sTA+1}]\ns_waitcnt lgkmcnt(0)")
    def stamp(self, i):
        if not self.on: return
        k = self.k
        k(f"s_memtime s[{sTB}:{sTB+1}]\ns_waitcnt lgkmcnt(0)")
        k(f"s_sub_u32 s{sT0}, s{sTB}, s{sTA}\ns_add_u32 s{sPROF+i}, s{sPROF+i}, s{sT0}\ns_mov_b32 s{sTA}, s{sTB}")
    def raw(self, i):
        if self.rawon: self.k(f"{'s_memrealtime' if self.rawon == 'rt' else 's_memtime'} s[{52+2*i}:{53+2*i}]")
    def raw_dump(self, tmpv, offv):
        if not self.rawon: return
        k = self.k
        k("s_waitcnt lgkmcnt(0)")
        k(f"s_lshl_b32 s{sT0}, s{sRANK}, 2\ns_add_u32 s{sT0}, s{sT0}, s{sWAVE}\ns_lshl_b32 s{sT0}, s{sT0}, 6\ns_add_u32 s{sT0}, s{sT0}, {PROF}")
        k(f"v_mov_b32 v{offv}, 0")
        for i in range(16):
            k(f"v_mov_b32 v{tmpv}, s{52+2*i}")
            k(f"buffer_store_dword v{tmpv}, v{offv}, s[{sWS}:{sWS+3}], s{sT0} offen offset:{4*i}")
        k("s_waitcnt vmcnt(0)")
    def tot_start(self, on):
        if on: self.k(f"s_mov_b32 s{sPROF+11}, 0\ns_memtime s[{sTA}:{sTA+1}]\ns_memrealtime s[44:45]\ns_waitcnt lgkmcnt(0)")
    def tot_dump(self, on, tmpv, offv):
        if not on: return
        k = self.k
        k(f"s_memtime s[{sTB}:{sTB+1}]\ns_memrealtime s[46:47]\ns_waitcnt lgkmcnt(0)")
        k(f"s_sub_u32 s{sPROF}, s{sTB}, s{sTA}\ns_sub_u32 s{sPROF+1}, s46, s44\ns_sub_u32 s{sPROF+2}, s44, s96")
        k(f"s_lshl_b32 s{sT0}, s{sRANK}, 2\ns_add_u32 s{sT0}, s{sT0}, s{sWAVE}\ns_lshl_b32 s{sT0}, s{sT0}, 6\ns_add_u32 s{sT0}, s{sT0}, {PROF}")
        k(f"v_mov_b32 v{offv}, 0")
        k(f"s_mov_b32 s{sPROF+3}, s{sPROF+11}")
        for i in range(4):
            k(f"v_mov_b32 v{tmpv}, s{sPROF+i}")
            k(f"buffer_store_dword v{tmpv}, v{offv}, s[{sWS}:{sWS+3}], s{sT0} offen offset:{4*i}")
        k("s_waitcnt vmcnt(0)")
    def dump(self, tmpv, offv):
        if not self.on: return
        k = self.k
        k(f"s_lshl_b32 s{sT0}, s{sRANK}, 2\ns_add_u32 s{sT0}, s{sT0}, s{sWAVE}\ns_lshl_b32 s{sT0}, s{sT0}, 6\ns_add_u32 s{sT0}, s{sT0}, {PROF}")
        k(f"v_mov_b32 v{offv}, 0")
        for i in range(12):
            k(f"v_mov_b32 v{tmpv}, s{sPROF+i}")
            k(f"buffer_store_dword v{tmpv}, v{offv}, s[{sWS}:{sWS+3}], s{sT0} offen offset:{4*i}")
        k("s_waitcnt vmcnt(0)")


SP_L = 0
SP_STRIDE = 3200
TR_L = 12800
MKP_L = 27136
SH_L = 39424
MEM_L = 0
OP_L = 7168
WL = 12288

def retry_block(cfg, label, body, abort, target):
    cfg.setdefault("outofline", []).append(
        f"{label}:\ns_sub_u32 s{sSPIN}, s{sSPIN}, 1\ns_cbranch_scc1 {abort}\n{body}s_branch {target}")

def emit_flag_poll(k, cfg, vAddr, vD0, sExp, off, abort):
    WSR = f"s[{sWS}:{sWS+3}]"
    top = k.uid("FP"); done = k.uid("FPD")
    k(f"s_mov_b32 s{sT0}, {off}" if isinstance(off, int) else f"s_mov_b32 s{sT0}, {off}")
    k(f"buffer_load_dword v{vD0}, v{vAddr}, {WSR}, s{sT0} offen sc1")
    k.label(top)
    k(f"buffer_load_dword v{vD0+1}, v{vAddr}, {WSR}, s{sT0} offen sc1")
    k("s_waitcnt vmcnt(1)")
    k(f"v_cmp_gt_u32 vcc, s{sExp}, v{vD0}")
    k(f"s_cbranch_vccz {done}")
    k(f"buffer_load_dword v{vD0}, v{vAddr}, {WSR}, s{sT0} offen sc1")
    k("s_waitcnt vmcnt(1)")
    k(f"v_cmp_gt_u32 vcc, s{sExp}, v{vD0+1}")
    k(f"s_cbranch_vccz {done}")
    k(f"s_sub_u32 s{sSPIN}, s{sSPIN}, 1\ns_cbranch_scc0 {top}\ns_branch {abort}")
    k.label(done)

def blockregA(b):
    return Reg("a", 8 * b) if b < 28 else Reg("v", 88 + 8 * (b - 28))

def emit_ring_advance(k):
    k(f"s_add_u32 s{sSTEP}, s{sSTEP}, 1")
    k(f"s_and_b32 s{sT0}, s{sSTEP}, 3")
    k(f"s_mul_i32 s{sMS}, s{sT0}, 7168\ns_add_u32 s{sMS}, s{sMS}, {MEMRING}")
    k(f"s_mul_i32 s{sPS}, s{sT0}, 10240\ns_add_u32 s{sPS}, s{sPS}, {PRING}")

def emit_chain_A(k, cfg, abort):
    prof = Prof(k, cfg.get("prof"), cfg.get("raw"))
    q = Q(k)
    WSR = f"s[{sWS}:{sWS+3}]"
    modes = cfg.get("modes", [cfg.get("st", "")])
    ST = modes[0]
    vL16, vL8, vTRw, vTRr, vMKg, vSR, vTRw2, vPst, vIdx, vX, vT, vDet, vSWx, vSWm, vTRr2 = range(1, 16)
    vLane = 0
    TMP, ACC, TR, MEM = 16, 20, 48, 60
    SACC = ACC
    XK = 224
    def TRr(tile): return (A(252, 2) if tile == 6 else V(TR + 2 * tile, 2))
    if cfg.get("tot"): k("s_memrealtime s[86:87]")
    k("v_and_b32 v0, 63, v0")
    k(f"v_lshlrev_b32 v{vL16}, 4, v{vLane}")
    k(f"v_lshlrev_b32 v{vL8}, 3, v{vLane}")
    k(f"v_and_b32 v{vX}, 15, v{vLane}")
    k(f"v_lshrrev_b32 v{vT}, 4, v{vLane}")
    k(f"v_min_u32 v{vDet}, 13, v{vX}\nv_lshlrev_b32 v{vDet}, 2, v{vDet}")
    k(f"s_mul_i32 s{sT1}, s{sWAVE}, 3584\ns_add_u32 s{sT1}, s{sT1}, {TR_L}\ns_add_u32 s{sT0}, s{sT1}, {3072 if cfg.get('pairs', False) else 0}")
    k(f"v_lshrrev_b32 v{vTRw2}, 3, v{vX}\nv_lshlrev_b32 v{vTRw2}, 9, v{vTRw2}\nv_lshl_add_u32 v{vTRw2}, v{vT}, 7, v{vTRw2}")
    k(f"v_and_b32 v{TMP}, 7, v{vX}\nv_lshl_add_u32 v{vTRw2}, v{TMP}, 4, v{vTRw2}\nv_add_u32 v{vTRw2}, s{sT1}, v{vTRw2}")
    k(f"v_lshrrev_b32 v{vTRr2}, 1, v{vT}\nv_lshlrev_b32 v{vTRr2}, 9, v{vTRr2}")
    k(f"v_and_b32 v{TMP}, 3, v{vLane}\nv_lshl_add_u32 v{vTRr2}, v{TMP}, 7, v{vTRr2}")
    k(f"v_and_b32 v{TMP}, 1, v{vT}\nv_lshl_add_u32 v{vTRr2}, v{TMP}, 6, v{vTRr2}")
    k(f"v_bfe_u32 v{TMP}, v{vLane}, 2, 2\nv_lshl_add_u32 v{vTRr2}, v{TMP}, 4, v{vTRr2}\nv_add_u32 v{vTRr2}, s{sT1}, v{vTRr2}")
    k(f"v_lshrrev_b32 v{vTRw}, 3, v{vX}\nv_lshlrev_b32 v{vTRw}, 8, v{vTRw}")
    k(f"v_lshl_add_u32 v{vTRw}, v{vT}, 6, v{vTRw}")
    k(f"v_and_b32 v{TMP}, 7, v{vX}\nv_lshl_add_u32 v{vTRw}, v{TMP}, 3, v{vTRw}")
    k(f"v_add_u32 v{vTRw}, s{sT0}, v{vTRw}")
    k(f"v_lshrrev_b32 v{vTRr}, 1, v{vT}\nv_lshlrev_b32 v{vTRr}, 8, v{vTRr}")
    k(f"v_and_b32 v{TMP}, 3, v{vLane}\nv_lshl_add_u32 v{vTRr}, v{TMP}, 6, v{vTRr}")
    k(f"v_and_b32 v{TMP}, 1, v{vT}\nv_lshl_add_u32 v{vTRr}, v{TMP}, 5, v{vTRr}")
    k(f"v_bfe_u32 v{TMP}, v{vLane}, 2, 2\nv_lshl_add_u32 v{vTRr}, v{TMP}, 3, v{vTRr}")
    k(f"v_add_u32 v{vTRr}, s{sT0}, v{vTRr}")
    k(f"v_lshrrev_b32 v{vMKg}, 1, v{vT}\nv_lshlrev_b32 v{vMKg}, 7, v{vMKg}")
    k(f"v_and_b32 v{TMP}, 7, v{vLane}\nv_lshl_add_u32 v{vMKg}, v{TMP}, 4, v{vMKg}")
    k(f"v_and_b32 v{TMP+1}, 1, v{vT}\nv_lshl_add_u32 v{vMKg}, v{TMP+1}, 3, v{vMKg}")
    k(f"s_mul_i32 s{sT1}, s{sWAVE}, {SP_STRIDE}\ns_add_u32 s{sT1}, s{sT1}, {SP_L}")
    k(f"v_add_u32 v{TMP}, v{vX}, v{vT}\nv_and_b32 v{TMP+1}, 15, v{TMP}\nv_lshlrev_b32 v{vSWx}, 4, v{TMP+1}")
    k(f"v_lshl_add_u32 v{vSWx}, v{vT}, 8, v{vSWx}\nv_add_u32 v{vSWx}, s{sT1}, v{vSWx}")
    k(f"v_add_u32 v{TMP}, 4, v{TMP}\nv_and_b32 v{TMP+1}, 15, v{TMP}\nv_lshlrev_b32 v{vSWm}, 4, v{TMP+1}")
    k(f"v_lshl_add_u32 v{vSWm}, v{vT}, 8, v{vSWm}\nv_add_u32 v{vSWm}, s{sT1}, v{vSWm}\nv_add_u32 v{vSWm}, 1024, v{vSWm}")
    k(f"s_lshl_b32 s{sT1}, s{sWAVE}, 2")
    k(f"v_add_u32 v{TMP}, s{sT1}, v{vT}")
    k(f"v_add_u32 v{TMP+1}, 2, v{vX}\nv_and_b32 v{TMP+1}, 3, v{TMP+1}")
    k(f"v_cmp_gt_u32 vcc, 2, v{vX}\ns_nop 1\nv_cndmask_b32 v{TMP+1}, v{TMP+1}, v{vX}, vcc")
    k(f"v_add_u32 v{TMP+2}, v{TMP}, v{TMP+1}")
    k(f"v_add_u32 v{TMP+3}, 4, v{TMP+2}\nv_cndmask_b32 v{TMP+2}, v{TMP+2}, v{TMP+3}, vcc")
    k(f"v_lshlrev_b32 v{vSR}, 8, v{TMP+1}\nv_add_u32 v{TMP+3}, 1024, v{vSR}\nv_cndmask_b32 v{vSR}, v{vSR}, v{TMP+3}, vcc")
    k(f"v_cmp_le_u32 vcc, 6, v{vX}\nv_add_u32 v{TMP+3}, 8, v{TMP+2}\ns_nop 0\nv_cndmask_b32 v{TMP+2}, v{TMP+2}, v{TMP+3}, vcc")
    k(f"v_and_b32 v{TMP+2}, 15, v{TMP+2}\nv_lshl_add_u32 v{vSR}, v{TMP+2}, 4, v{vSR}\nv_add_u32 v{vSR}, {SP_L}, v{vSR}")
    k(f"v_cmp_gt_u32 vcc, 10, v{vX}\nv_mov_b32 v{TMP+3}, {SP_L+3072}\ns_nop 0\nv_cndmask_b32 v{vSR}, v{TMP+3}, v{vSR}, vcc")
    k(f"v_cmp_gt_u32 s[{sMaskA}:{sMaskA+1}], 10, v{vX}")
    k(f"v_cmp_gt_u32 s[{sMaskB}:{sMaskB+1}], 40, v{vLane}")
    k(f"v_mov_b32 v{vIdx}, 0x44444444\nv_mov_b32 v{TMP+2}, 0xeeeeeeee")
    k(f"v_and_b32 v{TMP+1}, 8, v{vLane}\nv_cmp_ne_u32 vcc, 0, v{TMP+1}\ns_nop 1\nv_cndmask_b32 v{vIdx}, v{vIdx}, v{TMP+2}, vcc")
    k(f"s_lshr_b32 s{sT0}, s{sRANK}, 2\ns_mul_i32 s{sT0}, s{sT0}, 2560")
    k(f"s_bfe_u32 s{sT1}, s{sRANK}, 0x10001\ns_lshl_b32 s{sMS}, s{sT1}, 10\ns_lshl_b32 s{sPS}, s{sT1}, 8")
    k(f"s_and_b32 s{sT1}, s{sRANK}, 1\ns_lshl_b32 s{sMS1}, s{sT1}, 9\ns_add_u32 s{sMS}, s{sMS}, s{sMS1}")
    k(f"s_lshl_b32 s{sMS1}, s{sT1}, 7\ns_add_u32 s{sPS}, s{sPS}, s{sMS1}\ns_add_u32 s{sPS}, s{sPS}, 2048")
    k(f"s_add_u32 s{sMS}, s{sMS}, s{sT0}\ns_add_u32 s{sPS}, s{sPS}, s{sT0}")
    k(f"v_subrev_u32 v{TMP+1}, 2, v{vX}\nv_lshrrev_b32 v{TMP+1}, 1, v{TMP+1}")
    k(f"v_lshrrev_b32 v{TMP+2}, 1, v{TMP+1}\nv_lshlrev_b32 v{TMP+2}, 8, v{TMP+2}")
    k(f"v_and_b32 v{TMP+1}, 1, v{TMP+1}\nv_lshl_add_u32 v{TMP+2}, v{TMP+1}, 7, v{TMP+2}\nv_add_u32 v{TMP+2}, s{sMS}, v{TMP+2}")
    k(f"v_mov_b32 v{TMP+1}, s{sPS}\nv_cmp_gt_u32 vcc, 2, v{vX}\ns_nop 1\nv_cndmask_b32 v{TMP+2}, v{TMP+2}, v{TMP+1}, vcc")
    k(f"v_lshl_add_u32 v{vPst}, v{TMP}, 4, v{TMP+2}")
    k(f"v_and_b32 v{TMP+1}, 1, v{vX}\nv_lshl_add_u32 v{vPst}, v{TMP+1}, 3, v{vPst}")
    k(f"v_add_u32 v{TMP+1}, s{sMS}, v{vL16}\nv_add_u32 v{TMP+2}, s{sPS}, v{vL16}\nv_subrev_u32 v{TMP+2}, 512, v{TMP+2}")
    k(f"v_cmp_gt_u32 vcc, 32, v{vLane}\ns_nop 1\nv_cndmask_b32 v0, v{TMP+2}, v{TMP+1}, vcc")
    k(f"s_lshr_b32 s{sT0}, s{sRANK}, 2\ns_lshl_b32 s{sT0}, s{sT0}, 7\ns_and_b32 s{sT1}, s{sRANK}, 3\ns_lshl_b32 s{sT1}, s{sT1}, 2")
    k(f"s_add_u32 s{sFLG}, s{sT0}, s{sT1}\ns_add_u32 s{sFLG}, s{sFLG}, {FLAGP}")
    k(f"s_mul_i32 s{sT0}, s{sRANK}, 401408\ns_mul_i32 s{sT1}, s{sWAVE}, 100352\ns_add_u32 s{sT0}, s{sT0}, s{sT1}")
    if WA_OFF: k(f"s_add_u32 s{sT0}, s{sT0}, {WA_OFF}")
    FUSED = cfg.get("fused")
    LDF = "sc1" if FUSED else ""
    def wload(i):
        b, a = i >> 1, i & 1
        R = blockregA(b)
        off = i * 1024
        if off and off % 4096 == 0: k(f"s_add_u32 s{sT0}, s{sT0}, 4096")
        k(f"buffer_load_dwordx4 {R.r(4*a,4)}, v{vL16}, {WSR}, s{sT0} offen offset:{off%4096} {LDF}")
    if not FUSED:
        for i in range(98): wload(i)
    else:
        k(f"s_lshl_b32 s{sMS}, s{sRANK}, 2\ns_add_u32 s{sMS}, s{sMS}, s{sWAVE}\ns_lshl_b32 s{sMS}, s{sMS}, 7\ns_add_u32 s{sMS}, s{sMS}, {C_WA}")
        k(f"v_min_u32 v{TMP}, 6, v{vLane}\nv_lshlrev_b32 v{TMP}, 2, v{TMP}")
        def poll_tiles(mask_lo, inflight):
            top = k.uid("A_wp"); ok_ = k.uid("A_wpo")
            k(f"buffer_load_dword v{TMP+1}, v{TMP}, {WSR}, s{sMS} offen sc1")
            for f in inflight: f()
            k(f"s_waitcnt vmcnt({len(inflight)})")
            k.label(top)
            k(f"v_cmp_gt_u32 vcc, 7, v{TMP+1}\ns_and_b32 vcc_lo, vcc_lo, {(1 << mask_lo) - 1}\ns_mov_b32 vcc_hi, 0\ns_cbranch_vccz {ok_}")
            k(f"s_sleep 1\nbuffer_load_dword v{TMP+1}, v{TMP}, {WSR}, s{sMS} offen sc1\ns_waitcnt vmcnt(0)")
            k(f"s_sub_u32 s{sSPIN}, s{sSPIN}, 1\ns_cbranch_scc0 {top}\ns_branch {abort}")
            k.label(ok_)
        poll_tiles(4, [])
        for i in range(40): wload(i)
        poll_tiles(7, [lambda i=i: wload(i) for i in range(40, 56)])
        for i in range(56, 98): wload(i)
        k(f"s_mov_b32 s{sMS}, {C_LN}\nv_mov_b32 v{TMP}, 0")
        top = k.uid("A_ln"); ok_ = k.uid("A_lno")
        k.label(top)
        k(f"buffer_load_dword v{TMP+1}, v{TMP}, {WSR}, s{sMS} offen sc1\ns_waitcnt vmcnt(0)")
        k(f"v_cmp_gt_u32 vcc, 64, v{TMP+1}\ns_cbranch_vccz {ok_}")
        k(f"s_sleep 1\ns_sub_u32 s{sSPIN}, s{sSPIN}, 1\ns_cbranch_scc0 {top}\ns_branch {abort}")
        k.label(ok_)
    def xk_prefetch():
        for kap in range(2):
            for p in range(3):
                off = kap * 3584 + p * 1024
                so = sXK if off < 4096 else sT1
                if off >= 4096 and p == 1: k(f"s_add_u32 s{sT1}, s{sXK}, 4096")
                k(f"buffer_load_dwordx4 {A(XK+kap*14+4*p,4)}, v{vL16}, {WSR}, s{so} offen offset:{off%4096} {LDF}")
            off = kap * 3584 + 3072
            so = sXK if off < 4096 else sT1
            k(f"buffer_load_dwordx2 {A(XK+kap*14+12,2)}, v{vL8}, {WSR}, s{so} offen offset:{off%4096} {LDF}")
    k(f"s_mul_i32 s{sXK}, s{sWAVE}, 7168\ns_add_u32 s{sXK}, s{sXK}, {XK_OFF}")
    xk_prefetch()
    def zero_acc():
        for i in range(0, 28, 2): k(f"v_mov_b64 {V(ACC+i,2)}, 0")
    zero_acc()
    for i in range(4): k(f"v_mov_b32 v{TR+i}, 0xff800000")
    k(f"s_mul_i32 s{sT1}, s{sWAVE}, {SP_STRIDE}\ns_add_u32 s{sT1}, s{sT1}, {SP_L+3072}\nv_mov_b32 v{TMP}, s{sT1}")
    k(f"ds_write_b128 v{TMP}, {V(TR,4)}")
    k("s_waitcnt vmcnt(0) lgkmcnt(0)")
    if cfg.get("tot"): k("s_memrealtime s[88:89]\ns_waitcnt lgkmcnt(0)")
    if cfg.get("mark"): cfg["mark"](cfg.get("_mw", 3), 16 if cfg.get("_mw", 3) == 3 else 12, only=(sRANK, 0))
    k(f"s_mov_b32 s{sSTEP}, 0\ns_mov_b32 s{sMS}, {MEMRING}\ns_mov_b32 s{sPS}, {PRING}")
    def softmax(q, W, ST):
        X = TR
        dst = [TR, MEM, MEM+4, MEM+8]
        for u in range(4):
            q.ds(f"ds_read_b128 {V(dst[u],4)}, v{vSR} offset:{u*SP_STRIDE}", f"sp{u}")
        def pflag():
            if W != 0: return
            k(f"s_add_u32 s{sT0}, s{sSTEP}, 1\nv_mov_b32 v{TMP}, s{sT0}\nv_mov_b32 v{TMP+1}, 0")
            k(f"s_mov_b64 exec, 1\nbuffer_store_dword v{TMP}, v{TMP+1}, {WSR}, s{sFLG} offen {ST}\ns_mov_b64 exec, -1")
        fpos = cfg.get("pflag_pos", 2)
        if fpos == 0: pflag()
        def pk(d, a, b):
            k(f"v_pk_add_f32 {V(d,2)}, {V(a,2)}, {V(b,2)}\nv_pk_add_f32 {V(d+2,2)}, {V(a+2,2)}, {V(b+2,2)}")
        q.wait_lg("sp1"); pk(dst[0], dst[0], dst[1])
        q.wait_lg("sp3"); pk(dst[2], dst[2], dst[3]); pk(dst[0], dst[0], dst[2])
        q.reset()
        prof.raw(8)
        if fpos == 1: pflag()
        M = vX; L = MEM + 12
        k(f"v_max3_f32 v{M}, v{X}, v{X+1}, v{X+2}")
        k(f"v_max_f32 v{M}, v{M}, v{X+3}")
        for ror in (8, 4, 2, 1):
            k("s_nop 1")
            k(f"v_max_f32_dpp v{M}, v{M}, v{M} row_ror:{ror} row_mask:0xf bank_mask:0xf")
        if fpos == 2: pflag()
        k(f"v_pk_add_f32 {V(X,2)}, {V(X,2)}, {V(M,2)} op_sel_hi:[1,0] neg_lo:[0,1] neg_hi:[0,1]")
        k(f"v_pk_add_f32 {V(X+2,2)}, {V(X+2,2)}, {V(M,2)} op_sel_hi:[1,0] neg_lo:[0,1] neg_hi:[0,1]")
        for i in range(4): k(f"v_exp_f32 v{X+i}, v{X+i}")
        if fpos == 3: pflag()
        k(f"s_nop 0\nv_pk_add_f32 {V(TMP+2,2)}, {V(X,2)}, {V(X+2,2)}")
        k(f"v_add_f32 v{L}, v{TMP+2}, v{TMP+3}")
        for ror in (8, 4, 2, 1):
            k("s_nop 1")
            k(f"v_add_f32_dpp v{L}, v{L}, v{L} row_ror:{ror} row_mask:0xf bank_mask:0xf")
        if fpos == 4: pflag()
        k(f"v_rcp_f32 v{L}, v{L}")
        k("s_nop 0")
        k(f"v_pk_mul_f32 {V(X,2)}, {V(X,2)}, {V(L,2)} op_sel_hi:[1,0]")
        k(f"v_pk_mul_f32 {V(X+2,2)}, {V(X+2,2)}, {V(L,2)} op_sel_hi:[1,0]")
        k(f"v_cvt_pk_bf16_f32 v{X}, v{X}, v{X+1}\nv_cvt_pk_bf16_f32 v{X+1}, v{X+2}, v{X+3}")
        k(f"v_min_u32 v{X}, -2, v{X}\nv_min_u32 v{X+1}, -2, v{X+1}")
        k(f"s_mov_b64 exec, s[{sMaskA}:{sMaskA+1}]")
        k(f"buffer_store_dwordx2 {V(X,2)}, v{vPst}, {WSR}, s{sPS} offen {ST}")
        k("s_mov_b64 exec, -1")
        prof.raw(9)
        if fpos == 5: pflag()
        prof.raw(11)
    def preset(ST):
        X = TR
        k(f"s_add_u32 s{sRST}, s{sSTEP}, 2\ns_and_b32 s{sRST}, s{sRST}, 3\ns_mul_i32 s{sRST}, s{sRST}, 10240\ns_add_u32 s{sRST}, s{sRST}, {PRING}")
        for i in range(4): k(f"v_mov_b32 v{X+i}, -1")
        k(f"s_mov_b64 exec, s[{sMaskB}:{sMaskB+1}]")
        k(f"buffer_store_dwordx4 {V(X,4)}, v0, {WSR}, s{sRST} offen {ST}")
        k("s_mov_b64 exec, -1")
    def wave_loop(W, ST):
        q = Q(k)
        prof.start(); prof.tot_start(cfg.get("tot"))
        loop = k.uid("A_loop")
        k.label(loop)
        prof.stamp(0); prof.raw(0)
        if W == 2: emit_flag_poll(k, cfg, vDet, TMP, sSTEP, FLAGM, abort)
        k("s_barrier")
        prof.stamp(1); prof.raw(1)
        if cfg.get("trace"): k(f"s_memtime s[90:91]")
        q.reset()
        def mem_load(t):
            so = sMS if t < 4 else sMS1
            q.vmem(f"buffer_load_dwordx4 {V(MEM+4*t,4)}, v{vL16}, {WSR}, s{so} offen offset:{(t*1024)%4096} sc1", f"mem{t}")
        t0w, t1w = (112 * W) >> 6, (112 * W + 111) >> 6
        rot = cfg.get("rot", 2)
        ko = [(rot * W + i) % 7 for i in range(7)]
        def lds_of(t): return MKP_L + W * 3072 + (t - t0w) * 1024
        def stage(t, out=None):
            txt = f"ds_write_b128 v{vL16}, {V(MEM+4*t,4)} offset:{lds_of(t)}"
            if out is None: q.ds(txt, f"st{t}")
            else: out(txt)
        k(f"s_add_u32 s{sMS1}, s{sMS}, 4096") if ko[0] >= 4 else None
        mem_load(ko[0])
        if ko[0] < 4: k(f"s_add_u32 s{sMS1}, s{sMS}, 4096")
        for i in range(0, 14, 2): k(f"v_mov_b64 {V(ACC+i,2)}, 0")
        for i in range(cfg.get("pace", 5)): k("s_nop 0")
        mem_load(ko[1])
        for i in range(14, 28, 2): k(f"v_mov_b64 {V(ACC+i,2)}, 0")
        for i in range(cfg.get("pace", 5)): k("s_nop 0")
        mem_load(ko[2])
        k(f"s_nop {cfg.get('pace2', 12)}")
        mem_load(ko[3])
        k(f"s_nop {cfg.get('pace2', 12)}")
        mem_load(ko[4])
        again = k.uid("A_again"); retry = k.uid("A_retry")
        def smf(tt, t):
            R = blockregA(7 * tt + t)
            k(f"v_smfmac_f32_16x16x64_bf16 {V(ACC+4*tt,4)}, {V(MEM+4*t,4)}, {R.r(0,8)}, v{vIdx}")
        def cvt(tile, hi):
            pa = ACC + 4 * tile + 2 * hi
            k(f"v_cvt_pk_bf16_f32 v{TMP+2*(tile&1)+hi}, v{pa}, v{pa+1}")
        k("s_waitcnt vmcnt(4)")
        prof.raw(2)
        for i, t in enumerate(ko):
            m0 = MEM + 4 * t
            fl = [[], [], [], []]
            if i < 2: fl[0].append(lambda i=i: mem_load(ko[i + 5]))
            fl[1 if i < 2 else 0].append(lambda i=i, m0=m0: k(f"v_max_u32 v{vX}, v{m0}, v{m0+1}" if i == 0 else f"v_max3_u32 v{vX}, v{vX}, v{m0}, v{m0+1}"))
            fl[2 if i < 2 else 1].append(lambda m0=m0: k(f"v_max3_u32 v{vX}, v{vX}, v{m0+2}, v{m0+3}"))
            if t0w <= t <= t1w: fl[3 if i < 2 or i == 6 else 2].append(lambda t=t: stage(t))
            if i == 6:
                fl[2].append(lambda: k(f"v_cmp_eq_u32 vcc, -1, v{vX}"))
                if not cfg.get("pairs", False): fl[3].append(lambda: cvt(0, 0))
            else: fl[3].append(lambda i=i: k(f"s_waitcnt vmcnt({[4,4,3,2,1,0][i]})"))
            for tt in range(4):
                smf(tt, t)
                for f in fl[tt]: f()
            if cfg.get("raw2") and i < 5: prof.raw(11 + i)
        k(f"s_cbranch_vccnz {retry}")
        prof.raw(3)
        rb = K()
        lab = k.uid("A_rl")
        rb(f"{lab}:")
        rb(f"s_add_u32 s{sMS1}, s{sMS}, 4096")
        for t in range(7):
            so = sMS if t < 4 else sMS1
            rb(f"buffer_load_dwordx4 {V(MEM+4*t,4)}, v{vL16}, {WSR}, s{so} offen offset:{(t*1024)%4096} sc1")
        rb("s_waitcnt vmcnt(0)")
        rb(f"v_max3_u32 v{vX}, v{MEM}, v{MEM+1}, v{MEM+2}")
        for i in range(3, 27, 2): rb(f"v_max3_u32 v{vX}, v{vX}, v{MEM+i}, v{MEM+i+1}")
        rb(f"v_max_u32 v{vX}, v{vX}, v{MEM+27}")
        rb(f"v_cmp_eq_u32 vcc, -1, v{vX}")
        ok_ = k.uid("A_rok")
        rb(f"s_cbranch_vccz {ok_}")
        rb(f"s_sub_u32 s{sSPIN}, s{sSPIN}, 1\ns_cbranch_scc0 {lab}\ns_branch {abort}")
        rb(f"{ok_}:")
        for i in range(0, 16, 2): rb(f"v_mov_b64 {V(ACC+i,2)}, 0")
        if cfg.get("cnt_retry"): rb(f"s_add_u32 s{sPROF+11}, s{sPROF+11}, 1")
        for t in range(t0w, t1w + 1): stage(t, rb)
        rb("s_nop 1")
        for t in range(7):
            for tt in range(4):
                R = blockregA(7 * tt + t)
                rb(f"v_smfmac_f32_16x16x64_bf16 {V(ACC+4*tt,4)}, {V(MEM+4*t,4)}, {R.r(0,8)}, v{vIdx}")
        if not cfg.get("pairs", False): rb(f"v_cvt_pk_bf16_f32 v{TMP}, v{ACC}, v{ACC+1}")
        rb(f"s_branch {again}")
        cfg.setdefault("outofline", []).append(f"{retry}:\ns_nop 7\n" + rb.text())
        k.label(again)
        q.vm = []
        def wr2(pair): q.ds(f"ds_write_b128 v{vTRw2}, {V(TMP,4)} offset:{pair*1024}", f"w{pair}")
        PAIRS = cfg.get("pairs", False)
        def wr6(): q.ds(f"ds_write_b64 v{vTRw}, {V(TMP,2)} offset:{0 if PAIRS else 3072}", "w6")
        def wr1(tile): q.ds(f"ds_write_b64 v{vTRw}, {V(TMP+2*(tile&1),2)} offset:{tile*512}", f"w{tile}")
        def tr(tile):
            if tile == 6: q.ds(f"ds_read_b64_tr_b16 {TRr(6)}, v{vTRr} offset:{0 if PAIRS else 3072}", "tr6")
            elif not PAIRS: q.ds(f"ds_read_b64_tr_b16 {TRr(tile)}, v{vTRr} offset:{tile*512}", f"tr{tile}")
            else: q.ds(f"ds_read_b64_tr_b16 {TRr(tile)}, v{vTRr2} offset:{(tile>>1)*1024+(tile&1)*8}", f"tr{tile}")
        def mk(tt):
            tau = 7 * W + tt
            q.ds(f"ds_read_b64 {V(MEM+2*tt,2)}, v{vMKg} offset:{lds_of(tau >> 2) + 256 * (tau & 3)}", f"mk{tt}")
        fill_after = {}
        if PAIRS:
            slot = 0
            for pair in range(3):
                for f in [("c", 2*pair, 0), ("c", 2*pair, 1), ("c", 2*pair+1, 0), ("c", 2*pair+1, 1), ("w", pair), ("t", 2*pair), ("t", 2*pair+1)]:
                    fill_after.setdefault(slot, []).append(f); slot += 1
        else:
            if W < 2 or not cfg.get("stagger", True):
                seq_ = [("c", 0, 1), ("w1", 0), ("t", 0)]
                for tile in range(1, 5): seq_ += [("c", tile, 0), ("c", tile, 1), ("w1", tile), ("t", tile)]
                seq_ += [("c", 5, 0), ("c", 5, 1)]
            else:
                seq_ = [("c", 0, 1), ("c", 1, 0), ("c", 1, 1)]
                for tile in range(0, 4): seq_ += [("w1", tile), ("t", tile), ("c", tile + 2, 0), ("c", tile + 2, 1)]
                seq_ += [("w1", 4), ("t", 4)]
            for slot, f in enumerate(seq_): fill_after.setdefault(slot, []).append(f)
        def dofill(f):
            if f[0] == "c": cvt(f[1], f[2])
            elif f[0] == "w":
                if PAIRS: wr2(f[1])
                else: wr1(2*f[1]); wr1(2*f[1]+1)
            elif f[0] == "w1": wr1(f[1])
            elif f[0] == "t": tr(f[1])
        sl = 0
        for tt in (4, 5, 6):
            for t in range(7):
                smf(tt, t)
                for f in fill_after.get(sl, []): dofill(f)
                sl += 1
        prof.raw(4)
        def smm(kap, p, first=False):
            D = V(SACC + 4 * kap, 4)
            C = "0" if first else D
            if p < 3:
                Aop = A(XK + kap * 14 + 4 * p, 4) if kap < 2 else V(MEM + 4 * p, 4)
                k(f"v_mfma_f32_16x16x32_bf16 {D}, {Aop}, {V(TR+4*p,4)}, {C}")
            else:
                Aop = A(XK + kap * 14 + 12, 2) if kap < 2 else V(MEM + 12, 2)
                k(f"v_mfma_f32_16x16x16_bf16 {D}, {Aop}, {TRr(6)}, {C}")
        if not PAIRS: wr1(5); tr(5)
        q.wait_lg("tr3")
        smm(0, 0, True)
        mk(0); mk(1)
        smm(1, 0, True)
        mk(2); mk(3)
        smm(0, 1)
        cvt(6, 0); cvt(6, 1)
        smm(1, 1)
        wr6(); tr(6)
        q.wait_lg("tr5")
        smm(0, 2)
        mk(4); mk(5)
        smm(1, 2)
        mk(6)
        q.wait_lg("mk3")
        smm(2, 0, True); smm(2, 1)
        q.wait_lg("mk5")
        smm(2, 2)
        smm(0, 3); smm(1, 3)
        q.wait_lg("mk6")
        smm(2, 3)
        prof.raw(5)
        k(f"s_add_u32 s{sXK}, s{sXK}, 28672")
        k("s_nop 3")
        for r in range(4): k(f"v_add_f32_dpp v{SACC+r}, v{SACC+r}, v{SACC+r} row_ror:8 row_mask:0xf bank_mask:0x3")
        for r in range(4): k(f"v_add_f32_dpp v{SACC+r}, v{SACC+4+r}, v{SACC+4+r} row_ror:8 row_mask:0xf bank_mask:0xc")
        q.ds(f"ds_write_b128 v{vSWx}, {V(SACC,4)}")
        for r in range(4): k(f"v_add_f32_dpp v{SACC+8+r}, v{SACC+8+r}, v{SACC+8+r} row_ror:8 row_mask:0xf bank_mask:0xf")
        q.ds(f"ds_write_b128 v{vSWm}, {V(SACC+8,4)}")
        q.lg0()
        prof.stamp(3); prof.raw(6)
        k("s_barrier")
        prof.stamp(4); prof.raw(7)
        X = TR
        if W < 2: softmax(q, W, ST)
        if cfg.get("bar3", True): k("s_barrier")
        if W == 3: preset(ST)
        if cfg.get("trace") and W == 3:
            k(f"s_waitcnt lgkmcnt(0)\ns_lshl_b32 s{sT0}, s{sRANK}, 6\ns_add_u32 s{sT0}, s{sT0}, s{sSTEP}\ns_lshl_b32 s{sT0}, s{sT0}, 2\ns_add_u32 s{sT0}, s{sT0}, {PROF+8192}")
            k(f"v_mov_b32 v{TR+4}, s90\nv_mov_b32 v{TR+5}, 0\ns_mov_b64 exec, 1\nbuffer_store_dword v{TR+4}, v{TR+5}, {WSR}, s{sT0} offen\ns_mov_b64 exec, -1")
        xk_prefetch()
        prof.stamp(5); prof.raw(10)
        emit_ring_advance(k)
        k("s_waitcnt vmcnt(0)")
        k(f"s_cmp_lt_u32 s{sSTEP}, {cfg['nsteps']}\ns_cbranch_scc1 {loop}")
        prof.raw_dump(TR, TR + 1); prof.dump(TR, TR + 1); prof.tot_dump(cfg.get("tot"), TR, TR + 1)
        k("s_endpgm")
    if cfg.get("mode_hook"): cfg["mode_hook"](k, TR)
    mlabs = [k.uid("A_m") for _ in modes]
    if len(modes) > 1: k(f"s_cmp_eq_u32 s{sMODE}, 1\ns_cbranch_scc1 {mlabs[1]}")
    for mi, st in enumerate(modes):
        k.label(mlabs[mi])
        labs = [k.uid("A_w") for _ in range(4)]
        for w in range(1, 4): k(f"s_cmp_eq_u32 s{sWAVE}, {w}\ns_cbranch_scc1 {labs[w]}")
        for w in range(4):
            k.label(labs[w])
            wave_loop(w, st)

def blockregB(tau, t):
    if t == 6 and tau < 6: return None
    b = 7 * tau + t - min(tau, 6)
    return Reg("a", 32 + 8 * b) if b < 28 else Reg("v", 80 + 8 * (b - 28))

def emit_chain_B(k, cfg, abort):
    prof = Prof(k, cfg.get("prof"), cfg.get("raw"))
    q = Q(k)
    WSR = f"s[{sWS}:{sWS+3}]"
    modes = cfg.get("modes", [cfg.get("st", "")])
    vL16, vPollA, vPollB, vP0, vPm, vOA, vOR, vMst, vIdx, vWL, vDet = range(1, 12)
    vLane = 0
    WT, ACC, VB, MEM = 12, 28, 36, 52
    vT = WT
    VXR = 0
    cfg["_mw"] = 6
    if cfg.get("tot"): k("s_memrealtime s[86:87]")
    k(f"s_sub_u32 s{sRANK}, s{sRANK}, 16")
    k("v_and_b32 v0, 63, v0")
    k(f"v_lshlrev_b32 v{vL16}, 4, v{vLane}")
    k(f"s_mul_i32 s{sT0}, s{sWAVE}, 1792")
    k(f"v_add_u32 v{vPollA}, s{sT0}, v{vL16}")
    k(f"v_min_u32 v{vT}, 47, v{vLane}")
    k(f"v_lshlrev_b32 v{vT}, 4, v{vT}")
    k(f"s_add_u32 s{sT1}, s{sT0}, 1024")
    k(f"v_add_u32 v{vPollB}, s{sT1}, v{vT}")
    I, SUB, GA, T2 = WT + 1, WT + 2, WT + 3, WT + 4
    k(f"v_and_b32 v{I}, 7, v{vLane}\nv_bfe_u32 v{SUB}, v{vLane}, 3, 1\nv_lshrrev_b32 v{GA}, 4, v{vLane}")
    k(f"v_and_b32 v{T2}, 3, v{vLane}\nv_lshlrev_b32 v{vDet}, 2, v{T2}\ns_lshl_b32 s{sT0}, s{sWAVE}, 7\nv_add_u32 v{vDet}, s{sT0}, v{vDet}")
    k(f"s_mul_i32 s{sT0}, s{sWAVE}, 2560")
    k(f"v_add_u32 v{vP0}, s{sT0}, v{vL16}")
    k(f"v_lshrrev_b32 v{T2}, 1, v{GA}\nv_lshlrev_b32 v{vPm}, 8, v{T2}")
    k(f"v_lshl_add_u32 v{vPm}, v{SUB}, 7, v{vPm}\nv_lshl_add_u32 v{vPm}, v{I}, 4, v{vPm}")
    k(f"s_add_u32 s{sT0}, s{sT0}, 2048\nv_add_u32 v{vPm}, s{sT0}, v{vPm}")
    C2, CG = WT + 5, WT + 6
    k(f"v_and_b32 v{C2}, 3, v{vLane}")
    k(f"v_bfe_u32 v{CG}, v{vLane}, 2, 2\nv_lshrrev_b32 v{T2}, 5, v{vLane}\nv_lshl_add_u32 v{CG}, v{T2}, 2, v{CG}")
    k(f"v_and_b32 v{T2}, 1, v{GA}\nv_lshl_add_u32 v{T2}, v{CG}, 1, v{T2}")
    k(f"v_lshlrev_b32 v{vOA}, 2, v{C2}\nv_xor_b32 v{T2}, v{T2}, v{vOA}\nv_and_b32 v{T2}, 15, v{T2}")
    k(f"v_lshlrev_b32 v{vOA}, 8, v{C2}\nv_lshl_add_u32 v{vOA}, v{T2}, 4, v{vOA}")
    k(f"s_lshl_b32 s{sT0}, s{sWAVE}, 10\ns_add_u32 s{sT0}, s{sT0}, {OP_L}\nv_add_u32 v{vOA}, s{sT0}, v{vOA}")
    k(f"v_lshlrev_b32 v{T2}, 2, v{GA}\nv_and_b32 v{vOR}, 15, v{vLane}\nv_xor_b32 v{vOR}, v{vOR}, v{T2}\nv_and_b32 v{vOR}, 15, v{vOR}")
    k(f"v_lshlrev_b32 v{vOR}, 4, v{vOR}\nv_lshl_add_u32 v{vOR}, v{GA}, 8, v{vOR}\nv_add_u32 v{vOR}, {OP_L}, v{vOR}")
    k(f"v_and_b32 v{T2}, 1, v{vLane}\nv_lshl_add_u32 v{T2}, v{T2}, 2, v{GA}")
    k(f"v_bfe_u32 v{vMst}, v{vLane}, 3, 1\nv_lshl_add_u32 v{T2}, v{vMst}, 4, v{T2}")
    k(f"v_bfe_u32 v{vMst}, v{vLane}, 2, 1\nv_lshl_add_u32 v{T2}, v{vMst}, 3, v{T2}")
    k(f"v_lshlrev_b32 v{T2}, 4, v{T2}")
    k(f"v_bfe_u32 v{vMst}, v{vLane}, 1, 1\nv_lshl_add_u32 v{vMst}, v{vMst}, 3, v{T2}")
    k(f"s_lshl_b32 s{sT0}, s{sRANK}, 9\nv_add_u32 v{vMst}, s{sT0}, v{vMst}")
    k(f"s_lshl_b32 s{sFLG}, s{sRANK}, 2\ns_add_u32 s{sFLG}, s{sFLG}, {FLAGM}")
    k(f"v_mov_b32 v{vIdx}, 0x44444444\nv_mov_b32 v{T2}, 0xeeeeeeee")
    k(f"v_cmp_ne_u32 vcc, 0, v{SUB}\ns_nop 1\nv_cndmask_b32 v{vIdx}, v{vIdx}, v{T2}, vcc")
    if cfg.get("warm", True):
        sk = k.uid("B_warm")
        k(f"s_cmp_lg_u32 s{sRANK}, 0\ns_cbranch_scc1 {sk}")
        k(f"s_lshl_b32 s{sT0}, s{sWAVE}, 6\nv_add_u32 v{WT}, s{sT0}, v{vLane}\nv_lshlrev_b32 v{WT}, 7, v{WT}")
        for u in range(3):
            k(f"s_mov_b32 s{sT0}, {MEMRING + u*32768}\nbuffer_load_dword v{WT+1}, v{WT}, {WSR}, s{sT0} offen sc1")
        k("s_waitcnt vmcnt(0)")
        k.label(sk)
    FUSED = cfg.get("fused")
    LDF = "sc1" if FUSED else ""
    if FUSED:
        k(f"v_and_b32 v{WT}, 3, v{vLane}\nv_lshlrev_b32 v{WT}, 7, v{WT}\ns_lshl_b32 s{sT0}, s{sWAVE}, 9\ns_add_u32 s{sT0}, s{sT0}, {C_WB}")
        top = k.uid("B_wp"); ok_ = k.uid("B_wpo")
        k.label(top)
        k(f"buffer_load_dword v{WT+1}, v{WT}, {WSR}, s{sT0} offen sc1\ns_waitcnt vmcnt(0)")
        k(f"v_cmp_gt_u32 vcc, 7, v{WT+1}\ns_cbranch_vccz {ok_}")
        k(f"s_sleep 1\ns_sub_u32 s{sSPIN}, s{sSPIN}, 1\ns_cbranch_scc0 {top}\ns_branch {abort}")
        k.label(ok_)
    k(f"s_mul_i32 s{sT0}, s{sRANK}, 458752\ns_mul_i32 s{sT1}, s{sWAVE}, 114688\ns_add_u32 s{sT0}, s{sT0}, s{sT1}\ns_add_u32 s{sT0}, s{sT0}, {WB_OFF}")
    k(f"s_mul_i32 s{sT1}, s{sWAVE}, 12288\ns_add_u32 s{sT1}, s{sT1}, {WL}\nv_add_u32 v{vWL}, s{sT1}, v{vL16}")
    for tau in range(8):
        for t in range(7):
            R = blockregB(tau, t)
            for a in range(2):
                off = ((7 * tau + t) * 2 + a) * 1024
                if off and off % 4096 == 0: k(f"s_add_u32 s{sT0}, s{sT0}, 4096")
                if R is not None:
                    k(f"buffer_load_dwordx4 {R.r(4*a,4)}, v{vL16}, {WSR}, s{sT0} offen offset:{off%4096} {LDF}")
                else:
                    k(f"s_mul_i32 s{sT1}, s{sWAVE}, 12288\ns_add_u32 m0, s{sT1}, {WL + tau*2048 + a*1024 - off%4096}\ns_nop 0")
                    k(f"buffer_load_dwordx4 v{vL16}, {WSR}, s{sT0} offen offset:{off%4096} {LDF} lds")
    PX = WT + 15
    for i in range(8): k(f"v_mov_b32 v{ACC+i}, 0")
    k("s_waitcnt vmcnt(0) lgkmcnt(0)")
    if cfg.get("tot"): k("s_memrealtime s[88:89]\ns_waitcnt lgkmcnt(0)")
    if cfg.get("mark"): cfg["mark"](cfg.get("_mw", 3), 16 if cfg.get("_mw", 3) == 3 else 12, only=(sRANK, 0))
    k(f"s_mov_b32 s{sSTEP}, 0\ns_mov_b32 s{sMS}, {MEMRING}\ns_mov_b32 s{sPS}, {PRING}")
    k(f"s_mul_i32 s{sXK}, s{sRANK}, 32768\ns_lshl_b32 s{sT0}, s{sWAVE}, 13\ns_add_u32 s{sXK}, s{sXK}, s{sT0}\ns_add_u32 s{sXK}, s{sXK}, {VX_OFF}")
    k(f"s_mov_b32 s{sOUT}, {MEMOUT+7168}")
    k(f"s_mov_b32 s{sVXC}, {FLAGV}")
    def b_loop(ST):
        q = Q(k)
        prof.start(); prof.tot_start(cfg.get("tot"))
        loop = k.uid("B_loop")
        k.label(loop)
        prof.stamp(0); prof.raw(0)
        if cfg.get("b_sleep"): k(f"s_sleep {cfg['b_sleep']}")
        top = k.uid("PM"); retry = k.uid("PMR")
        k.label(top)
        k(f"buffer_load_dwordx4 {V(WT,4)}, v{vPollA}, {WSR}, s{sMS} offen sc1")
        k(f"buffer_load_dwordx4 {V(WT+4,4)}, v{vPollB}, {WSR}, s{sMS} offen sc1")
        if cfg.get("vxwait"): k(f"v_mov_b32 v{WT+9}, 0\nbuffer_load_dword v{WT+8}, v{WT+9}, {WSR}, s{sVXC} offen sc1")
        k("s_waitcnt vmcnt(0)")
        k(f"v_max3_u32 v{PX}, v{WT}, v{WT+1}, v{WT+2}")
        k(f"v_max3_u32 v{PX}, v{PX}, v{WT+3}, v{WT+4}")
        k(f"v_max3_u32 v{PX}, v{PX}, v{WT+5}, v{WT+6}")
        k(f"v_max_u32 v{PX}, v{PX}, v{WT+7}")
        k(f"v_cmp_eq_u32 vcc, -1, v{PX}")
        k(f"s_cbranch_vccnz {retry}")
        if cfg.get("vxwait"):
            k(f"v_cmp_ge_u32 vcc, s{sSTEP}, v{WT+8}")
            k(f"s_cbranch_vccnz {retry}")
        retry_block(cfg, retry, "", abort, top)
        q.reset()
        prof.stamp(1); prof.raw(1)
        q.ds(f"ds_write_b128 v{vPollA}, {V(WT,4)} offset:{MEM_L}")
        q.ds(f"ds_write_b128 v{vPollB}, {V(WT+4,4)} offset:{MEM_L}")
        q.lg0()
        k("s_barrier")
        prof.stamp(2)
        for t in range(7):
            q.ds(f"ds_read_b128 {V(MEM+4*t,4)}, v{vL16} offset:{MEM_L+t*1024}", f"mem{t}")
        nm = k.uid("B_nm")
        k(f"s_cmp_lg_u32 s{sWAVE}, 0\ns_cbranch_scc1 {nm}\ns_cmp_eq_u32 s{sSTEP}, 0\ns_cbranch_scc1 {nm}")
        k(f"s_sub_u32 s{sT1}, s{sOUT}, 7168\nbuffer_store_dwordx2 {V(VB+14,2)}, v{vMst}, {WSR}, s{sT1} offen sc1")
        k.label(nm)
        k(f"s_add_u32 s{sT1}, s{sXK}, 4096")
        def vx_load(u):
            off = u * 1024
            so = sXK if off < 4096 else sT1
            k(f"buffer_load_dwordx4 {A(VXR+4*u,4)}, v{vL16}, {WSR}, s{so} offen offset:{off%4096} sc1")
        def vb_dst(tau, rp):
            hh, c = tau >> 1, tau & 1
            a, sub = hh >> 1, hh & 1
            return VB + 8 * c + 4 * a + 2 * rp + sub
        for tau in range(8):
            for t in range(7):
                if tau == 0: q.wait_lg(f"mem{t}")
                R = blockregB(tau, t)
                if R is None:
                    q.wait_lg(f"wl{tau}b")
                    Bop = V(WT + 8 * (tau & 1), 8)
                else:
                    Bop = R.r(0, 8)
                k(f"v_smfmac_f32_16x16x64_bf16 {V(ACC+4*(tau&1),4)}, {V(MEM+4*t,4)}, {Bop}, v{vIdx}")
                if tau < 6:
                    if t == 0: q.ds(f"ds_read_b128 {V(WT+8*(tau&1),4)}, v{vWL} offset:{tau*2048}", f"wl{tau}a")
                    if t == 1: q.ds(f"ds_read_b128 {V(WT+8*(tau&1)+4,4)}, v{vWL} offset:{tau*2048+1024}", f"wl{tau}b")
                if tau < 4 and t in (5, 6): vx_load(2 * tau + (t - 5))
                if tau >= 1:
                    pa = ACC + 4 * ((tau - 1) & 1)
                    if t == 2: k(f"v_cvt_pk_bf16_f32 v{vb_dst(tau-1,0)}, v{pa}, v{pa+1}")
                    if t == 3: k(f"v_cvt_pk_bf16_f32 v{vb_dst(tau-1,1)}, v{pa+2}, v{pa+3}")
                    if t == 4: k(f"v_mov_b64 {V(pa,2)}, 0")
                    if t == 5: k(f"v_mov_b64 {V(pa+2,2)}, 0")
        k(f"s_add_u32 s{sXK}, s{sXK}, 458752")
        k("s_nop 6")
        pa = ACC + 4
        k(f"v_cvt_pk_bf16_f32 v{vb_dst(7,0)}, v{pa}, v{pa+1}")
        k(f"v_cvt_pk_bf16_f32 v{vb_dst(7,1)}, v{pa+2}, v{pa+3}")
        k(f"v_mov_b64 {V(pa,2)}, 0\nv_mov_b64 {V(pa+2,2)}, 0")
        prof.raw(2)
        k("s_waitcnt vmcnt(0)")
        prof.stamp(3); prof.raw(3)
        k(f"s_add_u32 s{sMS1}, s{sSTEP}, 1")
        emit_flag_poll(k, cfg, vDet, WT, sMS1, FLAGP, abort)
        prof.stamp(4); prof.raw(4)
        P0, P1, PM = MEM, MEM + 4, MEM + 8
        q.reset()
        def p_loads(qq):
            qq(f"buffer_load_dwordx4 {V(P0,4)}, v{vP0}, {WSR}, s{sPS} offen sc1", "p0")
            qq(f"buffer_load_dwordx4 {V(P1,4)}, v{vP0}, {WSR}, s{sPS} offen offset:1024 sc1", "p1")
            qq(f"buffer_load_dwordx4 {V(PM,4)}, v{vPm}, {WSR}, s{sPS} offen sc1", "pm")
        p_loads(q.vmem)
        again = k.uid("B_again"); retry = k.uid("B_retry")
        k.label(again)
        for (Pr, src, tag) in ((P0, "x0", "p0"), (P1, "x1", "p1"), (PM, "m", "pm")):
            q.wait_vm(tag)
            if tag == "p0": prof.raw(5)
            if tag == "pm": prof.raw(6)
            for c in range(2):
                Bop = {"x0": A(VXR + c * 8, 8), "x1": A(VXR + 16 + c * 8, 8), "m": V(VB + 8 * c, 8)}[src]
                k(f"v_smfmac_f32_16x16x64_bf16 {V(ACC+4*c,4)}, {V(Pr,4)}, {Bop}, v{vIdx}")
                if c == 0: k(f"v_max_u32 v{PX}, v{Pr}, v{Pr+1}" if src == "x0" else f"v_max3_u32 v{PX}, v{PX}, v{Pr}, v{Pr+1}")
                else: k(f"v_max3_u32 v{PX}, v{PX}, v{Pr+2}, v{Pr+3}")
        k(f"v_cmp_eq_u32 vcc, -1, v{PX}")
        k(f"s_cbranch_vccnz {retry}")
        rb = K(); lab = k.uid("B_rl"); ok_ = k.uid("B_rok")
        rb(f"{lab}:")
        p_loads(lambda txt, tag: rb(txt))
        rb("s_waitcnt vmcnt(0)")
        rb(f"v_max3_u32 v{PX}, v{P0}, v{P0+1}, v{P0+2}")
        for i in range(3, 11, 2): rb(f"v_max3_u32 v{PX}, v{PX}, v{P0+i}, v{P0+i+1}")
        rb(f"v_max_u32 v{PX}, v{PX}, v{P0+11}")
        rb(f"v_cmp_eq_u32 vcc, -1, v{PX}")
        rb(f"s_cbranch_vccz {ok_}")
        rb(f"s_sub_u32 s{sSPIN}, s{sSPIN}, 1\ns_cbranch_scc0 {lab}\ns_branch {abort}")
        rb(f"{ok_}:")
        for i in range(0, 8, 2): rb(f"v_mov_b64 {V(ACC+i,2)}, 0")
        if cfg.get("cnt_retry"): rb(f"s_add_u32 s{sPROF+11}, s{sPROF+11}, 1")
        rb(f"s_nop 1\ns_branch {again}")
        cfg.setdefault("outofline", []).append(f"{retry}:\ns_nop 7\n" + rb.text())
        def mflag():
            k(f"s_add_u32 s{sT0}, s{sSTEP}, 1\nv_mov_b32 v{PX}, s{sT0}\nv_mov_b32 v{PX-1}, 0")
            k(f"s_mov_b64 exec, 1\nbuffer_store_dword v{PX}, v{PX-1}, {WSR}, s{sFLG} offen {ST}\ns_mov_b64 exec, -1")
        mpos = cfg.get("mflag_pos", 1)
        k("s_nop 5")
        for r in range(4): k(f"v_permlane32_swap_b32 v{ACC+r}, v{ACC+4+r}")
        k(f"v_pk_add_f32 {V(ACC,2)}, {V(ACC,2)}, {V(ACC+4,2)}\nv_pk_add_f32 {V(ACC+2,2)}, {V(ACC+2,2)}, {V(ACC+6,2)}")
        q.ds(f"ds_write_b128 v{vOA}, {V(ACC,4)}")
        nofin = k.uid("B_nofin"); join = k.uid("B_join")
        if mpos == 0:
            sk = k.uid("B_f0"); k(f"s_cmp_lg_u32 s{sWAVE}, 0\ns_cbranch_scc1 {sk}"); mflag(); k.label(sk)
        q.lg0()
        prof.stamp(5); prof.raw(7)
        k("s_barrier")
        prof.stamp(6); prof.raw(8)
        k(f"s_cmp_lg_u32 s{sWAVE}, 0\ns_cbranch_scc1 {nofin}")
        X = WT
        for w_ in range(4): q.ds(f"ds_read_b128 {V(X+4*w_,4)}, v{vOR} offset:{w_*1024}", f"o{w_}")
        def mflag2():
            k(f"s_mov_b64 exec, 1\nbuffer_store_dword v{ACC+4}, v{ACC+5}, {WSR}, s{sFLG} offen {ST}\ns_mov_b64 exec, -1")
        k(f"s_add_u32 s{sT0}, s{sSTEP}, 1\nv_mov_b32 v{ACC+4}, s{sT0}\nv_mov_b32 v{ACC+5}, 0")
        if mpos == 1: mflag2()
        k(f"s_add_u32 s{sT0}, s{sSTEP}, 1\ns_and_b32 s{sT0}, s{sT0}, 3\ns_mul_i32 s{sMS1}, s{sT0}, 7168\ns_add_u32 s{sMS1}, s{sMS1}, {MEMRING}")
        def pk(d, a, b):
            k(f"v_pk_add_f32 {V(d,2)}, {V(a,2)}, {V(b,2)}\nv_pk_add_f32 {V(d+2,2)}, {V(a+2,2)}, {V(b+2,2)}")
        q.wait_lg("o1")
        if mpos == 11: mflag2()
        pk(X, X, X+4)
        q.wait_lg("o3"); pk(X+8, X+8, X+12); pk(X, X, X+8)
        q.reset()
        prof.raw(9)
        if mpos == 12: mflag2()
        else: k("s_nop 1")
        k(f"v_permlane32_swap_b32 v{X}, v{X+2}\nv_permlane32_swap_b32 v{X+1}, v{X+3}")
        k("s_nop 1")
        k(f"v_permlane16_swap_b32 v{X}, v{X+1}\nv_permlane16_swap_b32 v{X+2}, v{X+3}")
        if mpos == 13: mflag2()
        k(f"v_cvt_pk_bf16_f32 v{X}, v{X}, v{X+1}\nv_cvt_pk_bf16_f32 v{X+1}, v{X+2}, v{X+3}")
        k(f"v_min_u32 v{X}, -2, v{X}\nv_min_u32 v{X+1}, -2, v{X+1}")
        k(f"buffer_store_dwordx2 {V(X,2)}, v{vMst}, {WSR}, s{sMS1} offen {ST}")
        prof.raw(10)
        if mpos == 2: mflag2()
        k(f"v_mov_b64 {V(VB+14,2)}, {V(X,2)}")
        k.label(nofin)
        if cfg.get("bar4", True): k("s_barrier")
        k(f"s_cmp_lg_u32 s{sWAVE}, 1\ns_cbranch_scc1 {join}")
        X = WT
        k(f"s_add_u32 s{sRST}, s{sSTEP}, 3\ns_and_b32 s{sRST}, s{sRST}, 3\ns_mul_i32 s{sRST}, s{sRST}, 7168\ns_add_u32 s{sRST}, s{sRST}, {MEMRING}")
        k(f"v_mov_b32 v{X}, -1\nv_mov_b32 v{X+1}, -1")
        k(f"buffer_store_dwordx2 {V(X,2)}, v{vMst}, {WSR}, s{sRST} offen {ST}")
        k.label(join)
        for i in range(0, 8, 2): k(f"v_mov_b64 {V(ACC+i,2)}, 0")
        prof.stamp(7)
        k(f"s_add_u32 s{sOUT}, s{sOUT}, 7168")
        emit_ring_advance(k)
        k(f"s_cmp_lt_u32 s{sSTEP}, {cfg['nsteps']}\ns_cbranch_scc1 {loop}")
        if cfg.get("mark"): cfg["mark"](7, 12, only=(sRANK, 0))
        nm2 = k.uid("B_nm2")
        k(f"s_cmp_lg_u32 s{sWAVE}, 0\ns_cbranch_scc1 {nm2}")
        k(f"s_sub_u32 s{sT1}, s{sOUT}, 7168\nbuffer_store_dwordx2 {V(VB+14,2)}, v{vMst}, {WSR}, s{sT1} offen sc1\ns_waitcnt vmcnt(0)")
        k.label(nm2)
        k(f"s_add_u32 s{sRANK}, s{sRANK}, 16")
        prof.raw_dump(WT, WT + 1); prof.dump(WT, WT + 1); prof.tot_dump(cfg.get("tot"), WT, WT + 1)
        k("s_endpgm")
    if cfg.get("mode_hook"): cfg["mode_hook"](k, WT)
    mlabs = [k.uid("B_m") for _ in modes]
    if len(modes) > 1: k(f"s_cmp_eq_u32 s{sMODE}, 1\ns_cbranch_scc1 {mlabs[1]}")
    for mi, st in enumerate(modes):
        k.label(mlabs[mi])
        b_loop(st)

def emit_helper(k, cfg, abort):
    WSR = f"s[{sWS}:{sWS+3}]"
    modes = cfg.get("modes", [cfg.get("st", "")])
    dist = cfg.get("pf_dist", 3)
    k("v_lshlrev_b32 v1, 7, v0")
    k("v_mov_b32 v2, 0")
    if cfg.get("mode_hook"): cfg["mode_hook"](k, 40)
    mlabs = [k.uid("H_m") for _ in modes]
    if len(modes) > 1: k(f"s_cmp_eq_u32 s{sMODE}, 1\ns_cbranch_scc1 {mlabs[1]}")
    for mi, ST in enumerate(modes):
        k.label(mlabs[mi])
        k(f"s_mov_b32 s{sSTEP}, 0\ns_mov_b32 s{sXK}, {VX_OFF}\ns_mov_b32 s{sOUT}, {XK_OFF}\ns_mov_b32 s{sVXC}, {C_VX}")
        loop = k.uid("PF_loop"); p2 = k.uid("PF_p2"); g2 = k.uid("PF_g2")
        k(f"s_cmp_lg_u32 s{sWAVE}, 0\ns_cbranch_scc1 {g2}_end")
        k.label(loop)
        k.label(p2)
        k(f"buffer_load_dword v3, v2, {WSR}, s{sVXC} offen sc1\ns_waitcnt vmcnt(0)")
        k(f"v_cmp_gt_u32 vcc, 28, v3\ns_cbranch_vccz {g2}")
        k(f"s_sleep 1\ns_sub_u32 s{sSPIN}, s{sSPIN}, 1\ns_cbranch_scc0 {p2}\ns_branch {abort}")
        k.label(g2)
        k(f"s_add_u32 s{sT0}, s{sSTEP}, 1\nv_mov_b32 v3, s{sT0}\ns_mov_b32 s{sT0}, {FLAGV}")
        k(f"s_mov_b64 exec, 1\nbuffer_store_dword v3, v2, {WSR}, s{sT0} offen {ST}\ns_mov_b64 exec, -1")
        k(f"s_add_u32 s{sSTEP}, s{sSTEP}, 1\ns_add_u32 s{sVXC}, s{sVXC}, 16")
        k(f"s_cmp_lt_u32 s{sSTEP}, {cfg['nsteps']}\ns_cbranch_scc1 {loop}")
        k.label(f"{g2}_end")
        k("s_waitcnt vmcnt(0)")
        k("s_endpgm")

def gen_chain_test(cfg):
    k = K()
    name = "chain_kernel"
    k(f'.amdgcn_target "amdgcn-amd-amdhsa--gfx950"\n.text\n.globl {name}\n.p2align 8\n.type {name},@function\n{name}:')
    k("s_load_dwordx4 s[4:7], s[0:1], 0")
    if cfg.get("tot"): k("s_memrealtime s[96:97]")
    k("s_getreg_b32 s3, hwreg(HW_REG_XCC_ID)\ns_and_b32 s3, s3, 15")
    k("s_waitcnt lgkmcnt(0)")
    k(f"s_mov_b32 s{sWS}, s4\ns_mov_b32 s{sWS+1}, s5\ns_mov_b32 s{sWS+2}, {WS_BYTES}\ns_mov_b32 s{sWS+3}, 0x20000")
    if cfg.get("same_xcd", True):
        k("s_cmp_lg_u32 s3, 0\ns_cbranch_scc1 L_exit")
    k("v_mov_b32 v1, 0\nv_mov_b32 v2, 1")
    k("v_cmp_eq_u32 vcc, 0, v0\ns_and_saveexec_b64 s[20:21], vcc\ns_cbranch_execz L_t")
    k("global_atomic_add v3, v1, v2, s[6:7] sc0\ns_waitcnt vmcnt(0)\nds_write_b32 v1, v3\ns_waitcnt lgkmcnt(0)")
    k.label("L_t")
    k("s_mov_b64 exec, s[20:21]\ns_barrier\nds_read_b32 v3, v1\ns_waitcnt lgkmcnt(0)\ns_nop 0")
    k(f"v_readfirstlane_b32 s{sRANK}, v3")
    k(f"v_lshrrev_b32 v3, 6, v0\ns_nop 0\nv_readfirstlane_b32 s{sWAVE}, v3")
    k("s_barrier")
    k(f"s_mov_b32 s{sSPIN}, {SPIN}")

    k(f"s_cmp_ge_u32 s{sRANK}, 30\ns_cbranch_scc1 L_exit")
    k(f"s_cmp_ge_u32 s{sRANK}, 16\ns_cbranch_scc1 L_roleB")
    emit_chain_A(k, cfg, "L_abort")
    k.label("L_roleB")
    emit_chain_B(k, cfg, "L_abort")
    for t in cfg.get("outofline", []): k(t)
    k.label("L_abort")
    k(f"v_mov_b32 v1, 0\nv_mov_b32 v2, 1\nglobal_atomic_add v1, v2, s[6:7] offset:4\ns_waitcnt vmcnt(0)")
    k.label("L_exit")
    k("s_endpgm")
    k(f""".section .rodata,"a"
.p2align 6
.amdhsa_kernel {name}
  .amdhsa_next_free_vgpr 512
  .amdhsa_next_free_sgpr 102
  .amdhsa_accum_offset 256
  .amdhsa_group_segment_fixed_size 0
  .amdhsa_kernarg_size 16
  .amdhsa_user_sgpr_count 2
  .amdhsa_user_sgpr_kernarg_segment_ptr 1
  .amdhsa_system_sgpr_workgroup_id_x 1
.end_amdhsa_kernel""")
    return k.text()

if __name__ == "__main__":
    import sys, kfw
    cfg = dict(nsteps=63, prof=("prof" in sys.argv))
    t = gen_chain_test(cfg)
    open("chain_test.s", "w").write(t)
    p = kfw.check(t); w = kfw.check_waits(t)
    print("hazards", len(p), "waits", len(w))
```

```python
import sys
from kfw import *
from layout import *
import chain, workers, prepk, prep2
from chain import sWS, sRANK, sWAVE, sT0, sT1, sSPIN, SPIN, sMODE
from prepk import srd, KARG, kd

NAME = "recurrent_scan__memory_aug_recurrent_mem_tr__glu_gated_reglu__prompt"
HEADER = open("cdna_kernels/" + NAME + ".s.ref").read().split("; Override launch geometry")[0]

def emit_main(k, cfg, name):
    VXP, XAP, PVP = cfg.get("vx_par", 2), cfg.get("xa_par", 3), cfg.get("pv_par", 4)
    VMP = cfg.get("vm_par", 1)
    nVX, nXA, nPV, nFF, nVM = 28 * VXP, 16 * XAP, 7 * PVP, 64, 28 * VMP
    t1, t2, t3, t4 = nVX, nVX + nXA, nVX + nXA + nPV, nVX + nXA + nPV + nFF
    t5 = t4 + nVM
    assert t5 <= 224
    k(f".globl {name}\n.p2align 8\n.type {name},@function\n{name}:")
    k("s_cmp_ge_u32 s2, 256\ns_cbranch_scc1 M_exit")
    diag = cfg.get("diag")
    hd = cfg.get("hdiag")
    def mark(word, vt=247, sreg=None):
        if not hd: return
        sk = k.uid("HD")
        k(f"s_cmp_lg_u32 s{sWAVE}, 0\ns_cbranch_scc1 {sk}")
        if sreg is None: k("s_memrealtime s[80:81]\ns_waitcnt lgkmcnt(0)")
        k(f"v_mov_b32 v{vt+1}, 0\nv_mov_b32 v{vt}, s{80 if sreg is None else sreg}\ns_mov_b64 exec, 1\nglobal_atomic_umax v{vt+1}, v{vt}, s[4:5] offset:{4*word} sc1\ns_mov_b64 exec, -1")
        k.label(sk)
    cfg["mark"] = mark
    prep2.DIAG = bool(diag)
    if diag:
        for i in range(12): k(f"s_mov_b32 s{60+2*i}, 0")
    if diag: k("s_memrealtime s[96:97]\ns_mov_b32 s98, 0\ns_mov_b32 s44, 0")
    srd(k, sWS, KARG["ws"], WS_BYTES)
    k(f"s_load_dwordx2 s[4:5], s[0:1], {KARG['dbg']}")
    k("s_getreg_b32 s3, hwreg(HW_REG_XCC_ID)\ns_and_b32 s3, s3, 15")
    k(f"s_mov_b32 s{sSPIN}, {SPIN}")
    k(f"v_lshrrev_b32 v3, 6, v0\ns_nop 0\nv_readfirstlane_b32 s{sWAVE}, v3")
    k("s_waitcnt lgkmcnt(0)")
    if hd:
        k("s_cmp_lg_u32 s2, 0\ns_cbranch_scc1 M_hd0"); mark(1); k.label("M_hd0")
    k("s_and_b32 s3, s3, 7")
    FUSED = True
    k(f"s_lshl_b32 s{sT0}, s3, 5")
    k(f"v_mov_b32 v254, 1\nv_mov_b32 v253, s{sT0}")
    k(f"v_cmp_eq_u32 vcc, {cfg.get('reg_tid', 192) - 192} + 192 if False else 0, v0" if False else f"v_mov_b32 v252, {cfg.get('reg_tid', 192)}\nv_cmp_eq_u32 vcc, v252, v0\ns_and_saveexec_b64 s[20:21], vcc\ns_cbranch_execz M_reg_issued")
    k("global_atomic_add v254, v253, v254, s[4:5] sc0 sc1")
    k.label("M_reg_issued")
    k("s_mov_b64 exec, s[20:21]")
    k("s_cmp_ge_u32 s2, 224\ns_cbranch_scc1 M_lninit")
    k("s_and_b32 s20, s2, 7\ns_lshr_b32 s21, s2, 3\ns_mul_i32 s22, s21, 9363\ns_lshr_b32 s22, s22, 16")
    k("s_lshl_b32 s20, s20, 2\ns_add_u32 s20, s20, s22\ns_mul_i32 s20, s20, 7")
    k("s_mul_i32 s22, s22, 7\ns_sub_u32 s21, s21, s22\ns_add_u32 s55, s20, s21")
    prep2.emit_gemm_task(k, 55, "M_phase0_done", "M_abort")
    k.label("M_lninit")
    k("s_sub_u32 s55, s2, 224")
    k("s_lshl_b32 s56, s55, 1")
    prep2.stamp(k, 0)
    prep2.emit_ln_segment(k, 56, pre="load")
    prep2.emit_init(k, 55)
    prep2.stamp(k, 1)
    prep2.emit_ln_segment(k, 56, pre="have", X0=112, last=False)
    prep2.stamp(k, 2)
    k("s_add_u32 s56, s56, 1")
    prep2.emit_ln_segment(k, 56, pre="have", X0=144, need_init="M_abort", nsig=2)
    prep2.stamp(k, 3)
    k.label("M_phase0_done")
    mark(2)
    prep2.dump_stamps(k)
    if diag: k("s_memrealtime s[86:87]")
    k("s_waitcnt vmcnt(0)\nv_mov_b32 v1, 0")
    k("v_cmp_eq_u32 vcc, v252, v0\ns_and_saveexec_b64 s[20:21], vcc\ns_cbranch_execz M_reg_done")
    k("ds_write_b32 v1, v254\ns_waitcnt lgkmcnt(0)")
    k.label("M_reg_done")
    k("s_mov_b64 exec, s[20:21]\ns_barrier\nds_read_b32 v3, v1\ns_waitcnt lgkmcnt(0)\ns_nop 0")
    k(f"v_readfirstlane_b32 s{sRANK}, v3")
    k("s_barrier")
    prep2.wait_init_wg(k, 16, "M_abort")
    if diag: k("s_memrealtime s[84:85]")
    def load_counts(k, vt):
        k(f"v_mbcnt_lo_u32_b32 v{vt}, -1, 0\nv_mbcnt_hi_u32_b32 v{vt}, -1, v{vt}\nv_and_b32 v{vt}, 7, v{vt}\nv_lshlrev_b32 v{vt}, 5, v{vt}")
        k(f"global_load_dword v{vt+1}, v{vt}, s[4:5] sc1\ns_waitcnt vmcnt(0)")
        k(f"v_readlane_b32 s{sT1}, v{vt+1}, 0")
        for x in range(1, 8):
            k(f"v_readlane_b32 s{sT0}, v{vt+1}, {x}\ns_add_u32 s{sT1}, s{sT1}, s{sT0}")
    def wait_all(k, vt):
        top = k.uid("M_wa"); done = k.uid("M_wad")
        k.label(top)
        load_counts(k, vt)
        k(f"s_cmp_ge_u32 s{sT1}, 256\ns_cbranch_scc1 {done}")
        k(f"s_sleep 4\ns_sub_u32 s{sSPIN}, s{sSPIN}, 1\ns_cbranch_scc0 {top}\ns_branch M_abort")
        k.label(done)
    def delay(k, seg):
        if seg is None: return
        k(f"s_mov_b32 s{sT0}, {C_VX + 16*seg}\nv_mov_b32 v8, 0")
        workers.wait_counter(k, sT0, 28, 9, 8, "M_abort", sleep=8)
    def mode_hook(k, vt):
        top = k.uid("M_md"); done = k.uid("M_mdd")
        k.label(top)
        load_counts(k, vt)
        k(f"v_readlane_b32 s{sT0}, v{vt+1}, 0\ns_mov_b32 s{sMODE}, 0\ns_cmp_ge_u32 s{sT0}, {31 if cfg.get('force_slow') is None else 999}\ns_cbranch_scc1 {done}")
        k(f"s_mov_b32 s{sMODE}, 1\ns_cmp_ge_u32 s{sT1}, 256\ns_cbranch_scc1 {done}")
        k(f"s_sleep 4\ns_sub_u32 s{sSPIN}, s{sSPIN}, 1\ns_cbranch_scc0 {top}\ns_branch M_abort")
        k.label(done)
    k(f"s_cmp_lt_u32 s{sRANK}, 32\ns_cbranch_scc0 M_overflow")
    k(f"s_lshl_b32 s{sT0}, s3, 5\ns_add_u32 s{sRANK}, s{sRANK}, s{sT0}")
    k.label("M_dispatch")
    k(f"s_cmp_lt_u32 s{sRANK}, 30\ns_cbranch_scc1 M_chain")
    k(f"s_cmp_eq_u32 s{sRANK}, 30\ns_cbranch_scc1 M_helper")
    k(f"s_cmp_lt_u32 s{sRANK}, 32\ns_cbranch_scc1 M_exit")
    k(f"s_sub_u32 s{sRANK}, s{sRANK}, 32")
    k(f"s_cmp_lt_u32 s{sRANK}, {t1}\ns_cbranch_scc1 M_vx")
    k(f"s_cmp_lt_u32 s{sRANK}, {t2}\ns_cbranch_scc1 M_xa")
    k(f"s_cmp_lt_u32 s{sRANK}, {t3}\ns_cbranch_scc1 M_pv")
    k(f"s_cmp_lt_u32 s{sRANK}, {t4}\ns_cbranch_scc1 M_ff")
    k(f"s_cmp_lt_u32 s{sRANK}, {t5}\ns_cbranch_scc1 M_vm")
    k("s_branch M_exit")
    k.label("M_overflow")
    wait_all(k, 8)
    k(f"s_sub_u32 s20, s{sRANK}, 32")
    for x in range(7):
        k(f"v_readlane_b32 s{sT0}, v9, {x}\ns_max_u32 s{sT0}, s{sT0}, 32\ns_sub_u32 s{sT0}, s{sT0}, 32")
        k(f"s_cmp_gt_u32 s3, {x}\ns_cselect_b32 s{sT0}, s{sT0}, 0\ns_add_u32 s20, s20, s{sT0}")
    for x in range(8):
        nx = k.uid("M_es")
        k(f"v_readlane_b32 s{sT0}, v9, {x}\ns_min_u32 s{sT0}, s{sT0}, 32\ns_sub_u32 s21, 32, s{sT0}")
        k(f"s_cmp_lt_u32 s20, s21\ns_cbranch_scc0 {nx}")
        k(f"s_add_u32 s{sRANK}, s20, s{sT0}\ns_add_u32 s{sRANK}, s{sRANK}, {32*x}\ns_branch M_dispatch")
        k.label(nx)
        k("s_sub_u32 s20, s20, s21")
    k("s_branch M_exit")
    k.label("M_chain")
    ccfg = dict(nsteps=63, modes=["", "sc1"], mode_hook=mode_hook, vxwait=True, pflag_pos=2, mflag_pos=1, fused=True, stagger=False, pace=3, pace2=10)
    if diag: ccfg.update(dict(tot=True, trace=True))
    if hd: ccfg["mark"] = mark
    ccfg.update(cfg.get("chain", {}))
    k(f"s_cmp_ge_u32 s{sRANK}, 16\ns_cbranch_scc1 M_chainB")
    chain.emit_chain_A(k, ccfg, "M_abort")
    k.label("M_chainB")
    if diag: k("s_mov_b32 s98, 1")
    chain.emit_chain_B(k, ccfg, "M_abort")
    wcfg = dict(vx_par=VXP, xa_par=XAP, pv_par=PVP, vm_par=VMP, s0=cfg.get('s0', 32), fused=True, ln_in_ffn=False)
    k.label("M_helper")
    if diag: k("s_mov_b32 s98, 6")
    chain.emit_helper(k, ccfg, "M_abort")
    k.label("M_vx")
    if diag: k("s_mov_b32 s98, 2")
    workers.emit_vxgen(k, wcfg, "M_abort")
    k.label("M_vm")
    if diag: k("s_mov_b32 s98, 7")
    k(f"s_sub_u32 s{sRANK}, s{sRANK}, {t4}")
    delay(k, cfg.get("vm_delay", None))
    workers.emit_vxgen(k, wcfg, "M_abort", "vm")
    k.label("M_xa")
    if diag: k("s_mov_b32 s98, 3")
    k(f"s_sub_u32 s{sRANK}, s{sRANK}, {t1}")
    delay(k, cfg.get("xa_delay", None))
    workers.emit_xattn(k, wcfg, "M_abort")
    k.label("M_pv")
    if diag: k("s_mov_b32 s98, 4")
    k(f"s_sub_u32 s{sRANK}, s{sRANK}, {t2}")
    workers.emit_pvout(k, wcfg, "M_abort")
    k.label("M_ff")
    if diag: k("s_mov_b32 s98, 5")
    k(f"s_sub_u32 s{sRANK}, s{sRANK}, {t3}")
    delay(k, cfg.get("ff_delay", None))
    workers.emit_ffn(k, wcfg, "M_abort")
    for t in ccfg.get("outofline", []) + wcfg.get("outofline", []): k(t)
    if hd:
        txt = "\n".join(k.lines)
        head, body = txt.split("M_chain:", 1)
        body = body.replace("s_endpgm", "s_branch M_hdexit")
        k.lines = (head + "M_chain:" + body).split("\n")
        k.label("M_hdexit")
        k("s_waitcnt vmcnt(0)")
        mark(9)
        k("s_waitcnt vmcnt(0)\ns_endpgm")
    if diag:
        txt = "\n".join(k.lines)
        head, body = txt.split("M_chain:", 1)
        body = body.replace("s_endpgm", "s_branch M_diag")
        k.lines = (head + "M_chain:" + body).split("\n")
        k.label("M_diag")
        k(f"s_cmp_lg_u32 s{sWAVE}, 0\ns_cbranch_scc1 M_exit")
        k("s_memrealtime s[94:95]\ns_waitcnt lgkmcnt(0)")
        k(f"s_lshl_b32 s{sT0}, s2, 5\ns_add_u32 s{sT0}, s{sT0}, {PROF+16384}")
        k("v_mov_b32 v1, 0")
        for i, r in enumerate(("s86", f"s{sRANK}", "s96", "s94", "s44", "s88", "s98", "s84")):
            k(f"v_mov_b32 v2, {r}\nbuffer_store_dword v2, v1, s[{sWS}:{sWS+3}], s{sT0} offen offset:{4*i}")
        k("s_waitcnt vmcnt(0)\ns_endpgm")
    k.label("M_abort")
    k("v_mov_b32 v1, 0\nv_mov_b32 v2, 1\nglobal_atomic_add v1, v2, s[4:5] offset:20 sc1\ns_waitcnt vmcnt(0)")
    k.label("M_exit")
    k("s_endpgm")

def build(cfg):
    k = K()
    k(HEADER.rstrip())
    k("; @launch grid=(256,1,1) block=(256,1,1) lds=151552")
    k('.amdgcn_target "amdgcn-amd-amdhsa--gfx950"\n.text')
    emit_main(k, cfg, NAME + "_kernel")
    k('.section .rodata,"a"')
    k(kd(NAME + "_kernel", 512, 256, 102))
    return k.text()

if __name__ == "__main__":
    import kfw
    cfg = {}
    if "diag" in sys.argv: cfg["diag"] = True; sys.argv.remove("diag")
    for a in list(sys.argv[1:]):
        if "=" in a:
            kk_, vv = a.split("="); cfg[kk_] = eval(vv); sys.argv.remove(a)
    t = build(cfg)
    out = sys.argv[1] if len(sys.argv) > 1 else "cdna_kernels/" + NAME + ".s"
    open(out, "w").write(t)
    print("bytes", len(t), "lines", t.count("\n"), "hazards", len(kfw.check(t)))
```

```python
import sys
from kfw import *
from layout import *
import chain, workers, prepk, prep2
from chain import sWS, sRANK, sWAVE, sT0, sT1, sSPIN, SPIN, sMODE
from prepk import srd, KARG, kd

NAME = "recurrent_scan__memory_aug_recurrent_mem_tr__glu_gated_reglu__prompt"
HEADER = open("cdna_kernels/" + NAME + ".s.ref").read().split("; Override launch geometry")[0]

def emit_main(k, cfg, name):
    VXP, XAP, PVP = cfg.get("vx_par", 2), cfg.get("xa_par", 3), cfg.get("pv_par", 4)
    VMP = cfg.get("vm_par", 1)
    nVX, nXA, nPV, nFF, nVM = 28 * VXP, 16 * XAP, 7 * PVP, 64, 28 * VMP
    t1, t2, t3, t4 = nVX, nVX + nXA, nVX + nXA + nPV, nVX + nXA + nPV + nFF
    t5 = t4 + nVM
    assert t5 <= 224
    k(f".globl {name}\n.p2align 8\n.type {name},@function\n{name}:")
    k("s_cmp_ge_u32 s2, 256\ns_cbranch_scc1 M_exit")
    if cfg.get("codepf", True):
        k("s_getpc_b64 s[6:7]")
        k.label("M_pc")
        k(f"s_lshr_b32 s14, s2, 3\ns_and_b32 s14, s14, 31\ns_mul_i32 s14, s14, (((M_code_end-{name})+4095)/4096)*128")
        k(f"s_sub_u32 s6, s6, M_pc-{name}\ns_subb_u32 s7, s7, 0")
        k(f"v_lshlrev_b32 v255, 7, v0\nv_add_u32 v255, s14, v255")
        k(f"v_cmp_gt_u32 vcc, (((M_code_end-{name})+4095)/4096), v0\ns_and_saveexec_b64 s[20:21], vcc\ns_cbranch_execz M_pf_done")
        k("global_load_dword v255, v255, s[6:7]")
        k.label("M_pf_done")
        k("s_mov_b64 exec, s[20:21]")
    diag = cfg.get("diag")
    hd = cfg.get("hdiag")
    def mark(word, vt=247, sreg=None):
        if not hd: return
        sk = k.uid("HD")
        k(f"s_cmp_lg_u32 s{sWAVE}, 0\ns_cbranch_scc1 {sk}")
        if sreg is None: k("s_memrealtime s[80:81]\ns_waitcnt lgkmcnt(0)")
        k(f"v_mov_b32 v{vt+1}, 0\nv_mov_b32 v{vt}, s{80 if sreg is None else sreg}\ns_mov_b64 exec, 1\nglobal_atomic_umax v{vt+1}, v{vt}, s[4:5] offset:{4*word} sc1\ns_mov_b64 exec, -1")
        k.label(sk)
    cfg["mark"] = mark
    prep2.DIAG = bool(diag)
    if diag:
        for i in range(12): k(f"s_mov_b32 s{60+2*i}, 0")
    if diag: k("s_memrealtime s[96:97]\ns_mov_b32 s98, 0\ns_mov_b32 s44, 0")
    srd(k, sWS, KARG["ws"], WS_BYTES)
    k(f"s_load_dwordx2 s[4:5], s[0:1], {KARG['dbg']}")
    k("s_getreg_b32 s3, hwreg(HW_REG_XCC_ID)\ns_and_b32 s3, s3, 15")
    k(f"s_mov_b32 s{sSPIN}, {SPIN}")
    k(f"v_lshrrev_b32 v3, 6, v0\ns_nop 0\nv_readfirstlane_b32 s{sWAVE}, v3")
    k("s_waitcnt lgkmcnt(0)")
    if hd:
        k("s_cmp_lg_u32 s2, 0\ns_cbranch_scc1 M_hd0"); mark(1); k.label("M_hd0")
    k("s_and_b32 s3, s3, 7")
    FUSED = True
    k(f"s_lshl_b32 s{sT0}, s3, 5")
    k(f"v_mov_b32 v254, 1\nv_mov_b32 v253, s{sT0}")
    k(f"v_cmp_eq_u32 vcc, {cfg.get('reg_tid', 192) - 192} + 192 if False else 0, v0" if False else f"v_mov_b32 v252, {cfg.get('reg_tid', 192)}\nv_cmp_eq_u32 vcc, v252, v0\ns_and_saveexec_b64 s[20:21], vcc\ns_cbranch_execz M_reg_issued")
    k("global_atomic_add v254, v253, v254, s[4:5] sc0 sc1")
    k.label("M_reg_issued")
    k("s_mov_b64 exec, s[20:21]")
    k("s_cmp_ge_u32 s2, 224\ns_cbranch_scc1 M_lninit")
    k("s_and_b32 s20, s2, 7\ns_lshr_b32 s21, s2, 3\ns_mul_i32 s22, s21, 9363\ns_lshr_b32 s22, s22, 16")
    k("s_lshl_b32 s20, s20, 2\ns_add_u32 s20, s20, s22\ns_mul_i32 s20, s20, 7")
    k("s_mul_i32 s22, s22, 7\ns_sub_u32 s21, s21, s22\ns_add_u32 s55, s20, s21")
    prep2.emit_gemm_task(k, 55, "M_phase0_done", "M_abort")
    k.label("M_lninit")
    k("s_sub_u32 s55, s2, 224")
    k("s_lshl_b32 s56, s55, 1")
    prep2.stamp(k, 0)
    prep2.emit_ln_segment(k, 56, pre="load")
    prep2.emit_init(k, 55)
    prep2.stamp(k, 1)
    prep2.emit_ln_segment(k, 56, pre="have", X0=112, last=False)
    prep2.stamp(k, 2)
    k("s_add_u32 s56, s56, 1")
    prep2.emit_ln_segment(k, 56, pre="have", X0=144, need_init="M_abort", nsig=2)
    prep2.stamp(k, 3)
    k.label("M_phase0_done")
    mark(2)
    prep2.dump_stamps(k)
    if diag: k("s_memrealtime s[86:87]")
    k("s_waitcnt vmcnt(0)\nv_mov_b32 v1, 0")
    k("v_cmp_eq_u32 vcc, v252, v0\ns_and_saveexec_b64 s[20:21], vcc\ns_cbranch_execz M_reg_done")
    k("ds_write_b32 v1, v254\ns_waitcnt lgkmcnt(0)")
    k.label("M_reg_done")
    k("s_mov_b64 exec, s[20:21]\ns_barrier\nds_read_b32 v3, v1\ns_waitcnt lgkmcnt(0)\ns_nop 0")
    k(f"v_readfirstlane_b32 s{sRANK}, v3")
    k("s_barrier")
    prep2.wait_init_wg(k, 16, "M_abort")
    if diag: k("s_memrealtime s[84:85]")
    def load_counts(k, vt):
        k(f"v_mbcnt_lo_u32_b32 v{vt}, -1, 0\nv_mbcnt_hi_u32_b32 v{vt}, -1, v{vt}\nv_and_b32 v{vt}, 7, v{vt}\nv_lshlrev_b32 v{vt}, 5, v{vt}")
        k(f"global_load_dword v{vt+1}, v{vt}, s[4:5] sc1\ns_waitcnt vmcnt(0)")
        k(f"v_readlane_b32 s{sT1}, v{vt+1}, 0")
        for x in range(1, 8):
            k(f"v_readlane_b32 s{sT0}, v{vt+1}, {x}\ns_add_u32 s{sT1}, s{sT1}, s{sT0}")
    def wait_all(k, vt):
        top = k.uid("M_wa"); done = k.uid("M_wad")
        k.label(top)
        load_counts(k, vt)
        k(f"s_cmp_ge_u32 s{sT1}, 256\ns_cbranch_scc1 {done}")
        k(f"s_sleep 4\ns_sub_u32 s{sSPIN}, s{sSPIN}, 1\ns_cbranch_scc0 {top}\ns_branch M_abort")
        k.label(done)
    def delay(k, seg):
        if seg is None: return
        k(f"s_mov_b32 s{sT0}, {C_VX + 16*seg}\nv_mov_b32 v8, 0")
        workers.wait_counter(k, sT0, 28, 9, 8, "M_abort", sleep=8)
    def mode_hook(k, vt):
        top = k.uid("M_md"); done = k.uid("M_mdd")
        k.label(top)
        load_counts(k, vt)
        k(f"v_readlane_b32 s{sT0}, v{vt+1}, 0\ns_mov_b32 s{sMODE}, 0\ns_cmp_ge_u32 s{sT0}, {31 if cfg.get('force_slow') is None else 999}\ns_cbranch_scc1 {done}")
        k(f"s_mov_b32 s{sMODE}, 1\ns_cmp_ge_u32 s{sT1}, 256\ns_cbranch_scc1 {done}")
        k(f"s_sleep 4\ns_sub_u32 s{sSPIN}, s{sSPIN}, 1\ns_cbranch_scc0 {top}\ns_branch M_abort")
        k.label(done)
    k(f"s_cmp_lt_u32 s{sRANK}, 32\ns_cbranch_scc0 M_overflow")
    k(f"s_lshl_b32 s{sT0}, s3, 5\ns_add_u32 s{sRANK}, s{sRANK}, s{sT0}")
    k.label("M_dispatch")
    k(f"s_cmp_lt_u32 s{sRANK}, 30\ns_cbranch_scc1 M_chain")
    k(f"s_cmp_eq_u32 s{sRANK}, 30\ns_cbranch_scc1 M_helper")
    k(f"s_cmp_lt_u32 s{sRANK}, 32\ns_cbranch_scc1 M_exit")
    k(f"s_sub_u32 s{sRANK}, s{sRANK}, 32")
    k(f"s_cmp_lt_u32 s{sRANK}, {t1}\ns_cbranch_scc1 M_vx")
    k(f"s_cmp_lt_u32 s{sRANK}, {t2}\ns_cbranch_scc1 M_xa")
    k(f"s_cmp_lt_u32 s{sRANK}, {t3}\ns_cbranch_scc1 M_pv")
    k(f"s_cmp_lt_u32 s{sRANK}, {t4}\ns_cbranch_scc1 M_ff")
    k(f"s_cmp_lt_u32 s{sRANK}, {t5}\ns_cbranch_scc1 M_vm")
    k("s_branch M_exit")
    k.label("M_overflow")
    wait_all(k, 8)
    k(f"s_sub_u32 s20, s{sRANK}, 32")
    for x in range(7):
        k(f"v_readlane_b32 s{sT0}, v9, {x}\ns_max_u32 s{sT0}, s{sT0}, 32\ns_sub_u32 s{sT0}, s{sT0}, 32")
        k(f"s_cmp_gt_u32 s3, {x}\ns_cselect_b32 s{sT0}, s{sT0}, 0\ns_add_u32 s20, s20, s{sT0}")
    for x in range(8):
        nx = k.uid("M_es")
        k(f"v_readlane_b32 s{sT0}, v9, {x}\ns_min_u32 s{sT0}, s{sT0}, 32\ns_sub_u32 s21, 32, s{sT0}")
        k(f"s_cmp_lt_u32 s20, s21\ns_cbranch_scc0 {nx}")
        k(f"s_add_u32 s{sRANK}, s20, s{sT0}\ns_add_u32 s{sRANK}, s{sRANK}, {32*x}\ns_branch M_dispatch")
        k.label(nx)
        k("s_sub_u32 s20, s20, s21")
    k("s_branch M_exit")
    k.label("M_chain")
    ccfg = dict(nsteps=63, modes=["", "sc1"], mode_hook=mode_hook, vxwait=True, pflag_pos=2, mflag_pos=1, fused=True, stagger=False, pace=3, pace2=10)
    if diag: ccfg.update(dict(tot=True, trace=True))
    if hd: ccfg["mark"] = mark
    ccfg.update(cfg.get("chain", {}))
    k(f"s_cmp_ge_u32 s{sRANK}, 16\ns_cbranch_scc1 M_chainB")
    chain.emit_chain_A(k, ccfg, "M_abort")
    k.label("M_chainB")
    if diag: k("s_mov_b32 s98, 1")
    chain.emit_chain_B(k, ccfg, "M_abort")
    wcfg = dict(vx_par=VXP, xa_par=XAP, pv_par=PVP, vm_par=VMP, s0=cfg.get('s0', 32), fused=True, ln_in_ffn=False)
    k.label("M_helper")
    if diag: k("s_mov_b32 s98, 6")
    chain.emit_helper(k, ccfg, "M_abort")
    k.label("M_vx")
    if diag: k("s_mov_b32 s98, 2")
    workers.emit_vxgen(k, wcfg, "M_abort")
    k.label("M_vm")
    if diag: k("s_mov_b32 s98, 7")
    k(f"s_sub_u32 s{sRANK}, s{sRANK}, {t4}")
    delay(k, cfg.get("vm_delay", None))
    workers.emit_vxgen(k, wcfg, "M_abort", "vm")
    k.label("M_xa")
    if diag: k("s_mov_b32 s98, 3")
    k(f"s_sub_u32 s{sRANK}, s{sRANK}, {t1}")
    delay(k, cfg.get("xa_delay", None))
    workers.emit_xattn(k, wcfg, "M_abort")
    k.label("M_pv")
    if diag: k("s_mov_b32 s98, 4")
    k(f"s_sub_u32 s{sRANK}, s{sRANK}, {t2}")
    workers.emit_pvout(k, wcfg, "M_abort")
    k.label("M_ff")
    if diag: k("s_mov_b32 s98, 5")
    k(f"s_sub_u32 s{sRANK}, s{sRANK}, {t3}")
    delay(k, cfg.get("ff_delay", None))
    workers.emit_ffn(k, wcfg, "M_abort")
    for t in ccfg.get("outofline", []) + wcfg.get("outofline", []): k(t)
    if hd:
        txt = "\n".join(k.lines)
        head, body = txt.split("M_chain:", 1)
        body = body.replace("s_endpgm", "s_branch M_hdexit")
        k.lines = (head + "M_chain:" + body).split("\n")
        k.label("M_hdexit")
        k("s_waitcnt vmcnt(0)")
        mark(9)
        k("s_waitcnt vmcnt(0)\ns_endpgm")
    if diag:
        txt = "\n".join(k.lines)
        head, body = txt.split("M_chain:", 1)
        body = body.replace("s_endpgm", "s_branch M_diag")
        k.lines = (head + "M_chain:" + body).split("\n")
        k.label("M_diag")
        k(f"s_cmp_lg_u32 s{sWAVE}, 0\ns_cbranch_scc1 M_exit")
        k("s_memrealtime s[94:95]\ns_waitcnt lgkmcnt(0)")
        k(f"s_lshl_b32 s{sT0}, s2, 5\ns_add_u32 s{sT0}, s{sT0}, {PROF+16384}")
        k("v_mov_b32 v1, 0")
        for i, r in enumerate(("s86", f"s{sRANK}", "s96", "s94", "s44", "s88", "s98", "s84")):
            k(f"v_mov_b32 v2, {r}\nbuffer_store_dword v2, v1, s[{sWS}:{sWS+3}], s{sT0} offen offset:{4*i}")
        k("s_waitcnt vmcnt(0)\ns_endpgm")
    k.label("M_abort")
    k("v_mov_b32 v1, 0\nv_mov_b32 v2, 1\nglobal_atomic_add v1, v2, s[4:5] offset:20 sc1\ns_waitcnt vmcnt(0)")
    k.label("M_exit")
    k("s_endpgm")
    k.label("M_code_end")
    k(".fill 1100, 4, 0xbf800000")

def build(cfg):
    k = K()
    k(HEADER.rstrip())
    k("; @launch grid=(256,1,1) block=(256,1,1) lds=151552")
    k('.amdgcn_target "amdgcn-amd-amdhsa--gfx950"\n.text')
    emit_main(k, cfg, NAME + "_kernel")
    k('.section .rodata,"a"')
    k(kd(NAME + "_kernel", 512, 256, 102))
    return k.text()

if __name__ == "__main__":
    import kfw
    cfg = {}
    if "diag" in sys.argv: cfg["diag"] = True; sys.argv.remove("diag")
    for a in list(sys.argv[1:]):
        if "=" in a:
            kk_, vv = a.split("="); cfg[kk_] = eval(vv); sys.argv.remove(a)
    t = build(cfg)
    out = sys.argv[1] if len(sys.argv) > 1 else "cdna_kernels/" + NAME + ".s"
    open(out, "w").write(t)
    print("bytes", len(t), "lines", t.count("\n"), "hazards", len(kfw.check(t)))
```

```python
import sys
from kfw import *
from layout import *
import chain, workers, prepk, prep2
from chain import sWS, sRANK, sWAVE, sT0, sT1, sSPIN, SPIN, sMODE
from prepk import srd, KARG, kd

NAME = "recurrent_scan__memory_aug_recurrent_mem_tr__glu_gated_reglu__prompt"
HEADER = open("cdna_kernels/" + NAME + ".s.ref").read().split("; Override launch geometry")[0]

def emit_main(k, cfg, name):
    VXP, XAP, PVP = cfg.get("vx_par", 2), cfg.get("xa_par", 3), cfg.get("pv_par", 4)
    VMP = cfg.get("vm_par", 1)
    nVX, nXA, nPV, nFF, nVM = 28 * VXP, 16 * XAP, 7 * PVP, 64, 28 * VMP
    t1, t2, t3, t4 = nVX, nVX + nXA, nVX + nXA + nPV, nVX + nXA + nPV + nFF
    t5 = t4 + nVM
    assert t5 <= 224
    k(f".globl {name}\n.p2align 8\n.type {name},@function\n{name}:")
    k("s_cmp_ge_u32 s2, 256\ns_cbranch_scc1 M_exit")
    if cfg.get("codepf", True):
        k("s_getpc_b64 s[6:7]")
        k.label("M_pc")
        k(f"s_lshr_b32 s14, s2, 3\ns_and_b32 s14, s14, 31\ns_mul_i32 s14, s14, (((M_code_end-{name})+4095)/4096)*128")
        k(f"s_sub_u32 s6, s6, M_pc-{name}\ns_subb_u32 s7, s7, 0")
        k(f"v_lshlrev_b32 v255, 7, v0\nv_add_u32 v255, s14, v255")
        k(f"v_cmp_gt_u32 vcc, (((M_code_end-{name})+4095)/4096), v0\ns_and_saveexec_b64 s[20:21], vcc\ns_cbranch_execz M_pf_done")
        k("global_load_dword v255, v255, s[6:7]")
        k.label("M_pf_done")
        k("s_mov_b64 exec, s[20:21]")
    diag = cfg.get("diag")
    hd = cfg.get("hdiag")
    def mark(word, vt=247, only=None):
        if not hd: return
        sk = k.uid("HD")
        k(f"s_cmp_lg_u32 s{sWAVE}, 0\ns_cbranch_scc1 {sk}")
        if only: k(f"s_cmp_lg_u32 s{only[0]}, {only[1]}\ns_cbranch_scc1 {sk}")
        k("s_memrealtime s[80:81]\ns_waitcnt lgkmcnt(0)")
        k(f"v_mov_b32 v{vt+1}, 0\nv_mov_b32 v{vt}, s80\ns_mov_b64 exec, 1\nglobal_store_dword v{vt+1}, v{vt}, s[4:5] offset:{4*word} sc1\ns_mov_b64 exec, -1")
        k.label(sk)
    cfg["mark"] = mark
    prep2.DIAG = bool(diag)
    if diag:
        for i in range(12): k(f"s_mov_b32 s{60+2*i}, 0")
    if diag: k("s_memrealtime s[96:97]\ns_mov_b32 s98, 0\ns_mov_b32 s44, 0")
    if hd: k("s_mov_b32 s98, 0")
    srd(k, sWS, KARG["ws"], WS_BYTES)
    k(f"s_load_dwordx2 s[4:5], s[0:1], {KARG['dbg']}")
    k("s_getreg_b32 s3, hwreg(HW_REG_XCC_ID)\ns_and_b32 s3, s3, 15")
    k(f"s_mov_b32 s{sSPIN}, {SPIN}")
    k(f"v_lshrrev_b32 v3, 6, v0\ns_nop 0\nv_readfirstlane_b32 s{sWAVE}, v3")
    k("s_waitcnt lgkmcnt(0)")
    if hd:
        mark(1, only=(2, 0))
    k("s_and_b32 s3, s3, 7")
    FUSED = True
    k(f"s_lshl_b32 s{sT0}, s3, 5")
    k(f"v_mov_b32 v254, 1\nv_mov_b32 v253, s{sT0}")
    k(f"v_cmp_eq_u32 vcc, {cfg.get('reg_tid', 192) - 192} + 192 if False else 0, v0" if False else f"v_mov_b32 v252, {cfg.get('reg_tid', 192)}\nv_cmp_eq_u32 vcc, v252, v0\ns_and_saveexec_b64 s[20:21], vcc\ns_cbranch_execz M_reg_issued")
    k("global_atomic_add v254, v253, v254, s[4:5] sc0 sc1")
    k.label("M_reg_issued")
    k("s_mov_b64 exec, s[20:21]")
    k("s_cmp_ge_u32 s2, 224\ns_cbranch_scc1 M_lninit")
    k("s_and_b32 s20, s2, 7\ns_lshr_b32 s21, s2, 3\ns_mul_i32 s22, s21, 9363\ns_lshr_b32 s22, s22, 16")
    k("s_lshl_b32 s20, s20, 2\ns_add_u32 s20, s20, s22\ns_mul_i32 s20, s20, 7")
    k("s_mul_i32 s22, s22, 7\ns_sub_u32 s21, s21, s22\ns_add_u32 s55, s20, s21")
    prep2.emit_gemm_task(k, 55, "M_phase0_done", "M_abort")
    k.label("M_lninit")
    k("s_sub_u32 s55, s2, 224")
    k("s_lshl_b32 s56, s55, 1")
    prep2.stamp(k, 0)
    prep2.emit_ln_segment(k, 56, pre="load")
    prep2.emit_init(k, 55)
    prep2.stamp(k, 1)
    prep2.emit_ln_segment(k, 56, pre="have", X0=112, last=False)
    prep2.stamp(k, 2)
    k("s_add_u32 s56, s56, 1")
    prep2.emit_ln_segment(k, 56, pre="have", X0=144, need_init="M_abort", nsig=2)
    prep2.stamp(k, 3)
    k.label("M_phase0_done")
    mark(2, only=(2, 0)); mark(10, only=(2, 1)); mark(11, only=(2, 224)); mark(12, only=(2, 101))
    prep2.dump_stamps(k)
    if diag: k("s_memrealtime s[86:87]")
    k("s_waitcnt vmcnt(0)\nv_mov_b32 v1, 0")
    k("v_cmp_eq_u32 vcc, v252, v0\ns_and_saveexec_b64 s[20:21], vcc\ns_cbranch_execz M_reg_done")
    k("ds_write_b32 v1, v254\ns_waitcnt lgkmcnt(0)")
    k.label("M_reg_done")
    k("s_mov_b64 exec, s[20:21]\ns_barrier\nds_read_b32 v3, v1\ns_waitcnt lgkmcnt(0)\ns_nop 0")
    k(f"v_readfirstlane_b32 s{sRANK}, v3")
    k("s_barrier")
    prep2.wait_init_wg(k, 16, "M_abort")
    if diag: k("s_memrealtime s[84:85]")
    def load_counts(k, vt):
        k(f"v_mbcnt_lo_u32_b32 v{vt}, -1, 0\nv_mbcnt_hi_u32_b32 v{vt}, -1, v{vt}\nv_and_b32 v{vt}, 7, v{vt}\nv_lshlrev_b32 v{vt}, 5, v{vt}")
        k(f"global_load_dword v{vt+1}, v{vt}, s[4:5] sc1\ns_waitcnt vmcnt(0)")
        k(f"v_readlane_b32 s{sT1}, v{vt+1}, 0")
        for x in range(1, 8):
            k(f"v_readlane_b32 s{sT0}, v{vt+1}, {x}\ns_add_u32 s{sT1}, s{sT1}, s{sT0}")
    def wait_all(k, vt):
        top = k.uid("M_wa"); done = k.uid("M_wad")
        k.label(top)
        load_counts(k, vt)
        k(f"s_cmp_ge_u32 s{sT1}, 256\ns_cbranch_scc1 {done}")
        k(f"s_sleep 4\ns_sub_u32 s{sSPIN}, s{sSPIN}, 1\ns_cbranch_scc0 {top}\ns_branch M_abort")
        k.label(done)
    def delay(k, seg):
        if seg is None: return
        k(f"s_mov_b32 s{sT0}, {C_VX + 16*seg}\nv_mov_b32 v8, 0")
        workers.wait_counter(k, sT0, 28, 9, 8, "M_abort", sleep=8)
    def mode_hook(k, vt):
        top = k.uid("M_md"); done = k.uid("M_mdd")
        k.label(top)
        load_counts(k, vt)
        k(f"v_readlane_b32 s{sT0}, v{vt+1}, 0\ns_mov_b32 s{sMODE}, 0\ns_cmp_ge_u32 s{sT0}, {31 if cfg.get('force_slow') is None else 999}\ns_cbranch_scc1 {done}")
        k(f"s_mov_b32 s{sMODE}, 1\ns_cmp_ge_u32 s{sT1}, 256\ns_cbranch_scc1 {done}")
        k(f"s_sleep 4\ns_sub_u32 s{sSPIN}, s{sSPIN}, 1\ns_cbranch_scc0 {top}\ns_branch M_abort")
        k.label(done)
    k(f"s_cmp_lt_u32 s{sRANK}, 32\ns_cbranch_scc0 M_overflow")
    k(f"s_lshl_b32 s{sT0}, s3, 5\ns_add_u32 s{sRANK}, s{sRANK}, s{sT0}")
    k.label("M_dispatch")
    k(f"s_cmp_lt_u32 s{sRANK}, 30\ns_cbranch_scc1 M_chain")
    k(f"s_cmp_eq_u32 s{sRANK}, 30\ns_cbranch_scc1 M_helper")
    k(f"s_cmp_lt_u32 s{sRANK}, 32\ns_cbranch_scc1 M_exit")
    k(f"s_sub_u32 s{sRANK}, s{sRANK}, 32")
    k(f"s_cmp_lt_u32 s{sRANK}, {t1}\ns_cbranch_scc1 M_vx")
    k(f"s_cmp_lt_u32 s{sRANK}, {t2}\ns_cbranch_scc1 M_xa")
    k(f"s_cmp_lt_u32 s{sRANK}, {t3}\ns_cbranch_scc1 M_pv")
    k(f"s_cmp_lt_u32 s{sRANK}, {t4}\ns_cbranch_scc1 M_ff")
    k(f"s_cmp_lt_u32 s{sRANK}, {t5}\ns_cbranch_scc1 M_vm")
    k("s_branch M_exit")
    k.label("M_overflow")
    wait_all(k, 8)
    k(f"s_sub_u32 s20, s{sRANK}, 32")
    for x in range(7):
        k(f"v_readlane_b32 s{sT0}, v9, {x}\ns_max_u32 s{sT0}, s{sT0}, 32\ns_sub_u32 s{sT0}, s{sT0}, 32")
        k(f"s_cmp_gt_u32 s3, {x}\ns_cselect_b32 s{sT0}, s{sT0}, 0\ns_add_u32 s20, s20, s{sT0}")
    for x in range(8):
        nx = k.uid("M_es")
        k(f"v_readlane_b32 s{sT0}, v9, {x}\ns_min_u32 s{sT0}, s{sT0}, 32\ns_sub_u32 s21, 32, s{sT0}")
        k(f"s_cmp_lt_u32 s20, s21\ns_cbranch_scc0 {nx}")
        k(f"s_add_u32 s{sRANK}, s20, s{sT0}\ns_add_u32 s{sRANK}, s{sRANK}, {32*x}\ns_branch M_dispatch")
        k.label(nx)
        k("s_sub_u32 s20, s20, s21")
    k("s_branch M_exit")
    k.label("M_chain")
    ccfg = dict(nsteps=63, modes=["", "sc1"], mode_hook=mode_hook, vxwait=True, pflag_pos=2, mflag_pos=1, fused=True, stagger=False, pace=3, pace2=10)
    if diag: ccfg.update(dict(tot=True, trace=True))
    if hd: ccfg["mark"] = mark
    ccfg.update(cfg.get("chain", {}))
    k(f"s_cmp_ge_u32 s{sRANK}, 16\ns_cbranch_scc1 M_chainB")
    chain.emit_chain_A(k, ccfg, "M_abort")
    k.label("M_chainB")
    if diag: k("s_mov_b32 s98, 1")
    chain.emit_chain_B(k, ccfg, "M_abort")
    wcfg = dict(vx_par=VXP, xa_par=XAP, pv_par=PVP, vm_par=VMP, s0=cfg.get('s0', 32), fused=True, ln_in_ffn=False)
    k.label("M_helper")
    if diag: k("s_mov_b32 s98, 6")
    chain.emit_helper(k, ccfg, "M_abort")
    k.label("M_vx")
    if diag: k("s_mov_b32 s98, 2")
    workers.emit_vxgen(k, wcfg, "M_abort")
    k.label("M_vm")
    if diag: k("s_mov_b32 s98, 7")
    k(f"s_sub_u32 s{sRANK}, s{sRANK}, {t4}")
    delay(k, cfg.get("vm_delay", None))
    workers.emit_vxgen(k, wcfg, "M_abort", "vm")
    k.label("M_xa")
    if diag: k("s_mov_b32 s98, 3")
    k(f"s_sub_u32 s{sRANK}, s{sRANK}, {t1}")
    delay(k, cfg.get("xa_delay", None))
    workers.emit_xattn(k, wcfg, "M_abort")
    k.label("M_pv")
    if diag or hd: k("s_mov_b32 s98, 4")
    k(f"s_sub_u32 s{sRANK}, s{sRANK}, {t2}")
    workers.emit_pvout(k, wcfg, "M_abort")
    k.label("M_ff")
    if diag: k("s_mov_b32 s98, 5")
    k(f"s_sub_u32 s{sRANK}, s{sRANK}, {t3}")
    delay(k, cfg.get("ff_delay", None))
    workers.emit_ffn(k, wcfg, "M_abort")
    for t in ccfg.get("outofline", []) + wcfg.get("outofline", []): k(t)
    if hd:
        txt = "\n".join(k.lines)
        head, body = txt.split("M_chain:", 1)
        body = body.replace("s_endpgm", "s_branch M_hdexit")
        k.lines = (head + "M_chain:" + body).split("\n")
        k.label("M_hdexit")
        k("s_waitcnt vmcnt(0)")
        k("s_cmp_lg_u32 s98, 4\ns_cbranch_scc1 M_hdx"); mark(9, only=(sRANK, 7 * (63 % cfg.get("pv_par", 4)))); k.label("M_hdx")
        k("s_waitcnt vmcnt(0)\ns_endpgm")
    if diag:
        txt = "\n".join(k.lines)
        head, body = txt.split("M_chain:", 1)
        body = body.replace("s_endpgm", "s_branch M_diag")
        k.lines = (head + "M_chain:" + body).split("\n")
        k.label("M_diag")
        k(f"s_cmp_lg_u32 s{sWAVE}, 0\ns_cbranch_scc1 M_exit")
        k("s_memrealtime s[94:95]\ns_waitcnt lgkmcnt(0)")
        k(f"s_lshl_b32 s{sT0}, s2, 5\ns_add_u32 s{sT0}, s{sT0}, {PROF+16384}")
        k("v_mov_b32 v1, 0")
        for i, r in enumerate(("s86", f"s{sRANK}", "s96", "s94", "s44", "s88", "s98", "s84")):
            k(f"v_mov_b32 v2, {r}\nbuffer_store_dword v2, v1, s[{sWS}:{sWS+3}], s{sT0} offen offset:{4*i}")
        k("s_waitcnt vmcnt(0)\ns_endpgm")
    k.label("M_abort")
    k("v_mov_b32 v1, 0\nv_mov_b32 v2, 1\nglobal_atomic_add v1, v2, s[4:5] offset:20 sc1\ns_waitcnt vmcnt(0)")
    k.label("M_exit")
    k("s_endpgm")
    k.label("M_code_end")
    k(".fill 1100, 4, 0xbf800000")

def build(cfg):
    k = K()
    k(HEADER.rstrip())
    k("; @launch grid=(256,1,1) block=(256,1,1) lds=151552")
    k('.amdgcn_target "amdgcn-amd-amdhsa--gfx950"\n.text')
    emit_main(k, cfg, NAME + "_kernel")
    k('.section .rodata,"a"')
    k(kd(NAME + "_kernel", 512, 256, 102))
    return k.text()

if __name__ == "__main__":
    import kfw
    cfg = {}
    if "diag" in sys.argv: cfg["diag"] = True; sys.argv.remove("diag")
    for a in list(sys.argv[1:]):
        if "=" in a:
            kk_, vv = a.split("="); cfg[kk_] = eval(vv); sys.argv.remove(a)
    t = build(cfg)
    out = sys.argv[1] if len(sys.argv) > 1 else "cdna_kernels/" + NAME + ".s"
    open(out, "w").write(t)
    print("bytes", len(t), "lines", t.count("\n"), "hazards", len(kfw.check(t)))
```

```python
from kfw import *
from layout import *

class Q:
    def __init__(self, k):
        self.k = k; self.lg = []; self.vm = []
    def ds(self, txt, tag=None):
        self.k(txt); self.lg.append(tag)
    def vmem(self, txt, tag=None):
        self.k(txt); self.vm.append(tag)
    def _n(self, lst, tag):
        idx = max(i for i, t in enumerate(lst) if t == tag)
        return len(lst) - 1 - idx
    def wait_lg(self, tag):
        n = min(self._n(self.lg, tag), 15)
        self.k(f"s_waitcnt lgkmcnt({n})")
    def wait_vm(self, tag):
        n = min(self._n(self.vm, tag), 63)
        self.k(f"s_waitcnt vmcnt({n})")
    def lg0(self):
        self.k("s_waitcnt lgkmcnt(0)"); self.lg = []
    def reset(self):
        self.lg = []; self.vm = []

sWS   = 8
sRANK = 12
sWAVE = 13
sSTEP = 14
sMS   = 15
sPS   = 16
sT0   = 17
sT1   = 18
sSPIN = 19
sMaskA = 20
sMaskB = 22
sXK   = 24
sMS1  = 25
sRST  = 26
sOUT  = 27
sFLG  = 50
sMODE = 51
sVXC  = 92
sTA   = 28
sTB   = 30
sPROF = 32
SPIN  = 200000

class Prof:
    def __init__(self, k, on, rawon=False): self.k, self.on, self.n, self.rawon = k, on, 0, rawon
    def start(self):
        if not self.on: return
        k = self.k
        for i in range(12): k(f"s_mov_b32 s{sPROF+i}, 0")
        k(f"s_memtime s[{sTA}:{sTA+1}]\ns_waitcnt lgkmcnt(0)")
    def stamp(self, i):
        if not self.on: return
        k = self.k
        k(f"s_memtime s[{sTB}:{sTB+1}]\ns_waitcnt lgkmcnt(0)")
        k(f"s_sub_u32 s{sT0}, s{sTB}, s{sTA}\ns_add_u32 s{sPROF+i}, s{sPROF+i}, s{sT0}\ns_mov_b32 s{sTA}, s{sTB}")
    def raw(self, i):
        if self.rawon: self.k(f"{'s_memrealtime' if self.rawon == 'rt' else 's_memtime'} s[{52+2*i}:{53+2*i}]")
    def raw_dump(self, tmpv, offv):
        if not self.rawon: return
        k = self.k
        k("s_waitcnt lgkmcnt(0)")
        k(f"s_lshl_b32 s{sT0}, s{sRANK}, 2\ns_add_u32 s{sT0}, s{sT0}, s{sWAVE}\ns_lshl_b32 s{sT0}, s{sT0}, 6\ns_add_u32 s{sT0}, s{sT0}, {PROF}")
        k(f"v_mov_b32 v{offv}, 0")
        for i in range(16):
            k(f"v_mov_b32 v{tmpv}, s{52+2*i}")
            k(f"buffer_store_dword v{tmpv}, v{offv}, s[{sWS}:{sWS+3}], s{sT0} offen offset:{4*i}")
        k("s_waitcnt vmcnt(0)")
    def tot_start(self, on):
        if on: self.k(f"s_mov_b32 s{sPROF+11}, 0\ns_memtime s[{sTA}:{sTA+1}]\ns_memrealtime s[44:45]\ns_waitcnt lgkmcnt(0)")
    def tot_dump(self, on, tmpv, offv):
        if not on: return
        k = self.k
        k(f"s_memtime s[{sTB}:{sTB+1}]\ns_memrealtime s[46:47]\ns_waitcnt lgkmcnt(0)")
        k(f"s_sub_u32 s{sPROF}, s{sTB}, s{sTA}\ns_sub_u32 s{sPROF+1}, s46, s44\ns_sub_u32 s{sPROF+2}, s44, s96")
        k(f"s_lshl_b32 s{sT0}, s{sRANK}, 2\ns_add_u32 s{sT0}, s{sT0}, s{sWAVE}\ns_lshl_b32 s{sT0}, s{sT0}, 6\ns_add_u32 s{sT0}, s{sT0}, {PROF}")
        k(f"v_mov_b32 v{offv}, 0")
        k(f"s_mov_b32 s{sPROF+3}, s{sPROF+11}")
        for i in range(4):
            k(f"v_mov_b32 v{tmpv}, s{sPROF+i}")
            k(f"buffer_store_dword v{tmpv}, v{offv}, s[{sWS}:{sWS+3}], s{sT0} offen offset:{4*i}")
        k("s_waitcnt vmcnt(0)")
    def dump(self, tmpv, offv):
        if not self.on: return
        k = self.k
        k(f"s_lshl_b32 s{sT0}, s{sRANK}, 2\ns_add_u32 s{sT0}, s{sT0}, s{sWAVE}\ns_lshl_b32 s{sT0}, s{sT0}, 6\ns_add_u32 s{sT0}, s{sT0}, {PROF}")
        k(f"v_mov_b32 v{offv}, 0")
        for i in range(12):
            k(f"v_mov_b32 v{tmpv}, s{sPROF+i}")
            k(f"buffer_store_dword v{tmpv}, v{offv}, s[{sWS}:{sWS+3}], s{sT0} offen offset:{4*i}")
        k("s_waitcnt vmcnt(0)")


SP_L = 0
SP_STRIDE = 3200
TR_L = 12800
MKP_L = 27136
SH_L = 39424
MEM_L = 0
OP_L = 7168
WL = 12288

def retry_block(cfg, label, body, abort, target):
    cfg.setdefault("outofline", []).append(
        f"{label}:\ns_sub_u32 s{sSPIN}, s{sSPIN}, 1\ns_cbranch_scc1 {abort}\n{body}s_branch {target}")

def emit_flag_poll(k, cfg, vAddr, vD0, sExp, off, abort):
    WSR = f"s[{sWS}:{sWS+3}]"
    top = k.uid("FP"); done = k.uid("FPD")
    k(f"s_mov_b32 s{sT0}, {off}" if isinstance(off, int) else f"s_mov_b32 s{sT0}, {off}")
    k(f"buffer_load_dword v{vD0}, v{vAddr}, {WSR}, s{sT0} offen sc1")
    k.label(top)
    k(f"buffer_load_dword v{vD0+1}, v{vAddr}, {WSR}, s{sT0} offen sc1")
    k("s_waitcnt vmcnt(1)")
    k(f"v_cmp_gt_u32 vcc, s{sExp}, v{vD0}")
    k(f"s_cbranch_vccz {done}")
    k(f"buffer_load_dword v{vD0}, v{vAddr}, {WSR}, s{sT0} offen sc1")
    k("s_waitcnt vmcnt(1)")
    k(f"v_cmp_gt_u32 vcc, s{sExp}, v{vD0+1}")
    k(f"s_cbranch_vccz {done}")
    k(f"s_sub_u32 s{sSPIN}, s{sSPIN}, 1\ns_cbranch_scc0 {top}\ns_branch {abort}")
    k.label(done)

def blockregA(b):
    return Reg("a", 8 * b) if b < 28 else Reg("v", 88 + 8 * (b - 28))

def emit_ring_advance(k):
    k(f"s_add_u32 s{sSTEP}, s{sSTEP}, 1")
    k(f"s_and_b32 s{sT0}, s{sSTEP}, 3")
    k(f"s_mul_i32 s{sMS}, s{sT0}, 7168\ns_add_u32 s{sMS}, s{sMS}, {MEMRING}")
    k(f"s_mul_i32 s{sPS}, s{sT0}, 10240\ns_add_u32 s{sPS}, s{sPS}, {PRING}")

def emit_chain_A(k, cfg, abort):
    prof = Prof(k, cfg.get("prof"), cfg.get("raw"))
    q = Q(k)
    WSR = f"s[{sWS}:{sWS+3}]"
    modes = cfg.get("modes", [cfg.get("st", "")])
    ST = modes[0]
    vL16, vL8, vTRw, vTRr, vMKg, vSR, vTRw2, vPst, vIdx, vX, vT, vDet, vSWx, vSWm, vTRr2 = range(1, 16)
    vLane = 0
    TMP, ACC, TR, MEM = 16, 20, 48, 60
    SACC = ACC
    XK = 224
    def TRr(tile): return (A(252, 2) if tile == 6 else V(TR + 2 * tile, 2))
    if cfg.get("tot"): k("s_memrealtime s[86:87]")
    k("v_and_b32 v0, 63, v0")
    k(f"v_lshlrev_b32 v{vL16}, 4, v{vLane}")
    k(f"v_lshlrev_b32 v{vL8}, 3, v{vLane}")
    k(f"v_and_b32 v{vX}, 15, v{vLane}")
    k(f"v_lshrrev_b32 v{vT}, 4, v{vLane}")
    k(f"v_min_u32 v{vDet}, 13, v{vX}\nv_lshlrev_b32 v{vDet}, 2, v{vDet}")
    k(f"s_mul_i32 s{sT1}, s{sWAVE}, 3584\ns_add_u32 s{sT1}, s{sT1}, {TR_L}\ns_add_u32 s{sT0}, s{sT1}, {3072 if cfg.get('pairs', False) else 0}")
    k(f"v_lshrrev_b32 v{vTRw2}, 3, v{vX}\nv_lshlrev_b32 v{vTRw2}, 9, v{vTRw2}\nv_lshl_add_u32 v{vTRw2}, v{vT}, 7, v{vTRw2}")
    k(f"v_and_b32 v{TMP}, 7, v{vX}\nv_lshl_add_u32 v{vTRw2}, v{TMP}, 4, v{vTRw2}\nv_add_u32 v{vTRw2}, s{sT1}, v{vTRw2}")
    k(f"v_lshrrev_b32 v{vTRr2}, 1, v{vT}\nv_lshlrev_b32 v{vTRr2}, 9, v{vTRr2}")
    k(f"v_and_b32 v{TMP}, 3, v{vLane}\nv_lshl_add_u32 v{vTRr2}, v{TMP}, 7, v{vTRr2}")
    k(f"v_and_b32 v{TMP}, 1, v{vT}\nv_lshl_add_u32 v{vTRr2}, v{TMP}, 6, v{vTRr2}")
    k(f"v_bfe_u32 v{TMP}, v{vLane}, 2, 2\nv_lshl_add_u32 v{vTRr2}, v{TMP}, 4, v{vTRr2}\nv_add_u32 v{vTRr2}, s{sT1}, v{vTRr2}")
    k(f"v_lshrrev_b32 v{vTRw}, 3, v{vX}\nv_lshlrev_b32 v{vTRw}, 8, v{vTRw}")
    k(f"v_lshl_add_u32 v{vTRw}, v{vT}, 6, v{vTRw}")
    k(f"v_and_b32 v{TMP}, 7, v{vX}\nv_lshl_add_u32 v{vTRw}, v{TMP}, 3, v{vTRw}")
    k(f"v_add_u32 v{vTRw}, s{sT0}, v{vTRw}")
    k(f"v_lshrrev_b32 v{vTRr}, 1, v{vT}\nv_lshlrev_b32 v{vTRr}, 8, v{vTRr}")
    k(f"v_and_b32 v{TMP}, 3, v{vLane}\nv_lshl_add_u32 v{vTRr}, v{TMP}, 6, v{vTRr}")
    k(f"v_and_b32 v{TMP}, 1, v{vT}\nv_lshl_add_u32 v{vTRr}, v{TMP}, 5, v{vTRr}")
    k(f"v_bfe_u32 v{TMP}, v{vLane}, 2, 2\nv_lshl_add_u32 v{vTRr}, v{TMP}, 3, v{vTRr}")
    k(f"v_add_u32 v{vTRr}, s{sT0}, v{vTRr}")
    k(f"v_lshrrev_b32 v{vMKg}, 1, v{vT}\nv_lshlrev_b32 v{vMKg}, 7, v{vMKg}")
    k(f"v_and_b32 v{TMP}, 7, v{vLane}\nv_lshl_add_u32 v{vMKg}, v{TMP}, 4, v{vMKg}")
    k(f"v_and_b32 v{TMP+1}, 1, v{vT}\nv_lshl_add_u32 v{vMKg}, v{TMP+1}, 3, v{vMKg}")
    k(f"s_mul_i32 s{sT1}, s{sWAVE}, {SP_STRIDE}\ns_add_u32 s{sT1}, s{sT1}, {SP_L}")
    k(f"v_add_u32 v{TMP}, v{vX}, v{vT}\nv_and_b32 v{TMP+1}, 15, v{TMP}\nv_lshlrev_b32 v{vSWx}, 4, v{TMP+1}")
    k(f"v_lshl_add_u32 v{vSWx}, v{vT}, 8, v{vSWx}\nv_add_u32 v{vSWx}, s{sT1}, v{vSWx}")
    k(f"v_add_u32 v{TMP}, 4, v{TMP}\nv_and_b32 v{TMP+1}, 15, v{TMP}\nv_lshlrev_b32 v{vSWm}, 4, v{TMP+1}")
    k(f"v_lshl_add_u32 v{vSWm}, v{vT}, 8, v{vSWm}\nv_add_u32 v{vSWm}, s{sT1}, v{vSWm}\nv_add_u32 v{vSWm}, 1024, v{vSWm}")
    k(f"s_lshl_b32 s{sT1}, s{sWAVE}, 2")
    k(f"v_add_u32 v{TMP}, s{sT1}, v{vT}")
    k(f"v_add_u32 v{TMP+1}, 2, v{vX}\nv_and_b32 v{TMP+1}, 3, v{TMP+1}")
    k(f"v_cmp_gt_u32 vcc, 2, v{vX}\ns_nop 1\nv_cndmask_b32 v{TMP+1}, v{TMP+1}, v{vX}, vcc")
    k(f"v_add_u32 v{TMP+2}, v{TMP}, v{TMP+1}")
    k(f"v_add_u32 v{TMP+3}, 4, v{TMP+2}\nv_cndmask_b32 v{TMP+2}, v{TMP+2}, v{TMP+3}, vcc")
    k(f"v_lshlrev_b32 v{vSR}, 8, v{TMP+1}\nv_add_u32 v{TMP+3}, 1024, v{vSR}\nv_cndmask_b32 v{vSR}, v{vSR}, v{TMP+3}, vcc")
    k(f"v_cmp_le_u32 vcc, 6, v{vX}\nv_add_u32 v{TMP+3}, 8, v{TMP+2}\ns_nop 0\nv_cndmask_b32 v{TMP+2}, v{TMP+2}, v{TMP+3}, vcc")
    k(f"v_and_b32 v{TMP+2}, 15, v{TMP+2}\nv_lshl_add_u32 v{vSR}, v{TMP+2}, 4, v{vSR}\nv_add_u32 v{vSR}, {SP_L}, v{vSR}")
    k(f"v_cmp_gt_u32 vcc, 10, v{vX}\nv_mov_b32 v{TMP+3}, {SP_L+3072}\ns_nop 0\nv_cndmask_b32 v{vSR}, v{TMP+3}, v{vSR}, vcc")
    k(f"v_cmp_gt_u32 s[{sMaskA}:{sMaskA+1}], 10, v{vX}")
    k(f"v_cmp_gt_u32 s[{sMaskB}:{sMaskB+1}], 40, v{vLane}")
    k(f"v_mov_b32 v{vIdx}, 0x44444444\nv_mov_b32 v{TMP+2}, 0xeeeeeeee")
    k(f"v_and_b32 v{TMP+1}, 8, v{vLane}\nv_cmp_ne_u32 vcc, 0, v{TMP+1}\ns_nop 1\nv_cndmask_b32 v{vIdx}, v{vIdx}, v{TMP+2}, vcc")
    k(f"s_lshr_b32 s{sT0}, s{sRANK}, 2\ns_mul_i32 s{sT0}, s{sT0}, 2560")
    k(f"s_bfe_u32 s{sT1}, s{sRANK}, 0x10001\ns_lshl_b32 s{sMS}, s{sT1}, 10\ns_lshl_b32 s{sPS}, s{sT1}, 8")
    k(f"s_and_b32 s{sT1}, s{sRANK}, 1\ns_lshl_b32 s{sMS1}, s{sT1}, 9\ns_add_u32 s{sMS}, s{sMS}, s{sMS1}")
    k(f"s_lshl_b32 s{sMS1}, s{sT1}, 7\ns_add_u32 s{sPS}, s{sPS}, s{sMS1}\ns_add_u32 s{sPS}, s{sPS}, 2048")
    k(f"s_add_u32 s{sMS}, s{sMS}, s{sT0}\ns_add_u32 s{sPS}, s{sPS}, s{sT0}")
    k(f"v_subrev_u32 v{TMP+1}, 2, v{vX}\nv_lshrrev_b32 v{TMP+1}, 1, v{TMP+1}")
    k(f"v_lshrrev_b32 v{TMP+2}, 1, v{TMP+1}\nv_lshlrev_b32 v{TMP+2}, 8, v{TMP+2}")
    k(f"v_and_b32 v{TMP+1}, 1, v{TMP+1}\nv_lshl_add_u32 v{TMP+2}, v{TMP+1}, 7, v{TMP+2}\nv_add_u32 v{TMP+2}, s{sMS}, v{TMP+2}")
    k(f"v_mov_b32 v{TMP+1}, s{sPS}\nv_cmp_gt_u32 vcc, 2, v{vX}\ns_nop 1\nv_cndmask_b32 v{TMP+2}, v{TMP+2}, v{TMP+1}, vcc")
    k(f"v_lshl_add_u32 v{vPst}, v{TMP}, 4, v{TMP+2}")
    k(f"v_and_b32 v{TMP+1}, 1, v{vX}\nv_lshl_add_u32 v{vPst}, v{TMP+1}, 3, v{vPst}")
    k(f"v_add_u32 v{TMP+1}, s{sMS}, v{vL16}\nv_add_u32 v{TMP+2}, s{sPS}, v{vL16}\nv_subrev_u32 v{TMP+2}, 512, v{TMP+2}")
    k(f"v_cmp_gt_u32 vcc, 32, v{vLane}\ns_nop 1\nv_cndmask_b32 v0, v{TMP+2}, v{TMP+1}, vcc")
    k(f"s_lshr_b32 s{sT0}, s{sRANK}, 2\ns_lshl_b32 s{sT0}, s{sT0}, 7\ns_and_b32 s{sT1}, s{sRANK}, 3\ns_lshl_b32 s{sT1}, s{sT1}, 2")
    k(f"s_add_u32 s{sFLG}, s{sT0}, s{sT1}\ns_add_u32 s{sFLG}, s{sFLG}, {FLAGP}")
    k(f"s_mul_i32 s{sT0}, s{sRANK}, 401408\ns_mul_i32 s{sT1}, s{sWAVE}, 100352\ns_add_u32 s{sT0}, s{sT0}, s{sT1}")
    if WA_OFF: k(f"s_add_u32 s{sT0}, s{sT0}, {WA_OFF}")
    FUSED = cfg.get("fused")
    LDF = "sc1" if FUSED else ""
    def wload(i):
        b, a = i >> 1, i & 1
        R = blockregA(b)
        off = i * 1024
        if off and off % 4096 == 0: k(f"s_add_u32 s{sT0}, s{sT0}, 4096")
        k(f"buffer_load_dwordx4 {R.r(4*a,4)}, v{vL16}, {WSR}, s{sT0} offen offset:{off%4096} {LDF}")
    if not FUSED:
        for i in range(98): wload(i)
    else:
        k(f"s_lshl_b32 s{sMS}, s{sRANK}, 2\ns_add_u32 s{sMS}, s{sMS}, s{sWAVE}\ns_lshl_b32 s{sMS}, s{sMS}, 7\ns_add_u32 s{sMS}, s{sMS}, {C_WA}")
        k(f"v_min_u32 v{TMP}, 6, v{vLane}\nv_lshlrev_b32 v{TMP}, 2, v{TMP}")
        def poll_tiles(mask_lo, inflight):
            top = k.uid("A_wp"); ok_ = k.uid("A_wpo")
            k(f"buffer_load_dword v{TMP+1}, v{TMP}, {WSR}, s{sMS} offen sc1")
            for f in inflight: f()
            k(f"s_waitcnt vmcnt({len(inflight)})")
            k.label(top)
            k(f"v_cmp_gt_u32 vcc, 7, v{TMP+1}\ns_and_b32 vcc_lo, vcc_lo, {(1 << mask_lo) - 1}\ns_mov_b32 vcc_hi, 0\ns_cbranch_vccz {ok_}")
            k(f"s_sleep 1\nbuffer_load_dword v{TMP+1}, v{TMP}, {WSR}, s{sMS} offen sc1\ns_waitcnt vmcnt(0)")
            k(f"s_sub_u32 s{sSPIN}, s{sSPIN}, 1\ns_cbranch_scc0 {top}\ns_branch {abort}")
            k.label(ok_)
        poll_tiles(2, [])
        for i in range(20): wload(i)
        poll_tiles(4, [lambda i=i: wload(i) for i in range(20, 28)])
        for i in range(28, 48): wload(i)
        poll_tiles(7, [lambda i=i: wload(i) for i in range(48, 56)])
        for i in range(56, 98): wload(i)
        k(f"s_mov_b32 s{sMS}, {C_LN}\nv_mov_b32 v{TMP}, 0")
        top = k.uid("A_ln"); ok_ = k.uid("A_lno")
        k.label(top)
        k(f"buffer_load_dword v{TMP+1}, v{TMP}, {WSR}, s{sMS} offen sc1\ns_waitcnt vmcnt(0)")
        k(f"v_cmp_gt_u32 vcc, 64, v{TMP+1}\ns_cbranch_vccz {ok_}")
        k(f"s_sleep 1\ns_sub_u32 s{sSPIN}, s{sSPIN}, 1\ns_cbranch_scc0 {top}\ns_branch {abort}")
        k.label(ok_)
    def xk_prefetch():
        for kap in range(2):
            for p in range(3):
                off = kap * 3584 + p * 1024
                so = sXK if off < 4096 else sT1
                if off >= 4096 and p == 1: k(f"s_add_u32 s{sT1}, s{sXK}, 4096")
                k(f"buffer_load_dwordx4 {A(XK+kap*14+4*p,4)}, v{vL16}, {WSR}, s{so} offen offset:{off%4096} {LDF}")
            off = kap * 3584 + 3072
            so = sXK if off < 4096 else sT1
            k(f"buffer_load_dwordx2 {A(XK+kap*14+12,2)}, v{vL8}, {WSR}, s{so} offen offset:{off%4096} {LDF}")
    k(f"s_mul_i32 s{sXK}, s{sWAVE}, 7168\ns_add_u32 s{sXK}, s{sXK}, {XK_OFF}")
    xk_prefetch()
    def zero_acc():
        for i in range(0, 28, 2): k(f"v_mov_b64 {V(ACC+i,2)}, 0")
    zero_acc()
    for i in range(4): k(f"v_mov_b32 v{TR+i}, 0xff800000")
    k(f"s_mul_i32 s{sT1}, s{sWAVE}, {SP_STRIDE}\ns_add_u32 s{sT1}, s{sT1}, {SP_L+3072}\nv_mov_b32 v{TMP}, s{sT1}")
    k(f"ds_write_b128 v{TMP}, {V(TR,4)}")
    k("s_waitcnt vmcnt(0) lgkmcnt(0)")
    if cfg.get("tot"): k("s_memrealtime s[88:89]\ns_waitcnt lgkmcnt(0)")
    if cfg.get("mark"): cfg["mark"](cfg.get("_mw", 3), 16 if cfg.get("_mw", 3) == 3 else 12, only=(sRANK, 0))
    k(f"s_mov_b32 s{sSTEP}, 0\ns_mov_b32 s{sMS}, {MEMRING}\ns_mov_b32 s{sPS}, {PRING}")
    def softmax(q, W, ST):
        X = TR
        dst = [TR, MEM, MEM+4, MEM+8]
        for u in range(4):
            q.ds(f"ds_read_b128 {V(dst[u],4)}, v{vSR} offset:{u*SP_STRIDE}", f"sp{u}")
        def pflag():
            if W != 0: return
            k(f"s_add_u32 s{sT0}, s{sSTEP}, 1\nv_mov_b32 v{TMP}, s{sT0}\nv_mov_b32 v{TMP+1}, 0")
            k(f"s_mov_b64 exec, 1\nbuffer_store_dword v{TMP}, v{TMP+1}, {WSR}, s{sFLG} offen {ST}\ns_mov_b64 exec, -1")
        fpos = cfg.get("pflag_pos", 2)
        if fpos == 0: pflag()
        def pk(d, a, b):
            k(f"v_pk_add_f32 {V(d,2)}, {V(a,2)}, {V(b,2)}\nv_pk_add_f32 {V(d+2,2)}, {V(a+2,2)}, {V(b+2,2)}")
        q.wait_lg("sp1"); pk(dst[0], dst[0], dst[1])
        q.wait_lg("sp3"); pk(dst[2], dst[2], dst[3]); pk(dst[0], dst[0], dst[2])
        q.reset()
        prof.raw(8)
        if fpos == 1: pflag()
        M = vX; L = MEM + 12
        k(f"v_max3_f32 v{M}, v{X}, v{X+1}, v{X+2}")
        k(f"v_max_f32 v{M}, v{M}, v{X+3}")
        for ror in (8, 4, 2, 1):
            k("s_nop 1")
            k(f"v_max_f32_dpp v{M}, v{M}, v{M} row_ror:{ror} row_mask:0xf bank_mask:0xf")
        if fpos == 2: pflag()
        k(f"v_pk_add_f32 {V(X,2)}, {V(X,2)}, {V(M,2)} op_sel_hi:[1,0] neg_lo:[0,1] neg_hi:[0,1]")
        k(f"v_pk_add_f32 {V(X+2,2)}, {V(X+2,2)}, {V(M,2)} op_sel_hi:[1,0] neg_lo:[0,1] neg_hi:[0,1]")
        for i in range(4): k(f"v_exp_f32 v{X+i}, v{X+i}")
        if fpos == 3: pflag()
        k(f"s_nop 0\nv_pk_add_f32 {V(TMP+2,2)}, {V(X,2)}, {V(X+2,2)}")
        k(f"v_add_f32 v{L}, v{TMP+2}, v{TMP+3}")
        for ror in (8, 4, 2, 1):
            k("s_nop 1")
            k(f"v_add_f32_dpp v{L}, v{L}, v{L} row_ror:{ror} row_mask:0xf bank_mask:0xf")
        if fpos == 4: pflag()
        k(f"v_rcp_f32 v{L}, v{L}")
        k("s_nop 0")
        k(f"v_pk_mul_f32 {V(X,2)}, {V(X,2)}, {V(L,2)} op_sel_hi:[1,0]")
        k(f"v_pk_mul_f32 {V(X+2,2)}, {V(X+2,2)}, {V(L,2)} op_sel_hi:[1,0]")
        k(f"v_cvt_pk_bf16_f32 v{X}, v{X}, v{X+1}\nv_cvt_pk_bf16_f32 v{X+1}, v{X+2}, v{X+3}")
        k(f"v_min_u32 v{X}, -2, v{X}\nv_min_u32 v{X+1}, -2, v{X+1}")
        k(f"s_mov_b64 exec, s[{sMaskA}:{sMaskA+1}]")
        k(f"buffer_store_dwordx2 {V(X,2)}, v{vPst}, {WSR}, s{sPS} offen {ST}")
        k("s_mov_b64 exec, -1")
        prof.raw(9)
        if fpos == 5: pflag()
        prof.raw(11)
    def preset(ST):
        X = TR
        k(f"s_add_u32 s{sRST}, s{sSTEP}, 2\ns_and_b32 s{sRST}, s{sRST}, 3\ns_mul_i32 s{sRST}, s{sRST}, 10240\ns_add_u32 s{sRST}, s{sRST}, {PRING}")
        for i in range(4): k(f"v_mov_b32 v{X+i}, -1")
        k(f"s_mov_b64 exec, s[{sMaskB}:{sMaskB+1}]")
        k(f"buffer_store_dwordx4 {V(X,4)}, v0, {WSR}, s{sRST} offen {ST}")
        k("s_mov_b64 exec, -1")
    def wave_loop(W, ST):
        q = Q(k)
        prof.start(); prof.tot_start(cfg.get("tot"))
        loop = k.uid("A_loop")
        k.label(loop)
        prof.stamp(0); prof.raw(0)
        if W == 2: emit_flag_poll(k, cfg, vDet, TMP, sSTEP, FLAGM, abort)
        k("s_barrier")
        prof.stamp(1); prof.raw(1)
        if cfg.get("trace"): k(f"s_memtime s[90:91]")
        q.reset()
        def mem_load(t):
            so = sMS if t < 4 else sMS1
            q.vmem(f"buffer_load_dwordx4 {V(MEM+4*t,4)}, v{vL16}, {WSR}, s{so} offen offset:{(t*1024)%4096} sc1", f"mem{t}")
        t0w, t1w = (112 * W) >> 6, (112 * W + 111) >> 6
        rot = cfg.get("rot", 2)
        ko = [(rot * W + i) % 7 for i in range(7)]
        def lds_of(t): return MKP_L + W * 3072 + (t - t0w) * 1024
        def stage(t, out=None):
            txt = f"ds_write_b128 v{vL16}, {V(MEM+4*t,4)} offset:{lds_of(t)}"
            if out is None: q.ds(txt, f"st{t}")
            else: out(txt)
        k(f"s_add_u32 s{sMS1}, s{sMS}, 4096") if ko[0] >= 4 else None
        mem_load(ko[0])
        if ko[0] < 4: k(f"s_add_u32 s{sMS1}, s{sMS}, 4096")
        for i in range(0, 14, 2): k(f"v_mov_b64 {V(ACC+i,2)}, 0")
        for i in range(cfg.get("pace", 5)): k("s_nop 0")
        mem_load(ko[1])
        for i in range(14, 28, 2): k(f"v_mov_b64 {V(ACC+i,2)}, 0")
        for i in range(cfg.get("pace", 5)): k("s_nop 0")
        mem_load(ko[2])
        k(f"s_nop {cfg.get('pace2', 12)}")
        mem_load(ko[3])
        k(f"s_nop {cfg.get('pace2', 12)}")
        mem_load(ko[4])
        again = k.uid("A_again"); retry = k.uid("A_retry")
        def smf(tt, t):
            R = blockregA(7 * tt + t)
            k(f"v_smfmac_f32_16x16x64_bf16 {V(ACC+4*tt,4)}, {V(MEM+4*t,4)}, {R.r(0,8)}, v{vIdx}")
        def cvt(tile, hi):
            pa = ACC + 4 * tile + 2 * hi
            k(f"v_cvt_pk_bf16_f32 v{TMP+2*(tile&1)+hi}, v{pa}, v{pa+1}")
        k("s_waitcnt vmcnt(4)")
        prof.raw(2)
        for i, t in enumerate(ko):
            m0 = MEM + 4 * t
            fl = [[], [], [], []]
            if i < 2: fl[0].append(lambda i=i: mem_load(ko[i + 5]))
            fl[1 if i < 2 else 0].append(lambda i=i, m0=m0: k(f"v_max_u32 v{vX}, v{m0}, v{m0+1}" if i == 0 else f"v_max3_u32 v{vX}, v{vX}, v{m0}, v{m0+1}"))
            fl[2 if i < 2 else 1].append(lambda m0=m0: k(f"v_max3_u32 v{vX}, v{vX}, v{m0+2}, v{m0+3}"))
            if t0w <= t <= t1w: fl[3 if i < 2 or i == 6 else 2].append(lambda t=t: stage(t))
            if i == 6:
                fl[2].append(lambda: k(f"v_cmp_eq_u32 vcc, -1, v{vX}"))
                if not cfg.get("pairs", False): fl[3].append(lambda: cvt(0, 0))
            else: fl[3].append(lambda i=i: k(f"s_waitcnt vmcnt({[4,4,3,2,1,0][i]})"))
            for tt in range(4):
                smf(tt, t)
                for f in fl[tt]: f()
            if cfg.get("raw2") and i < 5: prof.raw(11 + i)
        k(f"s_cbranch_vccnz {retry}")
        prof.raw(3)
        rb = K()
        lab = k.uid("A_rl")
        rb(f"{lab}:")
        rb(f"s_add_u32 s{sMS1}, s{sMS}, 4096")
        for t in range(7):
            so = sMS if t < 4 else sMS1
            rb(f"buffer_load_dwordx4 {V(MEM+4*t,4)}, v{vL16}, {WSR}, s{so} offen offset:{(t*1024)%4096} sc1")
        rb("s_waitcnt vmcnt(0)")
        rb(f"v_max3_u32 v{vX}, v{MEM}, v{MEM+1}, v{MEM+2}")
        for i in range(3, 27, 2): rb(f"v_max3_u32 v{vX}, v{vX}, v{MEM+i}, v{MEM+i+1}")
        rb(f"v_max_u32 v{vX}, v{vX}, v{MEM+27}")
        rb(f"v_cmp_eq_u32 vcc, -1, v{vX}")
        ok_ = k.uid("A_rok")
        rb(f"s_cbranch_vccz {ok_}")
        rb(f"s_sub_u32 s{sSPIN}, s{sSPIN}, 1\ns_cbranch_scc0 {lab}\ns_branch {abort}")
        rb(f"{ok_}:")
        for i in range(0, 16, 2): rb(f"v_mov_b64 {V(ACC+i,2)}, 0")
        if cfg.get("cnt_retry"): rb(f"s_add_u32 s{sPROF+11}, s{sPROF+11}, 1")
        for t in range(t0w, t1w + 1): stage(t, rb)
        rb("s_nop 1")
        for t in range(7):
            for tt in range(4):
                R = blockregA(7 * tt + t)
                rb(f"v_smfmac_f32_16x16x64_bf16 {V(ACC+4*tt,4)}, {V(MEM+4*t,4)}, {R.r(0,8)}, v{vIdx}")
        if not cfg.get("pairs", False): rb(f"v_cvt_pk_bf16_f32 v{TMP}, v{ACC}, v{ACC+1}")
        rb(f"s_branch {again}")
        cfg.setdefault("outofline", []).append(f"{retry}:\ns_nop 7\n" + rb.text())
        k.label(again)
        q.vm = []
        def wr2(pair): q.ds(f"ds_write_b128 v{vTRw2}, {V(TMP,4)} offset:{pair*1024}", f"w{pair}")
        PAIRS = cfg.get("pairs", False)
        def wr6(): q.ds(f"ds_write_b64 v{vTRw}, {V(TMP,2)} offset:{0 if PAIRS else 3072}", "w6")
        def wr1(tile): q.ds(f"ds_write_b64 v{vTRw}, {V(TMP+2*(tile&1),2)} offset:{tile*512}", f"w{tile}")
        def tr(tile):
            if tile == 6: q.ds(f"ds_read_b64_tr_b16 {TRr(6)}, v{vTRr} offset:{0 if PAIRS else 3072}", "tr6")
            elif not PAIRS: q.ds(f"ds_read_b64_tr_b16 {TRr(tile)}, v{vTRr} offset:{tile*512}", f"tr{tile}")
            else: q.ds(f"ds_read_b64_tr_b16 {TRr(tile)}, v{vTRr2} offset:{(tile>>1)*1024+(tile&1)*8}", f"tr{tile}")
        def mk(tt):
            tau = 7 * W + tt
            q.ds(f"ds_read_b64 {V(MEM+2*tt,2)}, v{vMKg} offset:{lds_of(tau >> 2) + 256 * (tau & 3)}", f"mk{tt}")
        fill_after = {}
        if PAIRS:
            slot = 0
            for pair in range(3):
                for f in [("c", 2*pair, 0), ("c", 2*pair, 1), ("c", 2*pair+1, 0), ("c", 2*pair+1, 1), ("w", pair), ("t", 2*pair), ("t", 2*pair+1)]:
                    fill_after.setdefault(slot, []).append(f); slot += 1
        else:
            if W < 2 or not cfg.get("stagger", True):
                seq_ = [("c", 0, 1), ("w1", 0), ("t", 0)]
                for tile in range(1, 5): seq_ += [("c", tile, 0), ("c", tile, 1), ("w1", tile), ("t", tile)]
                seq_ += [("c", 5, 0), ("c", 5, 1)]
            else:
                seq_ = [("c", 0, 1), ("c", 1, 0), ("c", 1, 1)]
                for tile in range(0, 4): seq_ += [("w1", tile), ("t", tile), ("c", tile + 2, 0), ("c", tile + 2, 1)]
                seq_ += [("w1", 4), ("t", 4)]
            for slot, f in enumerate(seq_): fill_after.setdefault(slot, []).append(f)
        def dofill(f):
            if f[0] == "c": cvt(f[1], f[2])
            elif f[0] == "w":
                if PAIRS: wr2(f[1])
                else: wr1(2*f[1]); wr1(2*f[1]+1)
            elif f[0] == "w1": wr1(f[1])
            elif f[0] == "t": tr(f[1])
        sl = 0
        for tt in (4, 5, 6):
            for t in range(7):
                smf(tt, t)
                for f in fill_after.get(sl, []): dofill(f)
                sl += 1
        prof.raw(4)
        def smm(kap, p, first=False):
            D = V(SACC + 4 * kap, 4)
            C = "0" if first else D
            if p < 3:
                Aop = A(XK + kap * 14 + 4 * p, 4) if kap < 2 else V(MEM + 4 * p, 4)
                k(f"v_mfma_f32_16x16x32_bf16 {D}, {Aop}, {V(TR+4*p,4)}, {C}")
            else:
                Aop = A(XK + kap * 14 + 12, 2) if kap < 2 else V(MEM + 12, 2)
                k(f"v_mfma_f32_16x16x16_bf16 {D}, {Aop}, {TRr(6)}, {C}")
        if not PAIRS: wr1(5); tr(5)
        q.wait_lg("tr3")
        smm(0, 0, True)
        mk(0); mk(1)
        smm(1, 0, True)
        mk(2); mk(3)
        smm(0, 1)
        cvt(6, 0); cvt(6, 1)
        smm(1, 1)
        wr6(); tr(6)
        q.wait_lg("tr5")
        smm(0, 2)
        mk(4); mk(5)
        smm(1, 2)
        mk(6)
        q.wait_lg("mk3")
        smm(2, 0, True); smm(2, 1)
        q.wait_lg("mk5")
        smm(2, 2)
        smm(0, 3); smm(1, 3)
        q.wait_lg("mk6")
        smm(2, 3)
        prof.raw(5)
        k(f"s_add_u32 s{sXK}, s{sXK}, 28672")
        k("s_nop 3")
        for r in range(4): k(f"v_add_f32_dpp v{SACC+r}, v{SACC+r}, v{SACC+r} row_ror:8 row_mask:0xf bank_mask:0x3")
        for r in range(4): k(f"v_add_f32_dpp v{SACC+r}, v{SACC+4+r}, v{SACC+4+r} row_ror:8 row_mask:0xf bank_mask:0xc")
        q.ds(f"ds_write_b128 v{vSWx}, {V(SACC,4)}")
        for r in range(4): k(f"v_add_f32_dpp v{SACC+8+r}, v{SACC+8+r}, v{SACC+8+r} row_ror:8 row_mask:0xf bank_mask:0xf")
        q.ds(f"ds_write_b128 v{vSWm}, {V(SACC+8,4)}")
        q.lg0()
        prof.stamp(3); prof.raw(6)
        k("s_barrier")
        prof.stamp(4); prof.raw(7)
        X = TR
        if W < 2: softmax(q, W, ST)
        if cfg.get("bar3", True): k("s_barrier")
        if W == 3: preset(ST)
        if cfg.get("trace") and W == 3:
            k(f"s_waitcnt lgkmcnt(0)\ns_lshl_b32 s{sT0}, s{sRANK}, 6\ns_add_u32 s{sT0}, s{sT0}, s{sSTEP}\ns_lshl_b32 s{sT0}, s{sT0}, 2\ns_add_u32 s{sT0}, s{sT0}, {PROF+8192}")
            k(f"v_mov_b32 v{TR+4}, s90\nv_mov_b32 v{TR+5}, 0\ns_mov_b64 exec, 1\nbuffer_store_dword v{TR+4}, v{TR+5}, {WSR}, s{sT0} offen\ns_mov_b64 exec, -1")
        xk_prefetch()
        prof.stamp(5); prof.raw(10)
        emit_ring_advance(k)
        k("s_waitcnt vmcnt(0)")
        k(f"s_cmp_lt_u32 s{sSTEP}, {cfg['nsteps']}\ns_cbranch_scc1 {loop}")
        prof.raw_dump(TR, TR + 1); prof.dump(TR, TR + 1); prof.tot_dump(cfg.get("tot"), TR, TR + 1)
        k("s_endpgm")
    if cfg.get("mode_hook"): cfg["mode_hook"](k, TR)
    mlabs = [k.uid("A_m") for _ in modes]
    if len(modes) > 1: k(f"s_cmp_eq_u32 s{sMODE}, 1\ns_cbranch_scc1 {mlabs[1]}")
    for mi, st in enumerate(modes):
        k.label(mlabs[mi])
        labs = [k.uid("A_w") for _ in range(4)]
        for w in range(1, 4): k(f"s_cmp_eq_u32 s{sWAVE}, {w}\ns_cbranch_scc1 {labs[w]}")
        for w in range(4):
            k.label(labs[w])
            wave_loop(w, st)

def blockregB(tau, t):
    if t == 6 and tau < 6: return None
    b = 7 * tau + t - min(tau, 6)
    return Reg("a", 32 + 8 * b) if b < 28 else Reg("v", 80 + 8 * (b - 28))

def emit_chain_B(k, cfg, abort):
    prof = Prof(k, cfg.get("prof"), cfg.get("raw"))
    q = Q(k)
    WSR = f"s[{sWS}:{sWS+3}]"
    modes = cfg.get("modes", [cfg.get("st", "")])
    vL16, vPollA, vPollB, vP0, vPm, vOA, vOR, vMst, vIdx, vWL, vDet = range(1, 12)
    vLane = 0
    WT, ACC, VB, MEM = 12, 28, 36, 52
    vT = WT
    VXR = 0
    cfg["_mw"] = 6
    if cfg.get("tot"): k("s_memrealtime s[86:87]")
    k(f"s_sub_u32 s{sRANK}, s{sRANK}, 16")
    k("v_and_b32 v0, 63, v0")
    k(f"v_lshlrev_b32 v{vL16}, 4, v{vLane}")
    k(f"s_mul_i32 s{sT0}, s{sWAVE}, 1792")
    k(f"v_add_u32 v{vPollA}, s{sT0}, v{vL16}")
    k(f"v_min_u32 v{vT}, 47, v{vLane}")
    k(f"v_lshlrev_b32 v{vT}, 4, v{vT}")
    k(f"s_add_u32 s{sT1}, s{sT0}, 1024")
    k(f"v_add_u32 v{vPollB}, s{sT1}, v{vT}")
    I, SUB, GA, T2 = WT + 1, WT + 2, WT + 3, WT + 4
    k(f"v_and_b32 v{I}, 7, v{vLane}\nv_bfe_u32 v{SUB}, v{vLane}, 3, 1\nv_lshrrev_b32 v{GA}, 4, v{vLane}")
    k(f"v_and_b32 v{T2}, 3, v{vLane}\nv_lshlrev_b32 v{vDet}, 2, v{T2}\ns_lshl_b32 s{sT0}, s{sWAVE}, 7\nv_add_u32 v{vDet}, s{sT0}, v{vDet}")
    k(f"s_mul_i32 s{sT0}, s{sWAVE}, 2560")
    k(f"v_add_u32 v{vP0}, s{sT0}, v{vL16}")
    k(f"v_lshrrev_b32 v{T2}, 1, v{GA}\nv_lshlrev_b32 v{vPm}, 8, v{T2}")
    k(f"v_lshl_add_u32 v{vPm}, v{SUB}, 7, v{vPm}\nv_lshl_add_u32 v{vPm}, v{I}, 4, v{vPm}")
    k(f"s_add_u32 s{sT0}, s{sT0}, 2048\nv_add_u32 v{vPm}, s{sT0}, v{vPm}")
    C2, CG = WT + 5, WT + 6
    k(f"v_and_b32 v{C2}, 3, v{vLane}")
    k(f"v_bfe_u32 v{CG}, v{vLane}, 2, 2\nv_lshrrev_b32 v{T2}, 5, v{vLane}\nv_lshl_add_u32 v{CG}, v{T2}, 2, v{CG}")
    k(f"v_and_b32 v{T2}, 1, v{GA}\nv_lshl_add_u32 v{T2}, v{CG}, 1, v{T2}")
    k(f"v_lshlrev_b32 v{vOA}, 2, v{C2}\nv_xor_b32 v{T2}, v{T2}, v{vOA}\nv_and_b32 v{T2}, 15, v{T2}")
    k(f"v_lshlrev_b32 v{vOA}, 8, v{C2}\nv_lshl_add_u32 v{vOA}, v{T2}, 4, v{vOA}")
    k(f"s_lshl_b32 s{sT0}, s{sWAVE}, 10\ns_add_u32 s{sT0}, s{sT0}, {OP_L}\nv_add_u32 v{vOA}, s{sT0}, v{vOA}")
    k(f"v_lshlrev_b32 v{T2}, 2, v{GA}\nv_and_b32 v{vOR}, 15, v{vLane}\nv_xor_b32 v{vOR}, v{vOR}, v{T2}\nv_and_b32 v{vOR}, 15, v{vOR}")
    k(f"v_lshlrev_b32 v{vOR}, 4, v{vOR}\nv_lshl_add_u32 v{vOR}, v{GA}, 8, v{vOR}\nv_add_u32 v{vOR}, {OP_L}, v{vOR}")
    k(f"v_and_b32 v{T2}, 1, v{vLane}\nv_lshl_add_u32 v{T2}, v{T2}, 2, v{GA}")
    k(f"v_bfe_u32 v{vMst}, v{vLane}, 3, 1\nv_lshl_add_u32 v{T2}, v{vMst}, 4, v{T2}")
    k(f"v_bfe_u32 v{vMst}, v{vLane}, 2, 1\nv_lshl_add_u32 v{T2}, v{vMst}, 3, v{T2}")
    k(f"v_lshlrev_b32 v{T2}, 4, v{T2}")
    k(f"v_bfe_u32 v{vMst}, v{vLane}, 1, 1\nv_lshl_add_u32 v{vMst}, v{vMst}, 3, v{T2}")
    k(f"s_lshl_b32 s{sT0}, s{sRANK}, 9\nv_add_u32 v{vMst}, s{sT0}, v{vMst}")
    k(f"s_lshl_b32 s{sFLG}, s{sRANK}, 2\ns_add_u32 s{sFLG}, s{sFLG}, {FLAGM}")
    k(f"v_mov_b32 v{vIdx}, 0x44444444\nv_mov_b32 v{T2}, 0xeeeeeeee")
    k(f"v_cmp_ne_u32 vcc, 0, v{SUB}\ns_nop 1\nv_cndmask_b32 v{vIdx}, v{vIdx}, v{T2}, vcc")
    if cfg.get("warm", True):
        sk = k.uid("B_warm")
        k(f"s_cmp_lg_u32 s{sRANK}, 0\ns_cbranch_scc1 {sk}")
        k(f"s_lshl_b32 s{sT0}, s{sWAVE}, 6\nv_add_u32 v{WT}, s{sT0}, v{vLane}\nv_lshlrev_b32 v{WT}, 7, v{WT}")
        for u in range(3):
            k(f"s_mov_b32 s{sT0}, {MEMRING + u*32768}\nbuffer_load_dword v{WT+1}, v{WT}, {WSR}, s{sT0} offen sc1")
        k("s_waitcnt vmcnt(0)")
        k.label(sk)
    FUSED = cfg.get("fused")
    LDF = "sc1" if FUSED else ""
    if FUSED:
        k(f"v_and_b32 v{WT}, 3, v{vLane}\nv_lshlrev_b32 v{WT}, 7, v{WT}\ns_lshl_b32 s{sT0}, s{sWAVE}, 9\ns_add_u32 s{sT0}, s{sT0}, {C_WB}")
        top = k.uid("B_wp"); ok_ = k.uid("B_wpo")
        k.label(top)
        k(f"buffer_load_dword v{WT+1}, v{WT}, {WSR}, s{sT0} offen sc1\ns_waitcnt vmcnt(0)")
        k(f"v_cmp_gt_u32 vcc, 7, v{WT+1}\ns_cbranch_vccz {ok_}")
        k(f"s_sleep 1\ns_sub_u32 s{sSPIN}, s{sSPIN}, 1\ns_cbranch_scc0 {top}\ns_branch {abort}")
        k.label(ok_)
    k(f"s_mul_i32 s{sT0}, s{sRANK}, 458752\ns_mul_i32 s{sT1}, s{sWAVE}, 114688\ns_add_u32 s{sT0}, s{sT0}, s{sT1}\ns_add_u32 s{sT0}, s{sT0}, {WB_OFF}")
    k(f"s_mul_i32 s{sT1}, s{sWAVE}, 12288\ns_add_u32 s{sT1}, s{sT1}, {WL}\nv_add_u32 v{vWL}, s{sT1}, v{vL16}")
    for tau in range(8):
        for t in range(7):
            R = blockregB(tau, t)
            for a in range(2):
                off = ((7 * tau + t) * 2 + a) * 1024
                if off and off % 4096 == 0: k(f"s_add_u32 s{sT0}, s{sT0}, 4096")
                if R is not None:
                    k(f"buffer_load_dwordx4 {R.r(4*a,4)}, v{vL16}, {WSR}, s{sT0} offen offset:{off%4096} {LDF}")
                else:
                    k(f"s_mul_i32 s{sT1}, s{sWAVE}, 12288\ns_add_u32 m0, s{sT1}, {WL + tau*2048 + a*1024 - off%4096}\ns_nop 0")
                    k(f"buffer_load_dwordx4 v{vL16}, {WSR}, s{sT0} offen offset:{off%4096} {LDF} lds")
    PX = WT + 15
    for i in range(8): k(f"v_mov_b32 v{ACC+i}, 0")
    k("s_waitcnt vmcnt(0) lgkmcnt(0)")
    if cfg.get("tot"): k("s_memrealtime s[88:89]\ns_waitcnt lgkmcnt(0)")
    if cfg.get("mark"): cfg["mark"](cfg.get("_mw", 3), 16 if cfg.get("_mw", 3) == 3 else 12, only=(sRANK, 0))
    k(f"s_mov_b32 s{sSTEP}, 0\ns_mov_b32 s{sMS}, {MEMRING}\ns_mov_b32 s{sPS}, {PRING}")
    k(f"s_mul_i32 s{sXK}, s{sRANK}, 32768\ns_lshl_b32 s{sT0}, s{sWAVE}, 13\ns_add_u32 s{sXK}, s{sXK}, s{sT0}\ns_add_u32 s{sXK}, s{sXK}, {VX_OFF}")
    k(f"s_mov_b32 s{sOUT}, {MEMOUT+7168}")
    k(f"s_mov_b32 s{sVXC}, {FLAGV}")
    def b_loop(ST):
        q = Q(k)
        prof.start(); prof.tot_start(cfg.get("tot"))
        loop = k.uid("B_loop")
        k.label(loop)
        prof.stamp(0); prof.raw(0)
        if cfg.get("b_sleep"): k(f"s_sleep {cfg['b_sleep']}")
        top = k.uid("PM"); retry = k.uid("PMR")
        k.label(top)
        k(f"buffer_load_dwordx4 {V(WT,4)}, v{vPollA}, {WSR}, s{sMS} offen sc1")
        k(f"buffer_load_dwordx4 {V(WT+4,4)}, v{vPollB}, {WSR}, s{sMS} offen sc1")
        if cfg.get("vxwait"): k(f"v_mov_b32 v{WT+9}, 0\nbuffer_load_dword v{WT+8}, v{WT+9}, {WSR}, s{sVXC} offen sc1")
        k("s_waitcnt vmcnt(0)")
        k(f"v_max3_u32 v{PX}, v{WT}, v{WT+1}, v{WT+2}")
        k(f"v_max3_u32 v{PX}, v{PX}, v{WT+3}, v{WT+4}")
        k(f"v_max3_u32 v{PX}, v{PX}, v{WT+5}, v{WT+6}")
        k(f"v_max_u32 v{PX}, v{PX}, v{WT+7}")
        k(f"v_cmp_eq_u32 vcc, -1, v{PX}")
        k(f"s_cbranch_vccnz {retry}")
        if cfg.get("vxwait"):
            k(f"v_cmp_ge_u32 vcc, s{sSTEP}, v{WT+8}")
            k(f"s_cbranch_vccnz {retry}")
        retry_block(cfg, retry, "", abort, top)
        q.reset()
        prof.stamp(1); prof.raw(1)
        q.ds(f"ds_write_b128 v{vPollA}, {V(WT,4)} offset:{MEM_L}")
        q.ds(f"ds_write_b128 v{vPollB}, {V(WT+4,4)} offset:{MEM_L}")
        q.lg0()
        k("s_barrier")
        prof.stamp(2)
        for t in range(7):
            q.ds(f"ds_read_b128 {V(MEM+4*t,4)}, v{vL16} offset:{MEM_L+t*1024}", f"mem{t}")
        nm = k.uid("B_nm")
        k(f"s_cmp_lg_u32 s{sWAVE}, 0\ns_cbranch_scc1 {nm}\ns_cmp_eq_u32 s{sSTEP}, 0\ns_cbranch_scc1 {nm}")
        k(f"s_sub_u32 s{sT1}, s{sOUT}, 7168\nbuffer_store_dwordx2 {V(VB+14,2)}, v{vMst}, {WSR}, s{sT1} offen sc1")
        k.label(nm)
        k(f"s_add_u32 s{sT1}, s{sXK}, 4096")
        def vx_load(u):
            off = u * 1024
            so = sXK if off < 4096 else sT1
            k(f"buffer_load_dwordx4 {A(VXR+4*u,4)}, v{vL16}, {WSR}, s{so} offen offset:{off%4096} sc1")
        def vb_dst(tau, rp):
            hh, c = tau >> 1, tau & 1
            a, sub = hh >> 1, hh & 1
            return VB + 8 * c + 4 * a + 2 * rp + sub
        for tau in range(8):
            for t in range(7):
                if tau == 0: q.wait_lg(f"mem{t}")
                R = blockregB(tau, t)
                if R is None:
                    q.wait_lg(f"wl{tau}b")
                    Bop = V(WT + 8 * (tau & 1), 8)
                else:
                    Bop = R.r(0, 8)
                k(f"v_smfmac_f32_16x16x64_bf16 {V(ACC+4*(tau&1),4)}, {V(MEM+4*t,4)}, {Bop}, v{vIdx}")
                if tau < 6:
                    if t == 0: q.ds(f"ds_read_b128 {V(WT+8*(tau&1),4)}, v{vWL} offset:{tau*2048}", f"wl{tau}a")
                    if t == 1: q.ds(f"ds_read_b128 {V(WT+8*(tau&1)+4,4)}, v{vWL} offset:{tau*2048+1024}", f"wl{tau}b")
                if tau < 4 and t in (5, 6): vx_load(2 * tau + (t - 5))
                if tau >= 1:
                    pa = ACC + 4 * ((tau - 1) & 1)
                    if t == 2: k(f"v_cvt_pk_bf16_f32 v{vb_dst(tau-1,0)}, v{pa}, v{pa+1}")
                    if t == 3: k(f"v_cvt_pk_bf16_f32 v{vb_dst(tau-1,1)}, v{pa+2}, v{pa+3}")
                    if t == 4: k(f"v_mov_b64 {V(pa,2)}, 0")
                    if t == 5: k(f"v_mov_b64 {V(pa+2,2)}, 0")
        k(f"s_add_u32 s{sXK}, s{sXK}, 458752")
        k("s_nop 6")
        pa = ACC + 4
        k(f"v_cvt_pk_bf16_f32 v{vb_dst(7,0)}, v{pa}, v{pa+1}")
        k(f"v_cvt_pk_bf16_f32 v{vb_dst(7,1)}, v{pa+2}, v{pa+3}")
        k(f"v_mov_b64 {V(pa,2)}, 0\nv_mov_b64 {V(pa+2,2)}, 0")
        prof.raw(2)
        k("s_waitcnt vmcnt(0)")
        prof.stamp(3); prof.raw(3)
        k(f"s_add_u32 s{sMS1}, s{sSTEP}, 1")
        emit_flag_poll(k, cfg, vDet, WT, sMS1, FLAGP, abort)
        prof.stamp(4); prof.raw(4)
        P0, P1, PM = MEM, MEM + 4, MEM + 8
        q.reset()
        def p_loads(qq):
            qq(f"buffer_load_dwordx4 {V(P0,4)}, v{vP0}, {WSR}, s{sPS} offen sc1", "p0")
            qq(f"buffer_load_dwordx4 {V(P1,4)}, v{vP0}, {WSR}, s{sPS} offen offset:1024 sc1", "p1")
            qq(f"buffer_load_dwordx4 {V(PM,4)}, v{vPm}, {WSR}, s{sPS} offen sc1", "pm")
        p_loads(q.vmem)
        again = k.uid("B_again"); retry = k.uid("B_retry")
        k.label(again)
        for (Pr, src, tag) in ((P0, "x0", "p0"), (P1, "x1", "p1"), (PM, "m", "pm")):
            q.wait_vm(tag)
            if tag == "p0": prof.raw(5)
            if tag == "pm": prof.raw(6)
            for c in range(2):
                Bop = {"x0": A(VXR + c * 8, 8), "x1": A(VXR + 16 + c * 8, 8), "m": V(VB + 8 * c, 8)}[src]
                k(f"v_smfmac_f32_16x16x64_bf16 {V(ACC+4*c,4)}, {V(Pr,4)}, {Bop}, v{vIdx}")
                if c == 0: k(f"v_max_u32 v{PX}, v{Pr}, v{Pr+1}" if src == "x0" else f"v_max3_u32 v{PX}, v{PX}, v{Pr}, v{Pr+1}")
                else: k(f"v_max3_u32 v{PX}, v{PX}, v{Pr+2}, v{Pr+3}")
        k(f"v_cmp_eq_u32 vcc, -1, v{PX}")
        k(f"s_cbranch_vccnz {retry}")
        rb = K(); lab = k.uid("B_rl"); ok_ = k.uid("B_rok")
        rb(f"{lab}:")
        p_loads(lambda txt, tag: rb(txt))
        rb("s_waitcnt vmcnt(0)")
        rb(f"v_max3_u32 v{PX}, v{P0}, v{P0+1}, v{P0+2}")
        for i in range(3, 11, 2): rb(f"v_max3_u32 v{PX}, v{PX}, v{P0+i}, v{P0+i+1}")
        rb(f"v_max_u32 v{PX}, v{PX}, v{P0+11}")
        rb(f"v_cmp_eq_u32 vcc, -1, v{PX}")
        rb(f"s_cbranch_vccz {ok_}")
        rb(f"s_sub_u32 s{sSPIN}, s{sSPIN}, 1\ns_cbranch_scc0 {lab}\ns_branch {abort}")
        rb(f"{ok_}:")
        for i in range(0, 8, 2): rb(f"v_mov_b64 {V(ACC+i,2)}, 0")
        if cfg.get("cnt_retry"): rb(f"s_add_u32 s{sPROF+11}, s{sPROF+11}, 1")
        rb(f"s_nop 1\ns_branch {again}")
        cfg.setdefault("outofline", []).append(f"{retry}:\ns_nop 7\n" + rb.text())
        def mflag():
            k(f"s_add_u32 s{sT0}, s{sSTEP}, 1\nv_mov_b32 v{PX}, s{sT0}\nv_mov_b32 v{PX-1}, 0")
            k(f"s_mov_b64 exec, 1\nbuffer_store_dword v{PX}, v{PX-1}, {WSR}, s{sFLG} offen {ST}\ns_mov_b64 exec, -1")
        mpos = cfg.get("mflag_pos", 1)
        k("s_nop 5")
        for r in range(4): k(f"v_permlane32_swap_b32 v{ACC+r}, v{ACC+4+r}")
        k(f"v_pk_add_f32 {V(ACC,2)}, {V(ACC,2)}, {V(ACC+4,2)}\nv_pk_add_f32 {V(ACC+2,2)}, {V(ACC+2,2)}, {V(ACC+6,2)}")
        q.ds(f"ds_write_b128 v{vOA}, {V(ACC,4)}")
        nofin = k.uid("B_nofin"); join = k.uid("B_join")
        if mpos == 0:
            sk = k.uid("B_f0"); k(f"s_cmp_lg_u32 s{sWAVE}, 0\ns_cbranch_scc1 {sk}"); mflag(); k.label(sk)
        q.lg0()
        prof.stamp(5); prof.raw(7)
        k("s_barrier")
        prof.stamp(6); prof.raw(8)
        k(f"s_cmp_lg_u32 s{sWAVE}, 0\ns_cbranch_scc1 {nofin}")
        X = WT
        for w_ in range(4): q.ds(f"ds_read_b128 {V(X+4*w_,4)}, v{vOR} offset:{w_*1024}", f"o{w_}")
        def mflag2():
            k(f"s_mov_b64 exec, 1\nbuffer_store_dword v{ACC+4}, v{ACC+5}, {WSR}, s{sFLG} offen {ST}\ns_mov_b64 exec, -1")
        k(f"s_add_u32 s{sT0}, s{sSTEP}, 1\nv_mov_b32 v{ACC+4}, s{sT0}\nv_mov_b32 v{ACC+5}, 0")
        if mpos == 1: mflag2()
        k(f"s_add_u32 s{sT0}, s{sSTEP}, 1\ns_and_b32 s{sT0}, s{sT0}, 3\ns_mul_i32 s{sMS1}, s{sT0}, 7168\ns_add_u32 s{sMS1}, s{sMS1}, {MEMRING}")
        def pk(d, a, b):
            k(f"v_pk_add_f32 {V(d,2)}, {V(a,2)}, {V(b,2)}\nv_pk_add_f32 {V(d+2,2)}, {V(a+2,2)}, {V(b+2,2)}")
        q.wait_lg("o1")
        if mpos == 11: mflag2()
        pk(X, X, X+4)
        q.wait_lg("o3"); pk(X+8, X+8, X+12); pk(X, X, X+8)
        q.reset()
        prof.raw(9)
        if mpos == 12: mflag2()
        else: k("s_nop 1")
        k(f"v_permlane32_swap_b32 v{X}, v{X+2}\nv_permlane32_swap_b32 v{X+1}, v{X+3}")
        k("s_nop 1")
        k(f"v_permlane16_swap_b32 v{X}, v{X+1}\nv_permlane16_swap_b32 v{X+2}, v{X+3}")
        if mpos == 13: mflag2()
        k(f"v_cvt_pk_bf16_f32 v{X}, v{X}, v{X+1}\nv_cvt_pk_bf16_f32 v{X+1}, v{X+2}, v{X+3}")
        k(f"v_min_u32 v{X}, -2, v{X}\nv_min_u32 v{X+1}, -2, v{X+1}")
        k(f"buffer_store_dwordx2 {V(X,2)}, v{vMst}, {WSR}, s{sMS1} offen {ST}")
        prof.raw(10)
        if mpos == 2: mflag2()
        k(f"v_mov_b64 {V(VB+14,2)}, {V(X,2)}")
        k.label(nofin)
        if cfg.get("bar4", True): k("s_barrier")
        k(f"s_cmp_lg_u32 s{sWAVE}, 1\ns_cbranch_scc1 {join}")
        X = WT
        k(f"s_add_u32 s{sRST}, s{sSTEP}, 3\ns_and_b32 s{sRST}, s{sRST}, 3\ns_mul_i32 s{sRST}, s{sRST}, 7168\ns_add_u32 s{sRST}, s{sRST}, {MEMRING}")
        k(f"v_mov_b32 v{X}, -1\nv_mov_b32 v{X+1}, -1")
        k(f"buffer_store_dwordx2 {V(X,2)}, v{vMst}, {WSR}, s{sRST} offen {ST}")
        k.label(join)
        for i in range(0, 8, 2): k(f"v_mov_b64 {V(ACC+i,2)}, 0")
        prof.stamp(7)
        k(f"s_add_u32 s{sOUT}, s{sOUT}, 7168")
        emit_ring_advance(k)
        k(f"s_cmp_lt_u32 s{sSTEP}, {cfg['nsteps']}\ns_cbranch_scc1 {loop}")
        if cfg.get("mark"): cfg["mark"](7, 12, only=(sRANK, 0))
        nm2 = k.uid("B_nm2")
        k(f"s_cmp_lg_u32 s{sWAVE}, 0\ns_cbranch_scc1 {nm2}")
        k(f"s_sub_u32 s{sT1}, s{sOUT}, 7168\nbuffer_store_dwordx2 {V(VB+14,2)}, v{vMst}, {WSR}, s{sT1} offen sc1\ns_waitcnt vmcnt(0)")
        k.label(nm2)
        k(f"s_add_u32 s{sRANK}, s{sRANK}, 16")
        prof.raw_dump(WT, WT + 1); prof.dump(WT, WT + 1); prof.tot_dump(cfg.get("tot"), WT, WT + 1)
        k("s_endpgm")
    if cfg.get("mode_hook"): cfg["mode_hook"](k, WT)
    mlabs = [k.uid("B_m") for _ in modes]
    if len(modes) > 1: k(f"s_cmp_eq_u32 s{sMODE}, 1\ns_cbranch_scc1 {mlabs[1]}")
    for mi, st in enumerate(modes):
        k.label(mlabs[mi])
        b_loop(st)

def emit_helper(k, cfg, abort):
    WSR = f"s[{sWS}:{sWS+3}]"
    modes = cfg.get("modes", [cfg.get("st", "")])
    dist = cfg.get("pf_dist", 3)
    k("v_lshlrev_b32 v1, 7, v0")
    k("v_mov_b32 v2, 0")
    if cfg.get("mode_hook"): cfg["mode_hook"](k, 40)
    mlabs = [k.uid("H_m") for _ in modes]
    if len(modes) > 1: k(f"s_cmp_eq_u32 s{sMODE}, 1\ns_cbranch_scc1 {mlabs[1]}")
    for mi, ST in enumerate(modes):
        k.label(mlabs[mi])
        k(f"s_mov_b32 s{sSTEP}, 0\ns_mov_b32 s{sXK}, {VX_OFF}\ns_mov_b32 s{sOUT}, {XK_OFF}\ns_mov_b32 s{sVXC}, {C_VX}")
        loop = k.uid("PF_loop"); p2 = k.uid("PF_p2"); g2 = k.uid("PF_g2")
        k(f"s_cmp_lg_u32 s{sWAVE}, 0\ns_cbranch_scc1 {g2}_end")
        k.label(loop)
        k.label(p2)
        k(f"buffer_load_dword v3, v2, {WSR}, s{sVXC} offen sc1\ns_waitcnt vmcnt(0)")
        k(f"v_cmp_gt_u32 vcc, 28, v3\ns_cbranch_vccz {g2}")
        k(f"s_sleep 1\ns_sub_u32 s{sSPIN}, s{sSPIN}, 1\ns_cbranch_scc0 {p2}\ns_branch {abort}")
        k.label(g2)
        k(f"s_add_u32 s{sT0}, s{sSTEP}, 1\nv_mov_b32 v3, s{sT0}\ns_mov_b32 s{sT0}, {FLAGV}")
        k(f"s_mov_b64 exec, 1\nbuffer_store_dword v3, v2, {WSR}, s{sT0} offen {ST}")
        k(f"s_mov_b32 s{sT0}, {FLAGV2}\nbuffer_store_dword v3, v2, {WSR}, s{sT0} offen sc1\ns_mov_b64 exec, -1")
        k(f"s_add_u32 s{sSTEP}, s{sSTEP}, 1\ns_add_u32 s{sVXC}, s{sVXC}, 16")
        k(f"s_cmp_lt_u32 s{sSTEP}, {cfg['nsteps']}\ns_cbranch_scc1 {loop}")
        k.label(f"{g2}_end")
        k("s_waitcnt vmcnt(0)")
        k("s_endpgm")

def gen_chain_test(cfg):
    k = K()
    name = "chain_kernel"
    k(f'.amdgcn_target "amdgcn-amd-amdhsa--gfx950"\n.text\n.globl {name}\n.p2align 8\n.type {name},@function\n{name}:')
    k("s_load_dwordx4 s[4:7], s[0:1], 0")
    if cfg.get("tot"): k("s_memrealtime s[96:97]")
    k("s_getreg_b32 s3, hwreg(HW_REG_XCC_ID)\ns_and_b32 s3, s3, 15")
    k("s_waitcnt lgkmcnt(0)")
    k(f"s_mov_b32 s{sWS}, s4\ns_mov_b32 s{sWS+1}, s5\ns_mov_b32 s{sWS+2}, {WS_BYTES}\ns_mov_b32 s{sWS+3}, 0x20000")
    if cfg.get("same_xcd", True):
        k("s_cmp_lg_u32 s3, 0\ns_cbranch_scc1 L_exit")
    k("v_mov_b32 v1, 0\nv_mov_b32 v2, 1")
    k("v_cmp_eq_u32 vcc, 0, v0\ns_and_saveexec_b64 s[20:21], vcc\ns_cbranch_execz L_t")
    k("global_atomic_add v3, v1, v2, s[6:7] sc0\ns_waitcnt vmcnt(0)\nds_write_b32 v1, v3\ns_waitcnt lgkmcnt(0)")
    k.label("L_t")
    k("s_mov_b64 exec, s[20:21]\ns_barrier\nds_read_b32 v3, v1\ns_waitcnt lgkmcnt(0)\ns_nop 0")
    k(f"v_readfirstlane_b32 s{sRANK}, v3")
    k(f"v_lshrrev_b32 v3, 6, v0\ns_nop 0\nv_readfirstlane_b32 s{sWAVE}, v3")
    k("s_barrier")
    k(f"s_mov_b32 s{sSPIN}, {SPIN}")

    k(f"s_cmp_ge_u32 s{sRANK}, 30\ns_cbranch_scc1 L_exit")
    k(f"s_cmp_ge_u32 s{sRANK}, 16\ns_cbranch_scc1 L_roleB")
    emit_chain_A(k, cfg, "L_abort")
    k.label("L_roleB")
    emit_chain_B(k, cfg, "L_abort")
    for t in cfg.get("outofline", []): k(t)
    k.label("L_abort")
    k(f"v_mov_b32 v1, 0\nv_mov_b32 v2, 1\nglobal_atomic_add v1, v2, s[6:7] offset:4\ns_waitcnt vmcnt(0)")
    k.label("L_exit")
    k("s_endpgm")
    k(f""".section .rodata,"a"
.p2align 6
.amdhsa_kernel {name}
  .amdhsa_next_free_vgpr 512
  .amdhsa_next_free_sgpr 102
  .amdhsa_accum_offset 256
  .amdhsa_group_segment_fixed_size 0
  .amdhsa_kernarg_size 16
  .amdhsa_user_sgpr_count 2
  .amdhsa_user_sgpr_kernarg_segment_ptr 1
  .amdhsa_system_sgpr_workgroup_id_x 1
.end_amdhsa_kernel""")
    return k.text()

if __name__ == "__main__":
    import sys, kfw
    cfg = dict(nsteps=63, prof=("prof" in sys.argv))
    t = gen_chain_test(cfg)
    open("chain_test.s", "w").write(t)
    p = kfw.check(t); w = kfw.check_waits(t)
    print("hazards", len(p), "waits", len(w))
```

```python
from kfw import *
from layout import *
from chain import Q, sWS, sRANK, sWAVE, sT0, sT1, sSPIN, SPIN
from prepk import srd, KARG, fbits

WSR = f"s[{sWS}:{sWS+3}]"

def wait_counter(k, off_sgpr, target, vtmp, vzero, abort, sleep=2):
    top = k.uid("WC"); done = k.uid("WCD")
    k.label(top)
    k(f"buffer_load_dword v{vtmp}, v{vzero}, {WSR}, s{off_sgpr} offen sc1\ns_waitcnt vmcnt(0)")
    k(f"v_cmp_gt_u32 vcc, {target}, v{vtmp}" if isinstance(target, int) else f"v_cmp_gt_u32 vcc, {target}, v{vtmp}")
    k(f"s_cbranch_vccz {done}")
    k(f"s_sleep {sleep}\ns_sub_u32 s{sSPIN}, s{sSPIN}, 1\ns_cbranch_scc0 {top}\ns_branch {abort}")
    k.label(done)

def cheap_poll(k, soff, imm_reg, vtmp, abort, sleep):
    top = k.uid("CP"); done = k.uid("CPD")
    k.label(top)
    k(f"buffer_load_dword v{vtmp}, v{imm_reg}, {WSR}, s{soff} offen sc1\ns_waitcnt vmcnt(0)")
    k(f"v_cmp_eq_u32 vcc, -1, v{vtmp}\ns_cbranch_vccz {done}")
    k(f"s_sleep {sleep}\ns_sub_u32 s{sSPIN}, s{sSPIN}, 1\ns_cbranch_scc0 {top}\ns_branch {abort}")
    k.label(done)

def signal(k, off_sgpr, vone, vzero):
    k(f"s_mov_b64 exec, 1\nbuffer_atomic_add v{vone}, v{vzero}, {WSR}, s{off_sgpr} offen sc1\ns_mov_b64 exec, -1")

def dma(k, vaddr, soff, ldsoff_m0, imm=0):
    k(f"s_mov_b32 m0, {ldsoff_m0}\ns_nop 0\nbuffer_load_dwordx4 v{vaddr}, {WSR}, s{soff} offen offset:{imm} lds")

def emit_vxgen(k, cfg, abort, what="vx"):
    NPAR = cfg.get("vx_par", 2) if what == "vx" else cfg.get("vm_par", 1)
    sJ, sWp, sPar, sSeg, sSrc, sDst, sCnt, sBuf, sM = 20, 21, 22, 23, 24, 25, 26, 27, 28
    vL16, vZ, vOne, vT, vRd = 1, 2, 3, 4, 5
    XF, ACC = 8, 32
    k("v_and_b32 v0, 63, v0")
    k(f"v_lshlrev_b32 v{vL16}, 4, v0\nv_mov_b32 v{vZ}, 0\nv_mov_b32 v{vOne}, 1")
    k(f"s_mul_i32 s{sPar}, s{sRANK}, 2341\ns_lshr_b32 s{sPar}, s{sPar}, 16")
    k(f"s_mul_i32 s{sT0}, s{sPar}, 28\ns_sub_u32 s{sT0}, s{sRANK}, s{sT0}")
    k(f"s_lshr_b32 s{sJ}, s{sT0}, 1\ns_and_b32 s{sWp}, s{sT0}, 1")
    sW, sKs = 29, 30
    k(f"s_lshr_b32 s{sW}, s{sWAVE}, 1\ns_lshl_b32 s{sT0}, s{sWp}, 1\ns_add_u32 s{sW}, s{sW}, s{sT0}\ns_and_b32 s{sKs}, s{sWAVE}, 1")
    k(f"s_mul_i32 s{sSrc}, s{sJ}, 458752\ns_mul_i32 s{sT0}, s{sW}, 114688\ns_add_u32 s{sSrc}, s{sSrc}, s{sT0}")
    k(f"s_mul_i32 s{sT0}, s{sKs}, {4*14336}\ns_add_u32 s{sSrc}, s{sSrc}, s{sT0}\ns_add_u32 s{sSrc}, s{sSrc}, {WB_OFF}")
    def Wreg(c, a, kk): return ((a * 2 + c) * 14 + kk) * 4
    FUSED = cfg.get("fused"); LDF = "sc1" if FUSED else ""
    if FUSED:
        k(f"s_lshl_b32 s{sT0}, s{sW}, 2\ns_lshl_b32 s{sT1}, s{sKs}, 1\ns_add_u32 s{sT0}, s{sT0}, s{sT1}\ns_lshl_b32 s{sT0}, s{sT0}, 7\ns_add_u32 s{sT0}, s{sT0}, {C_WB}")
        k(f"v_and_b32 v{vT}, 1, v0\nv_lshlrev_b32 v{vT}, 7, v{vT}")
        wait_counter(k, sT0, 7, 6, vT, abort, sleep=1)
    for a in range(2):
        for c in range(2):
            for kk in range(14):
                off = ((2 * a + c) * 14 + kk) * 1024
                if off and off % 4096 == 0: k(f"s_add_u32 s{sSrc}, s{sSrc}, 4096")
                k(f"buffer_load_dwordx4 {A(Wreg(c,a,kk),4)}, v{vL16}, {WSR}, s{sSrc} offen offset:{off%4096} {LDF}")
    if what == "vm":
        k("s_waitcnt vmcnt(0)")
        emit_vm_phase(k, cfg, abort, locals(), 0, cfg.get("vm_split", 64))
        k("s_waitcnt vmcnt(0)")
        k("s_endpgm")
        return
    k(f"s_mul_i32 s{sDst}, s{sJ}, 32768\ns_lshl_b32 s{sT0}, s{sW}, 13\ns_add_u32 s{sDst}, s{sDst}, s{sT0}")
    k(f"s_lshl_b32 s{sT0}, s{sKs}, 12\ns_add_u32 s{sDst}, s{sDst}, s{sT0}\ns_add_u32 s{sDst}, s{sDst}, {VX_OFF}")
    k(f"s_mul_i32 s{sT0}, s{sPar}, 458752\ns_add_u32 s{sDst}, s{sDst}, s{sT0}")
    k(f"s_mov_b32 s{sSeg}, s{sPar}")
    k(f"s_lshl_b32 s{sCnt}, s{sPar}, 4\ns_add_u32 s{sCnt}, s{sCnt}, {C_VX}")
    k(f"s_mul_i32 s{sSrc}, s{sPar}, 28672\ns_mul_i32 s{sT0}, s{sWAVE}, 7168\ns_add_u32 s{sSrc}, s{sSrc}, s{sT0}\ns_add_u32 s{sSrc}, s{sSrc}, {XNA_OFF}")
    k(f"s_mul_i32 s{sM}, s{sWAVE}, 7168")
    k(f"s_mov_b32 s{sBuf}, 0")
    def issue_dma(bufreg):
        k(f"s_add_u32 s{sT1}, s{sM}, s{bufreg}")
        for u in range(7):
            k(f"s_add_u32 m0, s{sT1}, {u*1024}")
            if u == 4: k(f"s_add_u32 s{sT0}, s{sSrc}, 4096")
            else: k("s_nop 0")
            k(f"buffer_load_dwordx4 v{vL16}, {WSR}, s{sSrc if u < 4 else sT0} offen offset:{(u*1024)%4096} lds")
    def issue_dma(bufreg):
        k(f"s_add_u32 s{sT1}, s{sM}, s{bufreg}")
        k(f"s_mov_b32 m0, s{sT1}\ns_nop 0")
        for u in range(4):
            k(f"buffer_load_dwordx4 v{vL16}, {WSR}, s{sSrc} offen offset:{u*1024} {LDF} lds")
        k(f"s_add_u32 m0, s{sT1}, 4096\ns_add_u32 s{sT0}, s{sSrc}, 4096")
        for u in range(3):
            k(f"buffer_load_dwordx4 v{vL16}, {WSR}, s{sT0} offen offset:{u*1024} {LDF} lds")
    if FUSED:
        k(f"s_mov_b32 s{sT0}, {C_LN}")
        wait_counter(k, sT0, 64, 6, vZ, abort, sleep=1)
    issue_dma(sBuf)
    loop = k.uid("VX_loop"); last = k.uid("VX_nopf")
    k.label(loop)
    k("s_waitcnt vmcnt(0)\ns_barrier")
    k(f"v_add_u32 v{vRd}, s{sBuf}, v{vL16}")
    k(f"s_xor_b32 s{sBuf}, s{sBuf}, 28672")
    k(f"s_add_u32 s{sSrc}, s{sSrc}, {28672*NPAR}")
    k(f"s_add_u32 s{sT0}, s{sSeg}, {NPAR}\ns_cmp_ge_u32 s{sT0}, 64\ns_cbranch_scc1 {last}")
    issue_dma(sBuf)
    k.label(last)
    q = Q(k)
    def rd(kk):
        for rho in range(2):
            q.ds(f"ds_read_b128 {V(XF+8*(kk&1)+4*rho,4)}, v{vRd} offset:{(rho*14+kk)*1024}", f"x{kk}_{rho}")
    rd(0)
    for kk in range(14):
        if kk < 13: rd(kk + 1)
        q.wait_lg(f"x{kk}_1")
        for a in range(2):
            for c in range(2):
                for rho in range(2):
                    D = V(ACC + ((c * 2 + a) * 2 + rho) * 4, 4)
                    k(f"v_mfma_f32_16x16x32_bf16 {D}, {V(XF+8*(kk&1)+4*rho,4)}, {A(Wreg(c,a,kk),4)}, {'0' if kk == 0 else D}")
    k("s_nop 7")
    for c in range(2):
        for a in range(2):
            b = ACC + (c * 2 + a) * 8
            for i in range(4): k(f"v_cvt_pk_bf16_f32 v{b+i}, v{b+2*i}, v{b+2*i+1}")
            k(f"buffer_store_dwordx4 {V(b,4)}, v{vL16}, {WSR}, s{sDst} offen offset:{(c*2+a)*1024} sc1")
    k("s_waitcnt vmcnt(0)\ns_barrier")
    sk = k.uid("VX_ns")
    k(f"s_cmp_lg_u32 s{sWAVE}, 0\ns_cbranch_scc1 {sk}")
    signal(k, sCnt, vOne, vZ)
    k.label(sk)
    k(f"s_add_u32 s{sDst}, s{sDst}, {458752*NPAR}\ns_add_u32 s{sCnt}, s{sCnt}, {16*NPAR}\ns_add_u32 s{sSeg}, s{sSeg}, {NPAR}")
    k(f"s_cmp_lt_u32 s{sSeg}, 64\ns_cbranch_scc1 {loop}")
    if cfg.get("vm_split", 64) < 64: emit_vm_phase(k, cfg, abort, locals(), cfg["vm_split"], 64)
    k("s_waitcnt vmcnt(0)")
    k("s_endpgm")

def emit_vm_phase(k, cfg, abort, L, seg0=0, seg1=64):
    NPAR = L["NPAR"]; Wreg = L["Wreg"]
    sJ, sPar, sSeg, sSrc, sDst, sCnt, sW, sKs = L["sJ"], L["sPar"], L["sSeg"], L["sSrc"], L["sDst"], L["sCnt"], L["sW"], L["sKs"]
    vL16, vZ, vOne, vT = L["vL16"], L["vZ"], L["vOne"], L["vT"]
    vPA, vPB, vRd, vX = 5, 6, 7, 64
    MF, ACC, TA = 72, 32, 8
    k("; ---- V_m phase")
    k(f"s_mul_i32 s{sT0}, s{sWAVE}, 1792\nv_add_u32 v{vPA}, s{sT0}, v{vL16}")
    k(f"v_min_u32 v{vT}, 47, v0\nv_lshlrev_b32 v{vT}, 4, v{vT}\ns_add_u32 s{sT0}, s{sT0}, 1024\nv_add_u32 v{vPB}, s{sT0}, v{vT}")
    k(f"v_lshrrev_b32 v{vT}, 5, v0\nv_lshlrev_b32 v{vRd}, 8, v{vT}")
    k(f"v_and_b32 v{vT}, 7, v0\nv_lshl_add_u32 v{vRd}, v{vT}, 4, v{vRd}")
    k(f"v_bfe_u32 v{vT}, v0, 4, 1\nv_lshl_add_u32 v{vRd}, v{vT}, 3, v{vRd}")
    k(f"s_add_u32 s{sSeg}, s{sPar}, {seg0}")
    k(f"s_mul_i32 s{sSrc}, s{sSeg}, 7168\ns_add_u32 s{sSrc}, s{sSrc}, {MEMOUT}")
    k(f"s_mul_i32 s{sDst}, s{sJ}, 16384\ns_lshl_b32 s{sT0}, s{sW}, 12\ns_add_u32 s{sDst}, s{sDst}, s{sT0}")
    k(f"s_lshl_b32 s{sT0}, s{sKs}, 11\ns_add_u32 s{sDst}, s{sDst}, s{sT0}\ns_add_u32 s{sDst}, s{sDst}, {VM_OFF}")
    k(f"s_mul_i32 s{sT0}, s{sSeg}, 229376\ns_add_u32 s{sDst}, s{sDst}, s{sT0}")
    k(f"s_lshl_b32 s{sCnt}, s{sSeg}, 4\ns_add_u32 s{sCnt}, s{sCnt}, {C_VM}")
    loop = k.uid("VM_loop"); top = k.uid("VM_poll"); ok_ = k.uid("VM_ok")
    sHave, sPrev = 40, 41
    k(f"s_mov_b32 s{sHave}, 0")
    def loads(so):
        k(f"buffer_load_dwordx4 {V(TA,4)}, v{vPA}, {WSR}, s{so} offen sc1")
        k(f"buffer_load_dwordx4 {V(TA+4,4)}, v{vPB}, {WSR}, s{so} offen sc1")
    if seg0 > 0: cheap_poll(k, sSrc, vPA, vX, abort, 32)
    loads(sSrc)
    k.label(loop)
    k.label(top)
    k("s_waitcnt vmcnt(0)")
    ns = k.uid("VM_nsig")
    k(f"s_cmp_eq_u32 s{sHave}, 0\ns_cbranch_scc1 {ns}")
    signal(k, sPrev, vOne, vZ)
    k(f"s_mov_b32 s{sHave}, 0")
    k.label(ns)
    k(f"v_max3_u32 v{vX}, v{TA}, v{TA+1}, v{TA+2}\nv_max3_u32 v{vX}, v{vX}, v{TA+3}, v{TA+4}")
    k(f"v_max3_u32 v{vX}, v{vX}, v{TA+5}, v{TA+6}\nv_max_u32 v{vX}, v{vX}, v{TA+7}")
    k(f"v_cmp_eq_u32 vcc, -1, v{vX}\ns_cbranch_vccz {ok_}")
    k("s_sleep 1")
    loads(sSrc)
    k(f"s_sub_u32 s{sSPIN}, s{sSPIN}, 1\ns_cbranch_scc0 {top}\ns_branch {abort}")
    k.label(ok_)
    XD = cfg.get("xadiag")
    if XD: k("s_memrealtime s[60:61]")
    k(f"ds_write_b128 v{vPA}, {V(TA,4)}\nds_write_b128 v{vPB}, {V(TA+4,4)}")
    k("s_waitcnt lgkmcnt(0)\ns_barrier")
    nl = k.uid("VM_nl")
    k(f"s_add_u32 s{sSrc}, s{sSrc}, {7168*NPAR}\ns_add_u32 s{sT0}, s{sSeg}, {NPAR}\ns_cmp_ge_u32 s{sT0}, {seg1}\ns_cbranch_scc1 {nl}")
    loads(sSrc)
    k.label(nl)
    for t in range(7):
        if t: k(f"v_add_u32 v{vX}, {t*1024}, v{vRd}")
        ad = vRd if t == 0 else vX
        for a in range(2):
            k(f"ds_read2_b64 {V(MF+4*(2*t+a),4)}, v{ad} offset0:{a*64} offset1:{a*64+16}")
    k("s_waitcnt lgkmcnt(0)")
    for kk in range(14): k(f"v_swap_b32 v{MF+4*kk+1}, v{MF+4*kk+2}")
    k("s_nop 1")
    for kk in range(14):
        for c in range(2):
            for a in range(2):
                D = V(ACC + (c * 2 + a) * 4, 4)
                k(f"v_mfma_f32_16x16x32_bf16 {D}, {V(MF+4*kk,4)}, {A(Wreg(c,a,kk),4)}, {'0' if kk == 0 else D}")
    k("s_nop 7")
    for c in range(2):
        b = ACC + c * 8
        for i in range(4): k(f"v_cvt_pk_bf16_f32 v{b+i}, v{b+2*i}, v{b+2*i+1}")
        k(f"buffer_store_dwordx4 {V(b,4)}, v{vL16}, {WSR}, s{sDst} offen offset:{c*1024} sc1")
    if XD:
        skd = k.uid("VM_d")
        k(f"s_memrealtime s[62:63]\ns_cmp_lg_u32 s{sRANK}, 0\ns_cbranch_scc1 {skd}\ns_cmp_lg_u32 s{sWAVE}, 0\ns_cbranch_scc1 {skd}")
        k(f"s_waitcnt lgkmcnt(0)\ns_lshl_b32 s{sT0}, s{sSeg}, 3\ns_add_u32 s{sT0}, s{sT0}, {PROF+57344}")
        for n in range(2): k(f"v_mov_b32 v{vT}, s{60+2*n}\nbuffer_store_dword v{vT}, v{vZ}, {WSR}, s{sT0} offen offset:{4*n}")
        k.label(skd)
    k(f"s_mov_b32 s{sPrev}, s{sCnt}\ns_mov_b32 s{sHave}, 1")
    k("s_barrier")
    k(f"s_add_u32 s{sDst}, s{sDst}, {229376*NPAR}\ns_add_u32 s{sCnt}, s{sCnt}, {16*NPAR}\ns_add_u32 s{sSeg}, s{sSeg}, {NPAR}")
    k(f"s_cmp_lt_u32 s{sSeg}, {seg1}\ns_cbranch_scc1 {loop}")
    k("s_waitcnt vmcnt(0)")
    signal(k, sPrev, vOne, vZ)

def test_kernel(role_emit, name, cfg, nroles):
    k = K()
    k(f'.amdgcn_target "amdgcn-amd-amdhsa--gfx950"\n.text\n.globl {name}\n.p2align 8\n.type {name},@function\n{name}:')
    k(f"s_cmp_ge_u32 s2, {nroles}\ns_cbranch_scc1 L_exit")
    srd(k, sWS, KARG["ws"], WS_BYTES)
    k(f"s_mov_b32 s{sRANK}, s2\ns_mov_b32 s{sSPIN}, {SPIN}")
    k(f"v_lshrrev_b32 v3, 6, v0\ns_nop 0\nv_readfirstlane_b32 s{sWAVE}, v3")
    k("s_waitcnt lgkmcnt(0)")
    role_emit(k, cfg, "L_abort")
    for t in cfg.get("outofline", []): k(t)
    k.label("L_abort")
    k("s_load_dwordx2 s[4:5], s[0:1], 96\ns_waitcnt lgkmcnt(0)\nv_mov_b32 v1, 0\nv_mov_b32 v2, 1\nglobal_atomic_add v1, v2, s[4:5] offset:4\ns_waitcnt vmcnt(0)")
    k.label("L_exit")
    k("s_endpgm")
    from prepk import kd
    k('.section .rodata,"a"')
    k(kd(name, 512, 256))
    return k.text()

if __name__ == "__main__":
    import sys, kfw
    t = test_kernel(emit_vxgen, "vx_kernel", {}, 56)
    open("vx_test.s", "w").write(t)
    print("hazards", len(kfw.check(t)), "waits", len(kfw.check_waits(t)))

def blockregA(b):
    return Reg("a", 8 * b) if b < 28 else Reg("v", 88 + 8 * (b - 28))

def emit_xattn(k, cfg, abort):
    NPAR = cfg.get("xa_par", 2)
    sH, sPar, sSeg, sSrc, sBuf, sM, sKey, sMem, sPx, sCnt = 20, 21, 22, 23, 24, 25, 26, 27, 28, 29
    sMask = 32
    sLo = 48
    vL16, vL8, vZ, vOne, vRd, vMK, vSW, vSR, vX, vT, vNeg = 1, 2, 3, 4, 5, 6, 7, 8, 9, 10, 11
    XF, QT1, ACC, EX = 12, 28, 44, 76
    SACC = 56
    XK = 224
    SP_L = 57344
    MK_L = 81920
    sPrev, sHave = 50, 52
    k("v_and_b32 v0, 63, v0")
    k(f"v_lshlrev_b32 v{vL16}, 4, v0\nv_lshlrev_b32 v{vL8}, 3, v0\nv_mov_b32 v{vZ}, 0\nv_mov_b32 v{vOne}, 1\nv_mov_b32 v{vNeg}, 0xff800000")
    k(f"s_and_b32 s{sH}, s{sRANK}, 15\ns_lshr_b32 s{sPar}, s{sRANK}, 4")
    N_, G_ = XF, XF + 1
    k(f"v_and_b32 v{N_}, 15, v0\nv_lshrrev_b32 v{G_}, 4, v0")
    k(f"s_mul_i32 s{sT0}, s{sWAVE}, 1792")
    k(f"v_lshrrev_b32 v{vT}, 1, v{G_}\nv_lshlrev_b32 v{vMK}, 7, v{vT}")
    k(f"v_and_b32 v{vT}, 7, v0\nv_lshl_add_u32 v{vMK}, v{vT}, 4, v{vMK}")
    k(f"v_and_b32 v{vT}, 1, v{G_}\nv_lshl_add_u32 v{vMK}, v{vT}, 3, v{vMK}")
    vMKl = 84
    k(f"s_lshl_b32 s{sT1}, s{sWAVE}, 11\ns_add_u32 s{sT1}, s{sT1}, {MK_L}\nv_add_u32 v{vMKl}, s{sT1}, v{vMK}")
    k(f"v_add_u32 v{vMK}, s{sT0}, v{vMK}")
    k(f"v_cmp_gt_u32 s[54:55], 48, v0")
    k(f"s_mul_i32 s{sT0}, s{sWAVE}, 6144\ns_add_u32 s{sT0}, s{sT0}, {SP_L}\nv_add_u32 v{vSW}, s{sT0}, v{vL16}")
    k(f"s_and_b32 s{sT0}, s{sWAVE}, 1\ns_lshl_b32 s{sT0}, s{sT0}, 10\ns_add_u32 s{sT0}, s{sT0}, {SP_L}\nv_add_u32 v{vSR}, s{sT0}, v{vL16}")
    k(f"v_bfe_u32 v{vT}, v{N_}, 3, 1\nv_lshlrev_b32 v{vX}, 4, v{vT}")
    k(f"v_bfe_u32 v{vT}, v{N_}, 1, 1\nv_lshl_add_u32 v{vX}, v{vT}, 3, v{vX}")
    k(f"v_bfe_u32 v{vT}, v{N_}, 2, 1\nv_lshl_add_u32 v{vX}, v{vT}, 2, v{vX}")
    k(f"v_and_b32 v{vT}, 1, v{N_}\nv_add_u32 v{vX}, v{vX}, v{vT}")
    k(f"s_and_b32 s{sT0}, s{sWAVE}, 1\ns_lshl_b32 s{sT0}, s{sT0}, 1\nv_add_u32 v{vX}, s{sT0}, v{vX}")
    k(f"v_lshrrev_b32 v{vT}, 1, v{G_}\nv_lshlrev_b32 v{vT}, 4, v{vT}\nv_sub_u32 v{vX}, v{vX}, v{vT}")
    k(f"v_and_b32 v{vT}, 1, v{G_}\nv_lshlrev_b32 v{vT}, 2, v{vT}\nv_sub_u32 v{vX}, v{vX}, v{vT}")
    for kap in range(2):
        for r in range(4):
            c = 8 * (r >> 1) + 2 * kap + (r & 1)
            m = sMask + 2 * (4 * kap + r)
            k(f"v_cmp_le_i32 s[{m}:{m+1}], {c}, v{vX}")
    k(f"v_cmp_gt_u32 s[{sLo}:{sLo+1}], 2, v{G_}")
    FUSED = cfg.get("fused"); LDF = "sc1" if FUSED else ""
    if FUSED:
        k(f"s_lshl_b32 s{sT0}, s{sH}, 2\ns_add_u32 s{sT0}, s{sT0}, s{sWAVE}\ns_lshl_b32 s{sT0}, s{sT0}, 7\ns_add_u32 s{sT0}, s{sT0}, {C_WA}")
        k(f"v_and_b32 v{vT}, 7, v0\nv_min_u32 v{vT}, 6, v{vT}\nv_lshlrev_b32 v{vT}, 2, v{vT}")
        wait_counter(k, sT0, 7, vX, vT, abort, sleep=4)
    k(f"s_mul_i32 s{sT0}, s{sH}, 401408\ns_mul_i32 s{sT1}, s{sWAVE}, 100352\ns_add_u32 s{sT0}, s{sT0}, s{sT1}")
    if WA_OFF: k(f"s_add_u32 s{sT0}, s{sT0}, {WA_OFF}")
    for b in range(49):
        R = blockregA(b)
        for a in range(2):
            off = (b * 2 + a) * 1024
            if off and off % 4096 == 0: k(f"s_add_u32 s{sT0}, s{sT0}, 4096")
            k(f"buffer_load_dwordx4 {R.r(4*a,4)}, v{vL16}, {WSR}, s{sT0} offen offset:{off%4096} {LDF}")
    def Wf(tt, kk):
        return blockregA(7 * tt + (kk >> 1)).r(4 * (kk & 1), 4)
    k(f"s_mov_b32 s{sSeg}, s{sPar}")
    k(f"s_mul_i32 s{sSrc}, s{sPar}, 28672\ns_mul_i32 s{sT0}, s{sWAVE}, 7168\ns_add_u32 s{sSrc}, s{sSrc}, s{sT0}")
    k(f"s_add_u32 s{sKey}, s{sSrc}, {XKP_OFF}\ns_add_u32 s{sSrc}, s{sSrc}, {XNA_OFF}")
    k(f"s_mul_i32 s{sMem}, s{sPar}, 7168\ns_add_u32 s{sMem}, s{sMem}, {MEMOUT}")
    k(f"s_mul_i32 s{sPx}, s{sPar}, 49152\ns_mul_i32 s{sT0}, s{sH}, 3072\ns_add_u32 s{sPx}, s{sPx}, s{sT0}\ns_add_u32 s{sPx}, s{sPx}, {PX_OFF}")
    k(f"s_lshl_b32 s{sCnt}, s{sPar}, 4\ns_add_u32 s{sCnt}, s{sCnt}, {C_PX}")
    k(f"s_mul_i32 s{sM}, s{sWAVE}, 7168\ns_mov_b32 s{sBuf}, 0")
    def issue_dma(bufreg):
        k(f"s_add_u32 s{sT1}, s{sM}, s{bufreg}")
        k(f"s_mov_b32 m0, s{sT1}\ns_nop 0")
        for u in range(4):
            k(f"buffer_load_dwordx4 v{vL16}, {WSR}, s{sSrc} offen offset:{u*1024} {LDF} lds")
        k(f"s_add_u32 m0, s{sT1}, 4096\ns_add_u32 s{sT0}, s{sSrc}, 4096")
        for u in range(3):
            k(f"buffer_load_dwordx4 v{vL16}, {WSR}, s{sT0} offen offset:{u*1024} {LDF} lds")
    if FUSED:
        k(f"s_mov_b32 s{sT0}, {C_LN}")
        wait_counter(k, sT0, 64, vX, vZ, abort, sleep=4)
    issue_dma(sBuf)
    k(f"s_mov_b32 s{sHave}, 0\ns_waitcnt vmcnt(0)")
    if cfg.get("xadiag"): k("s_memrealtime s[88:89]\ns_waitcnt lgkmcnt(0)")
    loop = k.uid("XA_loop"); last = k.uid("XA_nopf")
    k.label(loop)
    XD = cfg.get("xadiag")
    def st(n):
        if XD: k(f"s_memrealtime s[{60+2*n}:{61+2*n}]")
    k("s_barrier")
    st(0)
    k(f"v_add_u32 v{vRd}, s{sBuf}, v{vL16}")
    k(f"s_xor_b32 s{sBuf}, s{sBuf}, 28672")
    for kap in range(2):
        for p in range(3):
            off = kap * 3584 + p * 1024
            so = sKey if off < 4096 else sT1
            if off >= 4096 and p == 1: k(f"s_add_u32 s{sT1}, s{sKey}, 4096")
            k(f"buffer_load_dwordx4 {A(XK+kap*14+4*p,4)}, v{vL16}, {WSR}, s{so} offen offset:{off%4096} {LDF}")
        off = kap * 3584 + 3072
        so = sKey if off < 4096 else sT1
        k(f"buffer_load_dwordx2 {A(XK+kap*14+12,2)}, v{vL8}, {WSR}, s{so} offen offset:{off%4096} {LDF}")
    k(f"s_mul_i32 s{sT0}, s{sWAVE}, 1792\ns_add_u32 s{sT0}, s{sT0}, s{sMem}\ns_lshl_b32 s{sT1}, s{sWAVE}, 11\ns_add_u32 m0, s{sT1}, {MK_L}\ns_nop 0")
    k(f"buffer_load_dwordx4 v{vL16}, {WSR}, s{sT0} offen sc1 lds")
    k(f"s_mov_b64 exec, s[54:55]\nbuffer_load_dwordx4 v{vL16}, {WSR}, s{sT0} offen offset:1024 sc1 lds\ns_mov_b64 exec, -1")
    k(f"s_add_u32 s{sSrc}, s{sSrc}, {28672*NPAR}\ns_add_u32 s{sKey}, s{sKey}, {28672*NPAR}")
    k(f"s_add_u32 s{sT0}, s{sSeg}, {NPAR}\ns_cmp_ge_u32 s{sT0}, 64\ns_cbranch_scc1 {last}")
    issue_dma(sBuf)
    k.label(last)
    st(1)
    q = Q(k)
    def qx_pass(tiles):
        def rd(kk):
            for rho in range(2):
                q.ds(f"ds_read_b128 {V(XF+8*(kk&1)+4*rho,4)}, v{vRd} offset:{(rho*14+kk)*1024}", f"x{kk}_{rho}")
        rd(0)
        for kk in range(14):
            if kk < 13: rd(kk + 1)
            q.wait_lg(f"x{kk}_1")
            for i, tt in enumerate(tiles):
                for rho in range(2):
                    D = V(ACC + (i * 2 + rho) * 4, 4)
                    k(f"v_mfma_f32_16x16x32_bf16 {D}, {Wf(tt,kk)}, {V(XF+8*(kk&1)+4*rho,4)}, {'0' if kk == 0 else D}")
        q.reset()
        k("s_nop 7")
    qx_pass([0, 1, 2, 3])
    for i in range(4):
        for rho in range(2):
            src = ACC + (i * 2 + rho) * 4; dst = QT1 + rho * 8 + (i >> 1) * 4 + (i & 1) * 2
            k(f"v_cvt_pk_bf16_f32 v{dst}, v{src}, v{src+1}\nv_cvt_pk_bf16_f32 v{dst+1}, v{src+2}, v{src+3}")
    st(2)
    qx_pass([4, 5, 6])
    st(3)
    for (i, rho, dst) in ((0, 0, 0), (1, 0, 2), (0, 1, 4), (1, 1, 6), (2, 0, 8), (2, 1, 10)):
        src = ACC + (i * 2 + rho) * 4
        k(f"v_cvt_pk_bf16_f32 v{ACC+dst}, v{src}, v{src+1}\nv_cvt_pk_bf16_f32 v{ACC+dst+1}, v{src+2}, v{src+3}")
    def QTr(p, rho):
        if p < 2: return V(QT1 + rho * 8 + p * 4, 4)
        if p == 2: return V(ACC + rho * 4, 4)
        return V(ACC + 8 + rho * 2, 2)
    def smm(kap, p, rho):
        D = V(SACC + (kap * 2 + rho) * 4, 4)
        C = "0" if p == 0 else D
        if p < 3:
            Aop = A(XK + kap * 14 + 4 * p, 4) if kap < 2 else V(XF + 4 * p, 4)
            k(f"v_mfma_f32_16x16x32_bf16 {D}, {Aop}, {QTr(p,rho)}, {C}")
        else:
            Aop = A(XK + kap * 14 + 12, 2) if kap < 2 else V(XF + 12, 2)
            k(f"v_mfma_f32_16x16x16_bf16 {D}, {Aop}, {QTr(p,rho)}, {C}")
    k("s_waitcnt vmcnt(0)")
    st(4)
    ns = k.uid("XA_nsig")
    k(f"s_cmp_ge_u32 s{sWAVE}, 2\ns_cbranch_scc1 {ns}\ns_cmp_eq_u32 s{sHave}, 0\ns_cbranch_scc1 {ns}")
    signal(k, sPrev, vOne, vZ)
    k.label(ns)
    for tt in range(7): k(f"ds_read_b64 {V(XF+2*tt,2)}, v{vMKl} offset:{256*tt}")
    for kap in range(2):
        for p in range(4):
            for rho in range(2): smm(kap, p, rho)
    top = k.uid("XA_mk"); ok_ = k.uid("XA_mkok")
    def mkcheck():
        k(f"v_max3_u32 v{vX}, v{XF}, v{XF+1}, v{XF+2}")
        for i in range(3, 13, 2): k(f"v_max3_u32 v{vX}, v{vX}, v{XF+i}, v{XF+i+1}")
        k(f"v_max_u32 v{vX}, v{vX}, v{XF+13}")
        k(f"v_cmp_eq_u32 vcc, -1, v{vX}\ns_cbranch_vccz {ok_}")
    k("s_waitcnt lgkmcnt(0)")
    mkcheck()
    k.label(top)
    k("s_sleep 1")
    for tt in range(7):
        k(f"buffer_load_dwordx2 {V(XF+2*tt,2)}, v{vMK}, {WSR}, s{sMem} offen offset:{256*tt} sc1")
    k("s_waitcnt vmcnt(0)")
    mkcheck()
    k(f"s_sub_u32 s{sSPIN}, s{sSPIN}, 1\ns_cbranch_scc0 {top}\ns_branch {abort}")
    k.label(ok_)
    st(5)
    for p in range(4):
        for rho in range(2): smm(2, p, rho)
    k("s_nop 7")
    for u in range(6): k(f"ds_write_b128 v{vSW}, {V(SACC+4*u,4)} offset:{u*1024}")
    k("s_waitcnt lgkmcnt(0)\ns_barrier")
    st(6)
    fin = k.uid("XA_fin")
    k(f"s_cmp_ge_u32 s{sWAVE}, 2\ns_cbranch_scc1 {fin}")
    S = 44
    T_ = 56
    dsts = [S, T_, T_ + 12, XF]
    for src in range(4):
        for kap in range(3):
            k(f"ds_read_b128 {V(dsts[src]+4*kap,4)}, v{vSR} offset:{src*6144+kap*2048}")
    k("s_waitcnt lgkmcnt(6)")
    for i in range(0, 12, 2): k(f"v_pk_add_f32 {V(S+i,2)}, {V(S+i,2)}, {V(T_+i,2)}")
    k("s_waitcnt lgkmcnt(0)")
    for i in range(0, 12, 2): k(f"v_pk_add_f32 {V(T_+12+i,2)}, {V(T_+12+i,2)}, {V(XF+i,2)}")
    for i in range(0, 12, 2): k(f"v_pk_add_f32 {V(S+i,2)}, {V(S+i,2)}, {V(T_+12+i,2)}")
    for kap in range(2):
        for r in range(4):
            m = sMask + 2 * (4 * kap + r)
            k(f"v_cndmask_b32 v{S+4*kap+r}, v{vNeg}, v{S+4*kap+r}, s[{m}:{m+1}]")
    M = vX; T2 = vT
    k(f"v_max3_f32 v{M}, v{S}, v{S+1}, v{S+2}")
    for i in range(3, 11, 2): k(f"v_max3_f32 v{M}, v{M}, v{S+i}, v{S+i+1}")
    k(f"v_max_f32 v{M}, v{M}, v{S+11}")
    def xg(op):
        for sw in ("v_permlane32_swap_b32", "v_permlane16_swap_b32"):
            k(f"v_mov_b32 v{T2}, v{M}\ns_nop 1\n{sw} v{M}, v{T2}\n{op} v{M}, v{M}, v{T2}")
    xg("v_max_f32")
    for i in range(12): k(f"v_sub_f32 v{S+i}, v{S+i}, v{M}")
    for i in range(12): k(f"v_exp_f32 v{S+i}, v{S+i}")
    k("s_nop 0")
    for i in range(8, 12): k(f"v_cndmask_b32 v{S+i}, 0, v{S+i}, s[{sLo}:{sLo+1}]")
    k(f"v_add_f32 v{M}, v{S}, v{S+1}")
    for i in range(2, 12): k(f"v_add_f32 v{M}, v{M}, v{S+i}")
    xg("v_add_f32")
    k(f"v_rcp_f32 v{M}, v{M}\ns_nop 0")
    for i in range(12): k(f"v_mul_f32 v{S+i}, v{S+i}, v{M}")
    for i in range(6): k(f"v_cvt_pk_bf16_f32 v{S+i}, v{S+2*i}, v{S+2*i+1}")
    k(f"s_and_b32 s{sT0}, s{sWAVE}, 1\ns_lshl_b32 s{sT1}, s{sT0}, 10\ns_add_u32 s{sT1}, s{sT1}, s{sPx}")
    k(f"buffer_store_dwordx4 {V(S,4)}, v{vL16}, {WSR}, s{sT1} offen sc1")
    k(f"s_lshl_b32 s{sT1}, s{sT0}, 9\ns_add_u32 s{sT1}, s{sT1}, s{sPx}")
    k(f"buffer_store_dwordx2 {V(S+4,2)}, v{vL8}, {WSR}, s{sT1} offen offset:2048 sc1")
    k.label(fin)
    st(7)
    if XD:
        skd = k.uid("XA_d")
        k(f"s_cmp_lg_u32 s{sRANK}, 0\ns_cbranch_scc1 {skd}\ns_cmp_lg_u32 s{sWAVE}, 0\ns_cbranch_scc1 {skd}")
        k(f"s_waitcnt lgkmcnt(0)\ns_lshl_b32 s{sT0}, s{sSeg}, 5\ns_add_u32 s{sT0}, s{sT0}, {PROF+53248}")
        for n in range(8): k(f"v_mov_b32 v{vT}, s{60+2*n}\nbuffer_store_dword v{vT}, v{vZ}, {WSR}, s{sT0} offen offset:{4*n}")
        k.label(skd)
    k(f"s_mov_b32 s{sPrev}, s{sCnt}\ns_mov_b32 s{sHave}, 1")
    k(f"s_add_u32 s{sMem}, s{sMem}, {7168*NPAR}\ns_add_u32 s{sPx}, s{sPx}, {49152*NPAR}\ns_add_u32 s{sCnt}, s{sCnt}, {16*NPAR}\ns_add_u32 s{sSeg}, s{sSeg}, {NPAR}")
    k(f"s_cmp_lt_u32 s{sSeg}, 64\ns_cbranch_scc1 {loop}")
    k("s_waitcnt vmcnt(0)")
    ns2 = k.uid("XA_nsig2")
    k(f"s_cmp_ge_u32 s{sWAVE}, 2\ns_cbranch_scc1 {ns2}")
    signal(k, sPrev, vOne, vZ)
    k.label(ns2)
    k("s_waitcnt vmcnt(0)")
    k("s_endpgm")

def emit_pvout(k, cfg, abort):
    NPAR = cfg.get("pv_par", 2)
    sX, sO = 36, 40
    sCg, sPar, sSeg, sVX, sVM, sPX, sG, sXo, sC = 20, 21, 22, 23, 24, 25, 26, 27, 28
    vL16, vL8, vZ, vT, vRow, vRd, vRm = 1, 2, 3, 4, 5, 7, 8
    PF, D, GV, XV = 12, 44, 52, 60
    srd(k, sX, KARG["x"], 1835008); srd(k, sO, KARG["out"], 1835008)
    k("v_and_b32 v0, 63, v0")
    k(f"v_lshlrev_b32 v{vL16}, 4, v0\nv_lshlrev_b32 v{vL8}, 3, v0\nv_mov_b32 v{vZ}, 0")
    k(f"s_mul_i32 s{sPar}, s{sRANK}, 9363\ns_lshr_b32 s{sPar}, s{sPar}, 16\ns_mul_i32 s{sT0}, s{sPar}, 7\ns_sub_u32 s{sCg}, s{sRANK}, s{sT0}")
    k(f"v_and_b32 v{vT}, 15, v0")
    k(f"v_bfe_u32 v{vRow}, v{vT}, 3, 1\nv_lshlrev_b32 v{vRow}, 4, v{vRow}")
    k(f"v_bfe_u32 v{vRow+1}, v{vT}, 1, 1\nv_lshl_add_u32 v{vRow}, v{vRow+1}, 3, v{vRow}")
    k(f"v_bfe_u32 v{vRow+1}, v{vT}, 2, 1\nv_lshl_add_u32 v{vRow}, v{vRow+1}, 2, v{vRow}")
    k(f"v_and_b32 v{vRow+1}, 1, v{vT}\nv_add_u32 v{vRow}, v{vRow}, v{vRow+1}")
    k(f"v_mul_u32_u24 v{vRow}, 896, v{vRow}")
    k(f"v_lshrrev_b32 v{vT}, 4, v0\nv_lshl_add_u32 v{vRow}, v{vT}, 3, v{vRow}")
    k(f"s_lshl_b32 s{sT0}, s{sCg}, 2\ns_add_u32 s{sT0}, s{sT0}, s{sWAVE}")
    k(f"s_lshl_b32 s{sT1}, s{sT0}, 5\nv_add_u32 v{vRow}, s{sT1}, v{vRow}\nv_add_u32 v{vRow+1}, {2*896}, v{vRow}")
    k(f"s_mul_i32 s{sG}, s{sT0}, 2048\ns_mul_i32 s{sT1}, s{sPar}, 57344\ns_add_u32 s{sG}, s{sG}, s{sT1}\ns_add_u32 s{sG}, s{sG}, {G_OFF}")
    k(f"s_lshr_b32 s{sT0}, s{sT0}, 1")
    k(f"s_mul_i32 s{sVX}, s{sT0}, 32768\ns_mul_i32 s{sVM}, s{sT0}, 16384")
    k(f"s_and_b32 s{sT0}, s{sWAVE}, 1\ns_lshl_b32 s{sT1}, s{sT0}, 11\ns_add_u32 s{sVX}, s{sVX}, s{sT1}\ns_lshl_b32 s{sT1}, s{sT0}, 10\ns_add_u32 s{sVM}, s{sVM}, s{sT1}")
    k(f"s_mul_i32 s{sT1}, s{sPar}, 458752\ns_add_u32 s{sVX}, s{sVX}, s{sT1}\ns_add_u32 s{sVX}, s{sVX}, {VX_OFF}")
    k(f"s_mul_i32 s{sT1}, s{sPar}, 229376\ns_add_u32 s{sVM}, s{sVM}, s{sT1}\ns_add_u32 s{sVM}, s{sVM}, {VM_OFF}")
    k(f"s_mul_i32 s{sPX}, s{sPar}, 49152\ns_mul_i32 s{sT1}, s{sWAVE}, 12288\ns_add_u32 s{sPX}, s{sPX}, s{sT1}\ns_add_u32 s{sPX}, s{sPX}, {PX_OFF}")
    k(f"s_mul_i32 s{sXo}, s{sPar}, 28672\ns_lshl_b32 s{sC}, s{sPar}, 4\ns_mov_b32 s{sSeg}, s{sPar}")
    k("s_waitcnt lgkmcnt(0)")
    VXR, VMR = 0, 64
    loop = k.uid("PV_loop")
    XD = cfg.get("xadiag")
    def st(n):
        if XD: k(f"s_memrealtime s[{60+2*n}:{61+2*n}]")
    k.label(loop)
    st(0)
    REC = 64
    def waitrec(checks):
        top = k.uid("PV_w"); done = k.uid("PV_wd"); skip = k.uid("PV_ws")
        k(f"s_cmp_lg_u32 s{sWAVE}, 0\ns_cbranch_scc1 {skip}")
        k(f"s_add_u32 s{sT0}, s{sC}, {CSEG}")
        k.label(top)
        k(f"buffer_load_dwordx4 {V(REC,4)}, v{vZ}, {WSR}, s{sT0} offen sc1\ns_waitcnt vmcnt(0)")
        first = True
        for idx, target in checks:
            k(f"v_cmp_gt_u32 vcc, {target}, v{REC+idx}")
            if first: k(f"s_mov_b64 s[30:31], vcc"); first = False
            else: k(f"s_or_b64 s[30:31], s[30:31], vcc")
        k(f"s_cmp_eq_u64 s[30:31], 0\ns_cbranch_scc1 {done}")
        k(f"s_sleep 2\ns_sub_u32 s{sSPIN}, s{sSPIN}, 1\ns_cbranch_scc0 {top}\ns_branch {abort}")
        k.label(done)
        k.label(skip)
        k("s_barrier")
    S0 = cfg.get("s0", 32)
    late = k.uid("PV_late"); go = k.uid("PV_go")
    k(f"s_cmp_ge_u32 s{sSeg}, {S0}\ns_cbranch_scc1 {late}")
    waitrec([(0, 28)])
    k(f"s_branch {go}")
    k.label(late)
    waitrec([(0, 28), (3, 1)])
    k.label(go)
    st(1)
    for w in range(4):
        for ks in range(2):
            k(f"s_add_u32 s{sT0}, s{sVX}, {w*8192+ks*4096}")
            for a in range(2):
                k(f"buffer_load_dwordx4 {A(VXR+((w*2+ks)*2+a)*4,4)}, v{vL16}, {WSR}, s{sT0} offen offset:{a*1024} sc1")
    early1 = k.uid("PV_e1")
    k(f"s_cmp_lt_u32 s{sSeg}, {S0}\ns_cbranch_scc1 {early1}")
    for rho in range(2): k(f"buffer_load_dwordx2 {V(XV+2*rho,2)}, v{vRow+rho}, s[{sX}:{sX+3}], s{sXo} offen")
    for rho in range(2): k(f"buffer_load_dwordx4 {V(GV+4*rho,4)}, v{vL16}, {WSR}, s{sG} offen offset:{rho*1024} sc1")
    k.label(early1)
    waitrec([(1, 112), (2, 32)])
    st(2)
    for w in range(4):
        k(f"s_add_u32 s{sT0}, s{sVM}, {w*4096}")
        for ks in range(2):
            k(f"buffer_load_dwordx4 {A(VMR+(w*2+ks)*4,4)}, v{vL16}, {WSR}, s{sT0} offen offset:{ks*2048} sc1")
    k(f"s_mul_i32 s{sT1}, s{sWAVE}, 12288")
    for u4 in range(3):
        k(f"s_add_u32 m0, s{sT1}, {u4*4096}\ns_add_u32 s{sT0}, s{sPX}, {u4*4096}")
        for u in range(4): k(f"buffer_load_dwordx4 v{vL16}, {WSR}, s{sT0} offen offset:{u*1024} sc1 lds")
    k("s_waitcnt vmcnt(0)\ns_barrier")
    st(3)
    q = Q(k)
    steps = []
    for h in range(16):
        for rho in range(2): steps.append(("x", h, rho))
    for pr in range(8):
        for rho in range(2): steps.append(("m", pr, rho))
    def rd(i):
        kind, a_, rho = steps[i]
        dst = V(PF + 4 * (i % 8), 4)
        if kind == "x": q.ds(f"ds_read_b128 {dst}, v{vL16} offset:{a_*3072+rho*1024}", f"p{i}")
        else: q.ds(f"ds_read2st64_b64 {dst}, v{vL8} offset0:{(2*a_*3072+2048+rho*512)//512} offset1:{((2*a_+1)*3072+2048+rho*512)//512}", f"p{i}")
    for i in range(6): rd(i)
    first = [True, True]
    for i, (kind, a_, rho) in enumerate(steps):
        if i + 6 < len(steps): rd(i + 6)
        q.wait_lg(f"p{i}")
        Aop = A(VXR + a_ * 4, 4) if kind == "x" else A(VMR + a_ * 4, 4)
        Dr = V(D + 4 * rho, 4)
        k(f"v_mfma_f32_16x16x32_bf16 {Dr}, {Aop}, {V(PF+4*(i%8),4)}, {'0' if first[rho] else Dr}")
        first[rho] = False
    k("s_nop 7")
    fin = k.uid("PV_fin"); nxt = k.uid("PV_nxt")
    k(f"s_cmp_ge_u32 s{sSeg}, {S0}\ns_cbranch_scc1 {fin}")
    for rho in range(2): k(f"buffer_store_dwordx4 {V(D+4*rho,4)}, v{vL16}, {WSR}, s{sG} offen offset:{rho*1024} sc1")
    k("s_waitcnt vmcnt(0)\ns_barrier")
    k(f"s_cmp_lg_u32 s{sWAVE}, 0\ns_cbranch_scc1 {nxt}")
    k(f"s_add_u32 s{sT0}, s{sC}, {C_G}\nv_mov_b32 v{vT}, 1")
    signal(k, sT0, vT, vZ)
    k(f"s_branch {nxt}")
    k.label(fin)
    for rho in range(2):
        T = PF
        k(f"v_lshlrev_b32 v{T}, 16, v{XV+2*rho}\nv_and_b32 v{T+1}, 0xffff0000, v{XV+2*rho}")
        k(f"v_lshlrev_b32 v{T+2}, 16, v{XV+2*rho+1}\nv_and_b32 v{T+3}, 0xffff0000, v{XV+2*rho+1}")
        for r in range(4): k(f"v_fma_f32 v{T+r}, v{D+4*rho+r}, v{GV+4*rho+r}, v{T+r}")
        k(f"v_cvt_pk_bf16_f32 v{T+4+2*rho}, v{T}, v{T+1}\nv_cvt_pk_bf16_f32 v{T+5+2*rho}, v{T+2}, v{T+3}")
        k(f"buffer_store_dwordx2 {V(T+4+2*rho,2)}, v{vRow+rho}, s[{sO}:{sO+3}], s{sXo} offen")
    k.label(nxt)
    st(4)
    if XD:
        skd = k.uid("PV_d")
        k(f"s_and_b32 s{sT0}, s{sRANK}, 0xff\ns_cmp_lg_u32 s{sCg}, 0\ns_cbranch_scc1 {skd}\ns_cmp_lg_u32 s{sWAVE}, 0\ns_cbranch_scc1 {skd}")
        k(f"s_waitcnt lgkmcnt(0)\ns_lshl_b32 s{sT0}, s{sSeg}, 5\ns_add_u32 s{sT0}, s{sT0}, {PROF+59392}")
        for n in range(5): k(f"v_mov_b32 v{vT}, s{60+2*n}\nbuffer_store_dword v{vT}, v{vZ}, {WSR}, s{sT0} offen offset:{4*n}")
        k.label(skd)
    k(f"s_add_u32 s{sVX}, s{sVX}, {458752*NPAR}\ns_add_u32 s{sVM}, s{sVM}, {229376*NPAR}\ns_add_u32 s{sPX}, s{sPX}, {49152*NPAR}")
    k(f"s_add_u32 s{sG}, s{sG}, {57344*NPAR}\ns_add_u32 s{sXo}, s{sXo}, {28672*NPAR}\ns_add_u32 s{sC}, s{sC}, {16*NPAR}\ns_add_u32 s{sSeg}, s{sSeg}, {NPAR}")
    k(f"s_cmp_lt_u32 s{sSeg}, 64\ns_cbranch_scc1 {loop}")
    k("s_waitcnt vmcnt(0)")
    k("s_endpgm")

import math
def emit_ffn(k, cfg, abort):
    k("; ================= FFN =================")
    FUSED = cfg.get("fused"); LDF = "sc1" if FUSED else ""
    if FUSED and cfg.get("ln_in_ffn"):
        import prep2
        prep2.emit_ln_segment(k, sRANK)
        if cfg.get("after_ln"): cfg["after_ln"](k)
    sA = 36
    sU, sGu, sTt, sFg, sSrc, sDst, sCnt = 20, 21, 22, 23, 24, 25, 26
    vL16, vZ, vOne, vT, vN, vG, vLd, vR = 1, 2, 3, 4, 5, 6, 7, 8
    k("v_mov_b32 v9, v0")
    k("v_and_b32 v0, 63, v0")
    k(f"v_lshlrev_b32 v{vL16}, 4, v0\nv_mov_b32 v{vZ}, 0\nv_mov_b32 v{vOne}, 1")
    k(f"v_and_b32 v{vN}, 15, v0\nv_lshrrev_b32 v{vG}, 4, v0")
    if cfg.get("relayout", True):
        STG = 16
        OUT = 48
        uloop = k.uid("FF_u"); isd = k.uid("FF_d"); nxt = k.uid("FF_n"); done = k.uid("FF_rd")
        k(f"s_mov_b32 s{sU}, s{sRANK}")
        k.label(uloop)
        k(f"s_cmp_ge_u32 s{sU}, 154\ns_cbranch_scc1 {done}")
        k(f"s_cmp_ge_u32 s{sU}, 98\ns_cbranch_scc1 {isd}")
        LS = 544
        k(f"s_cmp_ge_u32 s{sU}, 49\ns_cselect_b32 s{sGu}, 1, 0\ns_mul_i32 s{sT0}, s{sGu}, 49\ns_sub_u32 s{sT0}, s{sU}, s{sT0}")
        k(f"s_mul_i32 s{sTt}, s{sT0}, 9363\ns_lshr_b32 s{sTt}, s{sTt}, 16\ns_mul_i32 s{sT1}, s{sTt}, 7\ns_sub_u32 s{sFg}, s{sT0}, s{sT1}")
        g_ = k.uid("FF_g"); gu_ = k.uid("FF_gu")
        k(f"s_cmp_eq_u32 s{sGu}, 1\ns_cbranch_scc1 {g_}")
        srd(k, sA, KARG["Wg"], 1605632)
        k(f"s_branch {gu_}")
        k.label(g_)
        srd(k, sA, KARG["Wu"], 1605632)
        k.label(gu_)
        k(f"v_lshrrev_b32 v{vT}, 5, v9\nv_mul_u32_u24 v{vLd}, 3584, v{vT}\nv_mul_u32_u24 v{vR}, {LS}, v{vT}")
        k(f"v_and_b32 v{vT}, 31, v9\nv_lshl_add_u32 v{vLd}, v{vT}, 4, v{vLd}\nv_lshl_add_u32 v{vR}, v{vT}, 4, v{vR}")
        k(f"s_mul_i32 s{sSrc}, s{sTt}, {64*3584}\ns_lshl_b32 s{sT0}, s{sFg}, 9\ns_add_u32 s{sSrc}, s{sSrc}, s{sT0}")
        k("s_waitcnt lgkmcnt(0)")
        for u in range(8):
            k(f"buffer_load_dwordx4 {V(STG+4*u,4)}, v{vLd}, s[{sA}:{sA+3}], s{sSrc} offen")
            if u < 7: k(f"s_add_u32 s{sSrc}, s{sSrc}, {8*3584}")
        k("s_barrier")
        k("s_waitcnt vmcnt(0)")
        for u in range(8): k(f"ds_write_b128 v{vR}, {V(STG+4*u,4)} offset:{u*8*LS}")
        k(f"v_lshrrev_b32 v{vT}, 1, v{vG}\nv_lshlrev_b32 v{vR}, 4, v{vT}")
        k(f"v_and_b32 v{vT}, 1, v{vG}\nv_lshl_add_u32 v{vR}, v{vT}, 2, v{vR}")
        k(f"v_bfe_u32 v{vT}, v0, 2, 1\nv_add_u32 v{vR}, v{vR}, v{vT}")
        k(f"v_bfe_u32 v{vT}, v0, 3, 1\nv_lshl_add_u32 v{vR}, v{vT}, 3, v{vR}")
        k(f"v_mul_u32_u24 v{vR}, {LS}, v{vR}\nv_and_b32 v{vT}, 3, v0\nv_lshl_add_u32 v{vR}, v{vT}, 3, v{vR}")
        k(f"s_lshl_b32 s{sT0}, s{sWAVE}, 7\nv_add_u32 v{vR}, s{sT0}, v{vR}")
        k("s_waitcnt lgkmcnt(0)\ns_barrier")
        for ftl in range(4):
            for a in range(2):
                for u in range(2):
                    k(f"ds_read_b64_tr_b16 {V(OUT+(ftl*2+a)*4+2*u,2)}, v{vR} offset:{(32*a+2*u)*LS+ftl*32}")
        k("s_waitcnt lgkmcnt(0)")
        for ftl in range(4):
            k(f"s_lshl_b32 s{sT0}, s{sFg}, 4\ns_lshl_b32 s{sT1}, s{sWAVE}, 2\ns_add_u32 s{sT0}, s{sT0}, s{sT1}\ns_add_u32 s{sT0}, s{sT0}, {ftl}")
            k(f"s_lshl_b32 s{sT0}, s{sT0}, 1\ns_add_u32 s{sT0}, s{sT0}, s{sGu}\ns_mul_i32 s{sT0}, s{sT0}, 14\ns_lshl_b32 s{sT1}, s{sTt}, 1\ns_add_u32 s{sT0}, s{sT0}, s{sT1}")
            k(f"s_lshl_b32 s{sDst}, s{sT0}, 10\ns_add_u32 s{sDst}, s{sDst}, {WG_OFF}")
            for a in range(2):
                k(f"buffer_store_dwordx4 {V(OUT+(ftl*2+a)*4,4)}, v{vL16}, {WSR}, s{sDst} offen offset:{a*1024} sc1")
        k(f"s_branch {nxt}")
        k.label(isd)
        LS = 928
        srd(k, sA, KARG["Wd"], 1605632)
        k(f"s_sub_u32 s{sFg}, s{sU}, 98")
        k(f"s_mul_i32 s{sSrc}, s{sFg}, 28672")
        k(f"v_lshlrev_b32 v{vLd}, 4, v9")
        k("s_waitcnt lgkmcnt(0)")
        for u in range(7):
            k(f"buffer_load_dwordx4 {V(STG+4*u,4)}, v{vLd}, s[{sA}:{sA+3}], s{sSrc} offen")
            if u < 6: k(f"s_add_u32 s{sSrc}, s{sSrc}, 4096")
        k("s_barrier")
        for u in range(7):
            k(f"v_add_u32 v{vT}, {256*u}, v9\nv_mul_u32_u24 v{vR}, 2341, v{vT}\nv_lshrrev_b32 v{vR}, 17, v{vR}")
            k(f"v_mul_u32_u24 v{vLd}, 56, v{vR}\nv_sub_u32 v{vLd}, v{vT}, v{vLd}\nv_lshlrev_b32 v{vLd}, 4, v{vLd}")
            k(f"v_mul_u32_u24 v{vR}, {LS}, v{vR}\nv_add_u32 v{vLd}, v{vLd}, v{vR}")
            if u == 0: k("s_waitcnt vmcnt(0)")
            k(f"ds_write_b128 v{vLd}, {V(STG+4*u,4)}")
        k(f"v_bfe_u32 v{vT}, v0, 2, 2\nv_lshl_add_u32 v{vT}, v{vG}, 2, v{vT}\nv_mul_u32_u24 v{vR}, {LS}, v{vT}")
        k(f"v_and_b32 v{vT}, 3, v0\nv_lshl_add_u32 v{vR}, v{vT}, 3, v{vR}")
        k(f"s_mul_i32 s{sT0}, s{sWAVE}, 224\nv_add_u32 v{vR}, s{sT0}, v{vR}")
        k("s_waitcnt lgkmcnt(0)\ns_barrier")
        for i in range(7):
            for u in range(2):
                k(f"ds_read_b64_tr_b16 {V(OUT+i*4+2*u,2)}, v{vR} offset:{16*u*LS+i*32}")
        k(f"s_mul_i32 s{sDst}, s{sFg}, 28\ns_mul_i32 s{sT0}, s{sWAVE}, 7\ns_add_u32 s{sDst}, s{sDst}, s{sT0}\ns_lshl_b32 s{sDst}, s{sDst}, 10\ns_add_u32 s{sDst}, s{sDst}, {WD_OFF}")
        k("s_waitcnt lgkmcnt(0)")
        for i in range(7):
            if i == 4: k(f"s_add_u32 s{sDst}, s{sDst}, 4096")
            k(f"buffer_store_dwordx4 {V(OUT+i*4,4)}, v{vL16}, {WSR}, s{sDst} offen offset:{(i*1024)%4096} sc1")
        k.label(nxt)
        k(f"s_add_u32 s{sU}, s{sU}, 64\ns_branch {uloop}")
        k.label(done)
        k("s_waitcnt vmcnt(0)\ns_barrier")
        sk = k.uid("FF_ns")
        k(f"s_mov_b32 s{sCnt}, {C_RL}")
        k(f"s_cmp_lg_u32 s{sWAVE}, 0\ns_cbranch_scc1 {sk}")
        signal(k, sCnt, vOne, vZ)
        k.label(sk)
    XF, GU, HB, RING = 12, 124, 156, 164
    R, DEP = 28, 27
    def slotreg(i):
        j = i % R
        return V(RING + 4 * j, 4) if j < 21 else A(224 + 4 * (j - 21), 4)
    if FUSED and not cfg.get("ln_in_ffn"):
        k(f"s_mov_b32 s{sCnt}, {C_LN}")
        wait_counter(k, sCnt, 64, vT, vZ, abort, sleep=4)
    k(f"s_mul_i32 s{sSrc}, s{sRANK}, 28672\ns_add_u32 s{sSrc}, s{sSrc}, {XNA_OFF}")
    for f in range(28):
        if f and f % 4 == 0: k(f"s_add_u32 s{sSrc}, s{sSrc}, 4096")
        k(f"buffer_load_dwordx4 {V(XF+4*f,4)}, v{vL16}, {WSR}, s{sSrc} offen offset:{(f*1024)%4096} {LDF}")
    for i in range(224): k(f"v_accvgpr_write_b32 a{i}, 0")
    if cfg.get("relayout", True):
        k(f"s_mov_b32 s{sCnt}, {C_RL}")
        wait_counter(k, sCnt, 64, vT, vZ, abort)
    else:
        k("s_waitcnt vmcnt(0)")
    sGU, sWD, sIt, sGUn, sWDn, sA0 = 27, 28, 29, 30, 31, 32
    k(f"s_mul_i32 s{sGU}, s{sWAVE}, {14*57344}\ns_add_u32 s{sGU}, s{sGU}, {WG_OFF}")
    k(f"s_mul_i32 s{sWD}, s{sWAVE}, {14*28672}\ns_add_u32 s{sWD}, s{sWD}, {WD_OFF}")
    seq = []
    for kk in range(14):
        for gu, ftl in ((0, 0), (0, 1), (1, 0), (1, 1)): seq.append(("gu", gu, ftl, kk))
    for ct in range(28): seq.append(("d", ct))
    NS = len(seq)
    def issue(i, nxt_iter):
        e = seq[i % NS]
        slot = slotreg(i)
        if e[0] == "gu":
            off = e[2] * 28672 + e[1] * 14336 + e[3] * 1024
            base = sGUn if nxt_iter else sGU
        else:
            off = e[1] * 1024
            base = sWDn if nxt_iter else sWD
        hi = off - off % 4096
        if hi: k(f"s_add_u32 s{sA0}, s{base}, {hi}")
        k(f"buffer_load_dwordx4 {slot}, v{vL16}, {WSR}, s{sA0 if hi else base} offen offset:{off%4096} sc1")
    for i in range(DEP): issue(i, False)
    k(f"s_mov_b32 s{sIt}, 0")
    loop = k.uid("FF_loop")
    k.label(loop)
    k(f"s_cmp_lt_u32 s{sIt}, 13\ns_cselect_b32 s{sT0}, 57344, 0\ns_add_u32 s{sGUn}, s{sGU}, s{sT0}\ns_cselect_b32 s{sT0}, 0, 0")
    k(f"s_cmp_lt_u32 s{sIt}, 13\ns_cselect_b32 s{sT0}, 28672, 0\ns_add_u32 s{sWDn}, s{sWD}, s{sT0}")
    for i, e in enumerate(seq):
        k(f"s_waitcnt vmcnt({DEP-1})")
        slot = slotreg(i)
        if e[0] == "gu":
            _, gu, ftl, kk = e
            for rho in range(2):
                D = V(GU + ((gu * 2 + ftl) * 2 + rho) * 4, 4)
                k(f"v_mfma_f32_16x16x32_bf16 {D}, {slot}, {V(XF+(rho*14+kk)*4,4)}, {'0' if kk == 0 else D}")
        else:
            if e[1] == 0:
                k("s_nop 7")
                for ftl in range(2):
                    for rho in range(2):
                        g0 = GU + ((0 * 2 + ftl) * 2 + rho) * 4; u0 = GU + ((1 * 2 + ftl) * 2 + rho) * 4
                        for r in range(4): k(f"v_max_f32 v{g0+r}, 0, v{g0+r}")
                        for r in range(4): k(f"v_mul_f32 v{g0+r}, v{g0+r}, v{u0+r}")
                        k(f"v_cvt_pk_bf16_f32 v{HB+4*rho+2*ftl}, v{g0}, v{g0+1}\nv_cvt_pk_bf16_f32 v{HB+4*rho+2*ftl+1}, v{g0+2}, v{g0+3}")
                k("s_nop 1")
            ct = e[1]
            for rho in range(2):
                D = A((ct * 2 + rho) * 4, 4)
                k(f"v_mfma_f32_16x16x32_bf16 {D}, {slot}, {V(HB+4*rho,4)}, {D}")
        j = i + DEP
        issue(j, j >= NS)
    k(f"s_mov_b32 s{sGU}, s{sGUn}\ns_mov_b32 s{sWD}, s{sWDn}\ns_add_u32 s{sIt}, s{sIt}, 1")
    k(f"s_cmp_lt_u32 s{sIt}, 14\ns_cbranch_scc1 {loop}")
    k("s_waitcnt vmcnt(0)\ns_nop 7")
    S0 = cfg.get("s0", 32)
    vW, vRd, vRow = 7, 8, 11
    k(f"s_mul_i32 s{sT0}, s{sWAVE}, 28672\nv_add_u32 v{vW}, s{sT0}, v{vL16}")
    k(f"s_mul_i32 s{sT0}, s{sWAVE}, 7168\nv_add_u32 v{vRd}, s{sT0}, v{vL16}\nv_add_u32 v10, 57344, v{vRd}")
    k(f"s_mul_i32 s{sDst}, s{sRANK}, 57344\ns_mul_i32 s{sT0}, s{sWAVE}, 7168\ns_add_u32 s{sDst}, s{sDst}, s{sT0}\ns_add_u32 s{sDst}, s{sDst}, {G_OFF}")
    k(f"s_mov_b32 s33, {fbits(-math.log2(math.e)):#x}")
    k(f"s_lshl_b32 s{sCnt}, s{sRANK}, 4\ns_add_u32 s{sCnt}, s{sCnt}, {C_G}")
    k(f"v_bfe_u32 v{vRow}, v{vN}, 3, 1\nv_lshlrev_b32 v{vRow}, 4, v{vRow}")
    k(f"v_bfe_u32 v{vT}, v{vN}, 1, 1\nv_lshl_add_u32 v{vRow}, v{vT}, 3, v{vRow}")
    k(f"v_bfe_u32 v{vT}, v{vN}, 2, 1\nv_lshl_add_u32 v{vRow}, v{vT}, 2, v{vRow}")
    k(f"v_and_b32 v{vT}, 1, v{vN}\nv_add_u32 v{vRow}, v{vRow}, v{vT}")
    k(f"v_mul_u32_u24 v{vRow}, 896, v{vRow}\nv_lshl_add_u32 v{vRow}, v{vG}, 3, v{vRow}")
    sX, sO = 36, 40
    srd(k, sX, KARG["x"], 1835008); srd(k, sO, KARG["out"], 1835008)
    k(f"s_mul_i32 s34, s{sRANK}, 28672")
    k("s_waitcnt lgkmcnt(0)")
    T = 16
    def reduce_tile(i):
        for src in range(4): k(f"ds_read_b128 {V(T+4*src,4)}, v{vRd if src < 2 else 10} offset:{(src&1)*28672+i*1024}")
        k("s_waitcnt lgkmcnt(0)")
        for p in (0, 2):
            k(f"v_pk_add_f32 {V(T+p,2)}, {V(T+p,2)}, {V(T+4+p,2)}\nv_pk_add_f32 {V(T+8+p,2)}, {V(T+8+p,2)}, {V(T+12+p,2)}")
            k(f"v_pk_add_f32 {V(T+p,2)}, {V(T+p,2)}, {V(T+8+p,2)}")
        for r in range(4): k(f"v_mul_f32 v{T+4+r}, s33, v{T+r}")
        for r in range(4): k(f"v_exp_f32 v{T+4+r}, v{T+4+r}")
        k("s_nop 0")
        for r in range(4): k(f"v_add_f32 v{T+4+r}, 1.0, v{T+4+r}")
        for r in range(4): k(f"v_rcp_f32 v{T+4+r}, v{T+4+r}")
        k("s_nop 0")
        for r in range(4): k(f"v_mul_f32 v{T+20+r}, v{T+r}, v{T+4+r}")
    late = k.uid("FF_late"); endl = k.uid("FF_end")
    k(f"s_cmp_ge_u32 s{sRANK}, {S0}\ns_cbranch_scc1 {late}")
    wait_counter(k, sCnt, 7, vT, vZ, abort, sleep=4)
    OV, XV = 48, 80
    for rnd in range(2):
        k("s_barrier")
        for u in range(28): k(f"ds_write_b128 v{vW}, {A((rnd*28+u)*4,4)} offset:{u*1024}")
        for i in range(7):
            off = rnd * 28672 + i * 1024
            k(f"s_add_u32 s{sT0}, s{sDst}, {off - off%4096}")
            k(f"buffer_load_dwordx4 {V(OV+4*i,4)}, v{vL16}, {WSR}, s{sT0} offen offset:{off%4096} sc1")
            k(f"s_mul_i32 s{sT0}, s{sWAVE}, 7\ns_add_u32 s{sT0}, s{sT0}, {rnd*28+i}\ns_and_b32 s{sT1}, s{sT0}, 1\ns_mul_i32 s{sT1}, s{sT1}, 1792")
            k(f"s_lshr_b32 s{sT0}, s{sT0}, 1\ns_lshl_b32 s{sT0}, s{sT0}, 5\ns_add_u32 s{sT0}, s{sT0}, s{sT1}\ns_add_u32 s{60+i}, s{sT0}, s34")
            k(f"buffer_load_dwordx2 {V(XV+2*i,2)}, v{vRow}, s[{sX}:{sX+3}], s{60+i} offen")
        k("s_waitcnt lgkmcnt(0)\ns_barrier\ns_waitcnt vmcnt(0)")
        for i in range(7):
            reduce_tile(i)
            k(f"v_lshlrev_b32 v{T}, 16, v{XV+2*i}\nv_and_b32 v{T+1}, 0xffff0000, v{XV+2*i}")
            k(f"v_lshlrev_b32 v{T+2}, 16, v{XV+2*i+1}\nv_and_b32 v{T+3}, 0xffff0000, v{XV+2*i+1}")
            for r in range(4): k(f"v_fma_f32 v{T+r}, v{OV+4*i+r}, v{T+20+r}, v{T+r}")
            k(f"v_cvt_pk_bf16_f32 v{T+24}, v{T}, v{T+1}\nv_cvt_pk_bf16_f32 v{T+25}, v{T+2}, v{T+3}")
            k(f"buffer_store_dwordx2 {V(T+24,2)}, v{vRow}, s[{sO}:{sO+3}], s{60+i} offen")
    k(f"s_branch {endl}")
    k.label(late)
    for rnd in range(2):
        k("s_barrier")
        for u in range(28): k(f"ds_write_b128 v{vW}, {A((rnd*28+u)*4,4)} offset:{u*1024}")
        k("s_waitcnt lgkmcnt(0)\ns_barrier")
        for i in range(7):
            reduce_tile(i)
            off = rnd * 28672 + i * 1024
            k(f"s_add_u32 s{sT0}, s{sDst}, {off - off%4096}")
            k(f"buffer_store_dwordx4 {V(T+20,4)}, v{vL16}, {WSR}, s{sT0} offen offset:{off%4096} sc1")
            k("s_nop 1")
    k("s_waitcnt vmcnt(0)\ns_barrier")
    sk = k.uid("FF_gs")
    k(f"s_cmp_lg_u32 s{sWAVE}, 0\ns_cbranch_scc1 {sk}")
    signal(k, sCnt, vOne, vZ)
    k.label(sk)
    k.label(endl)
    k("s_waitcnt vmcnt(0)")
    k("s_endpgm")
```

```python
import sys
from kfw import *
from layout import *
import chain, workers, prepk, prep2
from chain import sWS, sRANK, sWAVE, sT0, sT1, sSPIN, SPIN, sMODE
from prepk import srd, KARG, kd

NAME = "recurrent_scan__memory_aug_recurrent_mem_tr__glu_gated_reglu__prompt"
HEADER = open("cdna_kernels/" + NAME + ".s.ref").read().split("; Override launch geometry")[0]

def emit_main(k, cfg, name):
    VXP, XAP, PVP = cfg.get("vx_par", 2), cfg.get("xa_par", 3), cfg.get("pv_par", 4)
    VMP = cfg.get("vm_par", 1)
    nVX, nXA, nPV, nFF, nVM = 28 * VXP, 16 * XAP, 7 * PVP, 64, 28 * VMP
    t1, t2, t3, t4 = nVX, nVX + nXA, nVX + nXA + nPV, nVX + nXA + nPV + nFF
    t5 = t4 + nVM
    assert t5 <= 224
    k(f".globl {name}\n.p2align 8\n.type {name},@function\n{name}:")
    k("s_cmp_ge_u32 s2, 256\ns_cbranch_scc1 M_exit")
    if cfg.get("codepf", True):
        k("s_getpc_b64 s[6:7]")
        k.label("M_pc")
        k(f"s_lshr_b32 s14, s2, 3\ns_and_b32 s14, s14, 31\ns_mul_i32 s14, s14, (((M_code_end-{name})+4095)/4096)*128")
        k(f"s_sub_u32 s6, s6, M_pc-{name}\ns_subb_u32 s7, s7, 0")
        k(f"v_lshlrev_b32 v255, 7, v0\nv_add_u32 v255, s14, v255")
        k(f"v_cmp_gt_u32 vcc, (((M_code_end-{name})+4095)/4096), v0\ns_and_saveexec_b64 s[20:21], vcc\ns_cbranch_execz M_pf_done")
        k("global_load_dword v255, v255, s[6:7]")
        k.label("M_pf_done")
        k("s_mov_b64 exec, s[20:21]")
    diag = cfg.get("diag")
    hd = cfg.get("hdiag")
    def mark(word, vt=247, only=None):
        if not hd: return
        sk = k.uid("HD")
        k(f"s_cmp_lg_u32 s{sWAVE}, 0\ns_cbranch_scc1 {sk}")
        if only: k(f"s_cmp_lg_u32 s{only[0]}, {only[1]}\ns_cbranch_scc1 {sk}")
        k("s_memrealtime s[80:81]\ns_waitcnt lgkmcnt(0)")
        k(f"v_mov_b32 v{vt+1}, 0\nv_mov_b32 v{vt}, s80\ns_mov_b64 exec, 1\nglobal_store_dword v{vt+1}, v{vt}, s[4:5] offset:{4*word} sc1\ns_mov_b64 exec, -1")
        k.label(sk)
    cfg["mark"] = mark
    prep2.DIAG = bool(diag)
    if diag:
        for i in range(12): k(f"s_mov_b32 s{60+2*i}, 0")
    if diag: k("s_memrealtime s[96:97]\ns_mov_b32 s98, 0\ns_mov_b32 s44, 0")
    if hd: k("s_mov_b32 s98, 0")
    srd(k, sWS, KARG["ws"], WS_BYTES)
    k(f"s_load_dwordx2 s[4:5], s[0:1], {KARG['dbg']}")
    k("s_getreg_b32 s3, hwreg(HW_REG_XCC_ID)\ns_and_b32 s3, s3, 15")
    k(f"s_mov_b32 s{sSPIN}, {SPIN}")
    k(f"v_lshrrev_b32 v3, 6, v0\ns_nop 0\nv_readfirstlane_b32 s{sWAVE}, v3")
    k("s_waitcnt lgkmcnt(0)")
    if hd:
        mark(1, only=(2, 0))
    k("s_and_b32 s3, s3, 7")
    k(f"s_lshl_b32 s{sT0}, s3, 5")
    k(f"v_mov_b32 v1, 0\nv_mov_b32 v2, 1\nv_mov_b32 v4, s{sT0}")
    k("v_cmp_eq_u32 vcc, 0, v0\ns_and_saveexec_b64 s[20:21], vcc\ns_cbranch_execz M_reg_done")
    k("global_atomic_add v2, v4, v2, s[4:5] sc0 sc1\ns_waitcnt vmcnt(0)")
    k("ds_write_b32 v1, v2\ns_waitcnt lgkmcnt(0)")
    k.label("M_reg_done")
    k("s_mov_b64 exec, s[20:21]\ns_barrier\nds_read_b32 v3, v1\ns_waitcnt lgkmcnt(0)\ns_nop 0")
    k(f"v_readfirstlane_b32 s{sRANK}, v3")
    k("s_barrier")
    if diag: k("s_memrealtime s[84:85]")
    def load_counts(k, vt):
        k(f"v_mbcnt_lo_u32_b32 v{vt}, -1, 0\nv_mbcnt_hi_u32_b32 v{vt}, -1, v{vt}\nv_and_b32 v{vt}, 7, v{vt}\nv_lshlrev_b32 v{vt}, 5, v{vt}")
        k(f"global_load_dword v{vt+1}, v{vt}, s[4:5] sc1\ns_waitcnt vmcnt(0)")
        k(f"v_readlane_b32 s{sT1}, v{vt+1}, 0")
        for x in range(1, 8):
            k(f"v_readlane_b32 s{sT0}, v{vt+1}, {x}\ns_add_u32 s{sT1}, s{sT1}, s{sT0}")
    def wait_all(k, vt):
        top = k.uid("M_wa"); done = k.uid("M_wad")
        k.label(top)
        load_counts(k, vt)
        k(f"s_cmp_ge_u32 s{sT1}, 256\ns_cbranch_scc1 {done}")
        k(f"s_sleep 4\ns_sub_u32 s{sSPIN}, s{sSPIN}, 1\ns_cbranch_scc0 {top}\ns_branch M_abort")
        k.label(done)
    def delay(k, seg):
        if seg is None: return
        sk = k.uid("M_dl")
        k(f"s_cmp_lg_u32 s{sWAVE}, 0\ns_cbranch_scc1 {sk}")
        k(f"s_mov_b32 s{sT0}, {FLAGV2}\nv_mov_b32 v8, 0")
        workers.wait_counter(k, sT0, seg + 1, 9, 8, "M_abort", sleep=16)
        k.label(sk)
        k("s_barrier")
    def mode_hook(k, vt):
        top = k.uid("M_md"); done = k.uid("M_mdd")
        k.label(top)
        load_counts(k, vt)
        k(f"v_readlane_b32 s{sT0}, v{vt+1}, 0\ns_mov_b32 s{sMODE}, 0\ns_cmp_ge_u32 s{sT0}, {31 if cfg.get('force_slow') is None else 999}\ns_cbranch_scc1 {done}")
        k(f"s_mov_b32 s{sMODE}, 1\ns_cmp_ge_u32 s{sT1}, 256\ns_cbranch_scc1 {done}")
        k(f"s_sleep 4\ns_sub_u32 s{sSPIN}, s{sSPIN}, 1\ns_cbranch_scc0 {top}\ns_branch M_abort")
        k.label(done)
    k(f"s_cmp_lt_u32 s{sRANK}, 32\ns_cbranch_scc0 M_overflow")
    k(f"s_lshl_b32 s{sT0}, s3, 5\ns_add_u32 s{sRANK}, s{sRANK}, s{sT0}")
    k.label("M_dispatch")
    k(f"s_cmp_ge_u32 s{sRANK}, 32\ns_cbranch_scc1 M_worker")
    k(f"s_lshl_b32 s56, s{sRANK}, 1")
    prep2.emit_ln_segment(k, 56, pre="load")
    prep2.emit_init(k, sRANK)
    prep2.emit_ln_segment(k, 56, pre="have", X0=112, last=False)
    k("s_add_u32 s56, s56, 1")
    prep2.emit_ln_segment(k, 56, pre="have", X0=144, need_init="M_abort", nsig=2)
    prep2.wait_init_wg(k, 16, "M_abort")
    k(f"s_cmp_lt_u32 s{sRANK}, 30\ns_cbranch_scc1 M_chain")
    k(f"s_cmp_eq_u32 s{sRANK}, 30\ns_cbranch_scc1 M_helper")
    k("s_branch M_exit")
    k.label("M_worker")
    k(f"s_sub_u32 s{sRANK}, s{sRANK}, 32")
    prep2.emit_gemm_task(k, sRANK, "M_phase0_done", "M_abort")
    k.label("M_phase0_done")
    mark(2, only=(sRANK, 0)); mark(10, only=(sRANK, 7)); mark(12, only=(sRANK, 101))
    prep2.dump_stamps(k)
    if diag: k("s_memrealtime s[86:87]")
    k(f"s_cmp_lt_u32 s{sRANK}, {t1}\ns_cbranch_scc1 M_vx")
    k(f"s_cmp_lt_u32 s{sRANK}, {t2}\ns_cbranch_scc1 M_xa")
    k(f"s_cmp_lt_u32 s{sRANK}, {t3}\ns_cbranch_scc1 M_pv")
    k(f"s_cmp_lt_u32 s{sRANK}, {t4}\ns_cbranch_scc1 M_ff")
    k(f"s_cmp_lt_u32 s{sRANK}, {t5}\ns_cbranch_scc1 M_vm")
    k("s_branch M_exit")
    k.label("M_overflow")
    wait_all(k, 8)
    k(f"s_sub_u32 s20, s{sRANK}, 32")
    for x in range(7):
        k(f"v_readlane_b32 s{sT0}, v9, {x}\ns_max_u32 s{sT0}, s{sT0}, 32\ns_sub_u32 s{sT0}, s{sT0}, 32")
        k(f"s_cmp_gt_u32 s3, {x}\ns_cselect_b32 s{sT0}, s{sT0}, 0\ns_add_u32 s20, s20, s{sT0}")
    for x in range(8):
        nx = k.uid("M_es")
        k(f"v_readlane_b32 s{sT0}, v9, {x}\ns_min_u32 s{sT0}, s{sT0}, 32\ns_sub_u32 s21, 32, s{sT0}")
        k(f"s_cmp_lt_u32 s20, s21\ns_cbranch_scc0 {nx}")
        k(f"s_add_u32 s{sRANK}, s20, s{sT0}\ns_add_u32 s{sRANK}, s{sRANK}, {32*x}\ns_branch M_dispatch")
        k.label(nx)
        k("s_sub_u32 s20, s20, s21")
    k("s_branch M_exit")
    k.label("M_chain")
    ccfg = dict(nsteps=63, modes=["", "sc1"], mode_hook=mode_hook, vxwait=True, pflag_pos=2, mflag_pos=1, fused=True, stagger=False, pace=3, pace2=10)
    if diag: ccfg.update(dict(tot=True, trace=True))
    if hd: ccfg["mark"] = mark
    ccfg.update(cfg.get("chain", {}))
    k(f"s_cmp_ge_u32 s{sRANK}, 16\ns_cbranch_scc1 M_chainB")
    chain.emit_chain_A(k, ccfg, "M_abort")
    k.label("M_chainB")
    if diag: k("s_mov_b32 s98, 1")
    chain.emit_chain_B(k, ccfg, "M_abort")
    wcfg = dict(vx_par=VXP, xa_par=XAP, pv_par=PVP, vm_par=VMP, s0=cfg.get('s0', 32), fused=True, ln_in_ffn=False, xadiag=cfg.get('xadiag'), vm_split=cfg.get('vm_split', 48))
    k.label("M_helper")
    if diag: k("s_mov_b32 s98, 6")
    chain.emit_helper(k, ccfg, "M_abort")
    k.label("M_vx")
    if diag: k("s_mov_b32 s98, 2")
    workers.emit_vxgen(k, wcfg, "M_abort")
    k.label("M_vm")
    if diag: k("s_mov_b32 s98, 7")
    k(f"s_sub_u32 s{sRANK}, s{sRANK}, {t4}")
    delay(k, cfg.get("vm_delay", 6))
    workers.emit_vxgen(k, wcfg, "M_abort", "vm")
    k.label("M_xa")
    if diag: k("s_mov_b32 s98, 3")
    k(f"s_sub_u32 s{sRANK}, s{sRANK}, {t1}")
    delay(k, cfg.get("xa_delay", 6))
    workers.emit_xattn(k, wcfg, "M_abort")
    k.label("M_pv")
    if diag or hd: k("s_mov_b32 s98, 4")
    k(f"s_sub_u32 s{sRANK}, s{sRANK}, {t2}")
    workers.emit_pvout(k, wcfg, "M_abort")
    k.label("M_ff")
    if diag: k("s_mov_b32 s98, 5")
    k(f"s_sub_u32 s{sRANK}, s{sRANK}, {t3}")
    delay(k, cfg.get("ff_delay", 2))
    workers.emit_ffn(k, wcfg, "M_abort")
    for t in ccfg.get("outofline", []) + wcfg.get("outofline", []): k(t)
    if hd:
        txt = "\n".join(k.lines)
        head, body = txt.split("M_chain:", 1)
        body = body.replace("s_endpgm", "s_branch M_hdexit")
        k.lines = (head + "M_chain:" + body).split("\n")
        k.label("M_hdexit")
        k("s_waitcnt vmcnt(0)")
        k("s_cmp_lg_u32 s98, 4\ns_cbranch_scc1 M_hdx"); mark(9, only=(sRANK, 7 * (63 % cfg.get("pv_par", 4)))); k.label("M_hdx")
        k("s_waitcnt vmcnt(0)\ns_endpgm")
    if diag:
        txt = "\n".join(k.lines)
        head, body = txt.split("M_chain:", 1)
        body = body.replace("s_endpgm", "s_branch M_diag")
        k.lines = (head + "M_chain:" + body).split("\n")
        k.label("M_diag")
        k(f"s_cmp_lg_u32 s{sWAVE}, 0\ns_cbranch_scc1 M_exit")
        k("s_memrealtime s[94:95]\ns_waitcnt lgkmcnt(0)")
        k(f"s_lshl_b32 s{sT0}, s2, 5\ns_add_u32 s{sT0}, s{sT0}, {PROF+16384}")
        k("v_mov_b32 v1, 0")
        for i, r in enumerate(("s86", f"s{sRANK}", "s96", "s94", "s44", "s88", "s98", "s84")):
            k(f"v_mov_b32 v2, {r}\nbuffer_store_dword v2, v1, s[{sWS}:{sWS+3}], s{sT0} offen offset:{4*i}")
        k("s_waitcnt vmcnt(0)\ns_endpgm")
    k.label("M_abort")
    k("v_mov_b32 v1, 0\nv_mov_b32 v2, 1\nglobal_atomic_add v1, v2, s[4:5] offset:20 sc1\ns_waitcnt vmcnt(0)")
    k.label("M_exit")
    k("s_endpgm")
    k.label("M_code_end")
    k(".fill 1100, 4, 0xbf800000")

def build(cfg):
    k = K()
    k(HEADER.rstrip())
    k("; @launch grid=(256,1,1) block=(256,1,1) lds=151552")
    k('.amdgcn_target "amdgcn-amd-amdhsa--gfx950"\n.text')
    emit_main(k, cfg, NAME + "_kernel")
    k('.section .rodata,"a"')
    k(kd(NAME + "_kernel", 512, 256, 102))
    return k.text()

if __name__ == "__main__":
    import kfw
    cfg = {}
    if "diag" in sys.argv: cfg["diag"] = True; sys.argv.remove("diag")
    for a in list(sys.argv[1:]):
        if "=" in a:
            kk_, vv = a.split("="); cfg[kk_] = eval(vv); sys.argv.remove(a)
    t = build(cfg)
    out = sys.argv[1] if len(sys.argv) > 1 else "cdna_kernels/" + NAME + ".s"
    open(out, "w").write(t)
    print("bytes", len(t), "lines", t.count("\n"), "hazards", len(kfw.check(t)))
```

```python
from kfw import *
from layout import *

class Q:
    def __init__(self, k):
        self.k = k; self.lg = []; self.vm = []
    def ds(self, txt, tag=None):
        self.k(txt); self.lg.append(tag)
    def vmem(self, txt, tag=None):
        self.k(txt); self.vm.append(tag)
    def _n(self, lst, tag):
        idx = max(i for i, t in enumerate(lst) if t == tag)
        return len(lst) - 1 - idx
    def wait_lg(self, tag):
        n = min(self._n(self.lg, tag), 15)
        self.k(f"s_waitcnt lgkmcnt({n})")
    def wait_vm(self, tag):
        n = min(self._n(self.vm, tag), 63)
        self.k(f"s_waitcnt vmcnt({n})")
    def lg0(self):
        self.k("s_waitcnt lgkmcnt(0)"); self.lg = []
    def reset(self):
        self.lg = []; self.vm = []

sWS   = 8
sRANK = 12
sWAVE = 13
sSTEP = 14
sMS   = 15
sPS   = 16
sT0   = 17
sT1   = 18
sSPIN = 19
sMaskA = 20
sMaskB = 22
sXK   = 24
sMS1  = 25
sRST  = 26
sOUT  = 27
sFLG  = 50
sMODE = 51
sVXC  = 92
sTA   = 28
sTB   = 30
sPROF = 32
SPIN  = 200000

class Prof:
    def __init__(self, k, on, rawon=False): self.k, self.on, self.n, self.rawon = k, on, 0, rawon
    def start(self):
        if not self.on: return
        k = self.k
        for i in range(12): k(f"s_mov_b32 s{sPROF+i}, 0")
        k(f"s_memtime s[{sTA}:{sTA+1}]\ns_waitcnt lgkmcnt(0)")
    def stamp(self, i):
        if not self.on: return
        k = self.k
        k(f"s_memtime s[{sTB}:{sTB+1}]\ns_waitcnt lgkmcnt(0)")
        k(f"s_sub_u32 s{sT0}, s{sTB}, s{sTA}\ns_add_u32 s{sPROF+i}, s{sPROF+i}, s{sT0}\ns_mov_b32 s{sTA}, s{sTB}")
    def raw(self, i):
        if self.rawon: self.k(f"{'s_memrealtime' if self.rawon == 'rt' else 's_memtime'} s[{52+2*i}:{53+2*i}]")
    def raw_dump(self, tmpv, offv):
        if not self.rawon: return
        k = self.k
        k("s_waitcnt lgkmcnt(0)")
        k(f"s_lshl_b32 s{sT0}, s{sRANK}, 2\ns_add_u32 s{sT0}, s{sT0}, s{sWAVE}\ns_lshl_b32 s{sT0}, s{sT0}, 6\ns_add_u32 s{sT0}, s{sT0}, {PROF}")
        k(f"v_mov_b32 v{offv}, 0")
        for i in range(16):
            k(f"v_mov_b32 v{tmpv}, s{52+2*i}")
            k(f"buffer_store_dword v{tmpv}, v{offv}, s[{sWS}:{sWS+3}], s{sT0} offen offset:{4*i}")
        k("s_waitcnt vmcnt(0)")
    def tot_start(self, on):
        if on: self.k(f"s_mov_b32 s{sPROF+11}, 0\ns_memtime s[{sTA}:{sTA+1}]\ns_memrealtime s[44:45]\ns_waitcnt lgkmcnt(0)")
    def tot_dump(self, on, tmpv, offv):
        if not on: return
        k = self.k
        k(f"s_memtime s[{sTB}:{sTB+1}]\ns_memrealtime s[46:47]\ns_waitcnt lgkmcnt(0)")
        k(f"s_sub_u32 s{sPROF}, s{sTB}, s{sTA}\ns_sub_u32 s{sPROF+1}, s46, s44\ns_sub_u32 s{sPROF+2}, s44, s96")
        k(f"s_lshl_b32 s{sT0}, s{sRANK}, 2\ns_add_u32 s{sT0}, s{sT0}, s{sWAVE}\ns_lshl_b32 s{sT0}, s{sT0}, 6\ns_add_u32 s{sT0}, s{sT0}, {PROF}")
        k(f"v_mov_b32 v{offv}, 0")
        k(f"s_mov_b32 s{sPROF+3}, s{sPROF+11}")
        for i in range(4):
            k(f"v_mov_b32 v{tmpv}, s{sPROF+i}")
            k(f"buffer_store_dword v{tmpv}, v{offv}, s[{sWS}:{sWS+3}], s{sT0} offen offset:{4*i}")
        k("s_waitcnt vmcnt(0)")
    def dump(self, tmpv, offv):
        if not self.on: return
        k = self.k
        k(f"s_lshl_b32 s{sT0}, s{sRANK}, 2\ns_add_u32 s{sT0}, s{sT0}, s{sWAVE}\ns_lshl_b32 s{sT0}, s{sT0}, 6\ns_add_u32 s{sT0}, s{sT0}, {PROF}")
        k(f"v_mov_b32 v{offv}, 0")
        for i in range(12):
            k(f"v_mov_b32 v{tmpv}, s{sPROF+i}")
            k(f"buffer_store_dword v{tmpv}, v{offv}, s[{sWS}:{sWS+3}], s{sT0} offen offset:{4*i}")
        k("s_waitcnt vmcnt(0)")


SP_L = 0
SP_STRIDE = 3200
TR_L = 12800
MKP_L = 27136
SH_L = 39424
MEM_L = 0
OP_L = 7168
WL = 12288

def retry_block(cfg, label, body, abort, target):
    cfg.setdefault("outofline", []).append(
        f"{label}:\ns_sub_u32 s{sSPIN}, s{sSPIN}, 1\ns_cbranch_scc1 {abort}\n{body}s_branch {target}")

def emit_flag_poll(k, cfg, vAddr, vD0, sExp, off, abort):
    WSR = f"s[{sWS}:{sWS+3}]"
    top = k.uid("FP"); done = k.uid("FPD")
    k(f"s_mov_b32 s{sT0}, {off}" if isinstance(off, int) else f"s_mov_b32 s{sT0}, {off}")
    k(f"buffer_load_dword v{vD0}, v{vAddr}, {WSR}, s{sT0} offen sc1")
    k.label(top)
    k(f"buffer_load_dword v{vD0+1}, v{vAddr}, {WSR}, s{sT0} offen sc1")
    k("s_waitcnt vmcnt(1)")
    k(f"v_cmp_gt_u32 vcc, s{sExp}, v{vD0}")
    k(f"s_cbranch_vccz {done}")
    k(f"buffer_load_dword v{vD0}, v{vAddr}, {WSR}, s{sT0} offen sc1")
    k("s_waitcnt vmcnt(1)")
    k(f"v_cmp_gt_u32 vcc, s{sExp}, v{vD0+1}")
    k(f"s_cbranch_vccz {done}")
    k(f"s_sub_u32 s{sSPIN}, s{sSPIN}, 1\ns_cbranch_scc0 {top}\ns_branch {abort}")
    k.label(done)

def blockregA(b):
    return Reg("a", 8 * b) if b < 28 else Reg("v", 88 + 8 * (b - 28))

def emit_ring_advance(k):
    k(f"s_add_u32 s{sSTEP}, s{sSTEP}, 1")
    k(f"s_and_b32 s{sT0}, s{sSTEP}, 3")
    k(f"s_mul_i32 s{sMS}, s{sT0}, 7168\ns_add_u32 s{sMS}, s{sMS}, {MEMRING}")
    k(f"s_mul_i32 s{sPS}, s{sT0}, 10240\ns_add_u32 s{sPS}, s{sPS}, {PRING}")

def emit_chain_A(k, cfg, abort):
    prof = Prof(k, cfg.get("prof"), cfg.get("raw"))
    q = Q(k)
    WSR = f"s[{sWS}:{sWS+3}]"
    modes = cfg.get("modes", [cfg.get("st", "")])
    ST = modes[0]
    vL16, vL8, vTRw, vTRr, vMKg, vSR, vTRw2, vPst, vIdx, vX, vT, vDet, vSWx, vSWm, vTRr2 = range(1, 16)
    vLane = 0
    TMP, ACC, TR, MEM = 16, 20, 48, 60
    SACC = ACC
    XK = 224
    def TRr(tile): return (A(252, 2) if tile == 6 else V(TR + 2 * tile, 2))
    if cfg.get("tot"): k("s_memrealtime s[86:87]")
    k("v_and_b32 v0, 63, v0")
    k(f"v_lshlrev_b32 v{vL16}, 4, v{vLane}")
    k(f"v_lshlrev_b32 v{vL8}, 3, v{vLane}")
    k(f"v_and_b32 v{vX}, 15, v{vLane}")
    k(f"v_lshrrev_b32 v{vT}, 4, v{vLane}")
    k(f"v_min_u32 v{vDet}, 13, v{vX}\nv_lshlrev_b32 v{vDet}, 2, v{vDet}")
    k(f"s_mul_i32 s{sT1}, s{sWAVE}, 3584\ns_add_u32 s{sT1}, s{sT1}, {TR_L}\ns_add_u32 s{sT0}, s{sT1}, {3072 if cfg.get('pairs', False) else 0}")
    k(f"v_lshrrev_b32 v{vTRw2}, 3, v{vX}\nv_lshlrev_b32 v{vTRw2}, 9, v{vTRw2}\nv_lshl_add_u32 v{vTRw2}, v{vT}, 7, v{vTRw2}")
    k(f"v_and_b32 v{TMP}, 7, v{vX}\nv_lshl_add_u32 v{vTRw2}, v{TMP}, 4, v{vTRw2}\nv_add_u32 v{vTRw2}, s{sT1}, v{vTRw2}")
    k(f"v_lshrrev_b32 v{vTRr2}, 1, v{vT}\nv_lshlrev_b32 v{vTRr2}, 9, v{vTRr2}")
    k(f"v_and_b32 v{TMP}, 3, v{vLane}\nv_lshl_add_u32 v{vTRr2}, v{TMP}, 7, v{vTRr2}")
    k(f"v_and_b32 v{TMP}, 1, v{vT}\nv_lshl_add_u32 v{vTRr2}, v{TMP}, 6, v{vTRr2}")
    k(f"v_bfe_u32 v{TMP}, v{vLane}, 2, 2\nv_lshl_add_u32 v{vTRr2}, v{TMP}, 4, v{vTRr2}\nv_add_u32 v{vTRr2}, s{sT1}, v{vTRr2}")
    k(f"v_lshrrev_b32 v{vTRw}, 3, v{vX}\nv_lshlrev_b32 v{vTRw}, 8, v{vTRw}")
    k(f"v_lshl_add_u32 v{vTRw}, v{vT}, 6, v{vTRw}")
    k(f"v_and_b32 v{TMP}, 7, v{vX}\nv_lshl_add_u32 v{vTRw}, v{TMP}, 3, v{vTRw}")
    k(f"v_add_u32 v{vTRw}, s{sT0}, v{vTRw}")
    k(f"v_lshrrev_b32 v{vTRr}, 1, v{vT}\nv_lshlrev_b32 v{vTRr}, 8, v{vTRr}")
    k(f"v_and_b32 v{TMP}, 3, v{vLane}\nv_lshl_add_u32 v{vTRr}, v{TMP}, 6, v{vTRr}")
    k(f"v_and_b32 v{TMP}, 1, v{vT}\nv_lshl_add_u32 v{vTRr}, v{TMP}, 5, v{vTRr}")
    k(f"v_bfe_u32 v{TMP}, v{vLane}, 2, 2\nv_lshl_add_u32 v{vTRr}, v{TMP}, 3, v{vTRr}")
    k(f"v_add_u32 v{vTRr}, s{sT0}, v{vTRr}")
    k(f"v_lshrrev_b32 v{vMKg}, 1, v{vT}\nv_lshlrev_b32 v{vMKg}, 7, v{vMKg}")
    k(f"v_and_b32 v{TMP}, 7, v{vLane}\nv_lshl_add_u32 v{vMKg}, v{TMP}, 4, v{vMKg}")
    k(f"v_and_b32 v{TMP+1}, 1, v{vT}\nv_lshl_add_u32 v{vMKg}, v{TMP+1}, 3, v{vMKg}")
    k(f"s_mul_i32 s{sT1}, s{sWAVE}, {SP_STRIDE}\ns_add_u32 s{sT1}, s{sT1}, {SP_L}")
    k(f"v_add_u32 v{TMP}, v{vX}, v{vT}\nv_and_b32 v{TMP+1}, 15, v{TMP}\nv_lshlrev_b32 v{vSWx}, 4, v{TMP+1}")
    k(f"v_lshl_add_u32 v{vSWx}, v{vT}, 8, v{vSWx}\nv_add_u32 v{vSWx}, s{sT1}, v{vSWx}")
    k(f"v_add_u32 v{TMP}, 4, v{TMP}\nv_and_b32 v{TMP+1}, 15, v{TMP}\nv_lshlrev_b32 v{vSWm}, 4, v{TMP+1}")
    k(f"v_lshl_add_u32 v{vSWm}, v{vT}, 8, v{vSWm}\nv_add_u32 v{vSWm}, s{sT1}, v{vSWm}\nv_add_u32 v{vSWm}, 1024, v{vSWm}")
    k(f"s_lshl_b32 s{sT1}, s{sWAVE}, 2")
    k(f"v_add_u32 v{TMP}, s{sT1}, v{vT}")
    k(f"v_add_u32 v{TMP+1}, 2, v{vX}\nv_and_b32 v{TMP+1}, 3, v{TMP+1}")
    k(f"v_cmp_gt_u32 vcc, 2, v{vX}\ns_nop 1\nv_cndmask_b32 v{TMP+1}, v{TMP+1}, v{vX}, vcc")
    k(f"v_add_u32 v{TMP+2}, v{TMP}, v{TMP+1}")
    k(f"v_add_u32 v{TMP+3}, 4, v{TMP+2}\nv_cndmask_b32 v{TMP+2}, v{TMP+2}, v{TMP+3}, vcc")
    k(f"v_lshlrev_b32 v{vSR}, 8, v{TMP+1}\nv_add_u32 v{TMP+3}, 1024, v{vSR}\nv_cndmask_b32 v{vSR}, v{vSR}, v{TMP+3}, vcc")
    k(f"v_cmp_le_u32 vcc, 6, v{vX}\nv_add_u32 v{TMP+3}, 8, v{TMP+2}\ns_nop 0\nv_cndmask_b32 v{TMP+2}, v{TMP+2}, v{TMP+3}, vcc")
    k(f"v_and_b32 v{TMP+2}, 15, v{TMP+2}\nv_lshl_add_u32 v{vSR}, v{TMP+2}, 4, v{vSR}\nv_add_u32 v{vSR}, {SP_L}, v{vSR}")
    k(f"v_cmp_gt_u32 vcc, 10, v{vX}\nv_mov_b32 v{TMP+3}, {SP_L+3072}\ns_nop 0\nv_cndmask_b32 v{vSR}, v{TMP+3}, v{vSR}, vcc")
    k(f"v_cmp_gt_u32 s[{sMaskA}:{sMaskA+1}], 10, v{vX}")
    k(f"v_cmp_gt_u32 s[{sMaskB}:{sMaskB+1}], 40, v{vLane}")
    k(f"v_mov_b32 v{vIdx}, 0x44444444\nv_mov_b32 v{TMP+2}, 0xeeeeeeee")
    k(f"v_and_b32 v{TMP+1}, 8, v{vLane}\nv_cmp_ne_u32 vcc, 0, v{TMP+1}\ns_nop 1\nv_cndmask_b32 v{vIdx}, v{vIdx}, v{TMP+2}, vcc")
    k(f"s_lshr_b32 s{sT0}, s{sRANK}, 2\ns_mul_i32 s{sT0}, s{sT0}, 2560")
    k(f"s_bfe_u32 s{sT1}, s{sRANK}, 0x10001\ns_lshl_b32 s{sMS}, s{sT1}, 10\ns_lshl_b32 s{sPS}, s{sT1}, 8")
    k(f"s_and_b32 s{sT1}, s{sRANK}, 1\ns_lshl_b32 s{sMS1}, s{sT1}, 9\ns_add_u32 s{sMS}, s{sMS}, s{sMS1}")
    k(f"s_lshl_b32 s{sMS1}, s{sT1}, 7\ns_add_u32 s{sPS}, s{sPS}, s{sMS1}\ns_add_u32 s{sPS}, s{sPS}, 2048")
    k(f"s_add_u32 s{sMS}, s{sMS}, s{sT0}\ns_add_u32 s{sPS}, s{sPS}, s{sT0}")
    k(f"v_subrev_u32 v{TMP+1}, 2, v{vX}\nv_lshrrev_b32 v{TMP+1}, 1, v{TMP+1}")
    k(f"v_lshrrev_b32 v{TMP+2}, 1, v{TMP+1}\nv_lshlrev_b32 v{TMP+2}, 8, v{TMP+2}")
    k(f"v_and_b32 v{TMP+1}, 1, v{TMP+1}\nv_lshl_add_u32 v{TMP+2}, v{TMP+1}, 7, v{TMP+2}\nv_add_u32 v{TMP+2}, s{sMS}, v{TMP+2}")
    k(f"v_mov_b32 v{TMP+1}, s{sPS}\nv_cmp_gt_u32 vcc, 2, v{vX}\ns_nop 1\nv_cndmask_b32 v{TMP+2}, v{TMP+2}, v{TMP+1}, vcc")
    k(f"v_lshl_add_u32 v{vPst}, v{TMP}, 4, v{TMP+2}")
    k(f"v_and_b32 v{TMP+1}, 1, v{vX}\nv_lshl_add_u32 v{vPst}, v{TMP+1}, 3, v{vPst}")
    k(f"v_add_u32 v{TMP+1}, s{sMS}, v{vL16}\nv_add_u32 v{TMP+2}, s{sPS}, v{vL16}\nv_subrev_u32 v{TMP+2}, 512, v{TMP+2}")
    k(f"v_cmp_gt_u32 vcc, 32, v{vLane}\ns_nop 1\nv_cndmask_b32 v0, v{TMP+2}, v{TMP+1}, vcc")
    k(f"s_lshr_b32 s{sT0}, s{sRANK}, 2\ns_lshl_b32 s{sT0}, s{sT0}, 7\ns_and_b32 s{sT1}, s{sRANK}, 3\ns_lshl_b32 s{sT1}, s{sT1}, 2")
    k(f"s_add_u32 s{sFLG}, s{sT0}, s{sT1}\ns_add_u32 s{sFLG}, s{sFLG}, {FLAGP}")
    k(f"s_mul_i32 s{sT0}, s{sRANK}, 401408\ns_mul_i32 s{sT1}, s{sWAVE}, 100352\ns_add_u32 s{sT0}, s{sT0}, s{sT1}")
    if WA_OFF: k(f"s_add_u32 s{sT0}, s{sT0}, {WA_OFF}")
    FUSED = cfg.get("fused")
    LDF = "sc1" if FUSED else ""
    def wload(i):
        b, a = i >> 1, i & 1
        R = blockregA(b)
        off = i * 1024
        if off and off % 4096 == 0: k(f"s_add_u32 s{sT0}, s{sT0}, 4096")
        k(f"buffer_load_dwordx4 {R.r(4*a,4)}, v{vL16}, {WSR}, s{sT0} offen offset:{off%4096} {LDF}")
    if not FUSED:
        for i in range(98): wload(i)
    else:
        k(f"s_lshl_b32 s{sMS}, s{sRANK}, 2\ns_add_u32 s{sMS}, s{sMS}, s{sWAVE}\ns_lshl_b32 s{sMS}, s{sMS}, 7\ns_add_u32 s{sMS}, s{sMS}, {C_WA}")
        k(f"v_min_u32 v{TMP}, 6, v{vLane}\nv_lshlrev_b32 v{TMP}, 2, v{TMP}")
        def poll_tiles(mask_lo, inflight):
            top = k.uid("A_wp"); ok_ = k.uid("A_wpo")
            k(f"buffer_load_dword v{TMP+1}, v{TMP}, {WSR}, s{sMS} offen sc1")
            for f in inflight: f()
            k(f"s_waitcnt vmcnt({len(inflight)})")
            k.label(top)
            k(f"v_cmp_gt_u32 vcc, 7, v{TMP+1}\ns_and_b32 vcc_lo, vcc_lo, {(1 << mask_lo) - 1}\ns_mov_b32 vcc_hi, 0\ns_cbranch_vccz {ok_}")
            k(f"s_sleep 1\nbuffer_load_dword v{TMP+1}, v{TMP}, {WSR}, s{sMS} offen sc1\ns_waitcnt vmcnt(0)")
            k(f"s_sub_u32 s{sSPIN}, s{sSPIN}, 1\ns_cbranch_scc0 {top}\ns_branch {abort}")
            k.label(ok_)
        def pst(n):
            if cfg.get("tot"): k(f"s_memrealtime s[{60+2*n}:{61+2*n}]")
        poll_tiles(2, [])
        pst(0)
        for i in range(20): wload(i)
        poll_tiles(4, [lambda i=i: wload(i) for i in range(20, 28)])
        pst(1)
        for i in range(28, 48): wload(i)
        poll_tiles(7, [lambda i=i: wload(i) for i in range(48, 56)])
        pst(2)
        for i in range(56, 98): wload(i)
        pst(3)
        k(f"s_mov_b32 s{sMS}, {C_LN}\nv_mov_b32 v{TMP}, 0")
        top = k.uid("A_ln"); ok_ = k.uid("A_lno")
        k.label(top)
        k(f"buffer_load_dword v{TMP+1}, v{TMP}, {WSR}, s{sMS} offen sc1\ns_waitcnt vmcnt(0)")
        k(f"v_cmp_gt_u32 vcc, 64, v{TMP+1}\ns_cbranch_vccz {ok_}")
        k(f"s_sleep 1\ns_sub_u32 s{sSPIN}, s{sSPIN}, 1\ns_cbranch_scc0 {top}\ns_branch {abort}")
        k.label(ok_)
        if cfg.get("tot"):
            k(f"s_memrealtime s[68:69]\ns_waitcnt lgkmcnt(0)\ns_lshl_b32 s{sMS}, s{sRANK}, 2\ns_add_u32 s{sMS}, s{sMS}, s{sWAVE}\ns_lshl_b32 s{sMS}, s{sMS}, 5\ns_add_u32 s{sMS}, s{sMS}, {PROF+61440}\nv_mov_b32 v{TMP}, 0")
            for n in range(5): k(f"v_mov_b32 v{TMP+1}, s{60+2*n}\nbuffer_store_dword v{TMP+1}, v{TMP}, {WSR}, s{sMS} offen offset:{4*n}")
    def xk_prefetch():
        for kap in range(2):
            for p in range(3):
                off = kap * 3584 + p * 1024
                so = sXK if off < 4096 else sT1
                if off >= 4096 and p == 1: k(f"s_add_u32 s{sT1}, s{sXK}, 4096")
                k(f"buffer_load_dwordx4 {A(XK+kap*14+4*p,4)}, v{vL16}, {WSR}, s{so} offen offset:{off%4096} {LDF}")
            off = kap * 3584 + 3072
            so = sXK if off < 4096 else sT1
            k(f"buffer_load_dwordx2 {A(XK+kap*14+12,2)}, v{vL8}, {WSR}, s{so} offen offset:{off%4096} {LDF}")
    k(f"s_mul_i32 s{sXK}, s{sWAVE}, 7168\ns_add_u32 s{sXK}, s{sXK}, {XK_OFF}")
    xk_prefetch()
    def zero_acc():
        for i in range(0, 28, 2): k(f"v_mov_b64 {V(ACC+i,2)}, 0")
    zero_acc()
    for i in range(4): k(f"v_mov_b32 v{TR+i}, 0xff800000")
    k(f"s_mul_i32 s{sT1}, s{sWAVE}, {SP_STRIDE}\ns_add_u32 s{sT1}, s{sT1}, {SP_L+3072}\nv_mov_b32 v{TMP}, s{sT1}")
    k(f"ds_write_b128 v{TMP}, {V(TR,4)}")
    k("s_waitcnt vmcnt(0) lgkmcnt(0)")
    if cfg.get("tot"): k("s_memrealtime s[88:89]\ns_waitcnt lgkmcnt(0)")
    if cfg.get("mark"): cfg["mark"](cfg.get("_mw", 3), 16 if cfg.get("_mw", 3) == 3 else 12, only=(sRANK, 0))
    k(f"s_mov_b32 s{sSTEP}, 0\ns_mov_b32 s{sMS}, {MEMRING}\ns_mov_b32 s{sPS}, {PRING}")
    def softmax(q, W, ST):
        X = TR
        dst = [TR, MEM, MEM+4, MEM+8]
        for u in range(4):
            q.ds(f"ds_read_b128 {V(dst[u],4)}, v{vSR} offset:{u*SP_STRIDE}", f"sp{u}")
        def pflag():
            if W != 0: return
            k(f"s_add_u32 s{sT0}, s{sSTEP}, 1\nv_mov_b32 v{TMP}, s{sT0}\nv_mov_b32 v{TMP+1}, 0")
            k(f"s_mov_b64 exec, 1\nbuffer_store_dword v{TMP}, v{TMP+1}, {WSR}, s{sFLG} offen {ST}\ns_mov_b64 exec, -1")
        fpos = cfg.get("pflag_pos", 2)
        if fpos == 0: pflag()
        def pk(d, a, b):
            k(f"v_pk_add_f32 {V(d,2)}, {V(a,2)}, {V(b,2)}\nv_pk_add_f32 {V(d+2,2)}, {V(a+2,2)}, {V(b+2,2)}")
        q.wait_lg("sp1"); pk(dst[0], dst[0], dst[1])
        q.wait_lg("sp3"); pk(dst[2], dst[2], dst[3]); pk(dst[0], dst[0], dst[2])
        q.reset()
        prof.raw(8)
        if fpos == 1: pflag()
        M = vX; L = MEM + 12
        k(f"v_max3_f32 v{M}, v{X}, v{X+1}, v{X+2}")
        k(f"v_max_f32 v{M}, v{M}, v{X+3}")
        for ror in (8, 4, 2, 1):
            k("s_nop 1")
            k(f"v_max_f32_dpp v{M}, v{M}, v{M} row_ror:{ror} row_mask:0xf bank_mask:0xf")
        if fpos == 2: pflag()
        k(f"v_pk_add_f32 {V(X,2)}, {V(X,2)}, {V(M,2)} op_sel_hi:[1,0] neg_lo:[0,1] neg_hi:[0,1]")
        k(f"v_pk_add_f32 {V(X+2,2)}, {V(X+2,2)}, {V(M,2)} op_sel_hi:[1,0] neg_lo:[0,1] neg_hi:[0,1]")
        for i in range(4): k(f"v_exp_f32 v{X+i}, v{X+i}")
        if fpos == 3: pflag()
        k(f"s_nop 0\nv_pk_add_f32 {V(TMP+2,2)}, {V(X,2)}, {V(X+2,2)}")
        k(f"v_add_f32 v{L}, v{TMP+2}, v{TMP+3}")
        for ror in (8, 4, 2, 1):
            k("s_nop 1")
            k(f"v_add_f32_dpp v{L}, v{L}, v{L} row_ror:{ror} row_mask:0xf bank_mask:0xf")
        if fpos == 4: pflag()
        k(f"v_rcp_f32 v{L}, v{L}")
        k("s_nop 0")
        k(f"v_pk_mul_f32 {V(X,2)}, {V(X,2)}, {V(L,2)} op_sel_hi:[1,0]")
        k(f"v_pk_mul_f32 {V(X+2,2)}, {V(X+2,2)}, {V(L,2)} op_sel_hi:[1,0]")
        k(f"v_cvt_pk_bf16_f32 v{X}, v{X}, v{X+1}\nv_cvt_pk_bf16_f32 v{X+1}, v{X+2}, v{X+3}")
        k(f"v_min_u32 v{X}, -2, v{X}\nv_min_u32 v{X+1}, -2, v{X+1}")
        k(f"s_mov_b64 exec, s[{sMaskA}:{sMaskA+1}]")
        k(f"buffer_store_dwordx2 {V(X,2)}, v{vPst}, {WSR}, s{sPS} offen {ST}")
        k("s_mov_b64 exec, -1")
        prof.raw(9)
        if fpos == 5: pflag()
        prof.raw(11)
    def preset(ST):
        X = TR
        k(f"s_add_u32 s{sRST}, s{sSTEP}, 2\ns_and_b32 s{sRST}, s{sRST}, 3\ns_mul_i32 s{sRST}, s{sRST}, 10240\ns_add_u32 s{sRST}, s{sRST}, {PRING}")
        for i in range(4): k(f"v_mov_b32 v{X+i}, -1")
        k(f"s_mov_b64 exec, s[{sMaskB}:{sMaskB+1}]")
        k(f"buffer_store_dwordx4 {V(X,4)}, v0, {WSR}, s{sRST} offen {ST}")
        k("s_mov_b64 exec, -1")
    def wave_loop(W, ST):
        q = Q(k)
        prof.start(); prof.tot_start(cfg.get("tot"))
        loop = k.uid("A_loop")
        k.label(loop)
        prof.stamp(0); prof.raw(0)
        if W == 2: emit_flag_poll(k, cfg, vDet, TMP, sSTEP, FLAGM, abort)
        k("s_barrier")
        prof.stamp(1); prof.raw(1)
        if cfg.get("trace"): k(f"s_memtime s[90:91]")
        q.reset()
        def mem_load(t):
            so = sMS if t < 4 else sMS1
            q.vmem(f"buffer_load_dwordx4 {V(MEM+4*t,4)}, v{vL16}, {WSR}, s{so} offen offset:{(t*1024)%4096} sc1", f"mem{t}")
        t0w, t1w = (112 * W) >> 6, (112 * W + 111) >> 6
        rot = cfg.get("rot", 2)
        ko = [(rot * W + i) % 7 for i in range(7)]
        def lds_of(t): return MKP_L + W * 3072 + (t - t0w) * 1024
        def stage(t, out=None):
            txt = f"ds_write_b128 v{vL16}, {V(MEM+4*t,4)} offset:{lds_of(t)}"
            if out is None: q.ds(txt, f"st{t}")
            else: out(txt)
        k(f"s_add_u32 s{sMS1}, s{sMS}, 4096") if ko[0] >= 4 else None
        mem_load(ko[0])
        if ko[0] < 4: k(f"s_add_u32 s{sMS1}, s{sMS}, 4096")
        for i in range(0, 14, 2): k(f"v_mov_b64 {V(ACC+i,2)}, 0")
        for i in range(cfg.get("pace", 5)): k("s_nop 0")
        mem_load(ko[1])
        for i in range(14, 28, 2): k(f"v_mov_b64 {V(ACC+i,2)}, 0")
        for i in range(cfg.get("pace", 5)): k("s_nop 0")
        mem_load(ko[2])
        k(f"s_nop {cfg.get('pace2', 12)}")
        mem_load(ko[3])
        k(f"s_nop {cfg.get('pace2', 12)}")
        mem_load(ko[4])
        again = k.uid("A_again"); retry = k.uid("A_retry")
        def smf(tt, t):
            R = blockregA(7 * tt + t)
            k(f"v_smfmac_f32_16x16x64_bf16 {V(ACC+4*tt,4)}, {V(MEM+4*t,4)}, {R.r(0,8)}, v{vIdx}")
        def cvt(tile, hi):
            pa = ACC + 4 * tile + 2 * hi
            k(f"v_cvt_pk_bf16_f32 v{TMP+2*(tile&1)+hi}, v{pa}, v{pa+1}")
        k("s_waitcnt vmcnt(4)")
        prof.raw(2)
        for i, t in enumerate(ko):
            m0 = MEM + 4 * t
            fl = [[], [], [], []]
            if i < 2: fl[0].append(lambda i=i: mem_load(ko[i + 5]))
            fl[1 if i < 2 else 0].append(lambda i=i, m0=m0: k(f"v_max_u32 v{vX}, v{m0}, v{m0+1}" if i == 0 else f"v_max3_u32 v{vX}, v{vX}, v{m0}, v{m0+1}"))
            fl[2 if i < 2 else 1].append(lambda m0=m0: k(f"v_max3_u32 v{vX}, v{vX}, v{m0+2}, v{m0+3}"))
            if t0w <= t <= t1w: fl[3 if i < 2 or i == 6 else 2].append(lambda t=t: stage(t))
            if i == 6:
                fl[2].append(lambda: k(f"v_cmp_eq_u32 vcc, -1, v{vX}"))
                if not cfg.get("pairs", False): fl[3].append(lambda: cvt(0, 0))
            else: fl[3].append(lambda i=i: k(f"s_waitcnt vmcnt({[4,4,3,2,1,0][i]})"))
            for tt in range(4):
                smf(tt, t)
                for f in fl[tt]: f()
            if cfg.get("raw2") and i < 5: prof.raw(11 + i)
        k(f"s_cbranch_vccnz {retry}")
        prof.raw(3)
        rb = K()
        lab = k.uid("A_rl")
        rb(f"{lab}:")
        rb(f"s_add_u32 s{sMS1}, s{sMS}, 4096")
        for t in range(7):
            so = sMS if t < 4 else sMS1
            rb(f"buffer_load_dwordx4 {V(MEM+4*t,4)}, v{vL16}, {WSR}, s{so} offen offset:{(t*1024)%4096} sc1")
        rb("s_waitcnt vmcnt(0)")
        rb(f"v_max3_u32 v{vX}, v{MEM}, v{MEM+1}, v{MEM+2}")
        for i in range(3, 27, 2): rb(f"v_max3_u32 v{vX}, v{vX}, v{MEM+i}, v{MEM+i+1}")
        rb(f"v_max_u32 v{vX}, v{vX}, v{MEM+27}")
        rb(f"v_cmp_eq_u32 vcc, -1, v{vX}")
        ok_ = k.uid("A_rok")
        rb(f"s_cbranch_vccz {ok_}")
        rb(f"s_sub_u32 s{sSPIN}, s{sSPIN}, 1\ns_cbranch_scc0 {lab}\ns_branch {abort}")
        rb(f"{ok_}:")
        for i in range(0, 16, 2): rb(f"v_mov_b64 {V(ACC+i,2)}, 0")
        if cfg.get("cnt_retry"): rb(f"s_add_u32 s{sPROF+11}, s{sPROF+11}, 1")
        for t in range(t0w, t1w + 1): stage(t, rb)
        rb("s_nop 1")
        for t in range(7):
            for tt in range(4):
                R = blockregA(7 * tt + t)
                rb(f"v_smfmac_f32_16x16x64_bf16 {V(ACC+4*tt,4)}, {V(MEM+4*t,4)}, {R.r(0,8)}, v{vIdx}")
        if not cfg.get("pairs", False): rb(f"v_cvt_pk_bf16_f32 v{TMP}, v{ACC}, v{ACC+1}")
        rb(f"s_branch {again}")
        cfg.setdefault("outofline", []).append(f"{retry}:\ns_nop 7\n" + rb.text())
        k.label(again)
        q.vm = []
        def wr2(pair): q.ds(f"ds_write_b128 v{vTRw2}, {V(TMP,4)} offset:{pair*1024}", f"w{pair}")
        PAIRS = cfg.get("pairs", False)
        def wr6(): q.ds(f"ds_write_b64 v{vTRw}, {V(TMP,2)} offset:{0 if PAIRS else 3072}", "w6")
        def wr1(tile): q.ds(f"ds_write_b64 v{vTRw}, {V(TMP+2*(tile&1),2)} offset:{tile*512}", f"w{tile}")
        def tr(tile):
            if tile == 6: q.ds(f"ds_read_b64_tr_b16 {TRr(6)}, v{vTRr} offset:{0 if PAIRS else 3072}", "tr6")
            elif not PAIRS: q.ds(f"ds_read_b64_tr_b16 {TRr(tile)}, v{vTRr} offset:{tile*512}", f"tr{tile}")
            else: q.ds(f"ds_read_b64_tr_b16 {TRr(tile)}, v{vTRr2} offset:{(tile>>1)*1024+(tile&1)*8}", f"tr{tile}")
        def mk(tt):
            tau = 7 * W + tt
            q.ds(f"ds_read_b64 {V(MEM+2*tt,2)}, v{vMKg} offset:{lds_of(tau >> 2) + 256 * (tau & 3)}", f"mk{tt}")
        fill_after = {}
        if PAIRS:
            slot = 0
            for pair in range(3):
                for f in [("c", 2*pair, 0), ("c", 2*pair, 1), ("c", 2*pair+1, 0), ("c", 2*pair+1, 1), ("w", pair), ("t", 2*pair), ("t", 2*pair+1)]:
                    fill_after.setdefault(slot, []).append(f); slot += 1
        else:
            if W < 2 or not cfg.get("stagger", True):
                seq_ = [("c", 0, 1), ("w1", 0), ("t", 0)]
                for tile in range(1, 5): seq_ += [("c", tile, 0), ("c", tile, 1), ("w1", tile), ("t", tile)]
                seq_ += [("c", 5, 0), ("c", 5, 1)]
            else:
                seq_ = [("c", 0, 1), ("c", 1, 0), ("c", 1, 1)]
                for tile in range(0, 4): seq_ += [("w1", tile), ("t", tile), ("c", tile + 2, 0), ("c", tile + 2, 1)]
                seq_ += [("w1", 4), ("t", 4)]
            for slot, f in enumerate(seq_): fill_after.setdefault(slot, []).append(f)
        def dofill(f):
            if f[0] == "c": cvt(f[1], f[2])
            elif f[0] == "w":
                if PAIRS: wr2(f[1])
                else: wr1(2*f[1]); wr1(2*f[1]+1)
            elif f[0] == "w1": wr1(f[1])
            elif f[0] == "t": tr(f[1])
        sl = 0
        for tt in (4, 5, 6):
            for t in range(7):
                smf(tt, t)
                for f in fill_after.get(sl, []): dofill(f)
                sl += 1
        prof.raw(4)
        def smm(kap, p, first=False):
            D = V(SACC + 4 * kap, 4)
            C = "0" if first else D
            if p < 3:
                Aop = A(XK + kap * 14 + 4 * p, 4) if kap < 2 else V(MEM + 4 * p, 4)
                k(f"v_mfma_f32_16x16x32_bf16 {D}, {Aop}, {V(TR+4*p,4)}, {C}")
            else:
                Aop = A(XK + kap * 14 + 12, 2) if kap < 2 else V(MEM + 12, 2)
                k(f"v_mfma_f32_16x16x16_bf16 {D}, {Aop}, {TRr(6)}, {C}")
        if not PAIRS: wr1(5); tr(5)
        q.wait_lg("tr3")
        smm(0, 0, True)
        mk(0); mk(1)
        smm(1, 0, True)
        mk(2); mk(3)
        smm(0, 1)
        cvt(6, 0); cvt(6, 1)
        smm(1, 1)
        wr6(); tr(6)
        q.wait_lg("tr5")
        smm(0, 2)
        mk(4); mk(5)
        smm(1, 2)
        mk(6)
        q.wait_lg("mk3")
        smm(2, 0, True); smm(2, 1)
        q.wait_lg("mk5")
        smm(2, 2)
        smm(0, 3); smm(1, 3)
        q.wait_lg("mk6")
        smm(2, 3)
        prof.raw(5)
        k(f"s_add_u32 s{sXK}, s{sXK}, 28672")
        k("s_nop 3")
        for r in range(4): k(f"v_add_f32_dpp v{SACC+r}, v{SACC+r}, v{SACC+r} row_ror:8 row_mask:0xf bank_mask:0x3")
        for r in range(4): k(f"v_add_f32_dpp v{SACC+r}, v{SACC+4+r}, v{SACC+4+r} row_ror:8 row_mask:0xf bank_mask:0xc")
        q.ds(f"ds_write_b128 v{vSWx}, {V(SACC,4)}")
        for r in range(4): k(f"v_add_f32_dpp v{SACC+8+r}, v{SACC+8+r}, v{SACC+8+r} row_ror:8 row_mask:0xf bank_mask:0xf")
        q.ds(f"ds_write_b128 v{vSWm}, {V(SACC+8,4)}")
        q.lg0()
        prof.stamp(3); prof.raw(6)
        k("s_barrier")
        prof.stamp(4); prof.raw(7)
        X = TR
        if W < 2: softmax(q, W, ST)
        if cfg.get("bar3", True): k("s_barrier")
        if W == 3: preset(ST)
        if cfg.get("trace") and W == 3:
            k(f"s_waitcnt lgkmcnt(0)\ns_lshl_b32 s{sT0}, s{sRANK}, 6\ns_add_u32 s{sT0}, s{sT0}, s{sSTEP}\ns_lshl_b32 s{sT0}, s{sT0}, 2\ns_add_u32 s{sT0}, s{sT0}, {PROF+8192}")
            k(f"v_mov_b32 v{TR+4}, s90\nv_mov_b32 v{TR+5}, 0\ns_mov_b64 exec, 1\nbuffer_store_dword v{TR+4}, v{TR+5}, {WSR}, s{sT0} offen\ns_mov_b64 exec, -1")
        xk_prefetch()
        prof.stamp(5); prof.raw(10)
        emit_ring_advance(k)
        k("s_waitcnt vmcnt(0)")
        k(f"s_cmp_lt_u32 s{sSTEP}, {cfg['nsteps']}\ns_cbranch_scc1 {loop}")
        prof.raw_dump(TR, TR + 1); prof.dump(TR, TR + 1); prof.tot_dump(cfg.get("tot"), TR, TR + 1)
        k("s_endpgm")
    if cfg.get("mode_hook"): cfg["mode_hook"](k, TR)
    mlabs = [k.uid("A_m") for _ in modes]
    if len(modes) > 1: k(f"s_cmp_eq_u32 s{sMODE}, 1\ns_cbranch_scc1 {mlabs[1]}")
    for mi, st in enumerate(modes):
        k.label(mlabs[mi])
        labs = [k.uid("A_w") for _ in range(4)]
        for w in range(1, 4): k(f"s_cmp_eq_u32 s{sWAVE}, {w}\ns_cbranch_scc1 {labs[w]}")
        for w in range(4):
            k.label(labs[w])
            wave_loop(w, st)

def blockregB(tau, t):
    if t == 6 and tau < 6: return None
    b = 7 * tau + t - min(tau, 6)
    return Reg("a", 32 + 8 * b) if b < 28 else Reg("v", 80 + 8 * (b - 28))

def emit_chain_B(k, cfg, abort):
    prof = Prof(k, cfg.get("prof"), cfg.get("raw"))
    q = Q(k)
    WSR = f"s[{sWS}:{sWS+3}]"
    modes = cfg.get("modes", [cfg.get("st", "")])
    vL16, vPollA, vPollB, vP0, vPm, vOA, vOR, vMst, vIdx, vWL, vDet = range(1, 12)
    vLane = 0
    WT, ACC, VB, MEM = 12, 28, 36, 52
    vT = WT
    VXR = 0
    cfg["_mw"] = 6
    if cfg.get("tot"): k("s_memrealtime s[86:87]")
    k(f"s_sub_u32 s{sRANK}, s{sRANK}, 16")
    k("v_and_b32 v0, 63, v0")
    k(f"v_lshlrev_b32 v{vL16}, 4, v{vLane}")
    k(f"s_mul_i32 s{sT0}, s{sWAVE}, 1792")
    k(f"v_add_u32 v{vPollA}, s{sT0}, v{vL16}")
    k(f"v_min_u32 v{vT}, 47, v{vLane}")
    k(f"v_lshlrev_b32 v{vT}, 4, v{vT}")
    k(f"s_add_u32 s{sT1}, s{sT0}, 1024")
    k(f"v_add_u32 v{vPollB}, s{sT1}, v{vT}")
    I, SUB, GA, T2 = WT + 1, WT + 2, WT + 3, WT + 4
    k(f"v_and_b32 v{I}, 7, v{vLane}\nv_bfe_u32 v{SUB}, v{vLane}, 3, 1\nv_lshrrev_b32 v{GA}, 4, v{vLane}")
    k(f"v_and_b32 v{T2}, 3, v{vLane}\nv_lshlrev_b32 v{vDet}, 2, v{T2}\ns_lshl_b32 s{sT0}, s{sWAVE}, 7\nv_add_u32 v{vDet}, s{sT0}, v{vDet}")
    k(f"s_mul_i32 s{sT0}, s{sWAVE}, 2560")
    k(f"v_add_u32 v{vP0}, s{sT0}, v{vL16}")
    k(f"v_lshrrev_b32 v{T2}, 1, v{GA}\nv_lshlrev_b32 v{vPm}, 8, v{T2}")
    k(f"v_lshl_add_u32 v{vPm}, v{SUB}, 7, v{vPm}\nv_lshl_add_u32 v{vPm}, v{I}, 4, v{vPm}")
    k(f"s_add_u32 s{sT0}, s{sT0}, 2048\nv_add_u32 v{vPm}, s{sT0}, v{vPm}")
    C2, CG = WT + 5, WT + 6
    k(f"v_and_b32 v{C2}, 3, v{vLane}")
    k(f"v_bfe_u32 v{CG}, v{vLane}, 2, 2\nv_lshrrev_b32 v{T2}, 5, v{vLane}\nv_lshl_add_u32 v{CG}, v{T2}, 2, v{CG}")
    k(f"v_and_b32 v{T2}, 1, v{GA}\nv_lshl_add_u32 v{T2}, v{CG}, 1, v{T2}")
    k(f"v_lshlrev_b32 v{vOA}, 2, v{C2}\nv_xor_b32 v{T2}, v{T2}, v{vOA}\nv_and_b32 v{T2}, 15, v{T2}")
    k(f"v_lshlrev_b32 v{vOA}, 8, v{C2}\nv_lshl_add_u32 v{vOA}, v{T2}, 4, v{vOA}")
    k(f"s_lshl_b32 s{sT0}, s{sWAVE}, 10\ns_add_u32 s{sT0}, s{sT0}, {OP_L}\nv_add_u32 v{vOA}, s{sT0}, v{vOA}")
    k(f"v_lshlrev_b32 v{T2}, 2, v{GA}\nv_and_b32 v{vOR}, 15, v{vLane}\nv_xor_b32 v{vOR}, v{vOR}, v{T2}\nv_and_b32 v{vOR}, 15, v{vOR}")
    k(f"v_lshlrev_b32 v{vOR}, 4, v{vOR}\nv_lshl_add_u32 v{vOR}, v{GA}, 8, v{vOR}\nv_add_u32 v{vOR}, {OP_L}, v{vOR}")
    k(f"v_and_b32 v{T2}, 1, v{vLane}\nv_lshl_add_u32 v{T2}, v{T2}, 2, v{GA}")
    k(f"v_bfe_u32 v{vMst}, v{vLane}, 3, 1\nv_lshl_add_u32 v{T2}, v{vMst}, 4, v{T2}")
    k(f"v_bfe_u32 v{vMst}, v{vLane}, 2, 1\nv_lshl_add_u32 v{T2}, v{vMst}, 3, v{T2}")
    k(f"v_lshlrev_b32 v{T2}, 4, v{T2}")
    k(f"v_bfe_u32 v{vMst}, v{vLane}, 1, 1\nv_lshl_add_u32 v{vMst}, v{vMst}, 3, v{T2}")
    k(f"s_lshl_b32 s{sT0}, s{sRANK}, 9\nv_add_u32 v{vMst}, s{sT0}, v{vMst}")
    k(f"s_lshl_b32 s{sFLG}, s{sRANK}, 2\ns_add_u32 s{sFLG}, s{sFLG}, {FLAGM}")
    k(f"v_mov_b32 v{vIdx}, 0x44444444\nv_mov_b32 v{T2}, 0xeeeeeeee")
    k(f"v_cmp_ne_u32 vcc, 0, v{SUB}\ns_nop 1\nv_cndmask_b32 v{vIdx}, v{vIdx}, v{T2}, vcc")
    if cfg.get("warm", True):
        sk = k.uid("B_warm")
        k(f"s_cmp_lg_u32 s{sRANK}, 0\ns_cbranch_scc1 {sk}")
        k(f"s_lshl_b32 s{sT0}, s{sWAVE}, 6\nv_add_u32 v{WT}, s{sT0}, v{vLane}\nv_lshlrev_b32 v{WT}, 7, v{WT}")
        for u in range(2):
            k(f"s_mov_b32 s{sT0}, {MEMRING + u*32768}\nbuffer_load_dword v{WT+1}, v{WT}, {WSR}, s{sT0} offen sc1")
        nrest = (FLAGP + 512 - MEMRING - 65536) // 128
        k(f"v_lshrrev_b32 v{WT+2}, 7, v{WT}\nv_cmp_gt_u32 vcc, {nrest}, v{WT+2}\ns_and_saveexec_b64 s[{sMaskA}:{sMaskA+1}], vcc")
        skw = k.uid("B_w3")
        k(f"s_cbranch_execz {skw}\ns_mov_b32 s{sT0}, {MEMRING + 65536}\nbuffer_load_dword v{WT+1}, v{WT}, {WSR}, s{sT0} offen sc1")
        k.label(skw)
        k(f"s_mov_b64 exec, s[{sMaskA}:{sMaskA+1}]")
        k("s_waitcnt vmcnt(0)")
        k.label(sk)
    FUSED = cfg.get("fused")
    LDF = "sc1" if FUSED else ""
    if FUSED:
        k(f"v_and_b32 v{WT}, 3, v{vLane}\nv_lshlrev_b32 v{WT}, 7, v{WT}\ns_lshl_b32 s{sT0}, s{sWAVE}, 9\ns_add_u32 s{sT0}, s{sT0}, {C_WB}")
        top = k.uid("B_wp"); ok_ = k.uid("B_wpo")
        k.label(top)
        k(f"buffer_load_dword v{WT+1}, v{WT}, {WSR}, s{sT0} offen sc1\ns_waitcnt vmcnt(0)")
        k(f"v_cmp_gt_u32 vcc, 7, v{WT+1}\ns_cbranch_vccz {ok_}")
        k(f"s_sleep 1\ns_sub_u32 s{sSPIN}, s{sSPIN}, 1\ns_cbranch_scc0 {top}\ns_branch {abort}")
        k.label(ok_)
    k(f"s_mul_i32 s{sT0}, s{sRANK}, 458752\ns_mul_i32 s{sT1}, s{sWAVE}, 114688\ns_add_u32 s{sT0}, s{sT0}, s{sT1}\ns_add_u32 s{sT0}, s{sT0}, {WB_OFF}")
    k(f"s_mul_i32 s{sT1}, s{sWAVE}, 12288\ns_add_u32 s{sT1}, s{sT1}, {WL}\nv_add_u32 v{vWL}, s{sT1}, v{vL16}")
    for tau in range(8):
        for t in range(7):
            R = blockregB(tau, t)
            for a in range(2):
                off = ((7 * tau + t) * 2 + a) * 1024
                if off and off % 4096 == 0: k(f"s_add_u32 s{sT0}, s{sT0}, 4096")
                if R is not None:
                    k(f"buffer_load_dwordx4 {R.r(4*a,4)}, v{vL16}, {WSR}, s{sT0} offen offset:{off%4096} {LDF}")
                else:
                    k(f"s_mul_i32 s{sT1}, s{sWAVE}, 12288\ns_add_u32 m0, s{sT1}, {WL + tau*2048 + a*1024 - off%4096}\ns_nop 0")
                    k(f"buffer_load_dwordx4 v{vL16}, {WSR}, s{sT0} offen offset:{off%4096} {LDF} lds")
    PX = WT + 15
    for i in range(8): k(f"v_mov_b32 v{ACC+i}, 0")
    k("s_waitcnt vmcnt(0) lgkmcnt(0)")
    if cfg.get("tot"): k("s_memrealtime s[88:89]\ns_waitcnt lgkmcnt(0)")
    if cfg.get("mark"): cfg["mark"](cfg.get("_mw", 3), 16 if cfg.get("_mw", 3) == 3 else 12, only=(sRANK, 0))
    k(f"s_mov_b32 s{sSTEP}, 0\ns_mov_b32 s{sMS}, {MEMRING}\ns_mov_b32 s{sPS}, {PRING}")
    k(f"s_mul_i32 s{sXK}, s{sRANK}, 32768\ns_lshl_b32 s{sT0}, s{sWAVE}, 13\ns_add_u32 s{sXK}, s{sXK}, s{sT0}\ns_add_u32 s{sXK}, s{sXK}, {VX_OFF}")
    k(f"s_mov_b32 s{sOUT}, {MEMOUT+7168}")
    k(f"s_mov_b32 s{sVXC}, {FLAGV}")
    def b_loop(ST):
        q = Q(k)
        prof.start(); prof.tot_start(cfg.get("tot"))
        loop = k.uid("B_loop")
        k.label(loop)
        prof.stamp(0); prof.raw(0)
        if cfg.get("b_sleep"): k(f"s_sleep {cfg['b_sleep']}")
        top = k.uid("PM"); retry = k.uid("PMR")
        k.label(top)
        k(f"buffer_load_dwordx4 {V(WT,4)}, v{vPollA}, {WSR}, s{sMS} offen sc1")
        k(f"buffer_load_dwordx4 {V(WT+4,4)}, v{vPollB}, {WSR}, s{sMS} offen sc1")
        if cfg.get("vxwait"): k(f"v_mov_b32 v{WT+9}, 0\nbuffer_load_dword v{WT+8}, v{WT+9}, {WSR}, s{sVXC} offen sc1")
        k("s_waitcnt vmcnt(0)")
        k(f"v_max3_u32 v{PX}, v{WT}, v{WT+1}, v{WT+2}")
        k(f"v_max3_u32 v{PX}, v{PX}, v{WT+3}, v{WT+4}")
        k(f"v_max3_u32 v{PX}, v{PX}, v{WT+5}, v{WT+6}")
        k(f"v_max_u32 v{PX}, v{PX}, v{WT+7}")
        k(f"v_cmp_eq_u32 vcc, -1, v{PX}")
        k(f"s_cbranch_vccnz {retry}")
        if cfg.get("vxwait"):
            k(f"v_cmp_ge_u32 vcc, s{sSTEP}, v{WT+8}")
            k(f"s_cbranch_vccnz {retry}")
        retry_block(cfg, retry, "", abort, top)
        q.reset()
        prof.stamp(1); prof.raw(1)
        def vx_load0(u):
            off = u * 1024
            so = sXK if off < 4096 else sT1
            k(f"buffer_load_dwordx4 {A(VXR+4*u,4)}, v{vL16}, {WSR}, s{so} offen offset:{off%4096} sc1")
        VXE = cfg.get("vxearly", 2)
        q.ds(f"ds_write_b128 v{vPollA}, {V(WT,4)} offset:{MEM_L}")
        q.ds(f"ds_write_b128 v{vPollB}, {V(WT+4,4)} offset:{MEM_L}")
        if VXE == 2:
            k(f"s_add_u32 s{sT1}, s{sXK}, 4096")
            for u in range(8): vx_load0(u)
        q.lg0()
        k("s_barrier")
        prof.stamp(2)
        for t in range(7):
            q.ds(f"ds_read_b128 {V(MEM+4*t,4)}, v{vL16} offset:{MEM_L+t*1024}", f"mem{t}")
        nm = k.uid("B_nm")
        k(f"s_cmp_lg_u32 s{sWAVE}, 0\ns_cbranch_scc1 {nm}\ns_cmp_eq_u32 s{sSTEP}, 0\ns_cbranch_scc1 {nm}")
        k(f"s_sub_u32 s{sT1}, s{sOUT}, 7168\nbuffer_store_dwordx2 {V(VB+14,2)}, v{vMst}, {WSR}, s{sT1} offen sc1")
        k.label(nm)
        k(f"s_add_u32 s{sT1}, s{sXK}, 4096")
        def vx_load(u):
            off = u * 1024
            so = sXK if off < 4096 else sT1
            k(f"buffer_load_dwordx4 {A(VXR+4*u,4)}, v{vL16}, {WSR}, s{so} offen offset:{off%4096} sc1")
        def vb_dst(tau, rp):
            hh, c = tau >> 1, tau & 1
            a, sub = hh >> 1, hh & 1
            return VB + 8 * c + 4 * a + 2 * rp + sub
        for tau in range(8):
            for t in range(7):
                if tau == 0: q.wait_lg(f"mem{t}")
                R = blockregB(tau, t)
                if R is None:
                    q.wait_lg(f"wl{tau}b")
                    Bop = V(WT + 8 * (tau & 1), 8)
                else:
                    Bop = R.r(0, 8)
                k(f"v_smfmac_f32_16x16x64_bf16 {V(ACC+4*(tau&1),4)}, {V(MEM+4*t,4)}, {Bop}, v{vIdx}")
                if tau < 6:
                    if t == 0: q.ds(f"ds_read_b128 {V(WT+8*(tau&1),4)}, v{vWL} offset:{tau*2048}", f"wl{tau}a")
                    if t == 1: q.ds(f"ds_read_b128 {V(WT+8*(tau&1)+4,4)}, v{vWL} offset:{tau*2048+1024}", f"wl{tau}b")
                if VXE == 2: pass
                elif VXE == 1:
                    if tau == 0: vx_load(t)
                    if tau == 1 and t == 2: vx_load(7)
                elif tau < 4 and t in (5, 6): vx_load(2 * tau + (t - 5))
                if tau >= 1:
                    pa = ACC + 4 * ((tau - 1) & 1)
                    if t == 2: k(f"v_cvt_pk_bf16_f32 v{vb_dst(tau-1,0)}, v{pa}, v{pa+1}")
                    if t == 3: k(f"v_cvt_pk_bf16_f32 v{vb_dst(tau-1,1)}, v{pa+2}, v{pa+3}")
                    if t == 4: k(f"v_mov_b64 {V(pa,2)}, 0")
                    if t == 5: k(f"v_mov_b64 {V(pa+2,2)}, 0")
        k(f"s_add_u32 s{sXK}, s{sXK}, 458752")
        k("s_nop 6")
        pa = ACC + 4
        k(f"v_cvt_pk_bf16_f32 v{vb_dst(7,0)}, v{pa}, v{pa+1}")
        k(f"v_cvt_pk_bf16_f32 v{vb_dst(7,1)}, v{pa+2}, v{pa+3}")
        k(f"v_mov_b64 {V(pa,2)}, 0\nv_mov_b64 {V(pa+2,2)}, 0")
        prof.raw(2)
        k("s_waitcnt vmcnt(0)")
        prof.stamp(3); prof.raw(3)
        k(f"s_add_u32 s{sMS1}, s{sSTEP}, 1")
        emit_flag_poll(k, cfg, vDet, WT, sMS1, FLAGP, abort)
        prof.stamp(4); prof.raw(4)
        P0, P1, PM = MEM, MEM + 4, MEM + 8
        q.reset()
        def p_loads(qq):
            qq(f"buffer_load_dwordx4 {V(P0,4)}, v{vP0}, {WSR}, s{sPS} offen sc1", "p0")
            qq(f"buffer_load_dwordx4 {V(P1,4)}, v{vP0}, {WSR}, s{sPS} offen offset:1024 sc1", "p1")
            qq(f"buffer_load_dwordx4 {V(PM,4)}, v{vPm}, {WSR}, s{sPS} offen sc1", "pm")
        p_loads(q.vmem)
        again = k.uid("B_again"); retry = k.uid("B_retry")
        k.label(again)
        for (Pr, src, tag) in ((P0, "x0", "p0"), (P1, "x1", "p1"), (PM, "m", "pm")):
            q.wait_vm(tag)
            if tag == "p0": prof.raw(5)
            if tag == "pm": prof.raw(6)
            for c in range(2):
                Bop = {"x0": A(VXR + c * 8, 8), "x1": A(VXR + 16 + c * 8, 8), "m": V(VB + 8 * c, 8)}[src]
                k(f"v_smfmac_f32_16x16x64_bf16 {V(ACC+4*c,4)}, {V(Pr,4)}, {Bop}, v{vIdx}")
                if c == 0: k(f"v_max_u32 v{PX}, v{Pr}, v{Pr+1}" if src == "x0" else f"v_max3_u32 v{PX}, v{PX}, v{Pr}, v{Pr+1}")
                else: k(f"v_max3_u32 v{PX}, v{PX}, v{Pr+2}, v{Pr+3}")
        k(f"v_cmp_eq_u32 vcc, -1, v{PX}")
        k(f"s_cbranch_vccnz {retry}")
        rb = K(); lab = k.uid("B_rl"); ok_ = k.uid("B_rok")
        rb(f"{lab}:")
        p_loads(lambda txt, tag: rb(txt))
        rb("s_waitcnt vmcnt(0)")
        rb(f"v_max3_u32 v{PX}, v{P0}, v{P0+1}, v{P0+2}")
        for i in range(3, 11, 2): rb(f"v_max3_u32 v{PX}, v{PX}, v{P0+i}, v{P0+i+1}")
        rb(f"v_max_u32 v{PX}, v{PX}, v{P0+11}")
        rb(f"v_cmp_eq_u32 vcc, -1, v{PX}")
        rb(f"s_cbranch_vccz {ok_}")
        rb(f"s_sub_u32 s{sSPIN}, s{sSPIN}, 1\ns_cbranch_scc0 {lab}\ns_branch {abort}")
        rb(f"{ok_}:")
        for i in range(0, 8, 2): rb(f"v_mov_b64 {V(ACC+i,2)}, 0")
        if cfg.get("cnt_retry"): rb(f"s_add_u32 s{sPROF+11}, s{sPROF+11}, 1")
        rb(f"s_nop 1\ns_branch {again}")
        cfg.setdefault("outofline", []).append(f"{retry}:\ns_nop 7\n" + rb.text())
        def mflag():
            k(f"s_add_u32 s{sT0}, s{sSTEP}, 1\nv_mov_b32 v{PX}, s{sT0}\nv_mov_b32 v{PX-1}, 0")
            k(f"s_mov_b64 exec, 1\nbuffer_store_dword v{PX}, v{PX-1}, {WSR}, s{sFLG} offen {ST}\ns_mov_b64 exec, -1")
        mpos = cfg.get("mflag_pos", 1)
        k("s_nop 5")
        for r in range(4): k(f"v_permlane32_swap_b32 v{ACC+r}, v{ACC+4+r}")
        k(f"v_pk_add_f32 {V(ACC,2)}, {V(ACC,2)}, {V(ACC+4,2)}\nv_pk_add_f32 {V(ACC+2,2)}, {V(ACC+2,2)}, {V(ACC+6,2)}")
        q.ds(f"ds_write_b128 v{vOA}, {V(ACC,4)}")
        nofin = k.uid("B_nofin"); join = k.uid("B_join")
        if mpos == 0:
            sk = k.uid("B_f0"); k(f"s_cmp_lg_u32 s{sWAVE}, 0\ns_cbranch_scc1 {sk}"); mflag(); k.label(sk)
        q.lg0()
        prof.stamp(5); prof.raw(7)
        k("s_barrier")
        prof.stamp(6); prof.raw(8)
        k(f"s_cmp_lg_u32 s{sWAVE}, 0\ns_cbranch_scc1 {nofin}")
        X = WT
        for w_ in range(4): q.ds(f"ds_read_b128 {V(X+4*w_,4)}, v{vOR} offset:{w_*1024}", f"o{w_}")
        def mflag2():
            k(f"s_mov_b64 exec, 1\nbuffer_store_dword v{ACC+4}, v{ACC+5}, {WSR}, s{sFLG} offen {ST}\ns_mov_b64 exec, -1")
        k(f"s_add_u32 s{sT0}, s{sSTEP}, 1\nv_mov_b32 v{ACC+4}, s{sT0}\nv_mov_b32 v{ACC+5}, 0")
        if mpos == 1: mflag2()
        k(f"s_add_u32 s{sT0}, s{sSTEP}, 1\ns_and_b32 s{sT0}, s{sT0}, 3\ns_mul_i32 s{sMS1}, s{sT0}, 7168\ns_add_u32 s{sMS1}, s{sMS1}, {MEMRING}")
        def pk(d, a, b):
            k(f"v_pk_add_f32 {V(d,2)}, {V(a,2)}, {V(b,2)}\nv_pk_add_f32 {V(d+2,2)}, {V(a+2,2)}, {V(b+2,2)}")
        q.wait_lg("o1")
        if mpos == 11: mflag2()
        pk(X, X, X+4)
        q.wait_lg("o3"); pk(X+8, X+8, X+12); pk(X, X, X+8)
        q.reset()
        prof.raw(9)
        if mpos == 12: mflag2()
        else: k("s_nop 1")
        k(f"v_permlane32_swap_b32 v{X}, v{X+2}\nv_permlane32_swap_b32 v{X+1}, v{X+3}")
        k("s_nop 1")
        k(f"v_permlane16_swap_b32 v{X}, v{X+1}\nv_permlane16_swap_b32 v{X+2}, v{X+3}")
        if mpos == 13: mflag2()
        k(f"v_cvt_pk_bf16_f32 v{X}, v{X}, v{X+1}\nv_cvt_pk_bf16_f32 v{X+1}, v{X+2}, v{X+3}")
        k(f"v_min_u32 v{X}, -2, v{X}\nv_min_u32 v{X+1}, -2, v{X+1}")
        k(f"buffer_store_dwordx2 {V(X,2)}, v{vMst}, {WSR}, s{sMS1} offen {ST}")
        prof.raw(10)
        if mpos == 2: mflag2()
        k(f"v_mov_b64 {V(VB+14,2)}, {V(X,2)}")
        k.label(nofin)
        if cfg.get("bar4", True): k("s_barrier")
        k(f"s_cmp_lg_u32 s{sWAVE}, 1\ns_cbranch_scc1 {join}")
        X = WT
        k(f"s_add_u32 s{sRST}, s{sSTEP}, 3\ns_and_b32 s{sRST}, s{sRST}, 3\ns_mul_i32 s{sRST}, s{sRST}, 7168\ns_add_u32 s{sRST}, s{sRST}, {MEMRING}")
        k(f"v_mov_b32 v{X}, -1\nv_mov_b32 v{X+1}, -1")
        k(f"buffer_store_dwordx2 {V(X,2)}, v{vMst}, {WSR}, s{sRST} offen {ST}")
        k.label(join)
        for i in range(0, 8, 2): k(f"v_mov_b64 {V(ACC+i,2)}, 0")
        prof.stamp(7)
        k(f"s_add_u32 s{sOUT}, s{sOUT}, 7168")
        emit_ring_advance(k)
        k(f"s_cmp_lt_u32 s{sSTEP}, {cfg['nsteps']}\ns_cbranch_scc1 {loop}")
        if cfg.get("mark"): cfg["mark"](7, 12, only=(sRANK, 0))
        nm2 = k.uid("B_nm2")
        k(f"s_cmp_lg_u32 s{sWAVE}, 0\ns_cbranch_scc1 {nm2}")
        k(f"s_sub_u32 s{sT1}, s{sOUT}, 7168\nbuffer_store_dwordx2 {V(VB+14,2)}, v{vMst}, {WSR}, s{sT1} offen sc1\ns_waitcnt vmcnt(0)")
        k.label(nm2)
        k(f"s_add_u32 s{sRANK}, s{sRANK}, 16")
        prof.raw_dump(WT, WT + 1); prof.dump(WT, WT + 1); prof.tot_dump(cfg.get("tot"), WT, WT + 1)
        k("s_endpgm")
    if cfg.get("mode_hook"): cfg["mode_hook"](k, WT)
    mlabs = [k.uid("B_m") for _ in modes]
    if len(modes) > 1: k(f"s_cmp_eq_u32 s{sMODE}, 1\ns_cbranch_scc1 {mlabs[1]}")
    for mi, st in enumerate(modes):
        k.label(mlabs[mi])
        b_loop(st)

def emit_helper(k, cfg, abort):
    WSR = f"s[{sWS}:{sWS+3}]"
    modes = cfg.get("modes", [cfg.get("st", "")])
    dist = cfg.get("pf_dist", 3)
    k("v_lshlrev_b32 v1, 7, v0")
    k("v_mov_b32 v2, 0")
    if cfg.get("mode_hook"): cfg["mode_hook"](k, 40)
    mlabs = [k.uid("H_m") for _ in modes]
    if len(modes) > 1: k(f"s_cmp_eq_u32 s{sMODE}, 1\ns_cbranch_scc1 {mlabs[1]}")
    for mi, ST in enumerate(modes):
        k.label(mlabs[mi])
        k(f"s_mov_b32 s{sSTEP}, 0\ns_mov_b32 s{sXK}, {VX_OFF}\ns_mov_b32 s{sOUT}, {XK_OFF}\ns_mov_b32 s{sVXC}, {C_VX}")
        loop = k.uid("PF_loop"); p2 = k.uid("PF_p2"); g2 = k.uid("PF_g2")
        pfl = k.uid("PF_pf")
        k(f"s_cmp_eq_u32 s{sRANK}, 31\ns_cbranch_scc1 {pfl}_b\ns_cmp_eq_u32 s{sWAVE}, 0\ns_cbranch_scc0 {pfl}_a")
        k.label(loop)
        k.label(p2)
        k(f"buffer_load_dword v3, v2, {WSR}, s{sVXC} offen sc1\ns_waitcnt vmcnt(0)")
        k(f"v_cmp_gt_u32 vcc, 28, v3\ns_cbranch_vccz {g2}")
        k(f"s_sleep 1\ns_sub_u32 s{sSPIN}, s{sSPIN}, 1\ns_cbranch_scc0 {p2}\ns_branch {abort}")
        k.label(g2)
        k(f"s_add_u32 s{sT0}, s{sSTEP}, 1\nv_mov_b32 v3, s{sT0}\ns_mov_b32 s{sT0}, {FLAGV}")
        k(f"s_mov_b64 exec, 1\nbuffer_store_dword v3, v2, {WSR}, s{sT0} offen {ST}")
        k(f"s_mov_b32 s{sT0}, {FLAGV2}\nbuffer_store_dword v3, v2, {WSR}, s{sT0} offen sc1\ns_mov_b64 exec, -1")
        k(f"s_add_u32 s{sSTEP}, s{sSTEP}, 1\ns_add_u32 s{sVXC}, s{sVXC}, {CSTR}")
        k(f"s_cmp_lt_u32 s{sSTEP}, {cfg['nsteps']}\ns_cbranch_scc1 {loop}")
        k(f"s_branch {g2}_end")
        k.label(f"{pfl}_a")
        k(f"s_sub_u32 s{sRST}, s{sWAVE}, 1\ns_branch {pfl}_c")
        k.label(f"{pfl}_b")
        k(f"s_add_u32 s{sRST}, s{sWAVE}, 3")
        k.label(f"{pfl}_c")
        if cfg.get("pf", True):
            dist = cfg.get("pf_dist", 2)
            SH = 6 if cfg.get("pf64") else 7
            k(f"v_and_b32 v4, 63, v0\nv_lshlrev_b32 v4, {SH}, v4\ns_lshl_b32 s{sRST}, s{sRST}, 16\nv_add_u32 v4, s{sRST}, v4")
            k(f"s_mov_b32 s{sSTEP}, 0\ns_mov_b32 s{sXK}, {VX_OFF}")
            lp = k.uid("PF_l"); w1 = k.uid("PF_w1"); o1 = k.uid("PF_o1"); w2 = k.uid("PF_w2"); o2 = k.uid("PF_o2")
            k.label(lp)
            k(f"s_mov_b32 s{sT0}, {FLAGV}")
            k.label(w1)
            k(f"buffer_load_dword v3, v2, {WSR}, s{sT0} offen sc1\ns_waitcnt vmcnt(0)\nv_cmp_ge_u32 vcc, s{sSTEP}, v3\ns_cbranch_vccz {o1}")
            k(f"s_sleep 4\ns_sub_u32 s{sSPIN}, s{sSPIN}, 1\ns_cbranch_scc0 {w1}\ns_branch {abort}")
            k.label(o1)
            k(f"s_cmp_le_u32 s{sSTEP}, {dist}\ns_cbranch_scc1 {o2}\ns_sub_u32 s{sMS}, s{sSTEP}, {dist}\ns_mov_b32 s{sT0}, {FLAGM}")
            k.label(w2)
            k(f"buffer_load_dword v3, v2, {WSR}, s{sT0} offen sc1\ns_waitcnt vmcnt(0)\nv_cmp_gt_u32 vcc, s{sMS}, v3\ns_cbranch_vccz {o2}")
            k(f"s_sleep 4\ns_sub_u32 s{sSPIN}, s{sSPIN}, 1\ns_cbranch_scc0 {w2}\ns_branch {abort}")
            k.label(o2)
            k(f"s_mov_b32 s{sT1}, s{sXK}")
            for u in range(16 if cfg.get("pf64") else 8):
                k(f"buffer_load_dword v{8+u}, v4, {WSR}, s{sT1} offen sc1\ns_add_u32 s{sT1}, s{sT1}, {4096 if cfg.get('pf64') else 8192}")
            k(f"s_add_u32 s{sXK}, s{sXK}, 458752\ns_add_u32 s{sSTEP}, s{sSTEP}, 1")
            k(f"s_cmp_lt_u32 s{sSTEP}, {cfg['nsteps']}\ns_cbranch_scc1 {lp}")
        k.label(f"{g2}_end")
        k("s_waitcnt vmcnt(0)")
        k("s_endpgm")

def gen_chain_test(cfg):
    k = K()
    name = "chain_kernel"
    k(f'.amdgcn_target "amdgcn-amd-amdhsa--gfx950"\n.text\n.globl {name}\n.p2align 8\n.type {name},@function\n{name}:')
    k("s_load_dwordx4 s[4:7], s[0:1], 0")
    if cfg.get("tot"): k("s_memrealtime s[96:97]")
    k("s_getreg_b32 s3, hwreg(HW_REG_XCC_ID)\ns_and_b32 s3, s3, 15")
    k("s_waitcnt lgkmcnt(0)")
    k(f"s_mov_b32 s{sWS}, s4\ns_mov_b32 s{sWS+1}, s5\ns_mov_b32 s{sWS+2}, {WS_BYTES}\ns_mov_b32 s{sWS+3}, 0x20000")
    if cfg.get("same_xcd", True):
        k("s_cmp_lg_u32 s3, 0\ns_cbranch_scc1 L_exit")
    k("v_mov_b32 v1, 0\nv_mov_b32 v2, 1")
    k("v_cmp_eq_u32 vcc, 0, v0\ns_and_saveexec_b64 s[20:21], vcc\ns_cbranch_execz L_t")
    k("global_atomic_add v3, v1, v2, s[6:7] sc0\ns_waitcnt vmcnt(0)\nds_write_b32 v1, v3\ns_waitcnt lgkmcnt(0)")
    k.label("L_t")
    k("s_mov_b64 exec, s[20:21]\ns_barrier\nds_read_b32 v3, v1\ns_waitcnt lgkmcnt(0)\ns_nop 0")
    k(f"v_readfirstlane_b32 s{sRANK}, v3")
    k(f"v_lshrrev_b32 v3, 6, v0\ns_nop 0\nv_readfirstlane_b32 s{sWAVE}, v3")
    k("s_barrier")
    k(f"s_mov_b32 s{sSPIN}, {SPIN}")

    k(f"s_cmp_ge_u32 s{sRANK}, 30\ns_cbranch_scc1 L_exit")
    k(f"s_cmp_ge_u32 s{sRANK}, 16\ns_cbranch_scc1 L_roleB")
    emit_chain_A(k, cfg, "L_abort")
    k.label("L_roleB")
    emit_chain_B(k, cfg, "L_abort")
    for t in cfg.get("outofline", []): k(t)
    k.label("L_abort")
    k(f"v_mov_b32 v1, 0\nv_mov_b32 v2, 1\nglobal_atomic_add v1, v2, s[6:7] offset:4\ns_waitcnt vmcnt(0)")
    k.label("L_exit")
    k("s_endpgm")
    k(f""".section .rodata,"a"
.p2align 6
.amdhsa_kernel {name}
  .amdhsa_next_free_vgpr 512
  .amdhsa_next_free_sgpr 102
  .amdhsa_accum_offset 256
  .amdhsa_group_segment_fixed_size 0
  .amdhsa_kernarg_size 16
  .amdhsa_user_sgpr_count 2
  .amdhsa_user_sgpr_kernarg_segment_ptr 1
  .amdhsa_system_sgpr_workgroup_id_x 1
.end_amdhsa_kernel""")
    return k.text()

if __name__ == "__main__":
    import sys, kfw
    cfg = dict(nsteps=63, prof=("prof" in sys.argv))
    t = gen_chain_test(cfg)
    open("chain_test.s", "w").write(t)
    p = kfw.check(t); w = kfw.check_waits(t)
    print("hazards", len(p), "waits", len(w))
```

```python
from kfw import *
from layout import *
from chain import Q, sWS, sRANK, sWAVE, sT0, sT1, sSPIN, SPIN
from prepk import srd, KARG, fbits

WSR = f"s[{sWS}:{sWS+3}]"

def wait_counter(k, off_sgpr, target, vtmp, vzero, abort, sleep=2):
    top = k.uid("WC"); done = k.uid("WCD")
    k.label(top)
    k(f"buffer_load_dword v{vtmp}, v{vzero}, {WSR}, s{off_sgpr} offen sc1\ns_waitcnt vmcnt(0)")
    k(f"v_cmp_gt_u32 vcc, {target}, v{vtmp}" if isinstance(target, int) else f"v_cmp_gt_u32 vcc, {target}, v{vtmp}")
    k(f"s_cbranch_vccz {done}")
    k(f"s_sleep {sleep}\ns_sub_u32 s{sSPIN}, s{sSPIN}, 1\ns_cbranch_scc0 {top}\ns_branch {abort}")
    k.label(done)

def cheap_poll(k, soff, imm_reg, vtmp, abort, sleep):
    top = k.uid("CP"); done = k.uid("CPD")
    k.label(top)
    k(f"buffer_load_dword v{vtmp}, v{imm_reg}, {WSR}, s{soff} offen sc1\ns_waitcnt vmcnt(0)")
    k(f"v_cmp_eq_u32 vcc, -1, v{vtmp}\ns_cbranch_vccz {done}")
    k(f"s_sleep {sleep}\ns_sub_u32 s{sSPIN}, s{sSPIN}, 1\ns_cbranch_scc0 {top}\ns_branch {abort}")
    k.label(done)

def signal(k, off_sgpr, vone, vzero):
    k(f"s_mov_b64 exec, 1\nbuffer_atomic_add v{vone}, v{vzero}, {WSR}, s{off_sgpr} offen sc1\ns_mov_b64 exec, -1")

def dma(k, vaddr, soff, ldsoff_m0, imm=0):
    k(f"s_mov_b32 m0, {ldsoff_m0}\ns_nop 0\nbuffer_load_dwordx4 v{vaddr}, {WSR}, s{soff} offen offset:{imm} lds")

def emit_vxgen(k, cfg, abort, what="vx"):
    NPAR = cfg.get("vx_par", 2) if what == "vx" else cfg.get("vm_par", 1)
    sJ, sWp, sPar, sSeg, sSrc, sDst, sCnt, sBuf, sM = 20, 21, 22, 23, 24, 25, 26, 27, 28
    vL16, vZ, vOne, vT, vRd = 1, 2, 3, 4, 5
    XF, ACC = 8, 32
    k("v_and_b32 v0, 63, v0")
    k(f"v_lshlrev_b32 v{vL16}, 4, v0\nv_mov_b32 v{vZ}, 0\nv_mov_b32 v{vOne}, 1")
    k(f"s_mul_i32 s{sPar}, s{sRANK}, 2341\ns_lshr_b32 s{sPar}, s{sPar}, 16")
    k(f"s_mul_i32 s{sT0}, s{sPar}, 28\ns_sub_u32 s{sT0}, s{sRANK}, s{sT0}")
    k(f"s_lshr_b32 s{sJ}, s{sT0}, 1\ns_and_b32 s{sWp}, s{sT0}, 1")
    sW, sKs = 29, 30
    k(f"s_lshr_b32 s{sW}, s{sWAVE}, 1\ns_lshl_b32 s{sT0}, s{sWp}, 1\ns_add_u32 s{sW}, s{sW}, s{sT0}\ns_and_b32 s{sKs}, s{sWAVE}, 1")
    k(f"s_mul_i32 s{sSrc}, s{sJ}, 458752\ns_mul_i32 s{sT0}, s{sW}, 114688\ns_add_u32 s{sSrc}, s{sSrc}, s{sT0}")
    k(f"s_mul_i32 s{sT0}, s{sKs}, {4*14336}\ns_add_u32 s{sSrc}, s{sSrc}, s{sT0}\ns_add_u32 s{sSrc}, s{sSrc}, {WB_OFF}")
    def Wreg(c, a, kk): return ((a * 2 + c) * 14 + kk) * 4
    FUSED = cfg.get("fused"); LDF = "sc1" if FUSED else ""
    if FUSED:
        k(f"s_lshl_b32 s{sT0}, s{sW}, 2\ns_lshl_b32 s{sT1}, s{sKs}, 1\ns_add_u32 s{sT0}, s{sT0}, s{sT1}\ns_lshl_b32 s{sT0}, s{sT0}, 7\ns_add_u32 s{sT0}, s{sT0}, {C_WB}")
        k(f"v_and_b32 v{vT}, 1, v0\nv_lshlrev_b32 v{vT}, 7, v{vT}")
        wait_counter(k, sT0, 7, 6, vT, abort, sleep=1)
    for a in range(2):
        for c in range(2):
            for kk in range(14):
                off = ((2 * a + c) * 14 + kk) * 1024
                if off and off % 4096 == 0: k(f"s_add_u32 s{sSrc}, s{sSrc}, 4096")
                k(f"buffer_load_dwordx4 {A(Wreg(c,a,kk),4)}, v{vL16}, {WSR}, s{sSrc} offen offset:{off%4096} {LDF}")
    if what == "vm":
        k("s_waitcnt vmcnt(0)")
        emit_vm_phase(k, cfg, abort, locals(), 0, cfg.get("vm_split", 64))
        k("s_waitcnt vmcnt(0)")
        k("s_endpgm")
        return
    k(f"s_mul_i32 s{sDst}, s{sJ}, 32768\ns_lshl_b32 s{sT0}, s{sW}, 13\ns_add_u32 s{sDst}, s{sDst}, s{sT0}")
    k(f"s_lshl_b32 s{sT0}, s{sKs}, 12\ns_add_u32 s{sDst}, s{sDst}, s{sT0}\ns_add_u32 s{sDst}, s{sDst}, {VX_OFF}")
    k(f"s_mul_i32 s{sT0}, s{sPar}, 458752\ns_add_u32 s{sDst}, s{sDst}, s{sT0}")
    k(f"s_mov_b32 s{sSeg}, s{sPar}")
    k(f"s_lshl_b32 s{sCnt}, s{sPar}, 7\ns_add_u32 s{sCnt}, s{sCnt}, {C_VX}")
    k(f"s_mul_i32 s{sSrc}, s{sPar}, 28672\ns_mul_i32 s{sT0}, s{sWAVE}, 7168\ns_add_u32 s{sSrc}, s{sSrc}, s{sT0}\ns_add_u32 s{sSrc}, s{sSrc}, {XNA_OFF}")
    k(f"s_mul_i32 s{sM}, s{sWAVE}, 7168")
    k(f"s_mov_b32 s{sBuf}, 0")
    def issue_dma(bufreg):
        k(f"s_add_u32 s{sT1}, s{sM}, s{bufreg}")
        for u in range(7):
            k(f"s_add_u32 m0, s{sT1}, {u*1024}")
            if u == 4: k(f"s_add_u32 s{sT0}, s{sSrc}, 4096")
            else: k("s_nop 0")
            k(f"buffer_load_dwordx4 v{vL16}, {WSR}, s{sSrc if u < 4 else sT0} offen offset:{(u*1024)%4096} lds")
    def issue_dma(bufreg):
        k(f"s_add_u32 s{sT1}, s{sM}, s{bufreg}")
        k(f"s_mov_b32 m0, s{sT1}\ns_nop 0")
        for u in range(4):
            k(f"buffer_load_dwordx4 v{vL16}, {WSR}, s{sSrc} offen offset:{u*1024} {LDF} lds")
        k(f"s_add_u32 m0, s{sT1}, 4096\ns_add_u32 s{sT0}, s{sSrc}, 4096")
        for u in range(3):
            k(f"buffer_load_dwordx4 v{vL16}, {WSR}, s{sT0} offen offset:{u*1024} {LDF} lds")
    if FUSED:
        k(f"s_mov_b32 s{sT0}, {C_LN}")
        wait_counter(k, sT0, 64, 6, vZ, abort, sleep=1)
    issue_dma(sBuf)
    loop = k.uid("VX_loop"); last = k.uid("VX_nopf")
    k.label(loop)
    k("s_waitcnt vmcnt(0)\ns_barrier")
    k(f"v_add_u32 v{vRd}, s{sBuf}, v{vL16}")
    k(f"s_xor_b32 s{sBuf}, s{sBuf}, 28672")
    k(f"s_add_u32 s{sSrc}, s{sSrc}, {28672*NPAR}")
    k(f"s_add_u32 s{sT0}, s{sSeg}, {NPAR}\ns_cmp_ge_u32 s{sT0}, 64\ns_cbranch_scc1 {last}")
    issue_dma(sBuf)
    k.label(last)
    q = Q(k)
    def rd(kk):
        for rho in range(2):
            q.ds(f"ds_read_b128 {V(XF+8*(kk&1)+4*rho,4)}, v{vRd} offset:{(rho*14+kk)*1024}", f"x{kk}_{rho}")
    rd(0)
    for kk in range(14):
        if kk < 13: rd(kk + 1)
        q.wait_lg(f"x{kk}_1")
        for a in range(2):
            for c in range(2):
                for rho in range(2):
                    D = V(ACC + ((c * 2 + a) * 2 + rho) * 4, 4)
                    k(f"v_mfma_f32_16x16x32_bf16 {D}, {V(XF+8*(kk&1)+4*rho,4)}, {A(Wreg(c,a,kk),4)}, {'0' if kk == 0 else D}")
    k("s_nop 7")
    for c in range(2):
        for a in range(2):
            b = ACC + (c * 2 + a) * 8
            for i in range(4): k(f"v_cvt_pk_bf16_f32 v{b+i}, v{b+2*i}, v{b+2*i+1}")
            k(f"buffer_store_dwordx4 {V(b,4)}, v{vL16}, {WSR}, s{sDst} offen offset:{(c*2+a)*1024} sc1")
    k("s_waitcnt vmcnt(0)\ns_barrier")
    sk = k.uid("VX_ns")
    k(f"s_cmp_lg_u32 s{sWAVE}, 0\ns_cbranch_scc1 {sk}")
    signal(k, sCnt, vOne, vZ)
    k.label(sk)
    k(f"s_add_u32 s{sDst}, s{sDst}, {458752*NPAR}\ns_add_u32 s{sCnt}, s{sCnt}, {CSTR*NPAR}\ns_add_u32 s{sSeg}, s{sSeg}, {NPAR}")
    k(f"s_cmp_lt_u32 s{sSeg}, 64\ns_cbranch_scc1 {loop}")
    if cfg.get("vm_split", 64) < 64: emit_vm_phase(k, cfg, abort, locals(), cfg["vm_split"], 64)
    k("s_waitcnt vmcnt(0)")
    k("s_endpgm")

def emit_vm_phase(k, cfg, abort, L, seg0=0, seg1=64):
    NPAR = L["NPAR"]; Wreg = L["Wreg"]
    sJ, sPar, sSeg, sSrc, sDst, sCnt, sW, sKs = L["sJ"], L["sPar"], L["sSeg"], L["sSrc"], L["sDst"], L["sCnt"], L["sW"], L["sKs"]
    vL16, vZ, vOne, vT = L["vL16"], L["vZ"], L["vOne"], L["vT"]
    vPA, vPB, vRd, vX = 5, 6, 7, 64
    MF, ACC, TA = 72, 32, 8
    k("; ---- V_m phase")
    k(f"s_mul_i32 s{sT0}, s{sWAVE}, 1792\nv_add_u32 v{vPA}, s{sT0}, v{vL16}")
    k(f"v_min_u32 v{vT}, 47, v0\nv_lshlrev_b32 v{vT}, 4, v{vT}\ns_add_u32 s{sT0}, s{sT0}, 1024\nv_add_u32 v{vPB}, s{sT0}, v{vT}")
    k(f"v_lshrrev_b32 v{vT}, 5, v0\nv_lshlrev_b32 v{vRd}, 8, v{vT}")
    k(f"v_and_b32 v{vT}, 7, v0\nv_lshl_add_u32 v{vRd}, v{vT}, 4, v{vRd}")
    k(f"v_bfe_u32 v{vT}, v0, 4, 1\nv_lshl_add_u32 v{vRd}, v{vT}, 3, v{vRd}")
    k(f"s_add_u32 s{sSeg}, s{sPar}, {seg0}")
    k(f"s_mul_i32 s{sSrc}, s{sSeg}, 7168\ns_add_u32 s{sSrc}, s{sSrc}, {MEMOUT}")
    k(f"s_mul_i32 s{sDst}, s{sJ}, 16384\ns_lshl_b32 s{sT0}, s{sW}, 12\ns_add_u32 s{sDst}, s{sDst}, s{sT0}")
    k(f"s_lshl_b32 s{sT0}, s{sKs}, 11\ns_add_u32 s{sDst}, s{sDst}, s{sT0}\ns_add_u32 s{sDst}, s{sDst}, {VM_OFF}")
    k(f"s_mul_i32 s{sT0}, s{sSeg}, 229376\ns_add_u32 s{sDst}, s{sDst}, s{sT0}")
    k(f"s_lshl_b32 s{sCnt}, s{sSeg}, 7\ns_add_u32 s{sCnt}, s{sCnt}, {C_VM}")
    loop = k.uid("VM_loop"); top = k.uid("VM_poll"); ok_ = k.uid("VM_ok")
    sHave, sPrev = 40, 41
    k(f"s_mov_b32 s{sHave}, 0")
    def loads(so):
        k(f"buffer_load_dwordx4 {V(TA,4)}, v{vPA}, {WSR}, s{so} offen sc1")
        k(f"buffer_load_dwordx4 {V(TA+4,4)}, v{vPB}, {WSR}, s{so} offen sc1")
    if seg0 > 0: cheap_poll(k, sSrc, vPA, vX, abort, 32)
    loads(sSrc)
    k.label(loop)
    k.label(top)
    k("s_waitcnt vmcnt(0)")
    ns = k.uid("VM_nsig")
    k(f"s_cmp_eq_u32 s{sHave}, 0\ns_cbranch_scc1 {ns}")
    signal(k, sPrev, vOne, vZ)
    k(f"s_mov_b32 s{sHave}, 0")
    k.label(ns)
    k(f"v_max3_u32 v{vX}, v{TA}, v{TA+1}, v{TA+2}\nv_max3_u32 v{vX}, v{vX}, v{TA+3}, v{TA+4}")
    k(f"v_max3_u32 v{vX}, v{vX}, v{TA+5}, v{TA+6}\nv_max_u32 v{vX}, v{vX}, v{TA+7}")
    k(f"v_cmp_eq_u32 vcc, -1, v{vX}\ns_cbranch_vccz {ok_}")
    k(f"s_sleep {cfg.get('vm_sleep', 1)}")
    loads(sSrc)
    k(f"s_sub_u32 s{sSPIN}, s{sSPIN}, 1\ns_cbranch_scc0 {top}\ns_branch {abort}")
    k.label(ok_)
    XD = cfg.get("xadiag")
    if XD: k("s_memrealtime s[60:61]")
    k(f"ds_write_b128 v{vPA}, {V(TA,4)}\nds_write_b128 v{vPB}, {V(TA+4,4)}")
    k("s_waitcnt lgkmcnt(0)\ns_barrier")
    nl = k.uid("VM_nl")
    k(f"s_add_u32 s{sSrc}, s{sSrc}, {7168*NPAR}\ns_add_u32 s{sT0}, s{sSeg}, {NPAR}\ns_cmp_ge_u32 s{sT0}, {seg1}\ns_cbranch_scc1 {nl}")
    loads(sSrc)
    k.label(nl)
    for t in range(7):
        if t: k(f"v_add_u32 v{vX}, {t*1024}, v{vRd}")
        ad = vRd if t == 0 else vX
        for a in range(2):
            k(f"ds_read2_b64 {V(MF+4*(2*t+a),4)}, v{ad} offset0:{a*64} offset1:{a*64+16}")
    k("s_waitcnt lgkmcnt(0)")
    for kk in range(14): k(f"v_swap_b32 v{MF+4*kk+1}, v{MF+4*kk+2}")
    k("s_nop 1")
    for kk in range(14):
        for c in range(2):
            for a in range(2):
                D = V(ACC + (c * 2 + a) * 4, 4)
                k(f"v_mfma_f32_16x16x32_bf16 {D}, {V(MF+4*kk,4)}, {A(Wreg(c,a,kk),4)}, {'0' if kk == 0 else D}")
    k("s_nop 7")
    for c in range(2):
        b = ACC + c * 8
        for i in range(4): k(f"v_cvt_pk_bf16_f32 v{b+i}, v{b+2*i}, v{b+2*i+1}")
        k(f"buffer_store_dwordx4 {V(b,4)}, v{vL16}, {WSR}, s{sDst} offen offset:{c*1024} sc1")
    if XD:
        skd = k.uid("VM_d")
        k(f"s_memrealtime s[62:63]\ns_cmp_lg_u32 s{sJ}, 0\ns_cbranch_scc1 {skd}\ns_cmp_lg_u32 s{sWAVE}, 0\ns_cbranch_scc1 {skd}")
        k(f"s_waitcnt lgkmcnt(0)\ns_lshl_b32 s{sT0}, s{sSeg}, 3\ns_add_u32 s{sT0}, s{sT0}, {PROF+57344}")
        for n in range(2): k(f"v_mov_b32 v{vT}, s{60+2*n}\nbuffer_store_dword v{vT}, v{vZ}, {WSR}, s{sT0} offen offset:{4*n}")
        k.label(skd)
    k(f"s_mov_b32 s{sPrev}, s{sCnt}\ns_mov_b32 s{sHave}, 1")
    if seg0 > 0:
        k("s_waitcnt vmcnt(0)")
        k(f"s_mov_b32 s{sHave}, 0")
    k("s_barrier")
    if seg0 > 0:
        sk4 = k.uid("VM_s4")
        k(f"s_cmp_lg_u32 s{sWAVE}, 0\ns_cbranch_scc1 {sk4}\nv_mov_b32 v{vX}, 4")
        signal(k, sPrev, vX, vZ)
        k.label(sk4)
    k(f"s_add_u32 s{sDst}, s{sDst}, {229376*NPAR}\ns_add_u32 s{sCnt}, s{sCnt}, {CSTR*NPAR}\ns_add_u32 s{sSeg}, s{sSeg}, {NPAR}")
    k(f"s_cmp_lt_u32 s{sSeg}, {seg1}\ns_cbranch_scc1 {loop}")
    if seg0 == 0:
        k("s_waitcnt vmcnt(0)")
        signal(k, sPrev, vOne, vZ)

def test_kernel(role_emit, name, cfg, nroles):
    k = K()
    k(f'.amdgcn_target "amdgcn-amd-amdhsa--gfx950"\n.text\n.globl {name}\n.p2align 8\n.type {name},@function\n{name}:')
    k(f"s_cmp_ge_u32 s2, {nroles}\ns_cbranch_scc1 L_exit")
    srd(k, sWS, KARG["ws"], WS_BYTES)
    k(f"s_mov_b32 s{sRANK}, s2\ns_mov_b32 s{sSPIN}, {SPIN}")
    k(f"v_lshrrev_b32 v3, 6, v0\ns_nop 0\nv_readfirstlane_b32 s{sWAVE}, v3")
    k("s_waitcnt lgkmcnt(0)")
    role_emit(k, cfg, "L_abort")
    for t in cfg.get("outofline", []): k(t)
    k.label("L_abort")
    k("s_load_dwordx2 s[4:5], s[0:1], 96\ns_waitcnt lgkmcnt(0)\nv_mov_b32 v1, 0\nv_mov_b32 v2, 1\nglobal_atomic_add v1, v2, s[4:5] offset:4\ns_waitcnt vmcnt(0)")
    k.label("L_exit")
    k("s_endpgm")
    from prepk import kd
    k('.section .rodata,"a"')
    k(kd(name, 512, 256))
    return k.text()

if __name__ == "__main__":
    import sys, kfw
    t = test_kernel(emit_vxgen, "vx_kernel", {}, 56)
    open("vx_test.s", "w").write(t)
    print("hazards", len(kfw.check(t)), "waits", len(kfw.check_waits(t)))

def blockregA(b):
    return Reg("a", 8 * b) if b < 28 else Reg("v", 88 + 8 * (b - 28))

def emit_xattn(k, cfg, abort):
    NPAR = cfg.get("xa_par", 2)
    sH, sPar, sSeg, sSrc, sBuf, sM, sKey, sMem, sPx, sCnt = 20, 21, 22, 23, 24, 25, 26, 27, 28, 29
    sMask = 32
    sLo = 48
    vL16, vL8, vZ, vOne, vRd, vMK, vSW, vSR, vX, vT, vNeg = 1, 2, 3, 4, 5, 6, 7, 8, 9, 10, 11
    XF, QT1, ACC, EX = 12, 28, 44, 76
    SACC = 56
    XK = 224
    SP_L = 57344
    MK_L = 81920
    sPrev, sHave = 50, 52
    k("v_and_b32 v0, 63, v0")
    k(f"v_lshlrev_b32 v{vL16}, 4, v0\nv_lshlrev_b32 v{vL8}, 3, v0\nv_mov_b32 v{vZ}, 0\nv_mov_b32 v{vOne}, 1\nv_mov_b32 v{vNeg}, 0xff800000")
    k(f"s_and_b32 s{sH}, s{sRANK}, 15\ns_lshr_b32 s{sPar}, s{sRANK}, 4")
    N_, G_ = XF, XF + 1
    k(f"v_and_b32 v{N_}, 15, v0\nv_lshrrev_b32 v{G_}, 4, v0")
    k(f"s_mul_i32 s{sT0}, s{sWAVE}, 1792")
    k(f"v_lshrrev_b32 v{vT}, 1, v{G_}\nv_lshlrev_b32 v{vMK}, 7, v{vT}")
    k(f"v_and_b32 v{vT}, 7, v0\nv_lshl_add_u32 v{vMK}, v{vT}, 4, v{vMK}")
    k(f"v_and_b32 v{vT}, 1, v{G_}\nv_lshl_add_u32 v{vMK}, v{vT}, 3, v{vMK}")
    vMKl = 84
    k(f"s_lshl_b32 s{sT1}, s{sWAVE}, 11\ns_add_u32 s{sT1}, s{sT1}, {MK_L}\nv_add_u32 v{vMKl}, s{sT1}, v{vMK}")
    k(f"v_add_u32 v{vMK}, s{sT0}, v{vMK}")
    k(f"v_cmp_gt_u32 s[54:55], 48, v0")
    k(f"s_mul_i32 s{sT0}, s{sWAVE}, 6144\ns_add_u32 s{sT0}, s{sT0}, {SP_L}\nv_add_u32 v{vSW}, s{sT0}, v{vL16}")
    k(f"s_and_b32 s{sT0}, s{sWAVE}, 1\ns_lshl_b32 s{sT0}, s{sT0}, 10\ns_add_u32 s{sT0}, s{sT0}, {SP_L}\nv_add_u32 v{vSR}, s{sT0}, v{vL16}")
    k(f"v_bfe_u32 v{vT}, v{N_}, 3, 1\nv_lshlrev_b32 v{vX}, 4, v{vT}")
    k(f"v_bfe_u32 v{vT}, v{N_}, 1, 1\nv_lshl_add_u32 v{vX}, v{vT}, 3, v{vX}")
    k(f"v_bfe_u32 v{vT}, v{N_}, 2, 1\nv_lshl_add_u32 v{vX}, v{vT}, 2, v{vX}")
    k(f"v_and_b32 v{vT}, 1, v{N_}\nv_add_u32 v{vX}, v{vX}, v{vT}")
    k(f"s_and_b32 s{sT0}, s{sWAVE}, 1\ns_lshl_b32 s{sT0}, s{sT0}, 1\nv_add_u32 v{vX}, s{sT0}, v{vX}")
    k(f"v_lshrrev_b32 v{vT}, 1, v{G_}\nv_lshlrev_b32 v{vT}, 4, v{vT}\nv_sub_u32 v{vX}, v{vX}, v{vT}")
    k(f"v_and_b32 v{vT}, 1, v{G_}\nv_lshlrev_b32 v{vT}, 2, v{vT}\nv_sub_u32 v{vX}, v{vX}, v{vT}")
    for kap in range(2):
        for r in range(4):
            c = 8 * (r >> 1) + 2 * kap + (r & 1)
            m = sMask + 2 * (4 * kap + r)
            k(f"v_cmp_le_i32 s[{m}:{m+1}], {c}, v{vX}")
    k(f"v_cmp_gt_u32 s[{sLo}:{sLo+1}], 2, v{G_}")
    FUSED = cfg.get("fused"); LDF = "sc1" if FUSED else ""
    if FUSED:
        k(f"s_lshl_b32 s{sT0}, s{sH}, 2\ns_add_u32 s{sT0}, s{sT0}, s{sWAVE}\ns_lshl_b32 s{sT0}, s{sT0}, 7\ns_add_u32 s{sT0}, s{sT0}, {C_WA}")
        k(f"v_and_b32 v{vT}, 7, v0\nv_min_u32 v{vT}, 6, v{vT}\nv_lshlrev_b32 v{vT}, 2, v{vT}")
        wait_counter(k, sT0, 7, vX, vT, abort, sleep=4)
    k(f"s_mul_i32 s{sT0}, s{sH}, 401408\ns_mul_i32 s{sT1}, s{sWAVE}, 100352\ns_add_u32 s{sT0}, s{sT0}, s{sT1}")
    if WA_OFF: k(f"s_add_u32 s{sT0}, s{sT0}, {WA_OFF}")
    for b in range(49):
        R = blockregA(b)
        for a in range(2):
            off = (b * 2 + a) * 1024
            if off and off % 4096 == 0: k(f"s_add_u32 s{sT0}, s{sT0}, 4096")
            k(f"buffer_load_dwordx4 {R.r(4*a,4)}, v{vL16}, {WSR}, s{sT0} offen offset:{off%4096} {LDF}")
    def Wf(tt, kk):
        return blockregA(7 * tt + (kk >> 1)).r(4 * (kk & 1), 4)
    k(f"s_mov_b32 s{sSeg}, s{sPar}")
    k(f"s_mul_i32 s{sSrc}, s{sPar}, 28672\ns_mul_i32 s{sT0}, s{sWAVE}, 7168\ns_add_u32 s{sSrc}, s{sSrc}, s{sT0}")
    k(f"s_add_u32 s{sKey}, s{sSrc}, {XKP_OFF}\ns_add_u32 s{sSrc}, s{sSrc}, {XNA_OFF}")
    k(f"s_mul_i32 s{sMem}, s{sPar}, 7168\ns_add_u32 s{sMem}, s{sMem}, {MEMOUT}")
    k(f"s_mul_i32 s{sPx}, s{sPar}, 49152\ns_mul_i32 s{sT0}, s{sH}, 3072\ns_add_u32 s{sPx}, s{sPx}, s{sT0}\ns_add_u32 s{sPx}, s{sPx}, {PX_OFF}")
    k(f"s_lshl_b32 s{sCnt}, s{sPar}, 7\ns_add_u32 s{sCnt}, s{sCnt}, {C_PX}")
    k(f"s_mul_i32 s{sM}, s{sWAVE}, 7168\ns_mov_b32 s{sBuf}, 0")
    def issue_dma(bufreg):
        k(f"s_add_u32 s{sT1}, s{sM}, s{bufreg}")
        k(f"s_mov_b32 m0, s{sT1}\ns_nop 0")
        for u in range(4):
            k(f"buffer_load_dwordx4 v{vL16}, {WSR}, s{sSrc} offen offset:{u*1024} {LDF} lds")
        k(f"s_add_u32 m0, s{sT1}, 4096\ns_add_u32 s{sT0}, s{sSrc}, 4096")
        for u in range(3):
            k(f"buffer_load_dwordx4 v{vL16}, {WSR}, s{sT0} offen offset:{u*1024} {LDF} lds")
    if FUSED:
        k(f"s_mov_b32 s{sT0}, {C_LN}")
        wait_counter(k, sT0, 64, vX, vZ, abort, sleep=4)
    issue_dma(sBuf)
    k(f"s_mov_b32 s{sHave}, 0\ns_waitcnt vmcnt(0)")
    if cfg.get("xadiag"): k("s_memrealtime s[88:89]\ns_waitcnt lgkmcnt(0)")
    loop = k.uid("XA_loop"); last = k.uid("XA_nopf")
    k.label(loop)
    XD = cfg.get("xadiag")
    def st(n):
        if XD: k(f"s_memrealtime s[{60+2*n}:{61+2*n}]")
    k("s_barrier")
    st(0)
    k(f"v_add_u32 v{vRd}, s{sBuf}, v{vL16}")
    k(f"s_xor_b32 s{sBuf}, s{sBuf}, 28672")
    for kap in range(2):
        for p in range(3):
            off = kap * 3584 + p * 1024
            so = sKey if off < 4096 else sT1
            if off >= 4096 and p == 1: k(f"s_add_u32 s{sT1}, s{sKey}, 4096")
            k(f"buffer_load_dwordx4 {A(XK+kap*14+4*p,4)}, v{vL16}, {WSR}, s{so} offen offset:{off%4096} {LDF}")
        off = kap * 3584 + 3072
        so = sKey if off < 4096 else sT1
        k(f"buffer_load_dwordx2 {A(XK+kap*14+12,2)}, v{vL8}, {WSR}, s{so} offen offset:{off%4096} {LDF}")
    k(f"s_mul_i32 s{sT0}, s{sWAVE}, 1792\ns_add_u32 s{sT0}, s{sT0}, s{sMem}\ns_lshl_b32 s{sT1}, s{sWAVE}, 11\ns_add_u32 m0, s{sT1}, {MK_L}\ns_nop 0")
    k(f"buffer_load_dwordx4 v{vL16}, {WSR}, s{sT0} offen sc1 lds")
    k(f"s_mov_b64 exec, s[54:55]\nbuffer_load_dwordx4 v{vL16}, {WSR}, s{sT0} offen offset:1024 sc1 lds\ns_mov_b64 exec, -1")
    k(f"s_add_u32 s{sSrc}, s{sSrc}, {28672*NPAR}\ns_add_u32 s{sKey}, s{sKey}, {28672*NPAR}")
    k(f"s_add_u32 s{sT0}, s{sSeg}, {NPAR}\ns_cmp_ge_u32 s{sT0}, 64\ns_cbranch_scc1 {last}")
    issue_dma(sBuf)
    k.label(last)
    st(1)
    q = Q(k)
    def qx_pass(tiles):
        def rd(kk):
            for rho in range(2):
                q.ds(f"ds_read_b128 {V(XF+8*(kk&1)+4*rho,4)}, v{vRd} offset:{(rho*14+kk)*1024}", f"x{kk}_{rho}")
        rd(0)
        for kk in range(14):
            if kk < 13: rd(kk + 1)
            q.wait_lg(f"x{kk}_1")
            for i, tt in enumerate(tiles):
                for rho in range(2):
                    D = V(ACC + (i * 2 + rho) * 4, 4)
                    k(f"v_mfma_f32_16x16x32_bf16 {D}, {Wf(tt,kk)}, {V(XF+8*(kk&1)+4*rho,4)}, {'0' if kk == 0 else D}")
        q.reset()
        k("s_nop 7")
    qx_pass([0, 1, 2, 3])
    for i in range(4):
        for rho in range(2):
            src = ACC + (i * 2 + rho) * 4; dst = QT1 + rho * 8 + (i >> 1) * 4 + (i & 1) * 2
            k(f"v_cvt_pk_bf16_f32 v{dst}, v{src}, v{src+1}\nv_cvt_pk_bf16_f32 v{dst+1}, v{src+2}, v{src+3}")
    st(2)
    qx_pass([4, 5, 6])
    st(3)
    for (i, rho, dst) in ((0, 0, 0), (1, 0, 2), (0, 1, 4), (1, 1, 6), (2, 0, 8), (2, 1, 10)):
        src = ACC + (i * 2 + rho) * 4
        k(f"v_cvt_pk_bf16_f32 v{ACC+dst}, v{src}, v{src+1}\nv_cvt_pk_bf16_f32 v{ACC+dst+1}, v{src+2}, v{src+3}")
    def QTr(p, rho):
        if p < 2: return V(QT1 + rho * 8 + p * 4, 4)
        if p == 2: return V(ACC + rho * 4, 4)
        return V(ACC + 8 + rho * 2, 2)
    def smm(kap, p, rho):
        D = V(SACC + (kap * 2 + rho) * 4, 4)
        C = "0" if p == 0 else D
        if p < 3:
            Aop = A(XK + kap * 14 + 4 * p, 4) if kap < 2 else V(XF + 4 * p, 4)
            k(f"v_mfma_f32_16x16x32_bf16 {D}, {Aop}, {QTr(p,rho)}, {C}")
        else:
            Aop = A(XK + kap * 14 + 12, 2) if kap < 2 else V(XF + 12, 2)
            k(f"v_mfma_f32_16x16x16_bf16 {D}, {Aop}, {QTr(p,rho)}, {C}")
    k("s_waitcnt vmcnt(0)")
    st(4)
    ns = k.uid("XA_nsig")
    k(f"s_cmp_ge_u32 s{sWAVE}, 2\ns_cbranch_scc1 {ns}\ns_cmp_eq_u32 s{sHave}, 0\ns_cbranch_scc1 {ns}")
    signal(k, sPrev, vOne, vZ)
    k.label(ns)
    for tt in range(7): k(f"ds_read_b64 {V(XF+2*tt,2)}, v{vMKl} offset:{256*tt}")
    for kap in range(2):
        for p in range(4):
            for rho in range(2): smm(kap, p, rho)
    top = k.uid("XA_mk"); ok_ = k.uid("XA_mkok")
    def mkcheck():
        k(f"v_max3_u32 v{vX}, v{XF}, v{XF+1}, v{XF+2}")
        for i in range(3, 13, 2): k(f"v_max3_u32 v{vX}, v{vX}, v{XF+i}, v{XF+i+1}")
        k(f"v_max_u32 v{vX}, v{vX}, v{XF+13}")
        k(f"v_cmp_eq_u32 vcc, -1, v{vX}\ns_cbranch_vccz {ok_}")
    k("s_waitcnt lgkmcnt(0)")
    mkcheck()
    k.label(top)
    k(f"s_sleep {cfg.get('xa_sleep', 1)}")
    for tt in range(7):
        k(f"buffer_load_dwordx2 {V(XF+2*tt,2)}, v{vMK}, {WSR}, s{sMem} offen offset:{256*tt} sc1")
    k("s_waitcnt vmcnt(0)")
    mkcheck()
    k(f"s_sub_u32 s{sSPIN}, s{sSPIN}, 1\ns_cbranch_scc0 {top}\ns_branch {abort}")
    k.label(ok_)
    st(5)
    for p in range(4):
        for rho in range(2): smm(2, p, rho)
    k("s_nop 7")
    for u in range(6): k(f"ds_write_b128 v{vSW}, {V(SACC+4*u,4)} offset:{u*1024}")
    k("s_waitcnt lgkmcnt(0)\ns_barrier")
    st(6)
    fin = k.uid("XA_fin")
    k(f"s_cmp_ge_u32 s{sWAVE}, 2\ns_cbranch_scc1 {fin}")
    S = 44
    T_ = 56
    dsts = [S, T_, T_ + 12, XF]
    for src in range(4):
        for kap in range(3):
            k(f"ds_read_b128 {V(dsts[src]+4*kap,4)}, v{vSR} offset:{src*6144+kap*2048}")
    k("s_waitcnt lgkmcnt(6)")
    for i in range(0, 12, 2): k(f"v_pk_add_f32 {V(S+i,2)}, {V(S+i,2)}, {V(T_+i,2)}")
    k("s_waitcnt lgkmcnt(0)")
    for i in range(0, 12, 2): k(f"v_pk_add_f32 {V(T_+12+i,2)}, {V(T_+12+i,2)}, {V(XF+i,2)}")
    for i in range(0, 12, 2): k(f"v_pk_add_f32 {V(S+i,2)}, {V(S+i,2)}, {V(T_+12+i,2)}")
    for kap in range(2):
        for r in range(4):
            m = sMask + 2 * (4 * kap + r)
            k(f"v_cndmask_b32 v{S+4*kap+r}, v{vNeg}, v{S+4*kap+r}, s[{m}:{m+1}]")
    M = vX; T2 = vT
    k(f"v_max3_f32 v{M}, v{S}, v{S+1}, v{S+2}")
    for i in range(3, 11, 2): k(f"v_max3_f32 v{M}, v{M}, v{S+i}, v{S+i+1}")
    k(f"v_max_f32 v{M}, v{M}, v{S+11}")
    def xg(op):
        for sw in ("v_permlane32_swap_b32", "v_permlane16_swap_b32"):
            k(f"v_mov_b32 v{T2}, v{M}\ns_nop 1\n{sw} v{M}, v{T2}\n{op} v{M}, v{M}, v{T2}")
    xg("v_max_f32")
    for i in range(12): k(f"v_sub_f32 v{S+i}, v{S+i}, v{M}")
    for i in range(12): k(f"v_exp_f32 v{S+i}, v{S+i}")
    k("s_nop 0")
    for i in range(8, 12): k(f"v_cndmask_b32 v{S+i}, 0, v{S+i}, s[{sLo}:{sLo+1}]")
    k(f"v_add_f32 v{M}, v{S}, v{S+1}")
    for i in range(2, 12): k(f"v_add_f32 v{M}, v{M}, v{S+i}")
    xg("v_add_f32")
    k(f"v_rcp_f32 v{M}, v{M}\ns_nop 0")
    for i in range(12): k(f"v_mul_f32 v{S+i}, v{S+i}, v{M}")
    for i in range(6): k(f"v_cvt_pk_bf16_f32 v{S+i}, v{S+2*i}, v{S+2*i+1}")
    k(f"s_and_b32 s{sT0}, s{sWAVE}, 1\ns_lshl_b32 s{sT1}, s{sT0}, 10\ns_add_u32 s{sT1}, s{sT1}, s{sPx}")
    k(f"buffer_store_dwordx4 {V(S,4)}, v{vL16}, {WSR}, s{sT1} offen sc1")
    k(f"s_lshl_b32 s{sT1}, s{sT0}, 9\ns_add_u32 s{sT1}, s{sT1}, s{sPx}")
    k(f"buffer_store_dwordx2 {V(S+4,2)}, v{vL8}, {WSR}, s{sT1} offen offset:2048 sc1")
    k.label(fin)
    st(7)
    if XD:
        skd = k.uid("XA_d")
        k(f"s_cmp_lg_u32 s{sRANK}, 0\ns_cbranch_scc1 {skd}\ns_cmp_lg_u32 s{sWAVE}, 0\ns_cbranch_scc1 {skd}")
        k(f"s_waitcnt lgkmcnt(0)\ns_lshl_b32 s{sT0}, s{sSeg}, 5\ns_add_u32 s{sT0}, s{sT0}, {PROF+53248}")
        for n in range(8): k(f"v_mov_b32 v{vT}, s{60+2*n}\nbuffer_store_dword v{vT}, v{vZ}, {WSR}, s{sT0} offen offset:{4*n}")
        k.label(skd)
    k(f"s_mov_b32 s{sPrev}, s{sCnt}\ns_mov_b32 s{sHave}, 1")
    dfr = k.uid("XA_dfr")
    k(f"s_cmp_lt_u32 s{sSeg}, {cfg.get('xa_imm', 30)}\ns_cbranch_scc1 {dfr}\ns_mov_b32 s{sHave}, 0\ns_cmp_ge_u32 s{sWAVE}, 2\ns_cbranch_scc1 {dfr}")
    k("s_waitcnt vmcnt(0)")
    signal(k, sPrev, vOne, vZ)
    k.label(dfr)
    k(f"s_add_u32 s{sMem}, s{sMem}, {7168*NPAR}\ns_add_u32 s{sPx}, s{sPx}, {49152*NPAR}\ns_add_u32 s{sCnt}, s{sCnt}, {CSTR*NPAR}\ns_add_u32 s{sSeg}, s{sSeg}, {NPAR}")
    k(f"s_cmp_lt_u32 s{sSeg}, 64\ns_cbranch_scc1 {loop}")
    k("s_waitcnt vmcnt(0)")
    ns2 = k.uid("XA_nsig2")
    k(f"s_cmp_ge_u32 s{sWAVE}, 2\ns_cbranch_scc1 {ns2}\ns_cmp_eq_u32 s{sHave}, 0\ns_cbranch_scc1 {ns2}")
    signal(k, sPrev, vOne, vZ)
    k.label(ns2)
    k("s_waitcnt vmcnt(0)")
    k("s_endpgm")

def emit_pvout(k, cfg, abort):
    NPAR = cfg.get("pv_par", 2)
    sX, sO = 36, 40
    sCg, sPar, sSeg, sVX, sVM, sPX, sG, sXo, sC = 20, 21, 22, 23, 24, 25, 26, 27, 28
    vL16, vL8, vZ, vT, vRow, vRd, vRm = 1, 2, 3, 4, 5, 7, 8
    PF, D, GV, XV = 12, 44, 52, 60
    srd(k, sX, KARG["x"], 1835008); srd(k, sO, KARG["out"], 1835008)
    k("v_and_b32 v0, 63, v0")
    k(f"v_lshlrev_b32 v{vL16}, 4, v0\nv_lshlrev_b32 v{vL8}, 3, v0\nv_mov_b32 v{vZ}, 0")
    k(f"s_mul_i32 s{sPar}, s{sRANK}, 9363\ns_lshr_b32 s{sPar}, s{sPar}, 16\ns_mul_i32 s{sT0}, s{sPar}, 7\ns_sub_u32 s{sCg}, s{sRANK}, s{sT0}")
    k(f"v_and_b32 v{vT}, 15, v0")
    k(f"v_bfe_u32 v{vRow}, v{vT}, 3, 1\nv_lshlrev_b32 v{vRow}, 4, v{vRow}")
    k(f"v_bfe_u32 v{vRow+1}, v{vT}, 1, 1\nv_lshl_add_u32 v{vRow}, v{vRow+1}, 3, v{vRow}")
    k(f"v_bfe_u32 v{vRow+1}, v{vT}, 2, 1\nv_lshl_add_u32 v{vRow}, v{vRow+1}, 2, v{vRow}")
    k(f"v_and_b32 v{vRow+1}, 1, v{vT}\nv_add_u32 v{vRow}, v{vRow}, v{vRow+1}")
    k(f"v_mul_u32_u24 v{vRow}, 896, v{vRow}")
    k(f"v_lshrrev_b32 v{vT}, 4, v0\nv_lshl_add_u32 v{vRow}, v{vT}, 3, v{vRow}")
    k(f"s_lshl_b32 s{sT0}, s{sCg}, 2\ns_add_u32 s{sT0}, s{sT0}, s{sWAVE}")
    k(f"s_lshl_b32 s{sT1}, s{sT0}, 5\nv_add_u32 v{vRow}, s{sT1}, v{vRow}\nv_add_u32 v{vRow+1}, {2*896}, v{vRow}")
    k(f"s_mul_i32 s{sG}, s{sT0}, 2048\ns_mul_i32 s{sT1}, s{sPar}, 57344\ns_add_u32 s{sG}, s{sG}, s{sT1}\ns_add_u32 s{sG}, s{sG}, {G_OFF}")
    k(f"s_lshr_b32 s{sT0}, s{sT0}, 1")
    k(f"s_mul_i32 s{sVX}, s{sT0}, 32768\ns_mul_i32 s{sVM}, s{sT0}, 16384")
    k(f"s_and_b32 s{sT0}, s{sWAVE}, 1\ns_lshl_b32 s{sT1}, s{sT0}, 11\ns_add_u32 s{sVX}, s{sVX}, s{sT1}\ns_lshl_b32 s{sT1}, s{sT0}, 10\ns_add_u32 s{sVM}, s{sVM}, s{sT1}")
    k(f"s_mul_i32 s{sT1}, s{sPar}, 458752\ns_add_u32 s{sVX}, s{sVX}, s{sT1}\ns_add_u32 s{sVX}, s{sVX}, {VX_OFF}")
    k(f"s_mul_i32 s{sT1}, s{sPar}, 229376\ns_add_u32 s{sVM}, s{sVM}, s{sT1}\ns_add_u32 s{sVM}, s{sVM}, {VM_OFF}")
    k(f"s_mul_i32 s{sPX}, s{sPar}, 49152\ns_mul_i32 s{sT1}, s{sWAVE}, 12288\ns_add_u32 s{sPX}, s{sPX}, s{sT1}\ns_add_u32 s{sPX}, s{sPX}, {PX_OFF}")
    k(f"s_mul_i32 s{sXo}, s{sPar}, 28672\ns_lshl_b32 s{sC}, s{sPar}, 7\ns_mov_b32 s{sSeg}, s{sPar}")
    k("s_waitcnt lgkmcnt(0)")
    VXR, VMR = 0, 64
    loop = k.uid("PV_loop")
    XD = cfg.get("xadiag")
    def st(n):
        if XD: k(f"s_memrealtime s[{60+2*n}:{61+2*n}]")
    k.label(loop)
    st(0)
    REC = 64
    def waitrec(checks):
        top = k.uid("PV_w"); done = k.uid("PV_wd"); skip = k.uid("PV_ws")
        k(f"s_cmp_lg_u32 s{sWAVE}, 0\ns_cbranch_scc1 {skip}")
        k(f"s_add_u32 s{sT0}, s{sC}, {CSEG}")
        k.label(top)
        k(f"buffer_load_dwordx4 {V(REC,4)}, v{vZ}, {WSR}, s{sT0} offen sc1\ns_waitcnt vmcnt(0)")
        first = True
        for idx, target in checks:
            k(f"v_cmp_gt_u32 vcc, {target}, v{REC+idx}")
            if first: k(f"s_mov_b64 s[30:31], vcc"); first = False
            else: k(f"s_or_b64 s[30:31], s[30:31], vcc")
        k(f"s_cmp_eq_u64 s[30:31], 0\ns_cbranch_scc1 {done}")
        k(f"s_sleep 2\ns_sub_u32 s{sSPIN}, s{sSPIN}, 1\ns_cbranch_scc0 {top}\ns_branch {abort}")
        k.label(done)
        k.label(skip)
        k("s_barrier")
    S0 = cfg.get("s0", 32)
    late = k.uid("PV_late"); go = k.uid("PV_go")
    k(f"s_cmp_ge_u32 s{sSeg}, {S0}\ns_cbranch_scc1 {late}")
    waitrec([(0, 28)])
    k(f"s_branch {go}")
    k.label(late)
    waitrec([(0, 28), (3, 1)])
    k.label(go)
    st(1)
    for w in range(4):
        for ks in range(2):
            k(f"s_add_u32 s{sT0}, s{sVX}, {w*8192+ks*4096}")
            for a in range(2):
                k(f"buffer_load_dwordx4 {A(VXR+((w*2+ks)*2+a)*4,4)}, v{vL16}, {WSR}, s{sT0} offen offset:{a*1024} sc1")
    early1 = k.uid("PV_e1")
    k(f"s_cmp_lt_u32 s{sSeg}, {S0}\ns_cbranch_scc1 {early1}")
    for rho in range(2): k(f"buffer_load_dwordx2 {V(XV+2*rho,2)}, v{vRow+rho}, s[{sX}:{sX+3}], s{sXo} offen")
    for rho in range(2): k(f"buffer_load_dwordx4 {V(GV+4*rho,4)}, v{vL16}, {WSR}, s{sG} offen offset:{rho*1024} sc1")
    k.label(early1)
    waitrec([(1, 112), (2, 32)])
    st(2)
    for w in range(4):
        k(f"s_add_u32 s{sT0}, s{sVM}, {w*4096}")
        for ks in range(2):
            k(f"buffer_load_dwordx4 {A(VMR+(w*2+ks)*4,4)}, v{vL16}, {WSR}, s{sT0} offen offset:{ks*2048} sc1")
    k(f"s_mul_i32 s{sT1}, s{sWAVE}, 12288")
    for u4 in range(3):
        k(f"s_add_u32 m0, s{sT1}, {u4*4096}\ns_add_u32 s{sT0}, s{sPX}, {u4*4096}")
        for u in range(4): k(f"buffer_load_dwordx4 v{vL16}, {WSR}, s{sT0} offen offset:{u*1024} sc1 lds")
    k("s_waitcnt vmcnt(0)\ns_barrier")
    st(3)
    q = Q(k)
    steps = []
    for h in range(16):
        for rho in range(2): steps.append(("x", h, rho))
    for pr in range(8):
        for rho in range(2): steps.append(("m", pr, rho))
    def rd(i):
        kind, a_, rho = steps[i]
        dst = V(PF + 4 * (i % 8), 4)
        if kind == "x": q.ds(f"ds_read_b128 {dst}, v{vL16} offset:{a_*3072+rho*1024}", f"p{i}")
        else: q.ds(f"ds_read2st64_b64 {dst}, v{vL8} offset0:{(2*a_*3072+2048+rho*512)//512} offset1:{((2*a_+1)*3072+2048+rho*512)//512}", f"p{i}")
    for i in range(6): rd(i)
    first = [True, True]
    for i, (kind, a_, rho) in enumerate(steps):
        if i + 6 < len(steps): rd(i + 6)
        q.wait_lg(f"p{i}")
        Aop = A(VXR + a_ * 4, 4) if kind == "x" else A(VMR + a_ * 4, 4)
        Dr = V(D + 4 * rho, 4)
        k(f"v_mfma_f32_16x16x32_bf16 {Dr}, {Aop}, {V(PF+4*(i%8),4)}, {'0' if first[rho] else Dr}")
        first[rho] = False
    k("s_nop 7")
    fin = k.uid("PV_fin"); nxt = k.uid("PV_nxt")
    k(f"s_cmp_ge_u32 s{sSeg}, {S0}\ns_cbranch_scc1 {fin}")
    for rho in range(2): k(f"buffer_store_dwordx4 {V(D+4*rho,4)}, v{vL16}, {WSR}, s{sG} offen offset:{rho*1024} sc1")
    k("s_waitcnt vmcnt(0)\ns_barrier")
    k(f"s_cmp_lg_u32 s{sWAVE}, 0\ns_cbranch_scc1 {nxt}")
    k(f"s_add_u32 s{sT0}, s{sC}, {C_G}\nv_mov_b32 v{vT}, 1")
    signal(k, sT0, vT, vZ)
    k(f"s_branch {nxt}")
    k.label(fin)
    for rho in range(2):
        T = PF
        k(f"v_lshlrev_b32 v{T}, 16, v{XV+2*rho}\nv_and_b32 v{T+1}, 0xffff0000, v{XV+2*rho}")
        k(f"v_lshlrev_b32 v{T+2}, 16, v{XV+2*rho+1}\nv_and_b32 v{T+3}, 0xffff0000, v{XV+2*rho+1}")
        for r in range(4): k(f"v_fma_f32 v{T+r}, v{D+4*rho+r}, v{GV+4*rho+r}, v{T+r}")
        k(f"v_cvt_pk_bf16_f32 v{T+4+2*rho}, v{T}, v{T+1}\nv_cvt_pk_bf16_f32 v{T+5+2*rho}, v{T+2}, v{T+3}")
        k(f"buffer_store_dwordx2 {V(T+4+2*rho,2)}, v{vRow+rho}, s[{sO}:{sO+3}], s{sXo} offen {cfg.get('out_st', '')}")
    k.label(nxt)
    st(4)
    if XD:
        skd = k.uid("PV_d")
        k(f"s_and_b32 s{sT0}, s{sRANK}, 0xff\ns_cmp_lg_u32 s{sCg}, 0\ns_cbranch_scc1 {skd}\ns_cmp_lg_u32 s{sWAVE}, 0\ns_cbranch_scc1 {skd}")
        k(f"s_waitcnt lgkmcnt(0)\ns_lshl_b32 s{sT0}, s{sSeg}, 5\ns_add_u32 s{sT0}, s{sT0}, {PROF+59392}")
        for n in range(5): k(f"v_mov_b32 v{vT}, s{60+2*n}\nbuffer_store_dword v{vT}, v{vZ}, {WSR}, s{sT0} offen offset:{4*n}")
        k.label(skd)
    k(f"s_add_u32 s{sVX}, s{sVX}, {458752*NPAR}\ns_add_u32 s{sVM}, s{sVM}, {229376*NPAR}\ns_add_u32 s{sPX}, s{sPX}, {49152*NPAR}")
    k(f"s_add_u32 s{sG}, s{sG}, {57344*NPAR}\ns_add_u32 s{sXo}, s{sXo}, {28672*NPAR}\ns_add_u32 s{sC}, s{sC}, {CSTR*NPAR}\ns_add_u32 s{sSeg}, s{sSeg}, {NPAR}")
    k(f"s_cmp_lt_u32 s{sSeg}, 64\ns_cbranch_scc1 {loop}")
    k("s_waitcnt vmcnt(0)")
    k("s_endpgm")

import math
def emit_ffn(k, cfg, abort):
    k("; ================= FFN =================")
    FUSED = cfg.get("fused"); LDF = "sc1" if FUSED else ""
    if FUSED and cfg.get("ln_in_ffn"):
        import prep2
        prep2.emit_ln_segment(k, sRANK)
        if cfg.get("after_ln"): cfg["after_ln"](k)
    sA = 36
    sU, sGu, sTt, sFg, sSrc, sDst, sCnt = 20, 21, 22, 23, 24, 25, 26
    vL16, vZ, vOne, vT, vN, vG, vLd, vR = 1, 2, 3, 4, 5, 6, 7, 8
    k("v_mov_b32 v9, v0")
    k("v_and_b32 v0, 63, v0")
    k(f"v_lshlrev_b32 v{vL16}, 4, v0\nv_mov_b32 v{vZ}, 0\nv_mov_b32 v{vOne}, 1")
    k(f"v_and_b32 v{vN}, 15, v0\nv_lshrrev_b32 v{vG}, 4, v0")
    if cfg.get("relayout", True):
        STG = 16
        OUT = 48
        uloop = k.uid("FF_u"); isd = k.uid("FF_d"); nxt = k.uid("FF_n"); done = k.uid("FF_rd")
        k(f"s_mov_b32 s{sU}, s{sRANK}")
        k.label(uloop)
        k(f"s_cmp_ge_u32 s{sU}, 154\ns_cbranch_scc1 {done}")
        k(f"s_cmp_ge_u32 s{sU}, 98\ns_cbranch_scc1 {isd}")
        LS = 544
        k(f"s_cmp_ge_u32 s{sU}, 49\ns_cselect_b32 s{sGu}, 1, 0\ns_mul_i32 s{sT0}, s{sGu}, 49\ns_sub_u32 s{sT0}, s{sU}, s{sT0}")
        k(f"s_mul_i32 s{sTt}, s{sT0}, 9363\ns_lshr_b32 s{sTt}, s{sTt}, 16\ns_mul_i32 s{sT1}, s{sTt}, 7\ns_sub_u32 s{sFg}, s{sT0}, s{sT1}")
        g_ = k.uid("FF_g"); gu_ = k.uid("FF_gu")
        k(f"s_cmp_eq_u32 s{sGu}, 1\ns_cbranch_scc1 {g_}")
        srd(k, sA, KARG["Wg"], 1605632)
        k(f"s_branch {gu_}")
        k.label(g_)
        srd(k, sA, KARG["Wu"], 1605632)
        k.label(gu_)
        k(f"v_lshrrev_b32 v{vT}, 5, v9\nv_mul_u32_u24 v{vLd}, 3584, v{vT}\nv_mul_u32_u24 v{vR}, {LS}, v{vT}")
        k(f"v_and_b32 v{vT}, 31, v9\nv_lshl_add_u32 v{vLd}, v{vT}, 4, v{vLd}\nv_lshl_add_u32 v{vR}, v{vT}, 4, v{vR}")
        k(f"s_mul_i32 s{sSrc}, s{sTt}, {64*3584}\ns_lshl_b32 s{sT0}, s{sFg}, 9\ns_add_u32 s{sSrc}, s{sSrc}, s{sT0}")
        k("s_waitcnt lgkmcnt(0)")
        for u in range(8):
            k(f"buffer_load_dwordx4 {V(STG+4*u,4)}, v{vLd}, s[{sA}:{sA+3}], s{sSrc} offen")
            if u < 7: k(f"s_add_u32 s{sSrc}, s{sSrc}, {8*3584}")
        k("s_barrier")
        k("s_waitcnt vmcnt(0)")
        for u in range(8): k(f"ds_write_b128 v{vR}, {V(STG+4*u,4)} offset:{u*8*LS}")
        k(f"v_lshrrev_b32 v{vT}, 1, v{vG}\nv_lshlrev_b32 v{vR}, 4, v{vT}")
        k(f"v_and_b32 v{vT}, 1, v{vG}\nv_lshl_add_u32 v{vR}, v{vT}, 2, v{vR}")
        k(f"v_bfe_u32 v{vT}, v0, 2, 1\nv_add_u32 v{vR}, v{vR}, v{vT}")
        k(f"v_bfe_u32 v{vT}, v0, 3, 1\nv_lshl_add_u32 v{vR}, v{vT}, 3, v{vR}")
        k(f"v_mul_u32_u24 v{vR}, {LS}, v{vR}\nv_and_b32 v{vT}, 3, v0\nv_lshl_add_u32 v{vR}, v{vT}, 3, v{vR}")
        k(f"s_lshl_b32 s{sT0}, s{sWAVE}, 7\nv_add_u32 v{vR}, s{sT0}, v{vR}")
        k("s_waitcnt lgkmcnt(0)\ns_barrier")
        for ftl in range(4):
            for a in range(2):
                for u in range(2):
                    k(f"ds_read_b64_tr_b16 {V(OUT+(ftl*2+a)*4+2*u,2)}, v{vR} offset:{(32*a+2*u)*LS+ftl*32}")
        k("s_waitcnt lgkmcnt(0)")
        for ftl in range(4):
            k(f"s_lshl_b32 s{sT0}, s{sFg}, 4\ns_lshl_b32 s{sT1}, s{sWAVE}, 2\ns_add_u32 s{sT0}, s{sT0}, s{sT1}\ns_add_u32 s{sT0}, s{sT0}, {ftl}")
            k(f"s_lshl_b32 s{sT0}, s{sT0}, 1\ns_add_u32 s{sT0}, s{sT0}, s{sGu}\ns_mul_i32 s{sT0}, s{sT0}, 14\ns_lshl_b32 s{sT1}, s{sTt}, 1\ns_add_u32 s{sT0}, s{sT0}, s{sT1}")
            k(f"s_lshl_b32 s{sDst}, s{sT0}, 10\ns_add_u32 s{sDst}, s{sDst}, {WG_OFF}")
            for a in range(2):
                k(f"buffer_store_dwordx4 {V(OUT+(ftl*2+a)*4,4)}, v{vL16}, {WSR}, s{sDst} offen offset:{a*1024} sc1")
        k(f"s_branch {nxt}")
        k.label(isd)
        LS = 928
        srd(k, sA, KARG["Wd"], 1605632)
        k(f"s_sub_u32 s{sFg}, s{sU}, 98")
        k(f"s_mul_i32 s{sSrc}, s{sFg}, 28672")
        k(f"v_lshlrev_b32 v{vLd}, 4, v9")
        k("s_waitcnt lgkmcnt(0)")
        for u in range(7):
            k(f"buffer_load_dwordx4 {V(STG+4*u,4)}, v{vLd}, s[{sA}:{sA+3}], s{sSrc} offen")
            if u < 6: k(f"s_add_u32 s{sSrc}, s{sSrc}, 4096")
        k("s_barrier")
        for u in range(7):
            k(f"v_add_u32 v{vT}, {256*u}, v9\nv_mul_u32_u24 v{vR}, 2341, v{vT}\nv_lshrrev_b32 v{vR}, 17, v{vR}")
            k(f"v_mul_u32_u24 v{vLd}, 56, v{vR}\nv_sub_u32 v{vLd}, v{vT}, v{vLd}\nv_lshlrev_b32 v{vLd}, 4, v{vLd}")
            k(f"v_mul_u32_u24 v{vR}, {LS}, v{vR}\nv_add_u32 v{vLd}, v{vLd}, v{vR}")
            if u == 0: k("s_waitcnt vmcnt(0)")
            k(f"ds_write_b128 v{vLd}, {V(STG+4*u,4)}")
        k(f"v_bfe_u32 v{vT}, v0, 2, 2\nv_lshl_add_u32 v{vT}, v{vG}, 2, v{vT}\nv_mul_u32_u24 v{vR}, {LS}, v{vT}")
        k(f"v_and_b32 v{vT}, 3, v0\nv_lshl_add_u32 v{vR}, v{vT}, 3, v{vR}")
        k(f"s_mul_i32 s{sT0}, s{sWAVE}, 224\nv_add_u32 v{vR}, s{sT0}, v{vR}")
        k("s_waitcnt lgkmcnt(0)\ns_barrier")
        for i in range(7):
            for u in range(2):
                k(f"ds_read_b64_tr_b16 {V(OUT+i*4+2*u,2)}, v{vR} offset:{16*u*LS+i*32}")
        k(f"s_mul_i32 s{sDst}, s{sFg}, 28\ns_mul_i32 s{sT0}, s{sWAVE}, 7\ns_add_u32 s{sDst}, s{sDst}, s{sT0}\ns_lshl_b32 s{sDst}, s{sDst}, 10\ns_add_u32 s{sDst}, s{sDst}, {WD_OFF}")
        k("s_waitcnt lgkmcnt(0)")
        for i in range(7):
            if i == 4: k(f"s_add_u32 s{sDst}, s{sDst}, 4096")
            k(f"buffer_store_dwordx4 {V(OUT+i*4,4)}, v{vL16}, {WSR}, s{sDst} offen offset:{(i*1024)%4096} sc1")
        k.label(nxt)
        k(f"s_add_u32 s{sU}, s{sU}, 64\ns_branch {uloop}")
        k.label(done)
        k("s_waitcnt vmcnt(0)\ns_barrier")
        sk = k.uid("FF_ns")
        k(f"s_mov_b32 s{sCnt}, {C_RL}")
        k(f"s_cmp_lg_u32 s{sWAVE}, 0\ns_cbranch_scc1 {sk}")
        signal(k, sCnt, vOne, vZ)
        k.label(sk)
    XF, GU, HB, RING = 12, 124, 156, 164
    R, DEP = 28, 27
    def slotreg(i):
        j = i % R
        return V(RING + 4 * j, 4) if j < 21 else A(224 + 4 * (j - 21), 4)
    if FUSED and not cfg.get("ln_in_ffn"):
        k(f"s_mov_b32 s{sCnt}, {C_LN}")
        wait_counter(k, sCnt, 64, vT, vZ, abort, sleep=4)
    k(f"s_mul_i32 s{sSrc}, s{sRANK}, 28672\ns_add_u32 s{sSrc}, s{sSrc}, {XNA_OFF}")
    for f in range(28):
        if f and f % 4 == 0: k(f"s_add_u32 s{sSrc}, s{sSrc}, 4096")
        k(f"buffer_load_dwordx4 {V(XF+4*f,4)}, v{vL16}, {WSR}, s{sSrc} offen offset:{(f*1024)%4096} {LDF}")
    for i in range(224): k(f"v_accvgpr_write_b32 a{i}, 0")
    if cfg.get("relayout", True):
        k(f"s_mov_b32 s{sCnt}, {C_RL}")
        wait_counter(k, sCnt, 64, vT, vZ, abort)
    else:
        k("s_waitcnt vmcnt(0)")
    sGU, sWD, sIt, sGUn, sWDn, sA0 = 27, 28, 29, 30, 31, 32
    k(f"s_mul_i32 s{sGU}, s{sWAVE}, {14*57344}\ns_add_u32 s{sGU}, s{sGU}, {WG_OFF}")
    k(f"s_mul_i32 s{sWD}, s{sWAVE}, {14*28672}\ns_add_u32 s{sWD}, s{sWD}, {WD_OFF}")
    seq = []
    for kk in range(14):
        for gu, ftl in ((0, 0), (0, 1), (1, 0), (1, 1)): seq.append(("gu", gu, ftl, kk))
    for ct in range(28): seq.append(("d", ct))
    NS = len(seq)
    def issue(i, nxt_iter):
        e = seq[i % NS]
        slot = slotreg(i)
        if e[0] == "gu":
            off = e[2] * 28672 + e[1] * 14336 + e[3] * 1024
            base = sGUn if nxt_iter else sGU
        else:
            off = e[1] * 1024
            base = sWDn if nxt_iter else sWD
        hi = off - off % 4096
        if hi: k(f"s_add_u32 s{sA0}, s{base}, {hi}")
        k(f"buffer_load_dwordx4 {slot}, v{vL16}, {WSR}, s{sA0 if hi else base} offen offset:{off%4096} sc1")
    for i in range(DEP): issue(i, False)
    k(f"s_mov_b32 s{sIt}, 0")
    loop = k.uid("FF_loop")
    k.label(loop)
    k(f"s_cmp_lt_u32 s{sIt}, 13\ns_cselect_b32 s{sT0}, 57344, 0\ns_add_u32 s{sGUn}, s{sGU}, s{sT0}\ns_cselect_b32 s{sT0}, 0, 0")
    k(f"s_cmp_lt_u32 s{sIt}, 13\ns_cselect_b32 s{sT0}, 28672, 0\ns_add_u32 s{sWDn}, s{sWD}, s{sT0}")
    for i, e in enumerate(seq):
        k(f"s_waitcnt vmcnt({DEP-1})")
        slot = slotreg(i)
        if e[0] == "gu":
            _, gu, ftl, kk = e
            for rho in range(2):
                D = V(GU + ((gu * 2 + ftl) * 2 + rho) * 4, 4)
                k(f"v_mfma_f32_16x16x32_bf16 {D}, {slot}, {V(XF+(rho*14+kk)*4,4)}, {'0' if kk == 0 else D}")
        else:
            if e[1] == 0:
                k("s_nop 7")
                for ftl in range(2):
                    for rho in range(2):
                        g0 = GU + ((0 * 2 + ftl) * 2 + rho) * 4; u0 = GU + ((1 * 2 + ftl) * 2 + rho) * 4
                        for r in range(4): k(f"v_max_f32 v{g0+r}, 0, v{g0+r}")
                        for r in range(4): k(f"v_mul_f32 v{g0+r}, v{g0+r}, v{u0+r}")
                        k(f"v_cvt_pk_bf16_f32 v{HB+4*rho+2*ftl}, v{g0}, v{g0+1}\nv_cvt_pk_bf16_f32 v{HB+4*rho+2*ftl+1}, v{g0+2}, v{g0+3}")
                k("s_nop 1")
            ct = e[1]
            for rho in range(2):
                D = A((ct * 2 + rho) * 4, 4)
                k(f"v_mfma_f32_16x16x32_bf16 {D}, {slot}, {V(HB+4*rho,4)}, {D}")
        j = i + DEP
        issue(j, j >= NS)
    k(f"s_mov_b32 s{sGU}, s{sGUn}\ns_mov_b32 s{sWD}, s{sWDn}\ns_add_u32 s{sIt}, s{sIt}, 1")
    k(f"s_cmp_lt_u32 s{sIt}, 14\ns_cbranch_scc1 {loop}")
    k("s_waitcnt vmcnt(0)\ns_nop 7")
    S0 = cfg.get("s0", 32)
    vW, vRd, vRow = 7, 8, 11
    k(f"s_mul_i32 s{sT0}, s{sWAVE}, 28672\nv_add_u32 v{vW}, s{sT0}, v{vL16}")
    k(f"s_mul_i32 s{sT0}, s{sWAVE}, 7168\nv_add_u32 v{vRd}, s{sT0}, v{vL16}\nv_add_u32 v10, 57344, v{vRd}")
    k(f"s_mul_i32 s{sDst}, s{sRANK}, 57344\ns_mul_i32 s{sT0}, s{sWAVE}, 7168\ns_add_u32 s{sDst}, s{sDst}, s{sT0}\ns_add_u32 s{sDst}, s{sDst}, {G_OFF}")
    k(f"s_mov_b32 s33, {fbits(-math.log2(math.e)):#x}")
    k(f"s_lshl_b32 s{sCnt}, s{sRANK}, 7\ns_add_u32 s{sCnt}, s{sCnt}, {C_G}")
    k(f"v_bfe_u32 v{vRow}, v{vN}, 3, 1\nv_lshlrev_b32 v{vRow}, 4, v{vRow}")
    k(f"v_bfe_u32 v{vT}, v{vN}, 1, 1\nv_lshl_add_u32 v{vRow}, v{vT}, 3, v{vRow}")
    k(f"v_bfe_u32 v{vT}, v{vN}, 2, 1\nv_lshl_add_u32 v{vRow}, v{vT}, 2, v{vRow}")
    k(f"v_and_b32 v{vT}, 1, v{vN}\nv_add_u32 v{vRow}, v{vRow}, v{vT}")
    k(f"v_mul_u32_u24 v{vRow}, 896, v{vRow}\nv_lshl_add_u32 v{vRow}, v{vG}, 3, v{vRow}")
    sX, sO = 36, 40
    srd(k, sX, KARG["x"], 1835008); srd(k, sO, KARG["out"], 1835008)
    k(f"s_mul_i32 s34, s{sRANK}, 28672")
    k("s_waitcnt lgkmcnt(0)")
    T = 16
    def reduce_tile(i):
        for src in range(4): k(f"ds_read_b128 {V(T+4*src,4)}, v{vRd if src < 2 else 10} offset:{(src&1)*28672+i*1024}")
        k("s_waitcnt lgkmcnt(0)")
        for p in (0, 2):
            k(f"v_pk_add_f32 {V(T+p,2)}, {V(T+p,2)}, {V(T+4+p,2)}\nv_pk_add_f32 {V(T+8+p,2)}, {V(T+8+p,2)}, {V(T+12+p,2)}")
            k(f"v_pk_add_f32 {V(T+p,2)}, {V(T+p,2)}, {V(T+8+p,2)}")
        for r in range(4): k(f"v_mul_f32 v{T+4+r}, s33, v{T+r}")
        for r in range(4): k(f"v_exp_f32 v{T+4+r}, v{T+4+r}")
        k("s_nop 0")
        for r in range(4): k(f"v_add_f32 v{T+4+r}, 1.0, v{T+4+r}")
        for r in range(4): k(f"v_rcp_f32 v{T+4+r}, v{T+4+r}")
        k("s_nop 0")
        for r in range(4): k(f"v_mul_f32 v{T+20+r}, v{T+r}, v{T+4+r}")
    late = k.uid("FF_late"); endl = k.uid("FF_end")
    k(f"s_cmp_ge_u32 s{sRANK}, {S0}\ns_cbranch_scc1 {late}")
    wait_counter(k, sCnt, 7, vT, vZ, abort, sleep=4)
    OV, XV = 48, 80
    for rnd in range(2):
        k("s_barrier")
        for u in range(28): k(f"ds_write_b128 v{vW}, {A((rnd*28+u)*4,4)} offset:{u*1024}")
        for i in range(7):
            off = rnd * 28672 + i * 1024
            k(f"s_add_u32 s{sT0}, s{sDst}, {off - off%4096}")
            k(f"buffer_load_dwordx4 {V(OV+4*i,4)}, v{vL16}, {WSR}, s{sT0} offen offset:{off%4096} sc1")
            k(f"s_mul_i32 s{sT0}, s{sWAVE}, 7\ns_add_u32 s{sT0}, s{sT0}, {rnd*28+i}\ns_and_b32 s{sT1}, s{sT0}, 1\ns_mul_i32 s{sT1}, s{sT1}, 1792")
            k(f"s_lshr_b32 s{sT0}, s{sT0}, 1\ns_lshl_b32 s{sT0}, s{sT0}, 5\ns_add_u32 s{sT0}, s{sT0}, s{sT1}\ns_add_u32 s{60+i}, s{sT0}, s34")
            k(f"buffer_load_dwordx2 {V(XV+2*i,2)}, v{vRow}, s[{sX}:{sX+3}], s{60+i} offen")
        k("s_waitcnt lgkmcnt(0)\ns_barrier\ns_waitcnt vmcnt(0)")
        for i in range(7):
            reduce_tile(i)
            k(f"v_lshlrev_b32 v{T}, 16, v{XV+2*i}\nv_and_b32 v{T+1}, 0xffff0000, v{XV+2*i}")
            k(f"v_lshlrev_b32 v{T+2}, 16, v{XV+2*i+1}\nv_and_b32 v{T+3}, 0xffff0000, v{XV+2*i+1}")
            for r in range(4): k(f"v_fma_f32 v{T+r}, v{OV+4*i+r}, v{T+20+r}, v{T+r}")
            k(f"v_cvt_pk_bf16_f32 v{T+24}, v{T}, v{T+1}\nv_cvt_pk_bf16_f32 v{T+25}, v{T+2}, v{T+3}")
            k(f"buffer_store_dwordx2 {V(T+24,2)}, v{vRow}, s[{sO}:{sO+3}], s{60+i} offen {cfg.get('out_st', '')}")
    k(f"s_branch {endl}")
    k.label(late)
    for rnd in range(2):
        k("s_barrier")
        for u in range(28): k(f"ds_write_b128 v{vW}, {A((rnd*28+u)*4,4)} offset:{u*1024}")
        k("s_waitcnt lgkmcnt(0)\ns_barrier")
        for i in range(7):
            reduce_tile(i)
            off = rnd * 28672 + i * 1024
            k(f"s_add_u32 s{sT0}, s{sDst}, {off - off%4096}")
            k(f"buffer_store_dwordx4 {V(T+20,4)}, v{vL16}, {WSR}, s{sT0} offen offset:{off%4096} sc1")
            k("s_nop 1")
    k("s_waitcnt vmcnt(0)\ns_barrier")
    sk = k.uid("FF_gs")
    k(f"s_cmp_lg_u32 s{sWAVE}, 0\ns_cbranch_scc1 {sk}")
    signal(k, sCnt, vOne, vZ)
    k.label(sk)
    k.label(endl)
    k("s_waitcnt vmcnt(0)")
    k("s_endpgm")
```

```python
import sys
from kfw import *
from layout import *
import chain, workers, prepk, prep2
from chain import sWS, sRANK, sWAVE, sT0, sT1, sSPIN, SPIN, sMODE
from prepk import srd, KARG, kd

NAME = "recurrent_scan__memory_aug_recurrent_mem_tr__glu_gated_reglu__prompt"
HEADER = open("cdna_kernels/" + NAME + ".s.ref").read().split("; Override launch geometry")[0]

def emit_main(k, cfg, name):
    VXP, XAP, PVP = cfg.get("vx_par", 2), cfg.get("xa_par", 3), cfg.get("pv_par", 4)
    VMP = cfg.get("vm_par", 1)
    nVX, nXA, nPV, nFF, nVM = 28 * VXP, 16 * XAP, 7 * PVP, 64, 28 * VMP
    t1, t2, t3, t4 = nVX, nVX + nXA, nVX + nXA + nPV, nVX + nXA + nPV + nFF
    t5 = t4 + nVM
    assert t5 <= 224
    k(f".globl {name}\n.p2align 8\n.type {name},@function\n{name}:")
    k("s_cmp_ge_u32 s2, 256\ns_cbranch_scc1 M_exit")
    if cfg.get("codepf", True):
        k("s_getpc_b64 s[6:7]")
        k.label("M_pc")
        k(f"s_lshr_b32 s14, s2, 3\ns_and_b32 s14, s14, 31\ns_mul_i32 s14, s14, (((M_code_end-{name})+4095)/4096)*128")
        k(f"s_sub_u32 s6, s6, M_pc-{name}\ns_subb_u32 s7, s7, 0")
        k(f"v_lshlrev_b32 v255, 7, v0\nv_add_u32 v255, s14, v255")
        k(f"v_cmp_gt_u32 vcc, (((M_code_end-{name})+4095)/4096), v0\ns_and_saveexec_b64 s[20:21], vcc\ns_cbranch_execz M_pf_done")
        k("global_load_dword v255, v255, s[6:7]")
        k.label("M_pf_done")
        k("s_mov_b64 exec, s[20:21]")
    diag = cfg.get("diag")
    hd = cfg.get("hdiag")
    def mark(word, vt=247, only=None):
        if not hd: return
        sk = k.uid("HD")
        k(f"s_cmp_lg_u32 s{sWAVE}, 0\ns_cbranch_scc1 {sk}")
        if only: k(f"s_cmp_lg_u32 s{only[0]}, {only[1]}\ns_cbranch_scc1 {sk}")
        k("s_memrealtime s[80:81]\ns_waitcnt lgkmcnt(0)")
        k(f"v_mov_b32 v{vt+1}, 0\nv_mov_b32 v{vt}, s80\ns_mov_b64 exec, 1\nglobal_store_dword v{vt+1}, v{vt}, s[4:5] offset:{4*word} sc1\ns_mov_b64 exec, -1")
        k.label(sk)
    cfg["mark"] = mark
    prep2.DIAG = bool(diag)
    if diag:
        for i in range(12): k(f"s_mov_b32 s{60+2*i}, 0")
    if diag: k("s_memrealtime s[96:97]\ns_mov_b32 s98, 0\ns_mov_b32 s44, 0")
    if hd: k("s_mov_b32 s98, 0")
    srd(k, sWS, KARG["ws"], WS_BYTES)
    k(f"s_load_dwordx2 s[4:5], s[0:1], {KARG['dbg']}")
    k("s_getreg_b32 s3, hwreg(HW_REG_XCC_ID)\ns_and_b32 s3, s3, 15")
    k(f"s_mov_b32 s{sSPIN}, {SPIN}")
    k(f"v_lshrrev_b32 v3, 6, v0\ns_nop 0\nv_readfirstlane_b32 s{sWAVE}, v3")
    k("s_waitcnt lgkmcnt(0)")
    if hd:
        mark(1, only=(2, 0))
    k("s_and_b32 s3, s3, 7")
    k(f"s_lshl_b32 s{sT0}, s3, 5")
    k(f"v_mov_b32 v1, 0\nv_mov_b32 v2, 1\nv_mov_b32 v4, s{sT0}")
    k("v_cmp_eq_u32 vcc, 0, v0\ns_and_saveexec_b64 s[20:21], vcc\ns_cbranch_execz M_reg_done")
    k("global_atomic_add v2, v4, v2, s[4:5] sc0 sc1\ns_waitcnt vmcnt(0)")
    k("ds_write_b32 v1, v2\ns_waitcnt lgkmcnt(0)")
    k.label("M_reg_done")
    k("s_mov_b64 exec, s[20:21]\ns_barrier\nds_read_b32 v3, v1\ns_waitcnt lgkmcnt(0)\ns_nop 0")
    k(f"v_readfirstlane_b32 s{sRANK}, v3")
    k("s_barrier")
    if diag: k("s_memrealtime s[84:85]")
    def load_counts(k, vt):
        k(f"v_mbcnt_lo_u32_b32 v{vt}, -1, 0\nv_mbcnt_hi_u32_b32 v{vt}, -1, v{vt}\nv_and_b32 v{vt}, 7, v{vt}\nv_lshlrev_b32 v{vt}, 5, v{vt}")
        k(f"global_load_dword v{vt+1}, v{vt}, s[4:5] sc1\ns_waitcnt vmcnt(0)")
        k(f"v_readlane_b32 s{sT1}, v{vt+1}, 0")
        for x in range(1, 8):
            k(f"v_readlane_b32 s{sT0}, v{vt+1}, {x}\ns_add_u32 s{sT1}, s{sT1}, s{sT0}")
    def wait_all(k, vt):
        top = k.uid("M_wa"); done = k.uid("M_wad")
        k.label(top)
        load_counts(k, vt)
        k(f"s_cmp_ge_u32 s{sT1}, 256\ns_cbranch_scc1 {done}")
        k(f"s_sleep 4\ns_sub_u32 s{sSPIN}, s{sSPIN}, 1\ns_cbranch_scc0 {top}\ns_branch M_abort")
        k.label(done)
    def delay(k, seg):
        if seg is None: return
        sk = k.uid("M_dl")
        k(f"s_cmp_lg_u32 s{sWAVE}, 0\ns_cbranch_scc1 {sk}")
        k(f"s_mov_b32 s{sT0}, {FLAGV2}\nv_mov_b32 v8, 0")
        workers.wait_counter(k, sT0, seg + 1, 9, 8, "M_abort", sleep=16)
        k.label(sk)
        k("s_barrier")
    def mode_hook(k, vt):
        top = k.uid("M_md"); done = k.uid("M_mdd")
        k.label(top)
        load_counts(k, vt)
        k(f"v_readlane_b32 s{sT0}, v{vt+1}, 0\ns_mov_b32 s{sMODE}, 0\ns_cmp_ge_u32 s{sT0}, {32 if cfg.get('force_slow') is None else 999}\ns_cbranch_scc1 {done}")
        k(f"s_mov_b32 s{sMODE}, 1\ns_cmp_ge_u32 s{sT1}, 256\ns_cbranch_scc1 {done}")
        k(f"s_sleep 4\ns_sub_u32 s{sSPIN}, s{sSPIN}, 1\ns_cbranch_scc0 {top}\ns_branch M_abort")
        k.label(done)
    k(f"s_cmp_lt_u32 s{sRANK}, 32\ns_cbranch_scc0 M_overflow")
    k(f"s_lshl_b32 s{sT0}, s3, 5\ns_add_u32 s{sRANK}, s{sRANK}, s{sT0}")
    k.label("M_dispatch")
    k(f"s_cmp_ge_u32 s{sRANK}, 32\ns_cbranch_scc1 M_worker")
    k(f"s_lshl_b32 s56, s{sRANK}, 1")
    prep2.emit_ln_segment(k, 56, pre="load")
    prep2.emit_init(k, sRANK)
    prep2.emit_ln_segment(k, 56, pre="have", X0=112, last=False)
    k("s_add_u32 s56, s56, 1")
    prep2.emit_ln_segment(k, 56, pre="have", X0=144, need_init="M_abort", nsig=2)
    prep2.wait_init_wg(k, 16, "M_abort")
    k(f"s_cmp_lt_u32 s{sRANK}, 30\ns_cbranch_scc1 M_chain")
    k("s_branch M_helper")
    k.label("M_worker")
    k(f"s_sub_u32 s{sRANK}, s{sRANK}, 32")
    prep2.emit_gemm_task(k, sRANK, "M_phase0_done", "M_abort")
    k.label("M_phase0_done")
    mark(2, only=(sRANK, 0)); mark(10, only=(sRANK, 7)); mark(12, only=(sRANK, 101))
    prep2.dump_stamps(k)
    if diag: k("s_memrealtime s[86:87]")
    k(f"s_cmp_lt_u32 s{sRANK}, {t1}\ns_cbranch_scc1 M_vx")
    k(f"s_cmp_lt_u32 s{sRANK}, {t2}\ns_cbranch_scc1 M_xa")
    k(f"s_cmp_lt_u32 s{sRANK}, {t3}\ns_cbranch_scc1 M_pv")
    k(f"s_cmp_lt_u32 s{sRANK}, {t4}\ns_cbranch_scc1 M_ff")
    k(f"s_cmp_lt_u32 s{sRANK}, {t5}\ns_cbranch_scc1 M_vm")
    k("s_branch M_exit")
    k.label("M_overflow")
    wait_all(k, 8)
    k(f"s_sub_u32 s20, s{sRANK}, 32")
    for x in range(7):
        k(f"v_readlane_b32 s{sT0}, v9, {x}\ns_max_u32 s{sT0}, s{sT0}, 32\ns_sub_u32 s{sT0}, s{sT0}, 32")
        k(f"s_cmp_gt_u32 s3, {x}\ns_cselect_b32 s{sT0}, s{sT0}, 0\ns_add_u32 s20, s20, s{sT0}")
    for x in range(8):
        nx = k.uid("M_es")
        k(f"v_readlane_b32 s{sT0}, v9, {x}\ns_min_u32 s{sT0}, s{sT0}, 32\ns_sub_u32 s21, 32, s{sT0}")
        k(f"s_cmp_lt_u32 s20, s21\ns_cbranch_scc0 {nx}")
        k(f"s_add_u32 s{sRANK}, s20, s{sT0}\ns_add_u32 s{sRANK}, s{sRANK}, {32*x}\ns_branch M_dispatch")
        k.label(nx)
        k("s_sub_u32 s20, s20, s21")
    k("s_branch M_exit")
    k.label("M_chain")
    ccfg = dict(nsteps=63, modes=["", "sc1"], mode_hook=mode_hook, vxwait=True, pflag_pos=2, mflag_pos=1, fused=True, stagger=False, pace=3, pace2=10, pf=False, vxearly=0, exporter=True)
    if diag: ccfg.update(dict(tot=True, trace=True))
    if cfg.get("rawfull"): ccfg.update(dict(raw=True, tot=False, nsteps=63))
    if hd: ccfg["mark"] = mark
    ccfg.update(cfg.get("chain", {}))
    for kk_ in ("pf", "pf_dist", "vxearly", "pflag_pos", "mflag_pos", "b_sleep", "pace", "pace2", "rot", "stagger", "cnt_retry", "pf64", "exporter", "ex_sleep"):
        if kk_ in cfg: ccfg[kk_] = cfg[kk_]
    k(f"s_cmp_ge_u32 s{sRANK}, 16\ns_cbranch_scc1 M_chainB")
    chain.emit_chain_A(k, ccfg, "M_abort")
    k.label("M_chainB")
    if diag: k("s_mov_b32 s98, 1")
    chain.emit_chain_B(k, ccfg, "M_abort")
    wcfg = dict(vx_par=VXP, xa_par=XAP, pv_par=PVP, vm_par=VMP, s0=cfg.get('s0', 32), fused=True, ln_in_ffn=False, xadiag=cfg.get('xadiag'), vm_split=cfg.get('vm_split', 48), xa_sleep=cfg.get('xa_sleep', 1), vm_sleep=cfg.get('vm_sleep', 1), xa_imm=cfg.get('xa_imm', 30), out_st=cfg.get('out_st', ''))
    k.label("M_helper")
    if diag: k("s_mov_b32 s98, 6")
    chain.emit_helper(k, ccfg, "M_abort")
    k.label("M_vx")
    if diag: k("s_mov_b32 s98, 2")
    workers.emit_vxgen(k, wcfg, "M_abort")
    k.label("M_vm")
    if diag: k("s_mov_b32 s98, 7")
    k(f"s_sub_u32 s{sRANK}, s{sRANK}, {t4}")
    delay(k, cfg.get("vm_delay", 6))
    workers.emit_vxgen(k, wcfg, "M_abort", "vm")
    k.label("M_xa")
    if diag: k("s_mov_b32 s98, 3")
    k(f"s_sub_u32 s{sRANK}, s{sRANK}, {t1}")
    delay(k, cfg.get("xa_delay", 6))
    workers.emit_xattn(k, wcfg, "M_abort")
    k.label("M_pv")
    if diag or hd: k("s_mov_b32 s98, 4")
    k(f"s_sub_u32 s{sRANK}, s{sRANK}, {t2}")
    workers.emit_pvout(k, wcfg, "M_abort")
    k.label("M_ff")
    if diag: k("s_mov_b32 s98, 5")
    k(f"s_sub_u32 s{sRANK}, s{sRANK}, {t3}")
    delay(k, cfg.get("ff_delay", 2))
    workers.emit_ffn(k, wcfg, "M_abort")
    for t in ccfg.get("outofline", []) + wcfg.get("outofline", []): k(t)
    if hd:
        txt = "\n".join(k.lines)
        head, body = txt.split("M_chain:", 1)
        body = body.replace("s_endpgm", "s_branch M_hdexit")
        k.lines = (head + "M_chain:" + body).split("\n")
        k.label("M_hdexit")
        k("s_waitcnt vmcnt(0)")
        k("s_cmp_lg_u32 s98, 4\ns_cbranch_scc1 M_hdx"); mark(9, only=(sRANK, 7 * (63 % cfg.get("pv_par", 4)))); k.label("M_hdx")
        k("s_waitcnt vmcnt(0)\ns_endpgm")
    if diag:
        txt = "\n".join(k.lines)
        head, body = txt.split("M_chain:", 1)
        body = body.replace("s_endpgm", "s_branch M_diag")
        k.lines = (head + "M_chain:" + body).split("\n")
        k.label("M_diag")
        k(f"s_cmp_lg_u32 s{sWAVE}, 0\ns_cbranch_scc1 M_exit")
        k("s_memrealtime s[94:95]\ns_waitcnt lgkmcnt(0)")
        k(f"s_lshl_b32 s{sT0}, s2, 5\ns_add_u32 s{sT0}, s{sT0}, {PROF+16384}")
        k("v_mov_b32 v1, 0")
        for i, r in enumerate(("s86", f"s{sRANK}", "s96", "s94", "s44", "s88", "s98", "s84")):
            k(f"v_mov_b32 v2, {r}\nbuffer_store_dword v2, v1, s[{sWS}:{sWS+3}], s{sT0} offen offset:{4*i}")
        k("s_waitcnt vmcnt(0)\ns_endpgm")
    k.label("M_abort")
    k("v_mov_b32 v1, 0\nv_mov_b32 v2, 1\nglobal_atomic_add v1, v2, s[4:5] offset:20 sc1\ns_waitcnt vmcnt(0)")
    k.label("M_exit")
    k("s_endpgm")
    k.label("M_code_end")
    k(".fill 1100, 4, 0xbf800000")

def build(cfg):
    k = K()
    k(HEADER.rstrip())
    k("; @launch grid=(256,1,1) block=(256,1,1) lds=151552")
    k('.amdgcn_target "amdgcn-amd-amdhsa--gfx950"\n.text')
    emit_main(k, cfg, NAME + "_kernel")
    k('.section .rodata,"a"')
    k(kd(NAME + "_kernel", 512, 256, 102))
    return k.text()

if __name__ == "__main__":
    import kfw
    cfg = {}
    if "diag" in sys.argv: cfg["diag"] = True; sys.argv.remove("diag")
    for a in list(sys.argv[1:]):
        if "=" in a:
            kk_, vv = a.split("="); cfg[kk_] = eval(vv); sys.argv.remove(a)
    t = build(cfg)
    out = sys.argv[1] if len(sys.argv) > 1 else "cdna_kernels/" + NAME + ".s"
    open(out, "w").write(t)
    print("bytes", len(t), "lines", t.count("\n"), "hazards", len(kfw.check(t)))
```

```python
from kfw import *
from layout import *

class Q:
    def __init__(self, k):
        self.k = k; self.lg = []; self.vm = []
    def ds(self, txt, tag=None):
        self.k(txt); self.lg.append(tag)
    def vmem(self, txt, tag=None):
        self.k(txt); self.vm.append(tag)
    def _n(self, lst, tag):
        idx = max(i for i, t in enumerate(lst) if t == tag)
        return len(lst) - 1 - idx
    def wait_lg(self, tag):
        n = min(self._n(self.lg, tag), 15)
        self.k(f"s_waitcnt lgkmcnt({n})")
    def wait_vm(self, tag):
        n = min(self._n(self.vm, tag), 63)
        self.k(f"s_waitcnt vmcnt({n})")
    def lg0(self):
        self.k("s_waitcnt lgkmcnt(0)"); self.lg = []
    def reset(self):
        self.lg = []; self.vm = []

sWS   = 8
sRANK = 12
sWAVE = 13
sSTEP = 14
sMS   = 15
sPS   = 16
sT0   = 17
sT1   = 18
sSPIN = 19
sMaskA = 20
sMaskB = 22
sXK   = 24
sMS1  = 25
sRST  = 26
sOUT  = 27
sFLG  = 50
sMODE = 51
sVXC  = 92
sTA   = 28
sTB   = 30
sPROF = 32
SPIN  = 200000

class Prof:
    def __init__(self, k, on, rawon=False): self.k, self.on, self.n, self.rawon = k, on, 0, rawon
    def start(self):
        if not self.on: return
        k = self.k
        for i in range(12): k(f"s_mov_b32 s{sPROF+i}, 0")
        k(f"s_memtime s[{sTA}:{sTA+1}]\ns_waitcnt lgkmcnt(0)")
    def stamp(self, i):
        if not self.on: return
        k = self.k
        k(f"s_memtime s[{sTB}:{sTB+1}]\ns_waitcnt lgkmcnt(0)")
        k(f"s_sub_u32 s{sT0}, s{sTB}, s{sTA}\ns_add_u32 s{sPROF+i}, s{sPROF+i}, s{sT0}\ns_mov_b32 s{sTA}, s{sTB}")
    def raw(self, i):
        if self.rawon: self.k(f"{'s_memrealtime' if self.rawon == 'rt' else 's_memtime'} s[{52+2*i}:{53+2*i}]")
    def raw_dump(self, tmpv, offv):
        if not self.rawon: return
        k = self.k
        k("s_waitcnt lgkmcnt(0)")
        k(f"s_lshl_b32 s{sT0}, s{sRANK}, 2\ns_add_u32 s{sT0}, s{sT0}, s{sWAVE}\ns_lshl_b32 s{sT0}, s{sT0}, 6\ns_add_u32 s{sT0}, s{sT0}, {PROF}")
        k(f"v_mov_b32 v{offv}, 0")
        for i in range(16):
            k(f"v_mov_b32 v{tmpv}, s{52+2*i}")
            k(f"buffer_store_dword v{tmpv}, v{offv}, s[{sWS}:{sWS+3}], s{sT0} offen offset:{4*i}")
        k("s_waitcnt vmcnt(0)")
    def tot_start(self, on):
        if on: self.k(f"s_mov_b32 s{sPROF+11}, 0\ns_memtime s[{sTA}:{sTA+1}]\ns_memrealtime s[44:45]\ns_waitcnt lgkmcnt(0)")
    def tot_dump(self, on, tmpv, offv):
        if not on: return
        k = self.k
        k(f"s_memtime s[{sTB}:{sTB+1}]\ns_memrealtime s[46:47]\ns_waitcnt lgkmcnt(0)")
        k(f"s_sub_u32 s{sPROF}, s{sTB}, s{sTA}\ns_sub_u32 s{sPROF+1}, s46, s44\ns_sub_u32 s{sPROF+2}, s44, s96")
        k(f"s_lshl_b32 s{sT0}, s{sRANK}, 2\ns_add_u32 s{sT0}, s{sT0}, s{sWAVE}\ns_lshl_b32 s{sT0}, s{sT0}, 6\ns_add_u32 s{sT0}, s{sT0}, {PROF}")
        k(f"v_mov_b32 v{offv}, 0")
        k(f"s_mov_b32 s{sPROF+3}, s{sPROF+11}")
        for i in range(4):
            k(f"v_mov_b32 v{tmpv}, s{sPROF+i}")
            k(f"buffer_store_dword v{tmpv}, v{offv}, s[{sWS}:{sWS+3}], s{sT0} offen offset:{4*i}")
        k("s_waitcnt vmcnt(0)")
    def dump(self, tmpv, offv):
        if not self.on: return
        k = self.k
        k(f"s_lshl_b32 s{sT0}, s{sRANK}, 2\ns_add_u32 s{sT0}, s{sT0}, s{sWAVE}\ns_lshl_b32 s{sT0}, s{sT0}, 6\ns_add_u32 s{sT0}, s{sT0}, {PROF}")
        k(f"v_mov_b32 v{offv}, 0")
        for i in range(12):
            k(f"v_mov_b32 v{tmpv}, s{sPROF+i}")
            k(f"buffer_store_dword v{tmpv}, v{offv}, s[{sWS}:{sWS+3}], s{sT0} offen offset:{4*i}")
        k("s_waitcnt vmcnt(0)")


SP_L = 0
SP_STRIDE = 3200
TR_L = 12800
MKP_L = 27136
SH_L = 39424
MEM_L = 0
OP_L = 7168
WL = 12288

def retry_block(cfg, label, body, abort, target):
    cfg.setdefault("outofline", []).append(
        f"{label}:\ns_sub_u32 s{sSPIN}, s{sSPIN}, 1\ns_cbranch_scc1 {abort}\n{body}s_branch {target}")

def emit_flag_poll(k, cfg, vAddr, vD0, sExp, off, abort):
    WSR = f"s[{sWS}:{sWS+3}]"
    top = k.uid("FP"); done = k.uid("FPD")
    k(f"s_mov_b32 s{sT0}, {off}" if isinstance(off, int) else f"s_mov_b32 s{sT0}, {off}")
    k(f"buffer_load_dword v{vD0}, v{vAddr}, {WSR}, s{sT0} offen sc1")
    k.label(top)
    k(f"buffer_load_dword v{vD0+1}, v{vAddr}, {WSR}, s{sT0} offen sc1")
    k("s_waitcnt vmcnt(1)")
    k(f"v_cmp_gt_u32 vcc, s{sExp}, v{vD0}")
    k(f"s_cbranch_vccz {done}")
    k(f"buffer_load_dword v{vD0}, v{vAddr}, {WSR}, s{sT0} offen sc1")
    k("s_waitcnt vmcnt(1)")
    k(f"v_cmp_gt_u32 vcc, s{sExp}, v{vD0+1}")
    k(f"s_cbranch_vccz {done}")
    k(f"s_sub_u32 s{sSPIN}, s{sSPIN}, 1\ns_cbranch_scc0 {top}\ns_branch {abort}")
    k.label(done)

def blockregA(b):
    return Reg("a", 8 * b) if b < 28 else Reg("v", 88 + 8 * (b - 28))

def emit_ring_advance(k):
    k(f"s_add_u32 s{sSTEP}, s{sSTEP}, 1")
    k(f"s_and_b32 s{sT0}, s{sSTEP}, 3")
    k(f"s_mul_i32 s{sMS}, s{sT0}, 7168\ns_add_u32 s{sMS}, s{sMS}, {MEMRING}")
    k(f"s_mul_i32 s{sPS}, s{sT0}, 10240\ns_add_u32 s{sPS}, s{sPS}, {PRING}")

def emit_chain_A(k, cfg, abort):
    prof = Prof(k, cfg.get("prof"), cfg.get("raw"))
    q = Q(k)
    WSR = f"s[{sWS}:{sWS+3}]"
    modes = cfg.get("modes", [cfg.get("st", "")])
    ST = modes[0]
    vL16, vL8, vTRw, vTRr, vMKg, vSR, vTRw2, vPst, vIdx, vX, vT, vDet, vSWx, vSWm, vTRr2 = range(1, 16)
    vLane = 0
    TMP, ACC, TR, MEM = 16, 20, 48, 60
    SACC = ACC
    XK = 224
    def TRr(tile): return (A(252, 2) if tile == 6 else V(TR + 2 * tile, 2))
    if cfg.get("tot"): k("s_memrealtime s[86:87]")
    k("v_and_b32 v0, 63, v0")
    k(f"v_lshlrev_b32 v{vL16}, 4, v{vLane}")
    k(f"v_lshlrev_b32 v{vL8}, 3, v{vLane}")
    k(f"v_and_b32 v{vX}, 15, v{vLane}")
    k(f"v_lshrrev_b32 v{vT}, 4, v{vLane}")
    k(f"v_min_u32 v{vDet}, 13, v{vX}\nv_lshlrev_b32 v{vDet}, 2, v{vDet}")
    k(f"s_mul_i32 s{sT1}, s{sWAVE}, 3584\ns_add_u32 s{sT1}, s{sT1}, {TR_L}\ns_add_u32 s{sT0}, s{sT1}, {3072 if cfg.get('pairs', False) else 0}")
    k(f"v_lshrrev_b32 v{vTRw2}, 3, v{vX}\nv_lshlrev_b32 v{vTRw2}, 9, v{vTRw2}\nv_lshl_add_u32 v{vTRw2}, v{vT}, 7, v{vTRw2}")
    k(f"v_and_b32 v{TMP}, 7, v{vX}\nv_lshl_add_u32 v{vTRw2}, v{TMP}, 4, v{vTRw2}\nv_add_u32 v{vTRw2}, s{sT1}, v{vTRw2}")
    k(f"v_lshrrev_b32 v{vTRr2}, 1, v{vT}\nv_lshlrev_b32 v{vTRr2}, 9, v{vTRr2}")
    k(f"v_and_b32 v{TMP}, 3, v{vLane}\nv_lshl_add_u32 v{vTRr2}, v{TMP}, 7, v{vTRr2}")
    k(f"v_and_b32 v{TMP}, 1, v{vT}\nv_lshl_add_u32 v{vTRr2}, v{TMP}, 6, v{vTRr2}")
    k(f"v_bfe_u32 v{TMP}, v{vLane}, 2, 2\nv_lshl_add_u32 v{vTRr2}, v{TMP}, 4, v{vTRr2}\nv_add_u32 v{vTRr2}, s{sT1}, v{vTRr2}")
    k(f"v_lshrrev_b32 v{vTRw}, 3, v{vX}\nv_lshlrev_b32 v{vTRw}, 8, v{vTRw}")
    k(f"v_lshl_add_u32 v{vTRw}, v{vT}, 6, v{vTRw}")
    k(f"v_and_b32 v{TMP}, 7, v{vX}\nv_lshl_add_u32 v{vTRw}, v{TMP}, 3, v{vTRw}")
    k(f"v_add_u32 v{vTRw}, s{sT0}, v{vTRw}")
    k(f"v_lshrrev_b32 v{vTRr}, 1, v{vT}\nv_lshlrev_b32 v{vTRr}, 8, v{vTRr}")
    k(f"v_and_b32 v{TMP}, 3, v{vLane}\nv_lshl_add_u32 v{vTRr}, v{TMP}, 6, v{vTRr}")
    k(f"v_and_b32 v{TMP}, 1, v{vT}\nv_lshl_add_u32 v{vTRr}, v{TMP}, 5, v{vTRr}")
    k(f"v_bfe_u32 v{TMP}, v{vLane}, 2, 2\nv_lshl_add_u32 v{vTRr}, v{TMP}, 3, v{vTRr}")
    k(f"v_add_u32 v{vTRr}, s{sT0}, v{vTRr}")
    k(f"v_lshrrev_b32 v{vMKg}, 1, v{vT}\nv_lshlrev_b32 v{vMKg}, 7, v{vMKg}")
    k(f"v_and_b32 v{TMP}, 7, v{vLane}\nv_lshl_add_u32 v{vMKg}, v{TMP}, 4, v{vMKg}")
    k(f"v_and_b32 v{TMP+1}, 1, v{vT}\nv_lshl_add_u32 v{vMKg}, v{TMP+1}, 3, v{vMKg}")
    k(f"s_mul_i32 s{sT1}, s{sWAVE}, {SP_STRIDE}\ns_add_u32 s{sT1}, s{sT1}, {SP_L}")
    k(f"v_add_u32 v{TMP}, v{vX}, v{vT}\nv_and_b32 v{TMP+1}, 15, v{TMP}\nv_lshlrev_b32 v{vSWx}, 4, v{TMP+1}")
    k(f"v_lshl_add_u32 v{vSWx}, v{vT}, 8, v{vSWx}\nv_add_u32 v{vSWx}, s{sT1}, v{vSWx}")
    k(f"v_add_u32 v{TMP}, 4, v{TMP}\nv_and_b32 v{TMP+1}, 15, v{TMP}\nv_lshlrev_b32 v{vSWm}, 4, v{TMP+1}")
    k(f"v_lshl_add_u32 v{vSWm}, v{vT}, 8, v{vSWm}\nv_add_u32 v{vSWm}, s{sT1}, v{vSWm}\nv_add_u32 v{vSWm}, 1024, v{vSWm}")
    k(f"s_lshl_b32 s{sT1}, s{sWAVE}, 2")
    k(f"v_add_u32 v{TMP}, s{sT1}, v{vT}")
    k(f"v_add_u32 v{TMP+1}, 2, v{vX}\nv_and_b32 v{TMP+1}, 3, v{TMP+1}")
    k(f"v_cmp_gt_u32 vcc, 2, v{vX}\ns_nop 1\nv_cndmask_b32 v{TMP+1}, v{TMP+1}, v{vX}, vcc")
    k(f"v_add_u32 v{TMP+2}, v{TMP}, v{TMP+1}")
    k(f"v_add_u32 v{TMP+3}, 4, v{TMP+2}\nv_cndmask_b32 v{TMP+2}, v{TMP+2}, v{TMP+3}, vcc")
    k(f"v_lshlrev_b32 v{vSR}, 8, v{TMP+1}\nv_add_u32 v{TMP+3}, 1024, v{vSR}\nv_cndmask_b32 v{vSR}, v{vSR}, v{TMP+3}, vcc")
    k(f"v_cmp_le_u32 vcc, 6, v{vX}\nv_add_u32 v{TMP+3}, 8, v{TMP+2}\ns_nop 0\nv_cndmask_b32 v{TMP+2}, v{TMP+2}, v{TMP+3}, vcc")
    k(f"v_and_b32 v{TMP+2}, 15, v{TMP+2}\nv_lshl_add_u32 v{vSR}, v{TMP+2}, 4, v{vSR}\nv_add_u32 v{vSR}, {SP_L}, v{vSR}")
    k(f"v_cmp_gt_u32 vcc, 10, v{vX}\nv_mov_b32 v{TMP+3}, {SP_L+3072}\ns_nop 0\nv_cndmask_b32 v{vSR}, v{TMP+3}, v{vSR}, vcc")
    k(f"v_cmp_gt_u32 s[{sMaskA}:{sMaskA+1}], 10, v{vX}")
    k(f"v_cmp_gt_u32 s[{sMaskB}:{sMaskB+1}], 40, v{vLane}")
    k(f"v_mov_b32 v{vIdx}, 0x44444444\nv_mov_b32 v{TMP+2}, 0xeeeeeeee")
    k(f"v_and_b32 v{TMP+1}, 8, v{vLane}\nv_cmp_ne_u32 vcc, 0, v{TMP+1}\ns_nop 1\nv_cndmask_b32 v{vIdx}, v{vIdx}, v{TMP+2}, vcc")
    k(f"s_lshr_b32 s{sT0}, s{sRANK}, 2\ns_mul_i32 s{sT0}, s{sT0}, 2560")
    k(f"s_bfe_u32 s{sT1}, s{sRANK}, 0x10001\ns_lshl_b32 s{sMS}, s{sT1}, 10\ns_lshl_b32 s{sPS}, s{sT1}, 8")
    k(f"s_and_b32 s{sT1}, s{sRANK}, 1\ns_lshl_b32 s{sMS1}, s{sT1}, 9\ns_add_u32 s{sMS}, s{sMS}, s{sMS1}")
    k(f"s_lshl_b32 s{sMS1}, s{sT1}, 7\ns_add_u32 s{sPS}, s{sPS}, s{sMS1}\ns_add_u32 s{sPS}, s{sPS}, 2048")
    k(f"s_add_u32 s{sMS}, s{sMS}, s{sT0}\ns_add_u32 s{sPS}, s{sPS}, s{sT0}")
    k(f"v_subrev_u32 v{TMP+1}, 2, v{vX}\nv_lshrrev_b32 v{TMP+1}, 1, v{TMP+1}")
    k(f"v_lshrrev_b32 v{TMP+2}, 1, v{TMP+1}\nv_lshlrev_b32 v{TMP+2}, 8, v{TMP+2}")
    k(f"v_and_b32 v{TMP+1}, 1, v{TMP+1}\nv_lshl_add_u32 v{TMP+2}, v{TMP+1}, 7, v{TMP+2}\nv_add_u32 v{TMP+2}, s{sMS}, v{TMP+2}")
    k(f"v_mov_b32 v{TMP+1}, s{sPS}\nv_cmp_gt_u32 vcc, 2, v{vX}\ns_nop 1\nv_cndmask_b32 v{TMP+2}, v{TMP+2}, v{TMP+1}, vcc")
    k(f"v_lshl_add_u32 v{vPst}, v{TMP}, 4, v{TMP+2}")
    k(f"v_and_b32 v{TMP+1}, 1, v{vX}\nv_lshl_add_u32 v{vPst}, v{TMP+1}, 3, v{vPst}")
    k(f"v_add_u32 v{TMP+1}, s{sMS}, v{vL16}\nv_add_u32 v{TMP+2}, s{sPS}, v{vL16}\nv_subrev_u32 v{TMP+2}, 512, v{TMP+2}")
    k(f"v_cmp_gt_u32 vcc, 32, v{vLane}\ns_nop 1\nv_cndmask_b32 v0, v{TMP+2}, v{TMP+1}, vcc")
    k(f"s_lshr_b32 s{sT0}, s{sRANK}, 2\ns_lshl_b32 s{sT0}, s{sT0}, 7\ns_and_b32 s{sT1}, s{sRANK}, 3\ns_lshl_b32 s{sT1}, s{sT1}, 2")
    k(f"s_add_u32 s{sFLG}, s{sT0}, s{sT1}\ns_add_u32 s{sFLG}, s{sFLG}, {FLAGP}")
    k(f"s_mul_i32 s{sT0}, s{sRANK}, 401408\ns_mul_i32 s{sT1}, s{sWAVE}, 100352\ns_add_u32 s{sT0}, s{sT0}, s{sT1}")
    if WA_OFF: k(f"s_add_u32 s{sT0}, s{sT0}, {WA_OFF}")
    FUSED = cfg.get("fused")
    LDF = "sc1" if FUSED else ""
    def wload(i):
        b, a = i >> 1, i & 1
        R = blockregA(b)
        off = i * 1024
        if off and off % 4096 == 0: k(f"s_add_u32 s{sT0}, s{sT0}, 4096")
        k(f"buffer_load_dwordx4 {R.r(4*a,4)}, v{vL16}, {WSR}, s{sT0} offen offset:{off%4096} {LDF}")
    if not FUSED:
        for i in range(98): wload(i)
    else:
        k(f"s_lshl_b32 s{sMS}, s{sRANK}, 2\ns_add_u32 s{sMS}, s{sMS}, s{sWAVE}\ns_lshl_b32 s{sMS}, s{sMS}, 7\ns_add_u32 s{sMS}, s{sMS}, {C_WA}")
        k(f"v_min_u32 v{TMP}, 6, v{vLane}\nv_lshlrev_b32 v{TMP}, 2, v{TMP}")
        def poll_tiles(mask_lo, inflight):
            top = k.uid("A_wp"); ok_ = k.uid("A_wpo")
            k(f"buffer_load_dword v{TMP+1}, v{TMP}, {WSR}, s{sMS} offen sc1")
            for f in inflight: f()
            k(f"s_waitcnt vmcnt({len(inflight)})")
            k.label(top)
            k(f"v_cmp_gt_u32 vcc, 7, v{TMP+1}\ns_and_b32 vcc_lo, vcc_lo, {(1 << mask_lo) - 1}\ns_mov_b32 vcc_hi, 0\ns_cbranch_vccz {ok_}")
            k(f"s_sleep 1\nbuffer_load_dword v{TMP+1}, v{TMP}, {WSR}, s{sMS} offen sc1\ns_waitcnt vmcnt(0)")
            k(f"s_sub_u32 s{sSPIN}, s{sSPIN}, 1\ns_cbranch_scc0 {top}\ns_branch {abort}")
            k.label(ok_)
        def pst(n):
            if cfg.get("tot"): k(f"s_memrealtime s[{60+2*n}:{61+2*n}]")
        poll_tiles(2, [])
        pst(0)
        for i in range(20): wload(i)
        poll_tiles(4, [lambda i=i: wload(i) for i in range(20, 28)])
        pst(1)
        for i in range(28, 48): wload(i)
        poll_tiles(7, [lambda i=i: wload(i) for i in range(48, 56)])
        pst(2)
        for i in range(56, 98): wload(i)
        pst(3)
        k(f"s_mov_b32 s{sMS}, {C_LN}\nv_mov_b32 v{TMP}, 0")
        top = k.uid("A_ln"); ok_ = k.uid("A_lno")
        k.label(top)
        k(f"buffer_load_dword v{TMP+1}, v{TMP}, {WSR}, s{sMS} offen sc1\ns_waitcnt vmcnt(0)")
        k(f"v_cmp_gt_u32 vcc, 64, v{TMP+1}\ns_cbranch_vccz {ok_}")
        k(f"s_sleep 1\ns_sub_u32 s{sSPIN}, s{sSPIN}, 1\ns_cbranch_scc0 {top}\ns_branch {abort}")
        k.label(ok_)
        if cfg.get("tot"):
            k(f"s_memrealtime s[68:69]\ns_waitcnt lgkmcnt(0)\ns_lshl_b32 s{sMS}, s{sRANK}, 2\ns_add_u32 s{sMS}, s{sMS}, s{sWAVE}\ns_lshl_b32 s{sMS}, s{sMS}, 5\ns_add_u32 s{sMS}, s{sMS}, {PROF+61440}\nv_mov_b32 v{TMP}, 0")
            for n in range(5): k(f"v_mov_b32 v{TMP+1}, s{60+2*n}\nbuffer_store_dword v{TMP+1}, v{TMP}, {WSR}, s{sMS} offen offset:{4*n}")
    def xk_prefetch():
        for kap in range(2):
            for p in range(3):
                off = kap * 3584 + p * 1024
                so = sXK if off < 4096 else sT1
                if off >= 4096 and p == 1: k(f"s_add_u32 s{sT1}, s{sXK}, 4096")
                k(f"buffer_load_dwordx4 {A(XK+kap*14+4*p,4)}, v{vL16}, {WSR}, s{so} offen offset:{off%4096} {LDF}")
            off = kap * 3584 + 3072
            so = sXK if off < 4096 else sT1
            k(f"buffer_load_dwordx2 {A(XK+kap*14+12,2)}, v{vL8}, {WSR}, s{so} offen offset:{off%4096} {LDF}")
    k(f"s_mul_i32 s{sXK}, s{sWAVE}, 7168\ns_add_u32 s{sXK}, s{sXK}, {XK_OFF}")
    xk_prefetch()
    def zero_acc():
        for i in range(0, 28, 2): k(f"v_mov_b64 {V(ACC+i,2)}, 0")
    zero_acc()
    for i in range(4): k(f"v_mov_b32 v{TR+i}, 0xff800000")
    k(f"s_mul_i32 s{sT1}, s{sWAVE}, {SP_STRIDE}\ns_add_u32 s{sT1}, s{sT1}, {SP_L+3072}\nv_mov_b32 v{TMP}, s{sT1}")
    k(f"ds_write_b128 v{TMP}, {V(TR,4)}")
    k("s_waitcnt vmcnt(0) lgkmcnt(0)")
    if cfg.get("tot"): k("s_memrealtime s[88:89]\ns_waitcnt lgkmcnt(0)")
    if cfg.get("mark"): cfg["mark"](cfg.get("_mw", 3), 16 if cfg.get("_mw", 3) == 3 else 12, only=(sRANK, 0))
    k(f"s_mov_b32 s{sSTEP}, 0\ns_mov_b32 s{sMS}, {MEMRING}\ns_mov_b32 s{sPS}, {PRING}")
    def softmax(q, W, ST):
        X = TR
        dst = [TR, MEM, MEM+4, MEM+8]
        for u in range(4):
            q.ds(f"ds_read_b128 {V(dst[u],4)}, v{vSR} offset:{u*SP_STRIDE}", f"sp{u}")
        def pflag():
            if W != 0: return
            k(f"s_add_u32 s{sT0}, s{sSTEP}, 1\nv_mov_b32 v{TMP}, s{sT0}\nv_mov_b32 v{TMP+1}, 0")
            k(f"s_mov_b64 exec, 1\nbuffer_store_dword v{TMP}, v{TMP+1}, {WSR}, s{sFLG} offen {ST}\ns_mov_b64 exec, -1")
        fpos = cfg.get("pflag_pos", 2)
        if fpos == 0: pflag()
        def pk(d, a, b):
            k(f"v_pk_add_f32 {V(d,2)}, {V(a,2)}, {V(b,2)}\nv_pk_add_f32 {V(d+2,2)}, {V(a+2,2)}, {V(b+2,2)}")
        q.wait_lg("sp1"); pk(dst[0], dst[0], dst[1])
        q.wait_lg("sp3"); pk(dst[2], dst[2], dst[3]); pk(dst[0], dst[0], dst[2])
        q.reset()
        prof.raw(8)
        if fpos == 1: pflag()
        M = vX; L = MEM + 12
        k(f"v_max3_f32 v{M}, v{X}, v{X+1}, v{X+2}")
        k(f"v_max_f32 v{M}, v{M}, v{X+3}")
        for ror in (8, 4, 2, 1):
            k("s_nop 1")
            k(f"v_max_f32_dpp v{M}, v{M}, v{M} row_ror:{ror} row_mask:0xf bank_mask:0xf")
        if fpos == 2: pflag()
        k(f"v_pk_add_f32 {V(X,2)}, {V(X,2)}, {V(M,2)} op_sel_hi:[1,0] neg_lo:[0,1] neg_hi:[0,1]")
        k(f"v_pk_add_f32 {V(X+2,2)}, {V(X+2,2)}, {V(M,2)} op_sel_hi:[1,0] neg_lo:[0,1] neg_hi:[0,1]")
        for i in range(4): k(f"v_exp_f32 v{X+i}, v{X+i}")
        if fpos == 3: pflag()
        k(f"s_nop 0\nv_pk_add_f32 {V(TMP+2,2)}, {V(X,2)}, {V(X+2,2)}")
        k(f"v_add_f32 v{L}, v{TMP+2}, v{TMP+3}")
        for ror in (8, 4, 2, 1):
            k("s_nop 1")
            k(f"v_add_f32_dpp v{L}, v{L}, v{L} row_ror:{ror} row_mask:0xf bank_mask:0xf")
        if fpos == 4: pflag()
        k(f"v_rcp_f32 v{L}, v{L}")
        k("s_nop 0")
        k(f"v_pk_mul_f32 {V(X,2)}, {V(X,2)}, {V(L,2)} op_sel_hi:[1,0]")
        k(f"v_pk_mul_f32 {V(X+2,2)}, {V(X+2,2)}, {V(L,2)} op_sel_hi:[1,0]")
        k(f"v_cvt_pk_bf16_f32 v{X}, v{X}, v{X+1}\nv_cvt_pk_bf16_f32 v{X+1}, v{X+2}, v{X+3}")
        k(f"v_min_u32 v{X}, -2, v{X}\nv_min_u32 v{X+1}, -2, v{X+1}")
        k(f"s_mov_b64 exec, s[{sMaskA}:{sMaskA+1}]")
        k(f"buffer_store_dwordx2 {V(X,2)}, v{vPst}, {WSR}, s{sPS} offen {ST}")
        k("s_mov_b64 exec, -1")
        prof.raw(9)
        if fpos == 5: pflag()
        prof.raw(11)
    def preset(ST):
        X = TR
        k(f"s_add_u32 s{sRST}, s{sSTEP}, 2\ns_and_b32 s{sRST}, s{sRST}, 3\ns_mul_i32 s{sRST}, s{sRST}, 10240\ns_add_u32 s{sRST}, s{sRST}, {PRING}")
        for i in range(4): k(f"v_mov_b32 v{X+i}, -1")
        k(f"s_mov_b64 exec, s[{sMaskB}:{sMaskB+1}]")
        k(f"buffer_store_dwordx4 {V(X,4)}, v0, {WSR}, s{sRST} offen {ST}")
        k("s_mov_b64 exec, -1")
    def wave_loop(W, ST):
        q = Q(k)
        prof.start(); prof.tot_start(cfg.get("tot"))
        loop = k.uid("A_loop")
        k.label(loop)
        prof.stamp(0); prof.raw(0)
        if W == 2: emit_flag_poll(k, cfg, vDet, TMP, sSTEP, FLAGM, abort)
        k("s_barrier")
        prof.stamp(1); prof.raw(1)
        if cfg.get("trace"): k(f"s_memtime s[90:91]")
        q.reset()
        def mem_load(t):
            so = sMS if t < 4 else sMS1
            q.vmem(f"buffer_load_dwordx4 {V(MEM+4*t,4)}, v{vL16}, {WSR}, s{so} offen offset:{(t*1024)%4096} sc1", f"mem{t}")
        t0w, t1w = (112 * W) >> 6, (112 * W + 111) >> 6
        rot = cfg.get("rot", 2)
        ko = [(rot * W + i) % 7 for i in range(7)]
        def lds_of(t): return MKP_L + W * 3072 + (t - t0w) * 1024
        def stage(t, out=None):
            txt = f"ds_write_b128 v{vL16}, {V(MEM+4*t,4)} offset:{lds_of(t)}"
            if out is None: q.ds(txt, f"st{t}")
            else: out(txt)
        k(f"s_add_u32 s{sMS1}, s{sMS}, 4096") if ko[0] >= 4 else None
        mem_load(ko[0])
        if ko[0] < 4: k(f"s_add_u32 s{sMS1}, s{sMS}, 4096")
        for i in range(0, 14, 2): k(f"v_mov_b64 {V(ACC+i,2)}, 0")
        for i in range(cfg.get("pace", 5)): k("s_nop 0")
        mem_load(ko[1])
        for i in range(14, 28, 2): k(f"v_mov_b64 {V(ACC+i,2)}, 0")
        for i in range(cfg.get("pace", 5)): k("s_nop 0")
        mem_load(ko[2])
        k(f"s_nop {cfg.get('pace2', 12)}")
        mem_load(ko[3])
        k(f"s_nop {cfg.get('pace2', 12)}")
        mem_load(ko[4])
        again = k.uid("A_again"); retry = k.uid("A_retry")
        def smf(tt, t):
            R = blockregA(7 * tt + t)
            k(f"v_smfmac_f32_16x16x64_bf16 {V(ACC+4*tt,4)}, {V(MEM+4*t,4)}, {R.r(0,8)}, v{vIdx}")
        def cvt(tile, hi):
            pa = ACC + 4 * tile + 2 * hi
            k(f"v_cvt_pk_bf16_f32 v{TMP+2*(tile&1)+hi}, v{pa}, v{pa+1}")
        k("s_waitcnt vmcnt(4)")
        prof.raw(2)
        for i, t in enumerate(ko):
            m0 = MEM + 4 * t
            fl = [[], [], [], []]
            if i < 2: fl[0].append(lambda i=i: mem_load(ko[i + 5]))
            fl[1 if i < 2 else 0].append(lambda i=i, m0=m0: k(f"v_max_u32 v{vX}, v{m0}, v{m0+1}" if i == 0 else f"v_max3_u32 v{vX}, v{vX}, v{m0}, v{m0+1}"))
            fl[2 if i < 2 else 1].append(lambda m0=m0: k(f"v_max3_u32 v{vX}, v{vX}, v{m0+2}, v{m0+3}"))
            if t0w <= t <= t1w: fl[3 if i < 2 or i == 6 else 2].append(lambda t=t: stage(t))
            if i == 6:
                fl[2].append(lambda: k(f"v_cmp_eq_u32 vcc, -1, v{vX}"))
                if not cfg.get("pairs", False): fl[3].append(lambda: cvt(0, 0))
            else: fl[3].append(lambda i=i: k(f"s_waitcnt vmcnt({[4,4,3,2,1,0][i]})"))
            for tt in range(4):
                smf(tt, t)
                for f in fl[tt]: f()
            if cfg.get("raw2") and i < 5: prof.raw(11 + i)
        k(f"s_cbranch_vccnz {retry}")
        prof.raw(3)
        rb = K()
        lab = k.uid("A_rl")
        rb(f"{lab}:")
        rb(f"s_add_u32 s{sMS1}, s{sMS}, 4096")
        for t in range(7):
            so = sMS if t < 4 else sMS1
            rb(f"buffer_load_dwordx4 {V(MEM+4*t,4)}, v{vL16}, {WSR}, s{so} offen offset:{(t*1024)%4096} sc1")
        rb("s_waitcnt vmcnt(0)")
        rb(f"v_max3_u32 v{vX}, v{MEM}, v{MEM+1}, v{MEM+2}")
        for i in range(3, 27, 2): rb(f"v_max3_u32 v{vX}, v{vX}, v{MEM+i}, v{MEM+i+1}")
        rb(f"v_max_u32 v{vX}, v{vX}, v{MEM+27}")
        rb(f"v_cmp_eq_u32 vcc, -1, v{vX}")
        ok_ = k.uid("A_rok")
        rb(f"s_cbranch_vccz {ok_}")
        rb(f"s_sub_u32 s{sSPIN}, s{sSPIN}, 1\ns_cbranch_scc0 {lab}\ns_branch {abort}")
        rb(f"{ok_}:")
        for i in range(0, 16, 2): rb(f"v_mov_b64 {V(ACC+i,2)}, 0")
        if cfg.get("cnt_retry"): rb(f"s_add_u32 s{sPROF+11}, s{sPROF+11}, 1")
        for t in range(t0w, t1w + 1): stage(t, rb)
        rb("s_nop 1")
        for t in range(7):
            for tt in range(4):
                R = blockregA(7 * tt + t)
                rb(f"v_smfmac_f32_16x16x64_bf16 {V(ACC+4*tt,4)}, {V(MEM+4*t,4)}, {R.r(0,8)}, v{vIdx}")
        if not cfg.get("pairs", False): rb(f"v_cvt_pk_bf16_f32 v{TMP}, v{ACC}, v{ACC+1}")
        rb(f"s_branch {again}")
        cfg.setdefault("outofline", []).append(f"{retry}:\ns_nop 7\n" + rb.text())
        k.label(again)
        q.vm = []
        def wr2(pair): q.ds(f"ds_write_b128 v{vTRw2}, {V(TMP,4)} offset:{pair*1024}", f"w{pair}")
        PAIRS = cfg.get("pairs", False)
        def wr6(): q.ds(f"ds_write_b64 v{vTRw}, {V(TMP,2)} offset:{0 if PAIRS else 3072}", "w6")
        def wr1(tile): q.ds(f"ds_write_b64 v{vTRw}, {V(TMP+2*(tile&1),2)} offset:{tile*512}", f"w{tile}")
        def tr(tile):
            if tile == 6: q.ds(f"ds_read_b64_tr_b16 {TRr(6)}, v{vTRr} offset:{0 if PAIRS else 3072}", "tr6")
            elif not PAIRS: q.ds(f"ds_read_b64_tr_b16 {TRr(tile)}, v{vTRr} offset:{tile*512}", f"tr{tile}")
            else: q.ds(f"ds_read_b64_tr_b16 {TRr(tile)}, v{vTRr2} offset:{(tile>>1)*1024+(tile&1)*8}", f"tr{tile}")
        def mk(tt):
            tau = 7 * W + tt
            q.ds(f"ds_read_b64 {V(MEM+2*tt,2)}, v{vMKg} offset:{lds_of(tau >> 2) + 256 * (tau & 3)}", f"mk{tt}")
        fill_after = {}
        if PAIRS:
            slot = 0
            for pair in range(3):
                for f in [("c", 2*pair, 0), ("c", 2*pair, 1), ("c", 2*pair+1, 0), ("c", 2*pair+1, 1), ("w", pair), ("t", 2*pair), ("t", 2*pair+1)]:
                    fill_after.setdefault(slot, []).append(f); slot += 1
        else:
            if W < 2 or not cfg.get("stagger", True):
                seq_ = [("c", 0, 1), ("w1", 0), ("t", 0)]
                for tile in range(1, 5): seq_ += [("c", tile, 0), ("c", tile, 1), ("w1", tile), ("t", tile)]
                seq_ += [("c", 5, 0), ("c", 5, 1)]
            else:
                seq_ = [("c", 0, 1), ("c", 1, 0), ("c", 1, 1)]
                for tile in range(0, 4): seq_ += [("w1", tile), ("t", tile), ("c", tile + 2, 0), ("c", tile + 2, 1)]
                seq_ += [("w1", 4), ("t", 4)]
            for slot, f in enumerate(seq_): fill_after.setdefault(slot, []).append(f)
        def dofill(f):
            if f[0] == "c": cvt(f[1], f[2])
            elif f[0] == "w":
                if PAIRS: wr2(f[1])
                else: wr1(2*f[1]); wr1(2*f[1]+1)
            elif f[0] == "w1": wr1(f[1])
            elif f[0] == "t": tr(f[1])
        sl = 0
        for tt in (4, 5, 6):
            for t in range(7):
                smf(tt, t)
                for f in fill_after.get(sl, []): dofill(f)
                sl += 1
        prof.raw(4)
        def smm(kap, p, first=False):
            D = V(SACC + 4 * kap, 4)
            C = "0" if first else D
            if p < 3:
                Aop = A(XK + kap * 14 + 4 * p, 4) if kap < 2 else V(MEM + 4 * p, 4)
                k(f"v_mfma_f32_16x16x32_bf16 {D}, {Aop}, {V(TR+4*p,4)}, {C}")
            else:
                Aop = A(XK + kap * 14 + 12, 2) if kap < 2 else V(MEM + 12, 2)
                k(f"v_mfma_f32_16x16x16_bf16 {D}, {Aop}, {TRr(6)}, {C}")
        if not PAIRS: wr1(5); tr(5)
        q.wait_lg("tr3")
        smm(0, 0, True)
        mk(0); mk(1)
        smm(1, 0, True)
        mk(2); mk(3)
        smm(0, 1)
        cvt(6, 0); cvt(6, 1)
        smm(1, 1)
        wr6(); tr(6)
        q.wait_lg("tr5")
        smm(0, 2)
        mk(4); mk(5)
        smm(1, 2)
        mk(6)
        q.wait_lg("mk3")
        smm(2, 0, True); smm(2, 1)
        q.wait_lg("mk5")
        smm(2, 2)
        smm(0, 3); smm(1, 3)
        q.wait_lg("mk6")
        smm(2, 3)
        prof.raw(5)
        k(f"s_add_u32 s{sXK}, s{sXK}, 28672")
        k("s_nop 3")
        for r in range(4): k(f"v_add_f32_dpp v{SACC+r}, v{SACC+r}, v{SACC+r} row_ror:8 row_mask:0xf bank_mask:0x3")
        for r in range(4): k(f"v_add_f32_dpp v{SACC+r}, v{SACC+4+r}, v{SACC+4+r} row_ror:8 row_mask:0xf bank_mask:0xc")
        q.ds(f"ds_write_b128 v{vSWx}, {V(SACC,4)}")
        for r in range(4): k(f"v_add_f32_dpp v{SACC+8+r}, v{SACC+8+r}, v{SACC+8+r} row_ror:8 row_mask:0xf bank_mask:0xf")
        q.ds(f"ds_write_b128 v{vSWm}, {V(SACC+8,4)}")
        q.lg0()
        prof.stamp(3); prof.raw(6)
        k("s_barrier")
        prof.stamp(4); prof.raw(7)
        X = TR
        if W < 2: softmax(q, W, ST)
        if cfg.get("bar3", True): k("s_barrier")
        if W == 3: preset(ST)
        if cfg.get("trace") and W == 3:
            k(f"s_waitcnt lgkmcnt(0)\ns_lshl_b32 s{sT0}, s{sRANK}, 6\ns_add_u32 s{sT0}, s{sT0}, s{sSTEP}\ns_lshl_b32 s{sT0}, s{sT0}, 2\ns_add_u32 s{sT0}, s{sT0}, {PROF+8192}")
            k(f"v_mov_b32 v{TR+4}, s90\nv_mov_b32 v{TR+5}, 0\ns_mov_b64 exec, 1\nbuffer_store_dword v{TR+4}, v{TR+5}, {WSR}, s{sT0} offen\ns_mov_b64 exec, -1")
        xk_prefetch()
        prof.stamp(5); prof.raw(10)
        emit_ring_advance(k)
        k("s_waitcnt vmcnt(0)")
        k(f"s_cmp_lt_u32 s{sSTEP}, {cfg['nsteps']}\ns_cbranch_scc1 {loop}")
        prof.raw_dump(TR, TR + 1); prof.dump(TR, TR + 1); prof.tot_dump(cfg.get("tot"), TR, TR + 1)
        k("s_endpgm")
    if cfg.get("mode_hook"): cfg["mode_hook"](k, TR)
    mlabs = [k.uid("A_m") for _ in modes]
    if len(modes) > 1: k(f"s_cmp_eq_u32 s{sMODE}, 1\ns_cbranch_scc1 {mlabs[1]}")
    for mi, st in enumerate(modes):
        k.label(mlabs[mi])
        labs = [k.uid("A_w") for _ in range(4)]
        for w in range(1, 4): k(f"s_cmp_eq_u32 s{sWAVE}, {w}\ns_cbranch_scc1 {labs[w]}")
        for w in range(4):
            k.label(labs[w])
            wave_loop(w, st)

def blockregB(tau, t):
    if t == 6 and tau < 6: return None
    b = 7 * tau + t - min(tau, 6)
    return Reg("a", 32 + 8 * b) if b < 28 else Reg("v", 80 + 8 * (b - 28))

def emit_chain_B(k, cfg, abort):
    prof = Prof(k, cfg.get("prof"), cfg.get("raw"))
    q = Q(k)
    WSR = f"s[{sWS}:{sWS+3}]"
    modes = cfg.get("modes", [cfg.get("st", "")])
    vL16, vPollA, vPollB, vP0, vPm, vOA, vOR, vMst, vIdx, vWL, vDet = range(1, 12)
    vLane = 0
    WT, ACC, VB, MEM = 12, 28, 36, 52
    vT = WT
    VXR = 0
    cfg["_mw"] = 6
    if cfg.get("tot"): k("s_memrealtime s[86:87]")
    k(f"s_sub_u32 s{sRANK}, s{sRANK}, 16")
    k("v_and_b32 v0, 63, v0")
    k(f"v_lshlrev_b32 v{vL16}, 4, v{vLane}")
    k(f"s_mul_i32 s{sT0}, s{sWAVE}, 1792")
    k(f"v_add_u32 v{vPollA}, s{sT0}, v{vL16}")
    k(f"v_min_u32 v{vT}, 47, v{vLane}")
    k(f"v_lshlrev_b32 v{vT}, 4, v{vT}")
    k(f"s_add_u32 s{sT1}, s{sT0}, 1024")
    k(f"v_add_u32 v{vPollB}, s{sT1}, v{vT}")
    I, SUB, GA, T2 = WT + 1, WT + 2, WT + 3, WT + 4
    k(f"v_and_b32 v{I}, 7, v{vLane}\nv_bfe_u32 v{SUB}, v{vLane}, 3, 1\nv_lshrrev_b32 v{GA}, 4, v{vLane}")
    k(f"v_and_b32 v{T2}, 3, v{vLane}\nv_lshlrev_b32 v{vDet}, 2, v{T2}\ns_lshl_b32 s{sT0}, s{sWAVE}, 7\nv_add_u32 v{vDet}, s{sT0}, v{vDet}")
    k(f"s_mul_i32 s{sT0}, s{sWAVE}, 2560")
    k(f"v_add_u32 v{vP0}, s{sT0}, v{vL16}")
    k(f"v_lshrrev_b32 v{T2}, 1, v{GA}\nv_lshlrev_b32 v{vPm}, 8, v{T2}")
    k(f"v_lshl_add_u32 v{vPm}, v{SUB}, 7, v{vPm}\nv_lshl_add_u32 v{vPm}, v{I}, 4, v{vPm}")
    k(f"s_add_u32 s{sT0}, s{sT0}, 2048\nv_add_u32 v{vPm}, s{sT0}, v{vPm}")
    C2, CG = WT + 5, WT + 6
    k(f"v_and_b32 v{C2}, 3, v{vLane}")
    k(f"v_bfe_u32 v{CG}, v{vLane}, 2, 2\nv_lshrrev_b32 v{T2}, 5, v{vLane}\nv_lshl_add_u32 v{CG}, v{T2}, 2, v{CG}")
    k(f"v_and_b32 v{T2}, 1, v{GA}\nv_lshl_add_u32 v{T2}, v{CG}, 1, v{T2}")
    k(f"v_lshlrev_b32 v{vOA}, 2, v{C2}\nv_xor_b32 v{T2}, v{T2}, v{vOA}\nv_and_b32 v{T2}, 15, v{T2}")
    k(f"v_lshlrev_b32 v{vOA}, 8, v{C2}\nv_lshl_add_u32 v{vOA}, v{T2}, 4, v{vOA}")
    k(f"s_lshl_b32 s{sT0}, s{sWAVE}, 10\ns_add_u32 s{sT0}, s{sT0}, {OP_L}\nv_add_u32 v{vOA}, s{sT0}, v{vOA}")
    k(f"v_lshlrev_b32 v{T2}, 2, v{GA}\nv_and_b32 v{vOR}, 15, v{vLane}\nv_xor_b32 v{vOR}, v{vOR}, v{T2}\nv_and_b32 v{vOR}, 15, v{vOR}")
    k(f"v_lshlrev_b32 v{vOR}, 4, v{vOR}\nv_lshl_add_u32 v{vOR}, v{GA}, 8, v{vOR}\nv_add_u32 v{vOR}, {OP_L}, v{vOR}")
    k(f"v_and_b32 v{T2}, 1, v{vLane}\nv_lshl_add_u32 v{T2}, v{T2}, 2, v{GA}")
    k(f"v_bfe_u32 v{vMst}, v{vLane}, 3, 1\nv_lshl_add_u32 v{T2}, v{vMst}, 4, v{T2}")
    k(f"v_bfe_u32 v{vMst}, v{vLane}, 2, 1\nv_lshl_add_u32 v{T2}, v{vMst}, 3, v{T2}")
    k(f"v_lshlrev_b32 v{T2}, 4, v{T2}")
    k(f"v_bfe_u32 v{vMst}, v{vLane}, 1, 1\nv_lshl_add_u32 v{vMst}, v{vMst}, 3, v{T2}")
    k(f"s_lshl_b32 s{sT0}, s{sRANK}, 9\nv_add_u32 v{vMst}, s{sT0}, v{vMst}")
    k(f"s_lshl_b32 s{sFLG}, s{sRANK}, 2\ns_add_u32 s{sFLG}, s{sFLG}, {FLAGM}")
    k(f"v_mov_b32 v{vIdx}, 0x44444444\nv_mov_b32 v{T2}, 0xeeeeeeee")
    k(f"v_cmp_ne_u32 vcc, 0, v{SUB}\ns_nop 1\nv_cndmask_b32 v{vIdx}, v{vIdx}, v{T2}, vcc")
    if cfg.get("warm", True):
        sk = k.uid("B_warm")
        k(f"s_cmp_lg_u32 s{sRANK}, 0\ns_cbranch_scc1 {sk}")
        k(f"s_lshl_b32 s{sT0}, s{sWAVE}, 6\nv_add_u32 v{WT}, s{sT0}, v{vLane}\nv_lshlrev_b32 v{WT}, 7, v{WT}")
        for u in range(2):
            k(f"s_mov_b32 s{sT0}, {MEMRING + u*32768}\nbuffer_load_dword v{WT+1}, v{WT}, {WSR}, s{sT0} offen sc1")
        nrest = (FLAGP + 512 - MEMRING - 65536) // 128
        k(f"v_lshrrev_b32 v{WT+2}, 7, v{WT}\nv_cmp_gt_u32 vcc, {nrest}, v{WT+2}\ns_and_saveexec_b64 s[{sMaskA}:{sMaskA+1}], vcc")
        skw = k.uid("B_w3")
        k(f"s_cbranch_execz {skw}\ns_mov_b32 s{sT0}, {MEMRING + 65536}\nbuffer_load_dword v{WT+1}, v{WT}, {WSR}, s{sT0} offen sc1")
        k.label(skw)
        k(f"s_mov_b64 exec, s[{sMaskA}:{sMaskA+1}]")
        k("s_waitcnt vmcnt(0)")
        k.label(sk)
    FUSED = cfg.get("fused")
    LDF = "sc1" if FUSED else ""
    if FUSED:
        k(f"v_and_b32 v{WT}, 3, v{vLane}\nv_lshlrev_b32 v{WT}, 7, v{WT}\ns_lshl_b32 s{sT0}, s{sWAVE}, 9\ns_add_u32 s{sT0}, s{sT0}, {C_WB}")
        top = k.uid("B_wp"); ok_ = k.uid("B_wpo")
        k.label(top)
        k(f"buffer_load_dword v{WT+1}, v{WT}, {WSR}, s{sT0} offen sc1\ns_waitcnt vmcnt(0)")
        k(f"v_cmp_gt_u32 vcc, 7, v{WT+1}\ns_cbranch_vccz {ok_}")
        k(f"s_sleep 1\ns_sub_u32 s{sSPIN}, s{sSPIN}, 1\ns_cbranch_scc0 {top}\ns_branch {abort}")
        k.label(ok_)
    k(f"s_mul_i32 s{sT0}, s{sRANK}, 458752\ns_mul_i32 s{sT1}, s{sWAVE}, 114688\ns_add_u32 s{sT0}, s{sT0}, s{sT1}\ns_add_u32 s{sT0}, s{sT0}, {WB_OFF}")
    k(f"s_mul_i32 s{sT1}, s{sWAVE}, 12288\ns_add_u32 s{sT1}, s{sT1}, {WL}\nv_add_u32 v{vWL}, s{sT1}, v{vL16}")
    for tau in range(8):
        for t in range(7):
            R = blockregB(tau, t)
            for a in range(2):
                off = ((7 * tau + t) * 2 + a) * 1024
                if off and off % 4096 == 0: k(f"s_add_u32 s{sT0}, s{sT0}, 4096")
                if R is not None:
                    k(f"buffer_load_dwordx4 {R.r(4*a,4)}, v{vL16}, {WSR}, s{sT0} offen offset:{off%4096} {LDF}")
                else:
                    k(f"s_mul_i32 s{sT1}, s{sWAVE}, 12288\ns_add_u32 m0, s{sT1}, {WL + tau*2048 + a*1024 - off%4096}\ns_nop 0")
                    k(f"buffer_load_dwordx4 v{vL16}, {WSR}, s{sT0} offen offset:{off%4096} {LDF} lds")
    PX = WT + 15
    for i in range(8): k(f"v_mov_b32 v{ACC+i}, 0")
    k("s_waitcnt vmcnt(0) lgkmcnt(0)")
    if cfg.get("tot"): k("s_memrealtime s[88:89]\ns_waitcnt lgkmcnt(0)")
    if cfg.get("mark"): cfg["mark"](cfg.get("_mw", 3), 16 if cfg.get("_mw", 3) == 3 else 12, only=(sRANK, 0))
    k(f"s_mov_b32 s{sSTEP}, 0\ns_mov_b32 s{sMS}, {MEMRING}\ns_mov_b32 s{sPS}, {PRING}")
    k(f"s_mul_i32 s{sXK}, s{sRANK}, 32768\ns_lshl_b32 s{sT0}, s{sWAVE}, 13\ns_add_u32 s{sXK}, s{sXK}, s{sT0}\ns_add_u32 s{sXK}, s{sXK}, {VX_OFF}")
    k(f"s_mov_b32 s{sOUT}, {MEMOUT+7168}")
    k(f"s_mov_b32 s{sVXC}, {FLAGV}")
    def b_loop(ST):
        q = Q(k)
        prof.start(); prof.tot_start(cfg.get("tot"))
        loop = k.uid("B_loop")
        k.label(loop)
        prof.stamp(0); prof.raw(0)
        if cfg.get("b_sleep"): k(f"s_sleep {cfg['b_sleep']}")
        top = k.uid("PM"); retry = k.uid("PMR")
        k.label(top)
        k(f"buffer_load_dwordx4 {V(WT,4)}, v{vPollA}, {WSR}, s{sMS} offen sc1")
        k(f"buffer_load_dwordx4 {V(WT+4,4)}, v{vPollB}, {WSR}, s{sMS} offen sc1")
        if cfg.get("vxwait"): k(f"v_mov_b32 v{WT+9}, 0\nbuffer_load_dword v{WT+8}, v{WT+9}, {WSR}, s{sVXC} offen sc1")
        k("s_waitcnt vmcnt(0)")
        k(f"v_max3_u32 v{PX}, v{WT}, v{WT+1}, v{WT+2}")
        k(f"v_max3_u32 v{PX}, v{PX}, v{WT+3}, v{WT+4}")
        k(f"v_max3_u32 v{PX}, v{PX}, v{WT+5}, v{WT+6}")
        k(f"v_max_u32 v{PX}, v{PX}, v{WT+7}")
        k(f"v_cmp_eq_u32 vcc, -1, v{PX}")
        k(f"s_cbranch_vccnz {retry}")
        if cfg.get("vxwait"):
            k(f"v_cmp_ge_u32 vcc, s{sSTEP}, v{WT+8}")
            k(f"s_cbranch_vccnz {retry}")
        retry_block(cfg, retry, "", abort, top)
        q.reset()
        prof.stamp(1); prof.raw(1)
        def vx_load0(u):
            off = u * 1024
            so = sXK if off < 4096 else sT1
            k(f"buffer_load_dwordx4 {A(VXR+4*u,4)}, v{vL16}, {WSR}, s{so} offen offset:{off%4096} sc1")
        VXE = cfg.get("vxearly", 2)
        q.ds(f"ds_write_b128 v{vPollA}, {V(WT,4)} offset:{MEM_L}")
        q.ds(f"ds_write_b128 v{vPollB}, {V(WT+4,4)} offset:{MEM_L}")
        if VXE == 2:
            k(f"s_add_u32 s{sT1}, s{sXK}, 4096")
            for u in range(8): vx_load0(u)
        q.lg0()
        k("s_barrier")
        prof.stamp(2)
        for t in range(7):
            q.ds(f"ds_read_b128 {V(MEM+4*t,4)}, v{vL16} offset:{MEM_L+t*1024}", f"mem{t}")
        if not cfg.get("exporter"):
            nm = k.uid("B_nm")
            k(f"s_cmp_lg_u32 s{sWAVE}, 0\ns_cbranch_scc1 {nm}\ns_cmp_eq_u32 s{sSTEP}, 0\ns_cbranch_scc1 {nm}")
            k(f"s_sub_u32 s{sT1}, s{sOUT}, 7168\nbuffer_store_dwordx2 {V(VB+14,2)}, v{vMst}, {WSR}, s{sT1} offen sc1")
            k.label(nm)
        k(f"s_add_u32 s{sT1}, s{sXK}, 4096")
        def vx_load(u):
            off = u * 1024
            so = sXK if off < 4096 else sT1
            k(f"buffer_load_dwordx4 {A(VXR+4*u,4)}, v{vL16}, {WSR}, s{so} offen offset:{off%4096} sc1")
        def vb_dst(tau, rp):
            hh, c = tau >> 1, tau & 1
            a, sub = hh >> 1, hh & 1
            return VB + 8 * c + 4 * a + 2 * rp + sub
        for tau in range(8):
            for t in range(7):
                if tau == 0: q.wait_lg(f"mem{t}")
                R = blockregB(tau, t)
                if R is None:
                    q.wait_lg(f"wl{tau}b")
                    Bop = V(WT + 8 * (tau & 1), 8)
                else:
                    Bop = R.r(0, 8)
                k(f"v_smfmac_f32_16x16x64_bf16 {V(ACC+4*(tau&1),4)}, {V(MEM+4*t,4)}, {Bop}, v{vIdx}")
                if tau < 6:
                    if t == 0: q.ds(f"ds_read_b128 {V(WT+8*(tau&1),4)}, v{vWL} offset:{tau*2048}", f"wl{tau}a")
                    if t == 1: q.ds(f"ds_read_b128 {V(WT+8*(tau&1)+4,4)}, v{vWL} offset:{tau*2048+1024}", f"wl{tau}b")
                if VXE == 2: pass
                elif VXE == 1:
                    if tau == 0: vx_load(t)
                    if tau == 1 and t == 2: vx_load(7)
                elif tau < 4 and t in (5, 6): vx_load(2 * tau + (t - 5))
                if tau >= 1:
                    pa = ACC + 4 * ((tau - 1) & 1)
                    if t == 2: k(f"v_cvt_pk_bf16_f32 v{vb_dst(tau-1,0)}, v{pa}, v{pa+1}")
                    if t == 3: k(f"v_cvt_pk_bf16_f32 v{vb_dst(tau-1,1)}, v{pa+2}, v{pa+3}")
                    if t == 4: k(f"v_mov_b64 {V(pa,2)}, 0")
                    if t == 5: k(f"v_mov_b64 {V(pa+2,2)}, 0")
        k(f"s_add_u32 s{sXK}, s{sXK}, 458752")
        k("s_nop 6")
        pa = ACC + 4
        k(f"v_cvt_pk_bf16_f32 v{vb_dst(7,0)}, v{pa}, v{pa+1}")
        k(f"v_cvt_pk_bf16_f32 v{vb_dst(7,1)}, v{pa+2}, v{pa+3}")
        k(f"v_mov_b64 {V(pa,2)}, 0\nv_mov_b64 {V(pa+2,2)}, 0")
        prof.raw(2)
        k("s_waitcnt vmcnt(0)")
        prof.stamp(3); prof.raw(3)
        k(f"s_add_u32 s{sMS1}, s{sSTEP}, 1")
        emit_flag_poll(k, cfg, vDet, WT, sMS1, FLAGP, abort)
        prof.stamp(4); prof.raw(4)
        P0, P1, PM = MEM, MEM + 4, MEM + 8
        q.reset()
        def p_loads(qq):
            qq(f"buffer_load_dwordx4 {V(P0,4)}, v{vP0}, {WSR}, s{sPS} offen sc1", "p0")
            qq(f"buffer_load_dwordx4 {V(P1,4)}, v{vP0}, {WSR}, s{sPS} offen offset:1024 sc1", "p1")
            qq(f"buffer_load_dwordx4 {V(PM,4)}, v{vPm}, {WSR}, s{sPS} offen sc1", "pm")
        p_loads(q.vmem)
        again = k.uid("B_again"); retry = k.uid("B_retry")
        k.label(again)
        for (Pr, src, tag) in ((P0, "x0", "p0"), (P1, "x1", "p1"), (PM, "m", "pm")):
            q.wait_vm(tag)
            if tag == "p0": prof.raw(5)
            if tag == "pm": prof.raw(6)
            for c in range(2):
                Bop = {"x0": A(VXR + c * 8, 8), "x1": A(VXR + 16 + c * 8, 8), "m": V(VB + 8 * c, 8)}[src]
                k(f"v_smfmac_f32_16x16x64_bf16 {V(ACC+4*c,4)}, {V(Pr,4)}, {Bop}, v{vIdx}")
                if c == 0: k(f"v_max_u32 v{PX}, v{Pr}, v{Pr+1}" if src == "x0" else f"v_max3_u32 v{PX}, v{PX}, v{Pr}, v{Pr+1}")
                else: k(f"v_max3_u32 v{PX}, v{PX}, v{Pr+2}, v{Pr+3}")
        k(f"v_cmp_eq_u32 vcc, -1, v{PX}")
        k(f"s_cbranch_vccnz {retry}")
        rb = K(); lab = k.uid("B_rl"); ok_ = k.uid("B_rok")
        rb(f"{lab}:")
        p_loads(lambda txt, tag: rb(txt))
        rb("s_waitcnt vmcnt(0)")
        rb(f"v_max3_u32 v{PX}, v{P0}, v{P0+1}, v{P0+2}")
        for i in range(3, 11, 2): rb(f"v_max3_u32 v{PX}, v{PX}, v{P0+i}, v{P0+i+1}")
        rb(f"v_max_u32 v{PX}, v{PX}, v{P0+11}")
        rb(f"v_cmp_eq_u32 vcc, -1, v{PX}")
        rb(f"s_cbranch_vccz {ok_}")
        rb(f"s_sub_u32 s{sSPIN}, s{sSPIN}, 1\ns_cbranch_scc0 {lab}\ns_branch {abort}")
        rb(f"{ok_}:")
        for i in range(0, 8, 2): rb(f"v_mov_b64 {V(ACC+i,2)}, 0")
        if cfg.get("cnt_retry"): rb(f"s_add_u32 s{sPROF+11}, s{sPROF+11}, 1")
        rb(f"s_nop 1\ns_branch {again}")
        cfg.setdefault("outofline", []).append(f"{retry}:\ns_nop 7\n" + rb.text())
        def mflag():
            k(f"s_add_u32 s{sT0}, s{sSTEP}, 1\nv_mov_b32 v{PX}, s{sT0}\nv_mov_b32 v{PX-1}, 0")
            k(f"s_mov_b64 exec, 1\nbuffer_store_dword v{PX}, v{PX-1}, {WSR}, s{sFLG} offen {ST}\ns_mov_b64 exec, -1")
        mpos = cfg.get("mflag_pos", 1)
        k("s_nop 5")
        for r in range(4): k(f"v_permlane32_swap_b32 v{ACC+r}, v{ACC+4+r}")
        k(f"v_pk_add_f32 {V(ACC,2)}, {V(ACC,2)}, {V(ACC+4,2)}\nv_pk_add_f32 {V(ACC+2,2)}, {V(ACC+2,2)}, {V(ACC+6,2)}")
        q.ds(f"ds_write_b128 v{vOA}, {V(ACC,4)}")
        nofin = k.uid("B_nofin"); join = k.uid("B_join")
        if mpos == 0:
            sk = k.uid("B_f0"); k(f"s_cmp_lg_u32 s{sWAVE}, 0\ns_cbranch_scc1 {sk}"); mflag(); k.label(sk)
        q.lg0()
        prof.stamp(5); prof.raw(7)
        k("s_barrier")
        prof.stamp(6); prof.raw(8)
        k(f"s_cmp_lg_u32 s{sWAVE}, 0\ns_cbranch_scc1 {nofin}")
        X = WT
        for w_ in range(4): q.ds(f"ds_read_b128 {V(X+4*w_,4)}, v{vOR} offset:{w_*1024}", f"o{w_}")
        def mflag2():
            k(f"s_mov_b64 exec, 1\nbuffer_store_dword v{ACC+4}, v{ACC+5}, {WSR}, s{sFLG} offen {ST}\ns_mov_b64 exec, -1")
        k(f"s_add_u32 s{sT0}, s{sSTEP}, 1\nv_mov_b32 v{ACC+4}, s{sT0}\nv_mov_b32 v{ACC+5}, 0")
        if mpos == 1: mflag2()
        k(f"s_add_u32 s{sT0}, s{sSTEP}, 1\ns_and_b32 s{sT0}, s{sT0}, 3\ns_mul_i32 s{sMS1}, s{sT0}, 7168\ns_add_u32 s{sMS1}, s{sMS1}, {MEMRING}")
        def pk(d, a, b):
            k(f"v_pk_add_f32 {V(d,2)}, {V(a,2)}, {V(b,2)}\nv_pk_add_f32 {V(d+2,2)}, {V(a+2,2)}, {V(b+2,2)}")
        q.wait_lg("o1")
        if mpos == 11: mflag2()
        pk(X, X, X+4)
        q.wait_lg("o3"); pk(X+8, X+8, X+12); pk(X, X, X+8)
        q.reset()
        prof.raw(9)
        if mpos == 12: mflag2()
        else: k("s_nop 1")
        k(f"v_permlane32_swap_b32 v{X}, v{X+2}\nv_permlane32_swap_b32 v{X+1}, v{X+3}")
        k("s_nop 1")
        k(f"v_permlane16_swap_b32 v{X}, v{X+1}\nv_permlane16_swap_b32 v{X+2}, v{X+3}")
        if mpos == 13: mflag2()
        k(f"v_cvt_pk_bf16_f32 v{X}, v{X}, v{X+1}\nv_cvt_pk_bf16_f32 v{X+1}, v{X+2}, v{X+3}")
        k(f"v_min_u32 v{X}, -2, v{X}\nv_min_u32 v{X+1}, -2, v{X+1}")
        k(f"buffer_store_dwordx2 {V(X,2)}, v{vMst}, {WSR}, s{sMS1} offen {ST}")
        prof.raw(10)
        if mpos == 2: mflag2()
        if not cfg.get("exporter"): k(f"v_mov_b64 {V(VB+14,2)}, {V(X,2)}")
        k.label(nofin)
        if cfg.get("exporter"):
            nr = k.uid("B_nr"); pe = k.uid("B_pe"); oke = k.uid("B_oke")
            k(f"s_cmp_lg_u32 s{sWAVE}, 1\ns_cbranch_scc1 {nr}\ns_cmp_eq_u32 s{sSTEP}, 0\ns_cbranch_scc1 {nr}")
            k(f"s_sub_u32 s{sRST}, s{sSTEP}, 1\ns_mov_b32 s{sT0}, {FLAGE}\nv_mov_b32 v{WT+9}, 0")
            k.label(pe)
            k(f"buffer_load_dword v{WT+8}, v{WT+9}, {WSR}, s{sT0} offen sc1\ns_waitcnt vmcnt(0)")
            k(f"v_cmp_gt_u32 vcc, s{sRST}, v{WT+8}\ns_cbranch_vccz {oke}")
            k(f"s_sub_u32 s{sSPIN}, s{sSPIN}, 1\ns_cbranch_scc0 {pe}\ns_branch {abort}")
            k.label(oke)
            k(f"s_and_b32 s{sRST}, s{sRST}, 3\ns_mul_i32 s{sRST}, s{sRST}, 7168\ns_add_u32 s{sRST}, s{sRST}, {MEMRING}")
            k(f"v_mov_b32 v{WT+8}, -1\nv_mov_b32 v{WT+9}, -1")
            k(f"buffer_store_dwordx2 {V(WT+8,2)}, v{vMst}, {WSR}, s{sRST} offen {ST}")
            k.label(nr)
        if cfg.get("bar4", True): k("s_barrier")
        if not cfg.get("exporter"):
            k(f"s_cmp_lg_u32 s{sWAVE}, 1\ns_cbranch_scc1 {join}")
            X = WT
            k(f"s_add_u32 s{sRST}, s{sSTEP}, 3\ns_and_b32 s{sRST}, s{sRST}, 3\ns_mul_i32 s{sRST}, s{sRST}, 7168\ns_add_u32 s{sRST}, s{sRST}, {MEMRING}")
            k(f"v_mov_b32 v{X}, -1\nv_mov_b32 v{X+1}, -1")
            k(f"buffer_store_dwordx2 {V(X,2)}, v{vMst}, {WSR}, s{sRST} offen {ST}")
        k.label(join)
        for i in range(0, 8, 2): k(f"v_mov_b64 {V(ACC+i,2)}, 0")
        prof.stamp(7)
        k(f"s_add_u32 s{sOUT}, s{sOUT}, 7168")
        emit_ring_advance(k)
        k(f"s_cmp_lt_u32 s{sSTEP}, {cfg['nsteps']}\ns_cbranch_scc1 {loop}")
        if cfg.get("mark"): cfg["mark"](7, 12, only=(sRANK, 0))
        if not cfg.get("exporter"):
            nm2 = k.uid("B_nm2")
            k(f"s_cmp_lg_u32 s{sWAVE}, 0\ns_cbranch_scc1 {nm2}")
            k(f"s_sub_u32 s{sT1}, s{sOUT}, 7168\nbuffer_store_dwordx2 {V(VB+14,2)}, v{vMst}, {WSR}, s{sT1} offen sc1\ns_waitcnt vmcnt(0)")
            k.label(nm2)
        k(f"s_add_u32 s{sRANK}, s{sRANK}, 16")
        prof.raw_dump(WT, WT + 1); prof.dump(WT, WT + 1); prof.tot_dump(cfg.get("tot"), WT, WT + 1)
        k("s_endpgm")
    if cfg.get("mode_hook"): cfg["mode_hook"](k, WT)
    mlabs = [k.uid("B_m") for _ in modes]
    if len(modes) > 1: k(f"s_cmp_eq_u32 s{sMODE}, 1\ns_cbranch_scc1 {mlabs[1]}")
    for mi, st in enumerate(modes):
        k.label(mlabs[mi])
        b_loop(st)

def emit_exporter(k, cfg, abort, ST):
    WSR = f"s[{sWS}:{sWS+3}]"
    vPA, vPB, vZ, vT, TA, vX = 4, 5, 6, 7, 8, 16
    k(f"v_and_b32 v{vT}, 63, v0\nv_lshlrev_b32 v{vPA}, 4, v{vT}\ns_mul_i32 s{sT0}, s{sWAVE}, 1792\nv_add_u32 v{vPA}, s{sT0}, v{vPA}")
    k(f"v_min_u32 v{vT}, 47, v{vT}\nv_lshlrev_b32 v{vT}, 4, v{vT}\ns_add_u32 s{sT0}, s{sT0}, 1024\nv_add_u32 v{vPB}, s{sT0}, v{vT}\nv_mov_b32 v{vZ}, 0")
    k(f"s_mov_b32 s{sSTEP}, 1\ns_mov_b32 s{sOUT}, {MEMOUT + 7168}")
    loop = k.uid("EX_loop"); top = k.uid("EX_poll"); ok_ = k.uid("EX_ok"); sk = k.uid("EX_s")
    k.label(loop)
    k(f"s_and_b32 s{sT0}, s{sSTEP}, 3\ns_mul_i32 s{sMS}, s{sT0}, 7168\ns_add_u32 s{sMS}, s{sMS}, {MEMRING}")
    k.label(top)
    k(f"buffer_load_dwordx4 {V(TA,4)}, v{vPA}, {WSR}, s{sMS} offen sc1\nbuffer_load_dwordx4 {V(TA+4,4)}, v{vPB}, {WSR}, s{sMS} offen sc1")
    k("s_waitcnt vmcnt(0)")
    k(f"v_max3_u32 v{vX}, v{TA}, v{TA+1}, v{TA+2}\nv_max3_u32 v{vX}, v{vX}, v{TA+3}, v{TA+4}")
    k(f"v_max3_u32 v{vX}, v{vX}, v{TA+5}, v{TA+6}\nv_max_u32 v{vX}, v{vX}, v{TA+7}")
    k(f"v_cmp_eq_u32 vcc, -1, v{vX}\ns_cbranch_vccz {ok_}")
    k(f"s_sleep {cfg.get('ex_sleep', 1)}\ns_sub_u32 s{sSPIN}, s{sSPIN}, 1\ns_cbranch_scc0 {top}\ns_branch {abort}")
    k.label(ok_)
    k(f"buffer_store_dwordx4 {V(TA,4)}, v{vPA}, {WSR}, s{sOUT} offen sc1\nbuffer_store_dwordx4 {V(TA+4,4)}, v{vPB}, {WSR}, s{sOUT} offen sc1")
    k("s_barrier")
    k(f"s_cmp_lg_u32 s{sWAVE}, 0\ns_cbranch_scc1 {sk}")
    k(f"v_mov_b32 v{vX}, s{sSTEP}\ns_mov_b32 s{sT0}, {FLAGE}\ns_mov_b64 exec, 1\nbuffer_store_dword v{vX}, v{vZ}, {WSR}, s{sT0} offen {ST}\ns_mov_b64 exec, -1")
    k.label(sk)
    k(f"s_add_u32 s{sOUT}, s{sOUT}, 7168\ns_add_u32 s{sSTEP}, s{sSTEP}, 1")
    k(f"s_cmp_le_u32 s{sSTEP}, {cfg['nsteps']}\ns_cbranch_scc1 {loop}")
    k("s_waitcnt vmcnt(0)")
    k("s_endpgm")

def emit_helper(k, cfg, abort):
    WSR = f"s[{sWS}:{sWS+3}]"
    modes = cfg.get("modes", [cfg.get("st", "")])
    dist = cfg.get("pf_dist", 3)
    k("v_lshlrev_b32 v1, 7, v0")
    k("v_mov_b32 v2, 0")
    if cfg.get("mode_hook"): cfg["mode_hook"](k, 40)
    mlabs = [k.uid("H_m") for _ in modes]
    if len(modes) > 1: k(f"s_cmp_eq_u32 s{sMODE}, 1\ns_cbranch_scc1 {mlabs[1]}")
    for mi, ST in enumerate(modes):
        k.label(mlabs[mi])
        k(f"s_mov_b32 s{sSTEP}, 0\ns_mov_b32 s{sXK}, {VX_OFF}\ns_mov_b32 s{sOUT}, {XK_OFF}\ns_mov_b32 s{sVXC}, {C_VX}")
        loop = k.uid("PF_loop"); p2 = k.uid("PF_p2"); g2 = k.uid("PF_g2")
        pfl = k.uid("PF_pf")
        if cfg.get("exporter"):
            nx = k.uid("EX_no")
            k(f"s_cmp_lg_u32 s{sRANK}, 31\ns_cbranch_scc1 {nx}")
            emit_exporter(k, cfg, abort, ST)
            k.label(nx)
        k(f"s_cmp_eq_u32 s{sRANK}, 31\ns_cbranch_scc1 {pfl}_b\ns_cmp_eq_u32 s{sWAVE}, 0\ns_cbranch_scc0 {pfl}_a")
        k.label(loop)
        k.label(p2)
        k(f"buffer_load_dword v3, v2, {WSR}, s{sVXC} offen sc1\ns_waitcnt vmcnt(0)")
        k(f"v_cmp_gt_u32 vcc, 28, v3\ns_cbranch_vccz {g2}")
        k(f"s_sleep 1\ns_sub_u32 s{sSPIN}, s{sSPIN}, 1\ns_cbranch_scc0 {p2}\ns_branch {abort}")
        k.label(g2)
        k(f"s_add_u32 s{sT0}, s{sSTEP}, 1\nv_mov_b32 v3, s{sT0}\ns_mov_b32 s{sT0}, {FLAGV}")
        k(f"s_mov_b64 exec, 1\nbuffer_store_dword v3, v2, {WSR}, s{sT0} offen {ST}")
        k(f"s_mov_b32 s{sT0}, {FLAGV2}\nbuffer_store_dword v3, v2, {WSR}, s{sT0} offen sc1\ns_mov_b64 exec, -1")
        k(f"s_add_u32 s{sSTEP}, s{sSTEP}, 1\ns_add_u32 s{sVXC}, s{sVXC}, {CSTR}")
        k(f"s_cmp_lt_u32 s{sSTEP}, {cfg['nsteps']}\ns_cbranch_scc1 {loop}")
        k(f"s_branch {g2}_end")
        k.label(f"{pfl}_a")
        k(f"s_sub_u32 s{sRST}, s{sWAVE}, 1\ns_branch {pfl}_c")
        k.label(f"{pfl}_b")
        k(f"s_add_u32 s{sRST}, s{sWAVE}, 3")
        k.label(f"{pfl}_c")
        if cfg.get("pf", True):
            dist = cfg.get("pf_dist", 2)
            SH = 6 if cfg.get("pf64") else 7
            k(f"v_and_b32 v4, 63, v0\nv_lshlrev_b32 v4, {SH}, v4\ns_lshl_b32 s{sRST}, s{sRST}, 16\nv_add_u32 v4, s{sRST}, v4")
            k(f"s_mov_b32 s{sSTEP}, 0\ns_mov_b32 s{sXK}, {VX_OFF}")
            lp = k.uid("PF_l"); w1 = k.uid("PF_w1"); o1 = k.uid("PF_o1"); w2 = k.uid("PF_w2"); o2 = k.uid("PF_o2")
            k.label(lp)
            k(f"s_mov_b32 s{sT0}, {FLAGV}")
            k.label(w1)
            k(f"buffer_load_dword v3, v2, {WSR}, s{sT0} offen sc1\ns_waitcnt vmcnt(0)\nv_cmp_ge_u32 vcc, s{sSTEP}, v3\ns_cbranch_vccz {o1}")
            k(f"s_sleep 4\ns_sub_u32 s{sSPIN}, s{sSPIN}, 1\ns_cbranch_scc0 {w1}\ns_branch {abort}")
            k.label(o1)
            k(f"s_cmp_le_u32 s{sSTEP}, {dist}\ns_cbranch_scc1 {o2}\ns_sub_u32 s{sMS}, s{sSTEP}, {dist}\ns_mov_b32 s{sT0}, {FLAGM}")
            k.label(w2)
            k(f"buffer_load_dword v3, v2, {WSR}, s{sT0} offen sc1\ns_waitcnt vmcnt(0)\nv_cmp_gt_u32 vcc, s{sMS}, v3\ns_cbranch_vccz {o2}")
            k(f"s_sleep 4\ns_sub_u32 s{sSPIN}, s{sSPIN}, 1\ns_cbranch_scc0 {w2}\ns_branch {abort}")
            k.label(o2)
            k(f"s_mov_b32 s{sT1}, s{sXK}")
            for u in range(16 if cfg.get("pf64") else 8):
                k(f"buffer_load_dword v{8+u}, v4, {WSR}, s{sT1} offen sc1\ns_add_u32 s{sT1}, s{sT1}, {4096 if cfg.get('pf64') else 8192}")
            k(f"s_add_u32 s{sXK}, s{sXK}, 458752\ns_add_u32 s{sSTEP}, s{sSTEP}, 1")
            k(f"s_cmp_lt_u32 s{sSTEP}, {cfg['nsteps']}\ns_cbranch_scc1 {lp}")
        k.label(f"{g2}_end")
        k("s_waitcnt vmcnt(0)")
        k("s_endpgm")

def gen_chain_test(cfg):
    k = K()
    name = "chain_kernel"
    k(f'.amdgcn_target "amdgcn-amd-amdhsa--gfx950"\n.text\n.globl {name}\n.p2align 8\n.type {name},@function\n{name}:')
    k("s_load_dwordx4 s[4:7], s[0:1], 0")
    if cfg.get("tot"): k("s_memrealtime s[96:97]")
    k("s_getreg_b32 s3, hwreg(HW_REG_XCC_ID)\ns_and_b32 s3, s3, 15")
    k("s_waitcnt lgkmcnt(0)")
    k(f"s_mov_b32 s{sWS}, s4\ns_mov_b32 s{sWS+1}, s5\ns_mov_b32 s{sWS+2}, {WS_BYTES}\ns_mov_b32 s{sWS+3}, 0x20000")
    if cfg.get("same_xcd", True):
        k("s_cmp_lg_u32 s3, 0\ns_cbranch_scc1 L_exit")
    k("v_mov_b32 v1, 0\nv_mov_b32 v2, 1")
    k("v_cmp_eq_u32 vcc, 0, v0\ns_and_saveexec_b64 s[20:21], vcc\ns_cbranch_execz L_t")
    k("global_atomic_add v3, v1, v2, s[6:7] sc0\ns_waitcnt vmcnt(0)\nds_write_b32 v1, v3\ns_waitcnt lgkmcnt(0)")
    k.label("L_t")
    k("s_mov_b64 exec, s[20:21]\ns_barrier\nds_read_b32 v3, v1\ns_waitcnt lgkmcnt(0)\ns_nop 0")
    k(f"v_readfirstlane_b32 s{sRANK}, v3")
    k(f"v_lshrrev_b32 v3, 6, v0\ns_nop 0\nv_readfirstlane_b32 s{sWAVE}, v3")
    k("s_barrier")
    k(f"s_mov_b32 s{sSPIN}, {SPIN}")

    k(f"s_cmp_ge_u32 s{sRANK}, 30\ns_cbranch_scc1 L_exit")
    k(f"s_cmp_ge_u32 s{sRANK}, 16\ns_cbranch_scc1 L_roleB")
    emit_chain_A(k, cfg, "L_abort")
    k.label("L_roleB")
    emit_chain_B(k, cfg, "L_abort")
    for t in cfg.get("outofline", []): k(t)
    k.label("L_abort")
    k(f"v_mov_b32 v1, 0\nv_mov_b32 v2, 1\nglobal_atomic_add v1, v2, s[6:7] offset:4\ns_waitcnt vmcnt(0)")
    k.label("L_exit")
    k("s_endpgm")
    k(f""".section .rodata,"a"
.p2align 6
.amdhsa_kernel {name}
  .amdhsa_next_free_vgpr 512
  .amdhsa_next_free_sgpr 102
  .amdhsa_accum_offset 256
  .amdhsa_group_segment_fixed_size 0
  .amdhsa_kernarg_size 16
  .amdhsa_user_sgpr_count 2
  .amdhsa_user_sgpr_kernarg_segment_ptr 1
  .amdhsa_system_sgpr_workgroup_id_x 1
.end_amdhsa_kernel""")
    return k.text()

if __name__ == "__main__":
    import sys, kfw
    cfg = dict(nsteps=63, prof=("prof" in sys.argv))
    t = gen_chain_test(cfg)
    open("chain_test.s", "w").write(t)
    p = kfw.check(t); w = kfw.check_waits(t)
    print("hazards", len(p), "waits", len(w))
```

```python
from kfw import *
from layout import *

class Q:
    def __init__(self, k):
        self.k = k; self.lg = []; self.vm = []
    def ds(self, txt, tag=None):
        self.k(txt); self.lg.append(tag)
    def vmem(self, txt, tag=None):
        self.k(txt); self.vm.append(tag)
    def _n(self, lst, tag):
        idx = max(i for i, t in enumerate(lst) if t == tag)
        return len(lst) - 1 - idx
    def wait_lg(self, tag):
        n = min(self._n(self.lg, tag), 15)
        self.k(f"s_waitcnt lgkmcnt({n})")
    def wait_vm(self, tag):
        n = min(self._n(self.vm, tag), 63)
        self.k(f"s_waitcnt vmcnt({n})")
    def lg0(self):
        self.k("s_waitcnt lgkmcnt(0)"); self.lg = []
    def reset(self):
        self.lg = []; self.vm = []

sWS   = 8
sRANK = 12
sWAVE = 13
sSTEP = 14
sMS   = 15
sPS   = 16
sT0   = 17
sT1   = 18
sSPIN = 19
sMaskA = 20
sMaskB = 22
sXK   = 24
sMS1  = 25
sRST  = 26
sOUT  = 27
sFLG  = 50
sMODE = 51
sVXC  = 92
sTA   = 28
sTB   = 30
sPROF = 32
SPIN  = 200000

class Prof:
    def __init__(self, k, on, rawon=False): self.k, self.on, self.n, self.rawon = k, on, 0, rawon
    def start(self):
        if not self.on: return
        k = self.k
        for i in range(12): k(f"s_mov_b32 s{sPROF+i}, 0")
        k(f"s_memtime s[{sTA}:{sTA+1}]\ns_waitcnt lgkmcnt(0)")
    def stamp(self, i):
        if not self.on: return
        k = self.k
        k(f"s_memtime s[{sTB}:{sTB+1}]\ns_waitcnt lgkmcnt(0)")
        k(f"s_sub_u32 s{sT0}, s{sTB}, s{sTA}\ns_add_u32 s{sPROF+i}, s{sPROF+i}, s{sT0}\ns_mov_b32 s{sTA}, s{sTB}")
    def raw(self, i):
        if self.rawon: self.k(f"{'s_memrealtime' if self.rawon == 'rt' else 's_memtime'} s[{52+2*i}:{53+2*i}]")
    def raw_dump(self, tmpv, offv):
        if not self.rawon: return
        k = self.k
        k("s_waitcnt lgkmcnt(0)")
        k(f"s_lshl_b32 s{sT0}, s{sRANK}, 2\ns_add_u32 s{sT0}, s{sT0}, s{sWAVE}\ns_lshl_b32 s{sT0}, s{sT0}, 6\ns_add_u32 s{sT0}, s{sT0}, {PROF}")
        k(f"v_mov_b32 v{offv}, 0")
        for i in range(16):
            k(f"v_mov_b32 v{tmpv}, s{52+2*i}")
            k(f"buffer_store_dword v{tmpv}, v{offv}, s[{sWS}:{sWS+3}], s{sT0} offen offset:{4*i}")
        k("s_waitcnt vmcnt(0)")
    def tot_start(self, on):
        if on: self.k(f"s_mov_b32 s{sPROF+11}, 0\ns_memtime s[{sTA}:{sTA+1}]\ns_memrealtime s[44:45]\ns_waitcnt lgkmcnt(0)")
    def tot_dump(self, on, tmpv, offv):
        if not on: return
        k = self.k
        k(f"s_memtime s[{sTB}:{sTB+1}]\ns_memrealtime s[46:47]\ns_waitcnt lgkmcnt(0)")
        k(f"s_sub_u32 s{sPROF}, s{sTB}, s{sTA}\ns_sub_u32 s{sPROF+1}, s46, s44\ns_sub_u32 s{sPROF+2}, s44, s96")
        k(f"s_lshl_b32 s{sT0}, s{sRANK}, 2\ns_add_u32 s{sT0}, s{sT0}, s{sWAVE}\ns_lshl_b32 s{sT0}, s{sT0}, 6\ns_add_u32 s{sT0}, s{sT0}, {PROF}")
        k(f"v_mov_b32 v{offv}, 0")
        k(f"s_mov_b32 s{sPROF+3}, s{sPROF+11}")
        for i in range(4):
            k(f"v_mov_b32 v{tmpv}, s{sPROF+i}")
            k(f"buffer_store_dword v{tmpv}, v{offv}, s[{sWS}:{sWS+3}], s{sT0} offen offset:{4*i}")
        k("s_waitcnt vmcnt(0)")
    def dump(self, tmpv, offv):
        if not self.on: return
        k = self.k
        k(f"s_lshl_b32 s{sT0}, s{sRANK}, 2\ns_add_u32 s{sT0}, s{sT0}, s{sWAVE}\ns_lshl_b32 s{sT0}, s{sT0}, 6\ns_add_u32 s{sT0}, s{sT0}, {PROF}")
        k(f"v_mov_b32 v{offv}, 0")
        for i in range(12):
            k(f"v_mov_b32 v{tmpv}, s{sPROF+i}")
            k(f"buffer_store_dword v{tmpv}, v{offv}, s[{sWS}:{sWS+3}], s{sT0} offen offset:{4*i}")
        k("s_waitcnt vmcnt(0)")


SP_L = 0
SP_STRIDE = 3200
TR_L = 12800
MKP_L = 27136
SH_L = 39424
MEM_L = 0
OP_L = 7168
WL = 12288

def retry_block(cfg, label, body, abort, target):
    cfg.setdefault("outofline", []).append(
        f"{label}:\ns_sub_u32 s{sSPIN}, s{sSPIN}, 1\ns_cbranch_scc1 {abort}\n{body}s_branch {target}")

def emit_flag_poll(k, cfg, vAddr, vD0, sExp, off, abort):
    WSR = f"s[{sWS}:{sWS+3}]"
    top = k.uid("FP"); done = k.uid("FPD")
    k(f"s_mov_b32 s{sT0}, {off}" if isinstance(off, int) else f"s_mov_b32 s{sT0}, {off}")
    k(f"buffer_load_dword v{vD0}, v{vAddr}, {WSR}, s{sT0} offen sc1")
    k.label(top)
    k(f"buffer_load_dword v{vD0+1}, v{vAddr}, {WSR}, s{sT0} offen sc1")
    k("s_waitcnt vmcnt(1)")
    k(f"v_cmp_gt_u32 vcc, s{sExp}, v{vD0}")
    k(f"s_cbranch_vccz {done}")
    k(f"buffer_load_dword v{vD0}, v{vAddr}, {WSR}, s{sT0} offen sc1")
    k("s_waitcnt vmcnt(1)")
    k(f"v_cmp_gt_u32 vcc, s{sExp}, v{vD0+1}")
    k(f"s_cbranch_vccz {done}")
    k(f"s_sub_u32 s{sSPIN}, s{sSPIN}, 1\ns_cbranch_scc0 {top}\ns_branch {abort}")
    k.label(done)

def blockregA(b):
    return Reg("a", 8 * b) if b < 28 else Reg("v", 88 + 8 * (b - 28))

def emit_ring_advance(k):
    k(f"s_add_u32 s{sSTEP}, s{sSTEP}, 1")
    k(f"s_and_b32 s{sT0}, s{sSTEP}, 3")
    k(f"s_mul_i32 s{sMS}, s{sT0}, 7168\ns_add_u32 s{sMS}, s{sMS}, {MEMRING}")
    k(f"s_mul_i32 s{sPS}, s{sT0}, 10240\ns_add_u32 s{sPS}, s{sPS}, {PRING}")

def emit_chain_A(k, cfg, abort):
    prof = Prof(k, cfg.get("prof"), cfg.get("raw"))
    q = Q(k)
    WSR = f"s[{sWS}:{sWS+3}]"
    modes = cfg.get("modes", [cfg.get("st", "")])
    ST = modes[0]
    vL16, vL8, vTRw, vTRr, vMKg, vSR, vTRw2, vPst, vIdx, vX, vT, vDet, vSWx, vSWm, vTRr2 = range(1, 16)
    vLane = 0
    TMP, ACC, TR, MEM = 16, 20, 48, 60
    SACC = ACC
    XK = 224
    def TRr(tile): return (A(252, 2) if tile == 6 else V(TR + 2 * tile, 2))
    if cfg.get("tot"): k("s_memrealtime s[86:87]")
    k("v_and_b32 v0, 63, v0")
    k(f"v_lshlrev_b32 v{vL16}, 4, v{vLane}")
    k(f"v_lshlrev_b32 v{vL8}, 3, v{vLane}")
    k(f"v_and_b32 v{vX}, 15, v{vLane}")
    k(f"v_lshrrev_b32 v{vT}, 4, v{vLane}")
    k(f"v_min_u32 v{vDet}, 13, v{vX}\nv_lshlrev_b32 v{vDet}, 2, v{vDet}")
    k(f"s_mul_i32 s{sT1}, s{sWAVE}, 3584\ns_add_u32 s{sT1}, s{sT1}, {TR_L}\ns_add_u32 s{sT0}, s{sT1}, {3072 if cfg.get('pairs', False) else 0}")
    k(f"v_lshrrev_b32 v{vTRw2}, 3, v{vX}\nv_lshlrev_b32 v{vTRw2}, 9, v{vTRw2}\nv_lshl_add_u32 v{vTRw2}, v{vT}, 7, v{vTRw2}")
    k(f"v_and_b32 v{TMP}, 7, v{vX}\nv_lshl_add_u32 v{vTRw2}, v{TMP}, 4, v{vTRw2}\nv_add_u32 v{vTRw2}, s{sT1}, v{vTRw2}")
    k(f"v_lshrrev_b32 v{vTRr2}, 1, v{vT}\nv_lshlrev_b32 v{vTRr2}, 9, v{vTRr2}")
    k(f"v_and_b32 v{TMP}, 3, v{vLane}\nv_lshl_add_u32 v{vTRr2}, v{TMP}, 7, v{vTRr2}")
    k(f"v_and_b32 v{TMP}, 1, v{vT}\nv_lshl_add_u32 v{vTRr2}, v{TMP}, 6, v{vTRr2}")
    k(f"v_bfe_u32 v{TMP}, v{vLane}, 2, 2\nv_lshl_add_u32 v{vTRr2}, v{TMP}, 4, v{vTRr2}\nv_add_u32 v{vTRr2}, s{sT1}, v{vTRr2}")
    k(f"v_lshrrev_b32 v{vTRw}, 3, v{vX}\nv_lshlrev_b32 v{vTRw}, 8, v{vTRw}")
    k(f"v_lshl_add_u32 v{vTRw}, v{vT}, 6, v{vTRw}")
    k(f"v_and_b32 v{TMP}, 7, v{vX}\nv_lshl_add_u32 v{vTRw}, v{TMP}, 3, v{vTRw}")
    k(f"v_add_u32 v{vTRw}, s{sT0}, v{vTRw}")
    k(f"v_lshrrev_b32 v{vTRr}, 1, v{vT}\nv_lshlrev_b32 v{vTRr}, 8, v{vTRr}")
    k(f"v_and_b32 v{TMP}, 3, v{vLane}\nv_lshl_add_u32 v{vTRr}, v{TMP}, 6, v{vTRr}")
    k(f"v_and_b32 v{TMP}, 1, v{vT}\nv_lshl_add_u32 v{vTRr}, v{TMP}, 5, v{vTRr}")
    k(f"v_bfe_u32 v{TMP}, v{vLane}, 2, 2\nv_lshl_add_u32 v{vTRr}, v{TMP}, 3, v{vTRr}")
    k(f"v_add_u32 v{vTRr}, s{sT0}, v{vTRr}")
    k(f"v_lshrrev_b32 v{vMKg}, 1, v{vT}\nv_lshlrev_b32 v{vMKg}, 7, v{vMKg}")
    k(f"v_and_b32 v{TMP}, 7, v{vLane}\nv_lshl_add_u32 v{vMKg}, v{TMP}, 4, v{vMKg}")
    k(f"v_and_b32 v{TMP+1}, 1, v{vT}\nv_lshl_add_u32 v{vMKg}, v{TMP+1}, 3, v{vMKg}")
    k(f"s_mul_i32 s{sT1}, s{sWAVE}, {SP_STRIDE}\ns_add_u32 s{sT1}, s{sT1}, {SP_L}")
    k(f"v_add_u32 v{TMP}, v{vX}, v{vT}\nv_and_b32 v{TMP+1}, 15, v{TMP}\nv_lshlrev_b32 v{vSWx}, 4, v{TMP+1}")
    k(f"v_lshl_add_u32 v{vSWx}, v{vT}, 8, v{vSWx}\nv_add_u32 v{vSWx}, s{sT1}, v{vSWx}")
    k(f"v_add_u32 v{TMP}, 4, v{TMP}\nv_and_b32 v{TMP+1}, 15, v{TMP}\nv_lshlrev_b32 v{vSWm}, 4, v{TMP+1}")
    k(f"v_lshl_add_u32 v{vSWm}, v{vT}, 8, v{vSWm}\nv_add_u32 v{vSWm}, s{sT1}, v{vSWm}\nv_add_u32 v{vSWm}, 1024, v{vSWm}")
    k(f"s_lshl_b32 s{sT1}, s{sWAVE}, 2")
    k(f"v_add_u32 v{TMP}, s{sT1}, v{vT}")
    k(f"v_add_u32 v{TMP+1}, 2, v{vX}\nv_and_b32 v{TMP+1}, 3, v{TMP+1}")
    k(f"v_cmp_gt_u32 vcc, 2, v{vX}\ns_nop 1\nv_cndmask_b32 v{TMP+1}, v{TMP+1}, v{vX}, vcc")
    k(f"v_add_u32 v{TMP+2}, v{TMP}, v{TMP+1}")
    k(f"v_add_u32 v{TMP+3}, 4, v{TMP+2}\nv_cndmask_b32 v{TMP+2}, v{TMP+2}, v{TMP+3}, vcc")
    k(f"v_lshlrev_b32 v{vSR}, 8, v{TMP+1}\nv_add_u32 v{TMP+3}, 1024, v{vSR}\nv_cndmask_b32 v{vSR}, v{vSR}, v{TMP+3}, vcc")
    k(f"v_cmp_le_u32 vcc, 6, v{vX}\nv_add_u32 v{TMP+3}, 8, v{TMP+2}\ns_nop 0\nv_cndmask_b32 v{TMP+2}, v{TMP+2}, v{TMP+3}, vcc")
    k(f"v_and_b32 v{TMP+2}, 15, v{TMP+2}\nv_lshl_add_u32 v{vSR}, v{TMP+2}, 4, v{vSR}\nv_add_u32 v{vSR}, {SP_L}, v{vSR}")
    k(f"v_cmp_gt_u32 vcc, 10, v{vX}\nv_mov_b32 v{TMP+3}, {SP_L+3072}\ns_nop 0\nv_cndmask_b32 v{vSR}, v{TMP+3}, v{vSR}, vcc")
    k(f"v_cmp_gt_u32 s[{sMaskA}:{sMaskA+1}], 10, v{vX}")
    k(f"v_cmp_gt_u32 s[{sMaskB}:{sMaskB+1}], 40, v{vLane}")
    k(f"v_mov_b32 v{vIdx}, 0x44444444\nv_mov_b32 v{TMP+2}, 0xeeeeeeee")
    k(f"v_and_b32 v{TMP+1}, 8, v{vLane}\nv_cmp_ne_u32 vcc, 0, v{TMP+1}\ns_nop 1\nv_cndmask_b32 v{vIdx}, v{vIdx}, v{TMP+2}, vcc")
    k(f"s_lshr_b32 s{sT0}, s{sRANK}, 2\ns_mul_i32 s{sT0}, s{sT0}, 2560")
    k(f"s_bfe_u32 s{sT1}, s{sRANK}, 0x10001\ns_lshl_b32 s{sMS}, s{sT1}, 10\ns_lshl_b32 s{sPS}, s{sT1}, 8")
    k(f"s_and_b32 s{sT1}, s{sRANK}, 1\ns_lshl_b32 s{sMS1}, s{sT1}, 9\ns_add_u32 s{sMS}, s{sMS}, s{sMS1}")
    k(f"s_lshl_b32 s{sMS1}, s{sT1}, 7\ns_add_u32 s{sPS}, s{sPS}, s{sMS1}\ns_add_u32 s{sPS}, s{sPS}, 2048")
    k(f"s_add_u32 s{sMS}, s{sMS}, s{sT0}\ns_add_u32 s{sPS}, s{sPS}, s{sT0}")
    k(f"v_subrev_u32 v{TMP+1}, 2, v{vX}\nv_lshrrev_b32 v{TMP+1}, 1, v{TMP+1}")
    k(f"v_lshrrev_b32 v{TMP+2}, 1, v{TMP+1}\nv_lshlrev_b32 v{TMP+2}, 8, v{TMP+2}")
    k(f"v_and_b32 v{TMP+1}, 1, v{TMP+1}\nv_lshl_add_u32 v{TMP+2}, v{TMP+1}, 7, v{TMP+2}\nv_add_u32 v{TMP+2}, s{sMS}, v{TMP+2}")
    k(f"v_mov_b32 v{TMP+1}, s{sPS}\nv_cmp_gt_u32 vcc, 2, v{vX}\ns_nop 1\nv_cndmask_b32 v{TMP+2}, v{TMP+2}, v{TMP+1}, vcc")
    k(f"v_lshl_add_u32 v{vPst}, v{TMP}, 4, v{TMP+2}")
    k(f"v_and_b32 v{TMP+1}, 1, v{vX}\nv_lshl_add_u32 v{vPst}, v{TMP+1}, 3, v{vPst}")
    k(f"v_add_u32 v{TMP+1}, s{sMS}, v{vL16}\nv_add_u32 v{TMP+2}, s{sPS}, v{vL16}\nv_subrev_u32 v{TMP+2}, 512, v{TMP+2}")
    k(f"v_cmp_gt_u32 vcc, 32, v{vLane}\ns_nop 1\nv_cndmask_b32 v0, v{TMP+2}, v{TMP+1}, vcc")
    k(f"s_lshr_b32 s{sT0}, s{sRANK}, 2\ns_lshl_b32 s{sT0}, s{sT0}, 7\ns_and_b32 s{sT1}, s{sRANK}, 3\ns_lshl_b32 s{sT1}, s{sT1}, 2")
    k(f"s_add_u32 s{sFLG}, s{sT0}, s{sT1}\ns_add_u32 s{sFLG}, s{sFLG}, {FLAGP}")
    k(f"s_mul_i32 s{sT0}, s{sRANK}, 401408\ns_mul_i32 s{sT1}, s{sWAVE}, 100352\ns_add_u32 s{sT0}, s{sT0}, s{sT1}")
    if WA_OFF: k(f"s_add_u32 s{sT0}, s{sT0}, {WA_OFF}")
    FUSED = cfg.get("fused")
    LDF = "sc1" if FUSED else ""
    def wload(i):
        b, a = i >> 1, i & 1
        R = blockregA(b)
        off = i * 1024
        if off and off % 4096 == 0: k(f"s_add_u32 s{sT0}, s{sT0}, 4096")
        k(f"buffer_load_dwordx4 {R.r(4*a,4)}, v{vL16}, {WSR}, s{sT0} offen offset:{off%4096} {LDF}")
    if not FUSED:
        for i in range(98): wload(i)
    else:
        k(f"s_lshl_b32 s{sMS}, s{sRANK}, 2\ns_add_u32 s{sMS}, s{sMS}, s{sWAVE}\ns_lshl_b32 s{sMS}, s{sMS}, 7\ns_add_u32 s{sMS}, s{sMS}, {C_WA}")
        k(f"v_min_u32 v{TMP}, 6, v{vLane}\nv_lshlrev_b32 v{TMP}, 2, v{TMP}")
        def poll_tiles(mask_lo, inflight):
            top = k.uid("A_wp"); ok_ = k.uid("A_wpo")
            k(f"buffer_load_dword v{TMP+1}, v{TMP}, {WSR}, s{sMS} offen sc1")
            for f in inflight: f()
            k(f"s_waitcnt vmcnt({len(inflight)})")
            k.label(top)
            k(f"v_cmp_gt_u32 vcc, 7, v{TMP+1}\ns_and_b32 vcc_lo, vcc_lo, {(1 << mask_lo) - 1}\ns_mov_b32 vcc_hi, 0\ns_cbranch_vccz {ok_}")
            k(f"s_sleep 1\nbuffer_load_dword v{TMP+1}, v{TMP}, {WSR}, s{sMS} offen sc1\ns_waitcnt vmcnt(0)")
            k(f"s_sub_u32 s{sSPIN}, s{sSPIN}, 1\ns_cbranch_scc0 {top}\ns_branch {abort}")
            k.label(ok_)
        def pst(n):
            if cfg.get("tot"): k(f"s_memrealtime s[{60+2*n}:{61+2*n}]")
        poll_tiles(2, [])
        pst(0)
        for i in range(20): wload(i)
        poll_tiles(4, [lambda i=i: wload(i) for i in range(20, 28)])
        pst(1)
        for i in range(28, 48): wload(i)
        poll_tiles(7, [lambda i=i: wload(i) for i in range(48, 56)])
        pst(2)
        for i in range(56, 98): wload(i)
        pst(3)
        k(f"s_mov_b32 s{sMS}, {C_LN}\nv_mov_b32 v{TMP}, 0")
        top = k.uid("A_ln"); ok_ = k.uid("A_lno")
        k.label(top)
        k(f"buffer_load_dword v{TMP+1}, v{TMP}, {WSR}, s{sMS} offen sc1\ns_waitcnt vmcnt(0)")
        k(f"v_cmp_gt_u32 vcc, 64, v{TMP+1}\ns_cbranch_vccz {ok_}")
        k(f"s_sleep 1\ns_sub_u32 s{sSPIN}, s{sSPIN}, 1\ns_cbranch_scc0 {top}\ns_branch {abort}")
        k.label(ok_)
        if cfg.get("tot"):
            k(f"s_memrealtime s[68:69]\ns_waitcnt lgkmcnt(0)\ns_lshl_b32 s{sMS}, s{sRANK}, 2\ns_add_u32 s{sMS}, s{sMS}, s{sWAVE}\ns_lshl_b32 s{sMS}, s{sMS}, 5\ns_add_u32 s{sMS}, s{sMS}, {PROF+61440}\nv_mov_b32 v{TMP}, 0")
            for n in range(5): k(f"v_mov_b32 v{TMP+1}, s{60+2*n}\nbuffer_store_dword v{TMP+1}, v{TMP}, {WSR}, s{sMS} offen offset:{4*n}")
    def xk_prefetch():
        for kap in range(2):
            for p in range(3):
                off = kap * 3584 + p * 1024
                so = sXK if off < 4096 else sT1
                if off >= 4096 and p == 1: k(f"s_add_u32 s{sT1}, s{sXK}, 4096")
                k(f"buffer_load_dwordx4 {A(XK+kap*14+4*p,4)}, v{vL16}, {WSR}, s{so} offen offset:{off%4096} {LDF}")
            off = kap * 3584 + 3072
            so = sXK if off < 4096 else sT1
            k(f"buffer_load_dwordx2 {A(XK+kap*14+12,2)}, v{vL8}, {WSR}, s{so} offen offset:{off%4096} {LDF}")
    k(f"s_mul_i32 s{sXK}, s{sWAVE}, 7168\ns_add_u32 s{sXK}, s{sXK}, {XK_OFF}")
    xk_prefetch()
    def zero_acc():
        for i in range(0, 28, 2): k(f"v_mov_b64 {V(ACC+i,2)}, 0")
    zero_acc()
    for i in range(4): k(f"v_mov_b32 v{TR+i}, 0xff800000")
    k(f"s_mul_i32 s{sT1}, s{sWAVE}, {SP_STRIDE}\ns_add_u32 s{sT1}, s{sT1}, {SP_L+3072}\nv_mov_b32 v{TMP}, s{sT1}")
    k(f"ds_write_b128 v{TMP}, {V(TR,4)}")
    k("s_waitcnt vmcnt(0) lgkmcnt(0)")
    if cfg.get("tot"): k("s_memrealtime s[88:89]\ns_waitcnt lgkmcnt(0)")
    if cfg.get("mark"): cfg["mark"](cfg.get("_mw", 3), 16 if cfg.get("_mw", 3) == 3 else 12, only=(sRANK, 0))
    k(f"s_mov_b32 s{sSTEP}, 0\ns_mov_b32 s{sMS}, {MEMRING}\ns_mov_b32 s{sPS}, {PRING}")
    def softmax(q, W, ST):
        X = TR
        dst = [TR, MEM, MEM+4, MEM+8]
        for u in range(4):
            q.ds(f"ds_read_b128 {V(dst[u],4)}, v{vSR} offset:{u*SP_STRIDE}", f"sp{u}")
        def pflag():
            if W != 0: return
            k(f"s_add_u32 s{sT0}, s{sSTEP}, 1\nv_mov_b32 v{TMP}, s{sT0}\nv_mov_b32 v{TMP+1}, 0")
            k(f"s_mov_b64 exec, 1\nbuffer_store_dword v{TMP}, v{TMP+1}, {WSR}, s{sFLG} offen {ST}\ns_mov_b64 exec, -1")
        fpos = cfg.get("pflag_pos", 2)
        if fpos == 0: pflag()
        def pk(d, a, b):
            k(f"v_pk_add_f32 {V(d,2)}, {V(a,2)}, {V(b,2)}\nv_pk_add_f32 {V(d+2,2)}, {V(a+2,2)}, {V(b+2,2)}")
        q.wait_lg("sp1"); pk(dst[0], dst[0], dst[1])
        q.wait_lg("sp3"); pk(dst[2], dst[2], dst[3]); pk(dst[0], dst[0], dst[2])
        q.reset()
        prof.raw(8)
        if fpos == 1: pflag()
        M = vX; L = MEM + 12
        k(f"v_max3_f32 v{M}, v{X}, v{X+1}, v{X+2}")
        k(f"v_max_f32 v{M}, v{M}, v{X+3}")
        for ror in (8, 4, 2, 1):
            k("s_nop 1")
            k(f"v_max_f32_dpp v{M}, v{M}, v{M} row_ror:{ror} row_mask:0xf bank_mask:0xf")
        if fpos == 2: pflag()
        k(f"v_pk_add_f32 {V(X,2)}, {V(X,2)}, {V(M,2)} op_sel_hi:[1,0] neg_lo:[0,1] neg_hi:[0,1]")
        k(f"v_pk_add_f32 {V(X+2,2)}, {V(X+2,2)}, {V(M,2)} op_sel_hi:[1,0] neg_lo:[0,1] neg_hi:[0,1]")
        for i in range(4): k(f"v_exp_f32 v{X+i}, v{X+i}")
        if fpos == 3: pflag()
        k(f"s_nop 0\nv_pk_add_f32 {V(TMP+2,2)}, {V(X,2)}, {V(X+2,2)}")
        k(f"v_add_f32 v{L}, v{TMP+2}, v{TMP+3}")
        for ror in (8, 4, 2, 1):
            k("s_nop 1")
            k(f"v_add_f32_dpp v{L}, v{L}, v{L} row_ror:{ror} row_mask:0xf bank_mask:0xf")
        if fpos == 4: pflag()
        k(f"v_rcp_f32 v{L}, v{L}")
        k("s_nop 0")
        k(f"v_pk_mul_f32 {V(X,2)}, {V(X,2)}, {V(L,2)} op_sel_hi:[1,0]")
        k(f"v_pk_mul_f32 {V(X+2,2)}, {V(X+2,2)}, {V(L,2)} op_sel_hi:[1,0]")
        k(f"v_cvt_pk_bf16_f32 v{X}, v{X}, v{X+1}\nv_cvt_pk_bf16_f32 v{X+1}, v{X+2}, v{X+3}")
        k(f"v_min_u32 v{X}, -2, v{X}\nv_min_u32 v{X+1}, -2, v{X+1}")
        k(f"s_mov_b64 exec, s[{sMaskA}:{sMaskA+1}]")
        k(f"buffer_store_dwordx2 {V(X,2)}, v{vPst}, {WSR}, s{sPS} offen {ST}")
        k("s_mov_b64 exec, -1")
        prof.raw(9)
        if fpos == 5: pflag()
        prof.raw(11)
    def preset(ST):
        X = TR
        k(f"s_add_u32 s{sRST}, s{sSTEP}, 2\ns_and_b32 s{sRST}, s{sRST}, 3\ns_mul_i32 s{sRST}, s{sRST}, 10240\ns_add_u32 s{sRST}, s{sRST}, {PRING}")
        for i in range(4): k(f"v_mov_b32 v{X+i}, -1")
        k(f"s_mov_b64 exec, s[{sMaskB}:{sMaskB+1}]")
        k(f"buffer_store_dwordx4 {V(X,4)}, v0, {WSR}, s{sRST} offen {ST}")
        k("s_mov_b64 exec, -1")
    def wave_loop(W, ST):
        q = Q(k)
        prof.start(); prof.tot_start(cfg.get("tot"))
        loop = k.uid("A_loop")
        k.label(loop)
        prof.stamp(0); prof.raw(0)
        if cfg.get("allpoll"):
            emit_flag_poll(k, cfg, vDet, TMP, sSTEP, FLAGM, abort)
        else:
            if W == cfg.get("pollwave", 2): emit_flag_poll(k, cfg, vDet, TMP, sSTEP, FLAGM, abort)
            k("s_barrier")
        prof.stamp(1); prof.raw(1)
        if cfg.get("trace"): k(f"s_memtime s[90:91]")
        q.reset()
        def mem_load(t):
            so = sMS if t < 4 else sMS1
            q.vmem(f"buffer_load_dwordx4 {V(MEM+4*t,4)}, v{vL16}, {WSR}, s{so} offen offset:{(t*1024)%4096} sc1", f"mem{t}")
        t0w, t1w = (112 * W) >> 6, (112 * W + 111) >> 6
        rot = cfg.get("rot", 2)
        ko = [(rot * W + i) % 7 for i in range(7)]
        def lds_of(t): return MKP_L + W * 3072 + (t - t0w) * 1024
        def stage(t, out=None):
            txt = f"ds_write_b128 v{vL16}, {V(MEM+4*t,4)} offset:{lds_of(t)}"
            if out is None: q.ds(txt, f"st{t}")
            else: out(txt)
        k(f"s_add_u32 s{sMS1}, s{sMS}, 4096") if ko[0] >= 4 else None
        mem_load(ko[0])
        if ko[0] < 4: k(f"s_add_u32 s{sMS1}, s{sMS}, 4096")
        for i in range(0, 14, 2): k(f"v_mov_b64 {V(ACC+i,2)}, 0")
        for i in range(cfg.get("pace", 5)): k("s_nop 0")
        mem_load(ko[1])
        for i in range(14, 28, 2): k(f"v_mov_b64 {V(ACC+i,2)}, 0")
        for i in range(cfg.get("pace", 5)): k("s_nop 0")
        mem_load(ko[2])
        k(f"s_nop {cfg.get('pace2', 12)}")
        mem_load(ko[3])
        k(f"s_nop {cfg.get('pace2', 12)}")
        mem_load(ko[4])
        again = k.uid("A_again"); retry = k.uid("A_retry")
        def smf(tt, t):
            R = blockregA(7 * tt + t)
            k(f"v_smfmac_f32_16x16x64_bf16 {V(ACC+4*tt,4)}, {V(MEM+4*t,4)}, {R.r(0,8)}, v{vIdx}")
        def cvt(tile, hi):
            pa = ACC + 4 * tile + 2 * hi
            k(f"v_cvt_pk_bf16_f32 v{TMP+2*(tile&1)+hi}, v{pa}, v{pa+1}")
        k("s_waitcnt vmcnt(4)")
        prof.raw(2)
        for i, t in enumerate(ko):
            m0 = MEM + 4 * t
            fl = [[], [], [], []]
            if i < 2: fl[0].append(lambda i=i: mem_load(ko[i + 5]))
            fl[1 if i < 2 else 0].append(lambda i=i, m0=m0: k(f"v_max_u32 v{vX}, v{m0}, v{m0+1}" if i == 0 else f"v_max3_u32 v{vX}, v{vX}, v{m0}, v{m0+1}"))
            fl[2 if i < 2 else 1].append(lambda m0=m0: k(f"v_max3_u32 v{vX}, v{vX}, v{m0+2}, v{m0+3}"))
            if t0w <= t <= t1w: fl[3 if i < 2 or i == 6 else 2].append(lambda t=t: stage(t))
            if i == 6:
                fl[2].append(lambda: k(f"v_cmp_eq_u32 vcc, -1, v{vX}"))
                if not cfg.get("pairs", False): fl[3].append(lambda: cvt(0, 0))
            else: fl[3].append(lambda i=i: k(f"s_waitcnt vmcnt({[4,4,3,2,1,0][i]})"))
            for tt in range(4):
                smf(tt, t)
                for f in fl[tt]: f()
            if cfg.get("raw2") and i < 5: prof.raw(11 + i)
        k(f"s_cbranch_vccnz {retry}")
        prof.raw(3)
        rb = K()
        lab = k.uid("A_rl")
        rb(f"{lab}:")
        rb(f"s_add_u32 s{sMS1}, s{sMS}, 4096")
        for t in range(7):
            so = sMS if t < 4 else sMS1
            rb(f"buffer_load_dwordx4 {V(MEM+4*t,4)}, v{vL16}, {WSR}, s{so} offen offset:{(t*1024)%4096} sc1")
        rb("s_waitcnt vmcnt(0)")
        rb(f"v_max3_u32 v{vX}, v{MEM}, v{MEM+1}, v{MEM+2}")
        for i in range(3, 27, 2): rb(f"v_max3_u32 v{vX}, v{vX}, v{MEM+i}, v{MEM+i+1}")
        rb(f"v_max_u32 v{vX}, v{vX}, v{MEM+27}")
        rb(f"v_cmp_eq_u32 vcc, -1, v{vX}")
        ok_ = k.uid("A_rok")
        rb(f"s_cbranch_vccz {ok_}")
        rb(f"s_sub_u32 s{sSPIN}, s{sSPIN}, 1\ns_cbranch_scc0 {lab}\ns_branch {abort}")
        rb(f"{ok_}:")
        for i in range(0, 16, 2): rb(f"v_mov_b64 {V(ACC+i,2)}, 0")
        if cfg.get("cnt_retry"): rb(f"s_add_u32 s{sPROF+11}, s{sPROF+11}, 1")
        for t in range(t0w, t1w + 1): stage(t, rb)
        rb("s_nop 1")
        for t in range(7):
            for tt in range(4):
                R = blockregA(7 * tt + t)
                rb(f"v_smfmac_f32_16x16x64_bf16 {V(ACC+4*tt,4)}, {V(MEM+4*t,4)}, {R.r(0,8)}, v{vIdx}")
        if not cfg.get("pairs", False): rb(f"v_cvt_pk_bf16_f32 v{TMP}, v{ACC}, v{ACC+1}")
        rb(f"s_branch {again}")
        cfg.setdefault("outofline", []).append(f"{retry}:\ns_nop 7\n" + rb.text())
        k.label(again)
        q.vm = []
        def wr2(pair): q.ds(f"ds_write_b128 v{vTRw2}, {V(TMP,4)} offset:{pair*1024}", f"w{pair}")
        PAIRS = cfg.get("pairs", False)
        def wr6(): q.ds(f"ds_write_b64 v{vTRw}, {V(TMP,2)} offset:{0 if PAIRS else 3072}", "w6")
        def wr1(tile): q.ds(f"ds_write_b64 v{vTRw}, {V(TMP+2*(tile&1),2)} offset:{tile*512}", f"w{tile}")
        def tr(tile):
            if tile == 6: q.ds(f"ds_read_b64_tr_b16 {TRr(6)}, v{vTRr} offset:{0 if PAIRS else 3072}", "tr6")
            elif not PAIRS: q.ds(f"ds_read_b64_tr_b16 {TRr(tile)}, v{vTRr} offset:{tile*512}", f"tr{tile}")
            else: q.ds(f"ds_read_b64_tr_b16 {TRr(tile)}, v{vTRr2} offset:{(tile>>1)*1024+(tile&1)*8}", f"tr{tile}")
        def mk(tt):
            tau = 7 * W + tt
            q.ds(f"ds_read_b64 {V(MEM+2*tt,2)}, v{vMKg} offset:{lds_of(tau >> 2) + 256 * (tau & 3)}", f"mk{tt}")
        fill_after = {}
        if PAIRS:
            slot = 0
            for pair in range(3):
                for f in [("c", 2*pair, 0), ("c", 2*pair, 1), ("c", 2*pair+1, 0), ("c", 2*pair+1, 1), ("w", pair), ("t", 2*pair), ("t", 2*pair+1)]:
                    fill_after.setdefault(slot, []).append(f); slot += 1
        else:
            if W < 2 or not cfg.get("stagger", True):
                seq_ = [("c", 0, 1), ("w1", 0), ("t", 0)]
                for tile in range(1, 5): seq_ += [("c", tile, 0), ("c", tile, 1), ("w1", tile), ("t", tile)]
                seq_ += [("c", 5, 0), ("c", 5, 1)]
            else:
                seq_ = [("c", 0, 1), ("c", 1, 0), ("c", 1, 1)]
                for tile in range(0, 4): seq_ += [("w1", tile), ("t", tile), ("c", tile + 2, 0), ("c", tile + 2, 1)]
                seq_ += [("w1", 4), ("t", 4)]
            for slot, f in enumerate(seq_): fill_after.setdefault(slot, []).append(f)
        def dofill(f):
            if f[0] == "c": cvt(f[1], f[2])
            elif f[0] == "w":
                if PAIRS: wr2(f[1])
                else: wr1(2*f[1]); wr1(2*f[1]+1)
            elif f[0] == "w1": wr1(f[1])
            elif f[0] == "t": tr(f[1])
        sl = 0
        for tt in (4, 5, 6):
            for t in range(7):
                smf(tt, t)
                for f in fill_after.get(sl, []): dofill(f)
                sl += 1
        prof.raw(4)
        def smm(kap, p, first=False):
            D = V(SACC + 4 * kap, 4)
            C = "0" if first else D
            if p < 3:
                Aop = A(XK + kap * 14 + 4 * p, 4) if kap < 2 else V(MEM + 4 * p, 4)
                k(f"v_mfma_f32_16x16x32_bf16 {D}, {Aop}, {V(TR+4*p,4)}, {C}")
            else:
                Aop = A(XK + kap * 14 + 12, 2) if kap < 2 else V(MEM + 12, 2)
                k(f"v_mfma_f32_16x16x16_bf16 {D}, {Aop}, {TRr(6)}, {C}")
        if not PAIRS: wr1(5); tr(5)
        q.wait_lg("tr3")
        smm(0, 0, True)
        mk(0); mk(1)
        smm(1, 0, True)
        mk(2); mk(3)
        smm(0, 1)
        cvt(6, 0); cvt(6, 1)
        smm(1, 1)
        wr6(); tr(6)
        q.wait_lg("tr5")
        smm(0, 2)
        mk(4); mk(5)
        smm(1, 2)
        mk(6)
        q.wait_lg("mk3")
        smm(2, 0, True); smm(2, 1)
        q.wait_lg("mk5")
        smm(2, 2)
        smm(0, 3); smm(1, 3)
        q.wait_lg("mk6")
        smm(2, 3)
        prof.raw(5)
        k(f"s_add_u32 s{sXK}, s{sXK}, 28672")
        k("s_nop 3")
        for r in range(4): k(f"v_add_f32_dpp v{SACC+r}, v{SACC+r}, v{SACC+r} row_ror:8 row_mask:0xf bank_mask:0x3")
        for r in range(4): k(f"v_add_f32_dpp v{SACC+r}, v{SACC+4+r}, v{SACC+4+r} row_ror:8 row_mask:0xf bank_mask:0xc")
        q.ds(f"ds_write_b128 v{vSWx}, {V(SACC,4)}")
        for r in range(4): k(f"v_add_f32_dpp v{SACC+8+r}, v{SACC+8+r}, v{SACC+8+r} row_ror:8 row_mask:0xf bank_mask:0xf")
        q.ds(f"ds_write_b128 v{vSWm}, {V(SACC+8,4)}")
        q.lg0()
        prof.stamp(3); prof.raw(6)
        k("s_barrier")
        prof.stamp(4); prof.raw(7)
        X = TR
        if W < 2: softmax(q, W, ST)
        if cfg.get("bar3", True): k("s_barrier")
        if W == 3: preset(ST)
        if cfg.get("trace") and W == 3:
            k(f"s_waitcnt lgkmcnt(0)\ns_lshl_b32 s{sT0}, s{sRANK}, 6\ns_add_u32 s{sT0}, s{sT0}, s{sSTEP}\ns_lshl_b32 s{sT0}, s{sT0}, 2\ns_add_u32 s{sT0}, s{sT0}, {PROF+8192}")
            k(f"v_mov_b32 v{TR+4}, s90\nv_mov_b32 v{TR+5}, 0\ns_mov_b64 exec, 1\nbuffer_store_dword v{TR+4}, v{TR+5}, {WSR}, s{sT0} offen\ns_mov_b64 exec, -1")
        xk_prefetch()
        prof.stamp(5); prof.raw(10)
        emit_ring_advance(k)
        k("s_waitcnt vmcnt(0)")
        k(f"s_cmp_lt_u32 s{sSTEP}, {cfg['nsteps']}\ns_cbranch_scc1 {loop}")
        prof.raw_dump(TR, TR + 1); prof.dump(TR, TR + 1); prof.tot_dump(cfg.get("tot"), TR, TR + 1)
        k("s_endpgm")
    if cfg.get("mode_hook"): cfg["mode_hook"](k, TR)
    mlabs = [k.uid("A_m") for _ in modes]
    if len(modes) > 1: k(f"s_cmp_eq_u32 s{sMODE}, 1\ns_cbranch_scc1 {mlabs[1]}")
    for mi, st in enumerate(modes):
        k.label(mlabs[mi])
        labs = [k.uid("A_w") for _ in range(4)]
        for w in range(1, 4): k(f"s_cmp_eq_u32 s{sWAVE}, {w}\ns_cbranch_scc1 {labs[w]}")
        for w in range(4):
            k.label(labs[w])
            wave_loop(w, st)

def blockregB(tau, t):
    if t == 6 and tau < 6: return None
    b = 7 * tau + t - min(tau, 6)
    return Reg("a", 32 + 8 * b) if b < 28 else Reg("v", 80 + 8 * (b - 28))

def emit_chain_B(k, cfg, abort):
    prof = Prof(k, cfg.get("prof"), cfg.get("raw"))
    q = Q(k)
    WSR = f"s[{sWS}:{sWS+3}]"
    modes = cfg.get("modes", [cfg.get("st", "")])
    vL16, vPollA, vPollB, vP0, vPm, vOA, vOR, vMst, vIdx, vWL, vDet = range(1, 12)
    vLane = 0
    WT, ACC, VB, MEM = 12, 28, 36, 52
    vT = WT
    VXR = 0
    cfg["_mw"] = 6
    if cfg.get("tot"): k("s_memrealtime s[86:87]")
    k(f"s_sub_u32 s{sRANK}, s{sRANK}, 16")
    k("v_and_b32 v0, 63, v0")
    k(f"v_lshlrev_b32 v{vL16}, 4, v{vLane}")
    k(f"s_mul_i32 s{sT0}, s{sWAVE}, 1792")
    k(f"v_add_u32 v{vPollA}, s{sT0}, v{vL16}")
    k(f"v_min_u32 v{vT}, 47, v{vLane}")
    k(f"v_lshlrev_b32 v{vT}, 4, v{vT}")
    k(f"s_add_u32 s{sT1}, s{sT0}, 1024")
    k(f"v_add_u32 v{vPollB}, s{sT1}, v{vT}")
    I, SUB, GA, T2 = WT + 1, WT + 2, WT + 3, WT + 4
    k(f"v_and_b32 v{I}, 7, v{vLane}\nv_bfe_u32 v{SUB}, v{vLane}, 3, 1\nv_lshrrev_b32 v{GA}, 4, v{vLane}")
    k(f"v_and_b32 v{T2}, 3, v{vLane}\nv_lshlrev_b32 v{vDet}, 2, v{T2}\ns_lshl_b32 s{sT0}, s{sWAVE}, 7\nv_add_u32 v{vDet}, s{sT0}, v{vDet}")
    k(f"s_mul_i32 s{sT0}, s{sWAVE}, 2560")
    k(f"v_add_u32 v{vP0}, s{sT0}, v{vL16}")
    k(f"v_lshrrev_b32 v{T2}, 1, v{GA}\nv_lshlrev_b32 v{vPm}, 8, v{T2}")
    k(f"v_lshl_add_u32 v{vPm}, v{SUB}, 7, v{vPm}\nv_lshl_add_u32 v{vPm}, v{I}, 4, v{vPm}")
    k(f"s_add_u32 s{sT0}, s{sT0}, 2048\nv_add_u32 v{vPm}, s{sT0}, v{vPm}")
    C2, CG = WT + 5, WT + 6
    k(f"v_and_b32 v{C2}, 3, v{vLane}")
    k(f"v_bfe_u32 v{CG}, v{vLane}, 2, 2\nv_lshrrev_b32 v{T2}, 5, v{vLane}\nv_lshl_add_u32 v{CG}, v{T2}, 2, v{CG}")
    k(f"v_and_b32 v{T2}, 1, v{GA}\nv_lshl_add_u32 v{T2}, v{CG}, 1, v{T2}")
    k(f"v_lshlrev_b32 v{vOA}, 2, v{C2}\nv_xor_b32 v{T2}, v{T2}, v{vOA}\nv_and_b32 v{T2}, 15, v{T2}")
    k(f"v_lshlrev_b32 v{vOA}, 8, v{C2}\nv_lshl_add_u32 v{vOA}, v{T2}, 4, v{vOA}")
    k(f"s_lshl_b32 s{sT0}, s{sWAVE}, 10\ns_add_u32 s{sT0}, s{sT0}, {OP_L}\nv_add_u32 v{vOA}, s{sT0}, v{vOA}")
    k(f"v_lshlrev_b32 v{T2}, 2, v{GA}\nv_and_b32 v{vOR}, 15, v{vLane}\nv_xor_b32 v{vOR}, v{vOR}, v{T2}\nv_and_b32 v{vOR}, 15, v{vOR}")
    k(f"v_lshlrev_b32 v{vOR}, 4, v{vOR}\nv_lshl_add_u32 v{vOR}, v{GA}, 8, v{vOR}\nv_add_u32 v{vOR}, {OP_L}, v{vOR}")
    k(f"v_and_b32 v{T2}, 1, v{vLane}\nv_lshl_add_u32 v{T2}, v{T2}, 2, v{GA}")
    k(f"v_bfe_u32 v{vMst}, v{vLane}, 3, 1\nv_lshl_add_u32 v{T2}, v{vMst}, 4, v{T2}")
    k(f"v_bfe_u32 v{vMst}, v{vLane}, 2, 1\nv_lshl_add_u32 v{T2}, v{vMst}, 3, v{T2}")
    k(f"v_lshlrev_b32 v{T2}, 4, v{T2}")
    k(f"v_bfe_u32 v{vMst}, v{vLane}, 1, 1\nv_lshl_add_u32 v{vMst}, v{vMst}, 3, v{T2}")
    k(f"s_lshl_b32 s{sT0}, s{sRANK}, 9\nv_add_u32 v{vMst}, s{sT0}, v{vMst}")
    k(f"s_lshl_b32 s{sFLG}, s{sRANK}, 2\ns_add_u32 s{sFLG}, s{sFLG}, {FLAGM}")
    k(f"v_mov_b32 v{vIdx}, 0x44444444\nv_mov_b32 v{T2}, 0xeeeeeeee")
    k(f"v_cmp_ne_u32 vcc, 0, v{SUB}\ns_nop 1\nv_cndmask_b32 v{vIdx}, v{vIdx}, v{T2}, vcc")
    if cfg.get("warm", True):
        sk = k.uid("B_warm")
        k(f"s_cmp_lg_u32 s{sRANK}, 0\ns_cbranch_scc1 {sk}")
        k(f"s_lshl_b32 s{sT0}, s{sWAVE}, 6\nv_add_u32 v{WT}, s{sT0}, v{vLane}\nv_lshlrev_b32 v{WT}, 7, v{WT}")
        for u in range(2):
            k(f"s_mov_b32 s{sT0}, {MEMRING + u*32768}\nbuffer_load_dword v{WT+1}, v{WT}, {WSR}, s{sT0} offen sc1")
        nrest = (FLAGP + 512 - MEMRING - 65536) // 128
        k(f"v_lshrrev_b32 v{WT+2}, 7, v{WT}\nv_cmp_gt_u32 vcc, {nrest}, v{WT+2}\ns_and_saveexec_b64 s[{sMaskA}:{sMaskA+1}], vcc")
        skw = k.uid("B_w3")
        k(f"s_cbranch_execz {skw}\ns_mov_b32 s{sT0}, {MEMRING + 65536}\nbuffer_load_dword v{WT+1}, v{WT}, {WSR}, s{sT0} offen sc1")
        k.label(skw)
        k(f"s_mov_b64 exec, s[{sMaskA}:{sMaskA+1}]")
        k("s_waitcnt vmcnt(0)")
        k.label(sk)
    FUSED = cfg.get("fused")
    LDF = "sc1" if FUSED else ""
    if FUSED:
        k(f"v_and_b32 v{WT}, 3, v{vLane}\nv_lshlrev_b32 v{WT}, 7, v{WT}\ns_lshl_b32 s{sT0}, s{sWAVE}, 9\ns_add_u32 s{sT0}, s{sT0}, {C_WB}")
        top = k.uid("B_wp"); ok_ = k.uid("B_wpo")
        k.label(top)
        k(f"buffer_load_dword v{WT+1}, v{WT}, {WSR}, s{sT0} offen sc1\ns_waitcnt vmcnt(0)")
        k(f"v_cmp_gt_u32 vcc, 7, v{WT+1}\ns_cbranch_vccz {ok_}")
        k(f"s_sleep 1\ns_sub_u32 s{sSPIN}, s{sSPIN}, 1\ns_cbranch_scc0 {top}\ns_branch {abort}")
        k.label(ok_)
    k(f"s_mul_i32 s{sT0}, s{sRANK}, 458752\ns_mul_i32 s{sT1}, s{sWAVE}, 114688\ns_add_u32 s{sT0}, s{sT0}, s{sT1}\ns_add_u32 s{sT0}, s{sT0}, {WB_OFF}")
    k(f"s_mul_i32 s{sT1}, s{sWAVE}, 12288\ns_add_u32 s{sT1}, s{sT1}, {WL}\nv_add_u32 v{vWL}, s{sT1}, v{vL16}")
    for tau in range(8):
        for t in range(7):
            R = blockregB(tau, t)
            for a in range(2):
                off = ((7 * tau + t) * 2 + a) * 1024
                if off and off % 4096 == 0: k(f"s_add_u32 s{sT0}, s{sT0}, 4096")
                if R is not None:
                    k(f"buffer_load_dwordx4 {R.r(4*a,4)}, v{vL16}, {WSR}, s{sT0} offen offset:{off%4096} {LDF}")
                else:
                    k(f"s_mul_i32 s{sT1}, s{sWAVE}, 12288\ns_add_u32 m0, s{sT1}, {WL + tau*2048 + a*1024 - off%4096}\ns_nop 0")
                    k(f"buffer_load_dwordx4 v{vL16}, {WSR}, s{sT0} offen offset:{off%4096} {LDF} lds")
    PX = WT + 15
    for i in range(8): k(f"v_mov_b32 v{ACC+i}, 0")
    k("s_waitcnt vmcnt(0) lgkmcnt(0)")
    if cfg.get("tot"): k("s_memrealtime s[88:89]\ns_waitcnt lgkmcnt(0)")
    if cfg.get("mark"): cfg["mark"](cfg.get("_mw", 3), 16 if cfg.get("_mw", 3) == 3 else 12, only=(sRANK, 0))
    k(f"s_mov_b32 s{sSTEP}, 0\ns_mov_b32 s{sMS}, {MEMRING}\ns_mov_b32 s{sPS}, {PRING}")
    k(f"s_mul_i32 s{sXK}, s{sRANK}, 32768\ns_lshl_b32 s{sT0}, s{sWAVE}, 13\ns_add_u32 s{sXK}, s{sXK}, s{sT0}\ns_add_u32 s{sXK}, s{sXK}, {VX_OFF}")
    k(f"s_mov_b32 s{sOUT}, {MEMOUT+7168}")
    k(f"s_mov_b32 s{sVXC}, {FLAGV}")
    def b_loop(ST):
        q = Q(k)
        prof.start(); prof.tot_start(cfg.get("tot"))
        loop = k.uid("B_loop")
        k.label(loop)
        prof.stamp(0); prof.raw(0)
        if cfg.get("b_sleep"): k(f"s_sleep {cfg['b_sleep']}")
        top = k.uid("PM"); retry = k.uid("PMR")
        k.label(top)
        k(f"buffer_load_dwordx4 {V(WT,4)}, v{vPollA}, {WSR}, s{sMS} offen sc1")
        k(f"buffer_load_dwordx4 {V(WT+4,4)}, v{vPollB}, {WSR}, s{sMS} offen sc1")
        if cfg.get("vxwait"): k(f"v_mov_b32 v{WT+9}, 0\nbuffer_load_dword v{WT+8}, v{WT+9}, {WSR}, s{sVXC} offen sc1")
        k("s_waitcnt vmcnt(0)")
        k(f"v_max3_u32 v{PX}, v{WT}, v{WT+1}, v{WT+2}")
        k(f"v_max3_u32 v{PX}, v{PX}, v{WT+3}, v{WT+4}")
        k(f"v_max3_u32 v{PX}, v{PX}, v{WT+5}, v{WT+6}")
        k(f"v_max_u32 v{PX}, v{PX}, v{WT+7}")
        k(f"v_cmp_eq_u32 vcc, -1, v{PX}")
        k(f"s_cbranch_vccnz {retry}")
        if cfg.get("vxwait"):
            k(f"v_cmp_ge_u32 vcc, s{sSTEP}, v{WT+8}")
            k(f"s_cbranch_vccnz {retry}")
        retry_block(cfg, retry, "", abort, top)
        q.reset()
        prof.stamp(1); prof.raw(1)
        def vx_load0(u):
            off = u * 1024
            so = sXK if off < 4096 else sT1
            k(f"buffer_load_dwordx4 {A(VXR+4*u,4)}, v{vL16}, {WSR}, s{so} offen offset:{off%4096} sc1")
        VXE = cfg.get("vxearly", 2)
        q.ds(f"ds_write_b128 v{vPollA}, {V(WT,4)} offset:{MEM_L}")
        q.ds(f"ds_write_b128 v{vPollB}, {V(WT+4,4)} offset:{MEM_L}")
        if VXE == 2:
            k(f"s_add_u32 s{sT1}, s{sXK}, 4096")
            for u in range(8): vx_load0(u)
        q.lg0()
        k("s_barrier")
        prof.stamp(2)
        for t in range(7):
            q.ds(f"ds_read_b128 {V(MEM+4*t,4)}, v{vL16} offset:{MEM_L+t*1024}", f"mem{t}")
        if not cfg.get("exporter"):
            nm = k.uid("B_nm")
            k(f"s_cmp_lg_u32 s{sWAVE}, 0\ns_cbranch_scc1 {nm}\ns_cmp_eq_u32 s{sSTEP}, 0\ns_cbranch_scc1 {nm}")
            k(f"s_sub_u32 s{sT1}, s{sOUT}, 7168\nbuffer_store_dwordx2 {V(VB+14,2)}, v{vMst}, {WSR}, s{sT1} offen sc1")
            k.label(nm)
        k(f"s_add_u32 s{sT1}, s{sXK}, 4096")
        def vx_load(u):
            off = u * 1024
            so = sXK if off < 4096 else sT1
            k(f"buffer_load_dwordx4 {A(VXR+4*u,4)}, v{vL16}, {WSR}, s{so} offen offset:{off%4096} sc1")
        def vb_dst(tau, rp):
            hh, c = tau >> 1, tau & 1
            a, sub = hh >> 1, hh & 1
            return VB + 8 * c + 4 * a + 2 * rp + sub
        for tau in range(8):
            for t in range(7):
                if tau == 0: q.wait_lg(f"mem{t}")
                R = blockregB(tau, t)
                if R is None:
                    q.wait_lg(f"wl{tau}b")
                    Bop = V(WT + 8 * (tau & 1), 8)
                else:
                    Bop = R.r(0, 8)
                k(f"v_smfmac_f32_16x16x64_bf16 {V(ACC+4*(tau&1),4)}, {V(MEM+4*t,4)}, {Bop}, v{vIdx}")
                if tau < 6:
                    if t == 0: q.ds(f"ds_read_b128 {V(WT+8*(tau&1),4)}, v{vWL} offset:{tau*2048}", f"wl{tau}a")
                    if t == 1: q.ds(f"ds_read_b128 {V(WT+8*(tau&1)+4,4)}, v{vWL} offset:{tau*2048+1024}", f"wl{tau}b")
                if VXE == 2: pass
                elif VXE == 1:
                    if tau == 0: vx_load(t)
                    if tau == 1 and t == 2: vx_load(7)
                elif tau < 4 and t in (5, 6): vx_load(2 * tau + (t - 5))
                if tau >= 1:
                    pa = ACC + 4 * ((tau - 1) & 1)
                    if t == 2: k(f"v_cvt_pk_bf16_f32 v{vb_dst(tau-1,0)}, v{pa}, v{pa+1}")
                    if t == 3: k(f"v_cvt_pk_bf16_f32 v{vb_dst(tau-1,1)}, v{pa+2}, v{pa+3}")
                    if t == 4: k(f"v_mov_b64 {V(pa,2)}, 0")
                    if t == 5: k(f"v_mov_b64 {V(pa+2,2)}, 0")
        k(f"s_add_u32 s{sXK}, s{sXK}, 458752")
        k("s_nop 6")
        pa = ACC + 4
        k(f"v_cvt_pk_bf16_f32 v{vb_dst(7,0)}, v{pa}, v{pa+1}")
        k(f"v_cvt_pk_bf16_f32 v{vb_dst(7,1)}, v{pa+2}, v{pa+3}")
        k(f"v_mov_b64 {V(pa,2)}, 0\nv_mov_b64 {V(pa+2,2)}, 0")
        prof.raw(2)
        k("s_waitcnt vmcnt(0)")
        prof.stamp(3); prof.raw(3)
        k(f"s_add_u32 s{sMS1}, s{sSTEP}, 1")
        emit_flag_poll(k, cfg, vDet, WT, sMS1, FLAGP, abort)
        prof.stamp(4); prof.raw(4)
        P0, P1, PM = MEM, MEM + 4, MEM + 8
        q.reset()
        def p_loads(qq):
            qq(f"buffer_load_dwordx4 {V(P0,4)}, v{vP0}, {WSR}, s{sPS} offen sc1", "p0")
            qq(f"buffer_load_dwordx4 {V(P1,4)}, v{vP0}, {WSR}, s{sPS} offen offset:1024 sc1", "p1")
            qq(f"buffer_load_dwordx4 {V(PM,4)}, v{vPm}, {WSR}, s{sPS} offen sc1", "pm")
        p_loads(q.vmem)
        again = k.uid("B_again"); retry = k.uid("B_retry")
        k.label(again)
        for (Pr, src, tag) in ((P0, "x0", "p0"), (P1, "x1", "p1"), (PM, "m", "pm")):
            q.wait_vm(tag)
            if tag == "p0": prof.raw(5)
            if tag == "pm": prof.raw(6)
            for c in range(2):
                Bop = {"x0": A(VXR + c * 8, 8), "x1": A(VXR + 16 + c * 8, 8), "m": V(VB + 8 * c, 8)}[src]
                k(f"v_smfmac_f32_16x16x64_bf16 {V(ACC+4*c,4)}, {V(Pr,4)}, {Bop}, v{vIdx}")
                if c == 0: k(f"v_max_u32 v{PX}, v{Pr}, v{Pr+1}" if src == "x0" else f"v_max3_u32 v{PX}, v{PX}, v{Pr}, v{Pr+1}")
                else: k(f"v_max3_u32 v{PX}, v{PX}, v{Pr+2}, v{Pr+3}")
        k(f"v_cmp_eq_u32 vcc, -1, v{PX}")
        k(f"s_cbranch_vccnz {retry}")
        rb = K(); lab = k.uid("B_rl"); ok_ = k.uid("B_rok")
        rb(f"{lab}:")
        p_loads(lambda txt, tag: rb(txt))
        rb("s_waitcnt vmcnt(0)")
        rb(f"v_max3_u32 v{PX}, v{P0}, v{P0+1}, v{P0+2}")
        for i in range(3, 11, 2): rb(f"v_max3_u32 v{PX}, v{PX}, v{P0+i}, v{P0+i+1}")
        rb(f"v_max_u32 v{PX}, v{PX}, v{P0+11}")
        rb(f"v_cmp_eq_u32 vcc, -1, v{PX}")
        rb(f"s_cbranch_vccz {ok_}")
        rb(f"s_sub_u32 s{sSPIN}, s{sSPIN}, 1\ns_cbranch_scc0 {lab}\ns_branch {abort}")
        rb(f"{ok_}:")
        for i in range(0, 8, 2): rb(f"v_mov_b64 {V(ACC+i,2)}, 0")
        if cfg.get("cnt_retry"): rb(f"s_add_u32 s{sPROF+11}, s{sPROF+11}, 1")
        rb(f"s_nop 1\ns_branch {again}")
        cfg.setdefault("outofline", []).append(f"{retry}:\ns_nop 7\n" + rb.text())
        def mflag():
            k(f"s_add_u32 s{sT0}, s{sSTEP}, 1\nv_mov_b32 v{PX}, s{sT0}\nv_mov_b32 v{PX-1}, 0")
            k(f"s_mov_b64 exec, 1\nbuffer_store_dword v{PX}, v{PX-1}, {WSR}, s{sFLG} offen {ST}\ns_mov_b64 exec, -1")
        mpos = cfg.get("mflag_pos", 1)
        k("s_nop 5")
        for r in range(4): k(f"v_permlane32_swap_b32 v{ACC+r}, v{ACC+4+r}")
        k(f"v_pk_add_f32 {V(ACC,2)}, {V(ACC,2)}, {V(ACC+4,2)}\nv_pk_add_f32 {V(ACC+2,2)}, {V(ACC+2,2)}, {V(ACC+6,2)}")
        q.ds(f"ds_write_b128 v{vOA}, {V(ACC,4)}")
        nofin = k.uid("B_nofin"); join = k.uid("B_join")
        if mpos == 0:
            sk = k.uid("B_f0"); k(f"s_cmp_lg_u32 s{sWAVE}, 0\ns_cbranch_scc1 {sk}"); mflag(); k.label(sk)
        q.lg0()
        prof.stamp(5); prof.raw(7)
        k("s_barrier")
        prof.stamp(6); prof.raw(8)
        k(f"s_cmp_lg_u32 s{sWAVE}, 0\ns_cbranch_scc1 {nofin}")
        X = WT
        for w_ in range(4): q.ds(f"ds_read_b128 {V(X+4*w_,4)}, v{vOR} offset:{w_*1024}", f"o{w_}")
        def mflag2():
            k(f"s_mov_b64 exec, 1\nbuffer_store_dword v{ACC+4}, v{ACC+5}, {WSR}, s{sFLG} offen {ST}\ns_mov_b64 exec, -1")
        k(f"s_add_u32 s{sT0}, s{sSTEP}, 1\nv_mov_b32 v{ACC+4}, s{sT0}\nv_mov_b32 v{ACC+5}, 0")
        if mpos == 1: mflag2()
        k(f"s_add_u32 s{sT0}, s{sSTEP}, 1\ns_and_b32 s{sT0}, s{sT0}, 3\ns_mul_i32 s{sMS1}, s{sT0}, 7168\ns_add_u32 s{sMS1}, s{sMS1}, {MEMRING}")
        def pk(d, a, b):
            k(f"v_pk_add_f32 {V(d,2)}, {V(a,2)}, {V(b,2)}\nv_pk_add_f32 {V(d+2,2)}, {V(a+2,2)}, {V(b+2,2)}")
        q.wait_lg("o1")
        if mpos == 11: mflag2()
        pk(X, X, X+4)
        q.wait_lg("o3"); pk(X+8, X+8, X+12); pk(X, X, X+8)
        q.reset()
        prof.raw(9)
        if mpos == 12: mflag2()
        else: k("s_nop 1")
        k(f"v_permlane32_swap_b32 v{X}, v{X+2}\nv_permlane32_swap_b32 v{X+1}, v{X+3}")
        k("s_nop 1")
        k(f"v_permlane16_swap_b32 v{X}, v{X+1}\nv_permlane16_swap_b32 v{X+2}, v{X+3}")
        if mpos == 13: mflag2()
        k(f"v_cvt_pk_bf16_f32 v{X}, v{X}, v{X+1}\nv_cvt_pk_bf16_f32 v{X+1}, v{X+2}, v{X+3}")
        k(f"v_min_u32 v{X}, -2, v{X}\nv_min_u32 v{X+1}, -2, v{X+1}")
        k(f"buffer_store_dwordx2 {V(X,2)}, v{vMst}, {WSR}, s{sMS1} offen {ST}")
        prof.raw(10)
        if mpos == 2: mflag2()
        if not cfg.get("exporter"): k(f"v_mov_b64 {V(VB+14,2)}, {V(X,2)}")
        k.label(nofin)
        if cfg.get("exporter"):
            nr = k.uid("B_nr"); pe = k.uid("B_pe"); oke = k.uid("B_oke")
            k(f"s_cmp_lg_u32 s{sWAVE}, 1\ns_cbranch_scc1 {nr}\ns_cmp_eq_u32 s{sSTEP}, 0\ns_cbranch_scc1 {nr}")
            k(f"s_sub_u32 s{sRST}, s{sSTEP}, 1\ns_mov_b32 s{sT0}, {FLAGE}\nv_mov_b32 v{WT+9}, 0")
            k.label(pe)
            k(f"buffer_load_dword v{WT+8}, v{WT+9}, {WSR}, s{sT0} offen sc1\ns_waitcnt vmcnt(0)")
            k(f"v_cmp_gt_u32 vcc, s{sRST}, v{WT+8}\ns_cbranch_vccz {oke}")
            k(f"s_sub_u32 s{sSPIN}, s{sSPIN}, 1\ns_cbranch_scc0 {pe}\ns_branch {abort}")
            k.label(oke)
            k(f"s_and_b32 s{sRST}, s{sRST}, 3\ns_mul_i32 s{sRST}, s{sRST}, 7168\ns_add_u32 s{sRST}, s{sRST}, {MEMRING}")
            k(f"v_mov_b32 v{WT+8}, -1\nv_mov_b32 v{WT+9}, -1")
            k(f"buffer_store_dwordx2 {V(WT+8,2)}, v{vMst}, {WSR}, s{sRST} offen {ST}")
            k.label(nr)
        if cfg.get("bar4", True): k("s_barrier")
        if not cfg.get("exporter"):
            k(f"s_cmp_lg_u32 s{sWAVE}, 1\ns_cbranch_scc1 {join}")
            X = WT
            k(f"s_add_u32 s{sRST}, s{sSTEP}, 3\ns_and_b32 s{sRST}, s{sRST}, 3\ns_mul_i32 s{sRST}, s{sRST}, 7168\ns_add_u32 s{sRST}, s{sRST}, {MEMRING}")
            k(f"v_mov_b32 v{X}, -1\nv_mov_b32 v{X+1}, -1")
            k(f"buffer_store_dwordx2 {V(X,2)}, v{vMst}, {WSR}, s{sRST} offen {ST}")
        k.label(join)
        for i in range(0, 8, 2): k(f"v_mov_b64 {V(ACC+i,2)}, 0")
        prof.stamp(7)
        k(f"s_add_u32 s{sOUT}, s{sOUT}, 7168")
        emit_ring_advance(k)
        k(f"s_cmp_lt_u32 s{sSTEP}, {cfg['nsteps']}\ns_cbranch_scc1 {loop}")
        if cfg.get("mark"): cfg["mark"](7, 12, only=(sRANK, 0))
        if cfg.get("exporter") and cfg.get("lastdirect", True):
            nm3 = k.uid("B_nm3")
            k(f"s_cmp_lg_u32 s{sWAVE}, 0\ns_cbranch_scc1 {nm3}")
            k(f"s_sub_u32 s{sT1}, s{sOUT}, 7168\nbuffer_store_dwordx2 {V(WT,2)}, v{vMst}, {WSR}, s{sT1} offen sc1\ns_waitcnt vmcnt(0)")
            k.label(nm3)
        if not cfg.get("exporter"):
            nm2 = k.uid("B_nm2")
            k(f"s_cmp_lg_u32 s{sWAVE}, 0\ns_cbranch_scc1 {nm2}")
            k(f"s_sub_u32 s{sT1}, s{sOUT}, 7168\nbuffer_store_dwordx2 {V(VB+14,2)}, v{vMst}, {WSR}, s{sT1} offen sc1\ns_waitcnt vmcnt(0)")
            k.label(nm2)
        k(f"s_add_u32 s{sRANK}, s{sRANK}, 16")
        prof.raw_dump(WT, WT + 1); prof.dump(WT, WT + 1); prof.tot_dump(cfg.get("tot"), WT, WT + 1)
        k("s_endpgm")
    if cfg.get("mode_hook"): cfg["mode_hook"](k, WT)
    mlabs = [k.uid("B_m") for _ in modes]
    if len(modes) > 1: k(f"s_cmp_eq_u32 s{sMODE}, 1\ns_cbranch_scc1 {mlabs[1]}")
    for mi, st in enumerate(modes):
        k.label(mlabs[mi])
        b_loop(st)

def emit_exporter(k, cfg, abort, ST):
    WSR = f"s[{sWS}:{sWS+3}]"
    vPA, vPB, vZ, vT, TA, vX = 4, 5, 6, 7, 8, 16
    k(f"v_and_b32 v{vT}, 63, v0\nv_lshlrev_b32 v{vPA}, 4, v{vT}\ns_mul_i32 s{sT0}, s{sWAVE}, 1792\nv_add_u32 v{vPA}, s{sT0}, v{vPA}")
    k(f"v_min_u32 v{vT}, 47, v{vT}\nv_lshlrev_b32 v{vT}, 4, v{vT}\ns_add_u32 s{sT0}, s{sT0}, 1024\nv_add_u32 v{vPB}, s{sT0}, v{vT}\nv_mov_b32 v{vZ}, 0")
    k(f"s_mov_b32 s{sSTEP}, 1\ns_mov_b32 s{sOUT}, {MEMOUT + 7168}")
    loop = k.uid("EX_loop"); top = k.uid("EX_poll"); ok_ = k.uid("EX_ok"); sk = k.uid("EX_s")
    k.label(loop)
    k(f"s_and_b32 s{sT0}, s{sSTEP}, 3\ns_mul_i32 s{sMS}, s{sT0}, 7168\ns_add_u32 s{sMS}, s{sMS}, {MEMRING}")
    k.label(top)
    k(f"buffer_load_dwordx4 {V(TA,4)}, v{vPA}, {WSR}, s{sMS} offen sc1\nbuffer_load_dwordx4 {V(TA+4,4)}, v{vPB}, {WSR}, s{sMS} offen sc1")
    k("s_waitcnt vmcnt(0)")
    k(f"v_max3_u32 v{vX}, v{TA}, v{TA+1}, v{TA+2}\nv_max3_u32 v{vX}, v{vX}, v{TA+3}, v{TA+4}")
    k(f"v_max3_u32 v{vX}, v{vX}, v{TA+5}, v{TA+6}\nv_max_u32 v{vX}, v{vX}, v{TA+7}")
    k(f"v_cmp_eq_u32 vcc, -1, v{vX}\ns_cbranch_vccz {ok_}")
    k(f"s_sleep {cfg.get('ex_sleep', 4)}\ns_sub_u32 s{sSPIN}, s{sSPIN}, 1\ns_cbranch_scc0 {top}\ns_branch {abort}")
    k.label(ok_)
    k(f"buffer_store_dwordx4 {V(TA,4)}, v{vPA}, {WSR}, s{sOUT} offen sc1\nbuffer_store_dwordx4 {V(TA+4,4)}, v{vPB}, {WSR}, s{sOUT} offen sc1")
    k("s_barrier")
    k(f"s_cmp_lg_u32 s{sWAVE}, 0\ns_cbranch_scc1 {sk}")
    k(f"v_mov_b32 v{vX}, s{sSTEP}\ns_mov_b32 s{sT0}, {FLAGE}\ns_mov_b64 exec, 1\nbuffer_store_dword v{vX}, v{vZ}, {WSR}, s{sT0} offen {ST}\ns_mov_b64 exec, -1")
    k.label(sk)
    k(f"s_add_u32 s{sOUT}, s{sOUT}, 7168\ns_add_u32 s{sSTEP}, s{sSTEP}, 1")
    k(f"s_cmp_le_u32 s{sSTEP}, {cfg['nsteps']}\ns_cbranch_scc1 {loop}")
    k("s_waitcnt vmcnt(0)")
    k("s_endpgm")

def emit_helper(k, cfg, abort):
    WSR = f"s[{sWS}:{sWS+3}]"
    modes = cfg.get("modes", [cfg.get("st", "")])
    dist = cfg.get("pf_dist", 3)
    k("v_lshlrev_b32 v1, 7, v0")
    k("v_mov_b32 v2, 0")
    if cfg.get("mode_hook"): cfg["mode_hook"](k, 40)
    mlabs = [k.uid("H_m") for _ in modes]
    if len(modes) > 1: k(f"s_cmp_eq_u32 s{sMODE}, 1\ns_cbranch_scc1 {mlabs[1]}")
    for mi, ST in enumerate(modes):
        k.label(mlabs[mi])
        k(f"s_mov_b32 s{sSTEP}, 0\ns_mov_b32 s{sXK}, {VX_OFF}\ns_mov_b32 s{sOUT}, {XK_OFF}\ns_mov_b32 s{sVXC}, {C_VX}")
        loop = k.uid("PF_loop"); p2 = k.uid("PF_p2"); g2 = k.uid("PF_g2")
        pfl = k.uid("PF_pf")
        if cfg.get("exporter"):
            nx = k.uid("EX_no")
            k(f"s_cmp_lg_u32 s{sRANK}, 31\ns_cbranch_scc1 {nx}")
            emit_exporter(k, cfg, abort, ST)
            k.label(nx)
        k(f"s_cmp_eq_u32 s{sRANK}, 31\ns_cbranch_scc1 {pfl}_b\ns_cmp_eq_u32 s{sWAVE}, 0\ns_cbranch_scc0 {pfl}_a")
        k.label(loop)
        k.label(p2)
        k(f"buffer_load_dword v3, v2, {WSR}, s{sVXC} offen sc1\ns_waitcnt vmcnt(0)")
        k(f"v_cmp_gt_u32 vcc, 28, v3\ns_cbranch_vccz {g2}")
        k(f"s_sleep 1\ns_sub_u32 s{sSPIN}, s{sSPIN}, 1\ns_cbranch_scc0 {p2}\ns_branch {abort}")
        k.label(g2)
        k(f"s_add_u32 s{sT0}, s{sSTEP}, 1\nv_mov_b32 v3, s{sT0}\ns_mov_b32 s{sT0}, {FLAGV}")
        k(f"s_mov_b64 exec, 1\nbuffer_store_dword v3, v2, {WSR}, s{sT0} offen {ST}")
        k(f"s_mov_b32 s{sT0}, {FLAGV2}\nbuffer_store_dword v3, v2, {WSR}, s{sT0} offen sc1\ns_mov_b64 exec, -1")
        k(f"s_add_u32 s{sSTEP}, s{sSTEP}, 1\ns_add_u32 s{sVXC}, s{sVXC}, {CSTR}")
        k(f"s_cmp_lt_u32 s{sSTEP}, {cfg['nsteps']}\ns_cbranch_scc1 {loop}")
        k(f"s_branch {g2}_end")
        k.label(f"{pfl}_a")
        k(f"s_sub_u32 s{sRST}, s{sWAVE}, 1\ns_branch {pfl}_c")
        k.label(f"{pfl}_b")
        k(f"s_add_u32 s{sRST}, s{sWAVE}, 3")
        k.label(f"{pfl}_c")
        if cfg.get("pf", True):
            dist = cfg.get("pf_dist", 2)
            SH = 6 if cfg.get("pf64") else 7
            k(f"v_and_b32 v4, 63, v0\nv_lshlrev_b32 v4, {SH}, v4\ns_lshl_b32 s{sRST}, s{sRST}, 16\nv_add_u32 v4, s{sRST}, v4")
            k(f"s_mov_b32 s{sSTEP}, 0\ns_mov_b32 s{sXK}, {VX_OFF}")
            lp = k.uid("PF_l"); w1 = k.uid("PF_w1"); o1 = k.uid("PF_o1"); w2 = k.uid("PF_w2"); o2 = k.uid("PF_o2")
            k.label(lp)
            k(f"s_mov_b32 s{sT0}, {FLAGV}")
            k.label(w1)
            k(f"buffer_load_dword v3, v2, {WSR}, s{sT0} offen sc1\ns_waitcnt vmcnt(0)\nv_cmp_ge_u32 vcc, s{sSTEP}, v3\ns_cbranch_vccz {o1}")
            k(f"s_sleep 4\ns_sub_u32 s{sSPIN}, s{sSPIN}, 1\ns_cbranch_scc0 {w1}\ns_branch {abort}")
            k.label(o1)
            k(f"s_cmp_le_u32 s{sSTEP}, {dist}\ns_cbranch_scc1 {o2}\ns_sub_u32 s{sMS}, s{sSTEP}, {dist}\ns_mov_b32 s{sT0}, {FLAGM}")
            k.label(w2)
            k(f"buffer_load_dword v3, v2, {WSR}, s{sT0} offen sc1\ns_waitcnt vmcnt(0)\nv_cmp_gt_u32 vcc, s{sMS}, v3\ns_cbranch_vccz {o2}")
            k(f"s_sleep 4\ns_sub_u32 s{sSPIN}, s{sSPIN}, 1\ns_cbranch_scc0 {w2}\ns_branch {abort}")
            k.label(o2)
            k(f"s_mov_b32 s{sT1}, s{sXK}")
            for u in range(16 if cfg.get("pf64") else 8):
                k(f"buffer_load_dword v{8+u}, v4, {WSR}, s{sT1} offen sc1\ns_add_u32 s{sT1}, s{sT1}, {4096 if cfg.get('pf64') else 8192}")
            k(f"s_add_u32 s{sXK}, s{sXK}, 458752\ns_add_u32 s{sSTEP}, s{sSTEP}, 1")
            k(f"s_cmp_lt_u32 s{sSTEP}, {cfg['nsteps']}\ns_cbranch_scc1 {lp}")
        k.label(f"{g2}_end")
        k("s_waitcnt vmcnt(0)")
        k("s_endpgm")

def gen_chain_test(cfg):
    k = K()
    name = "chain_kernel"
    k(f'.amdgcn_target "amdgcn-amd-amdhsa--gfx950"\n.text\n.globl {name}\n.p2align 8\n.type {name},@function\n{name}:')
    k("s_load_dwordx4 s[4:7], s[0:1], 0")
    if cfg.get("tot"): k("s_memrealtime s[96:97]")
    k("s_getreg_b32 s3, hwreg(HW_REG_XCC_ID)\ns_and_b32 s3, s3, 15")
    k("s_waitcnt lgkmcnt(0)")
    k(f"s_mov_b32 s{sWS}, s4\ns_mov_b32 s{sWS+1}, s5\ns_mov_b32 s{sWS+2}, {WS_BYTES}\ns_mov_b32 s{sWS+3}, 0x20000")
    if cfg.get("same_xcd", True):
        k("s_cmp_lg_u32 s3, 0\ns_cbranch_scc1 L_exit")
    k("v_mov_b32 v1, 0\nv_mov_b32 v2, 1")
    k("v_cmp_eq_u32 vcc, 0, v0\ns_and_saveexec_b64 s[20:21], vcc\ns_cbranch_execz L_t")
    k("global_atomic_add v3, v1, v2, s[6:7] sc0\ns_waitcnt vmcnt(0)\nds_write_b32 v1, v3\ns_waitcnt lgkmcnt(0)")
    k.label("L_t")
    k("s_mov_b64 exec, s[20:21]\ns_barrier\nds_read_b32 v3, v1\ns_waitcnt lgkmcnt(0)\ns_nop 0")
    k(f"v_readfirstlane_b32 s{sRANK}, v3")
    k(f"v_lshrrev_b32 v3, 6, v0\ns_nop 0\nv_readfirstlane_b32 s{sWAVE}, v3")
    k("s_barrier")
    k(f"s_mov_b32 s{sSPIN}, {SPIN}")

    k(f"s_cmp_ge_u32 s{sRANK}, 30\ns_cbranch_scc1 L_exit")
    k(f"s_cmp_ge_u32 s{sRANK}, 16\ns_cbranch_scc1 L_roleB")
    emit_chain_A(k, cfg, "L_abort")
    k.label("L_roleB")
    emit_chain_B(k, cfg, "L_abort")
    for t in cfg.get("outofline", []): k(t)
    k.label("L_abort")
    k(f"v_mov_b32 v1, 0\nv_mov_b32 v2, 1\nglobal_atomic_add v1, v2, s[6:7] offset:4\ns_waitcnt vmcnt(0)")
    k.label("L_exit")
    k("s_endpgm")
    k(f""".section .rodata,"a"
.p2align 6
.amdhsa_kernel {name}
  .amdhsa_next_free_vgpr 512
  .amdhsa_next_free_sgpr 102
  .amdhsa_accum_offset 256
  .amdhsa_group_segment_fixed_size 0
  .amdhsa_kernarg_size 16
  .amdhsa_user_sgpr_count 2
  .amdhsa_user_sgpr_kernarg_segment_ptr 1
  .amdhsa_system_sgpr_workgroup_id_x 1
.end_amdhsa_kernel""")
    return k.text()

if __name__ == "__main__":
    import sys, kfw
    cfg = dict(nsteps=63, prof=("prof" in sys.argv))
    t = gen_chain_test(cfg)
    open("chain_test.s", "w").write(t)
    p = kfw.check(t); w = kfw.check_waits(t)
    print("hazards", len(p), "waits", len(w))
```

```python
import sys
from kfw import *
from layout import *
import chain, workers, prepk, prep2
from chain import sWS, sRANK, sWAVE, sT0, sT1, sSPIN, SPIN, sMODE
from prepk import srd, KARG, kd

NAME = "recurrent_scan__memory_aug_recurrent_mem_tr__glu_gated_reglu__prompt"
HEADER = open("cdna_kernels/" + NAME + ".s.ref").read().split("; Override launch geometry")[0]

def emit_main(k, cfg, name):
    VXP, XAP, PVP = cfg.get("vx_par", 2), cfg.get("xa_par", 3), cfg.get("pv_par", 4)
    VMP = cfg.get("vm_par", 1)
    nVX, nXA, nPV, nFF, nVM = 28 * VXP, 16 * XAP, 7 * PVP, 64, 28 * VMP
    t1, t2, t3, t4 = nVX, nVX + nXA, nVX + nXA + nPV, nVX + nXA + nPV + nFF
    t5 = t4 + nVM
    assert t5 <= 224
    k(f".globl {name}\n.p2align 8\n.type {name},@function\n{name}:")
    k("s_cmp_ge_u32 s2, 256\ns_cbranch_scc1 M_exit")
    if cfg.get("codepf", True):
        k("s_getpc_b64 s[6:7]")
        k.label("M_pc")
        k(f"s_lshr_b32 s14, s2, 3\ns_and_b32 s14, s14, 31\ns_mul_i32 s14, s14, (((M_code_end-{name})+4095)/4096)*128")
        k(f"s_sub_u32 s6, s6, M_pc-{name}\ns_subb_u32 s7, s7, 0")
        k(f"v_subrev_u32 v254, 64, v0\nv_lshlrev_b32 v255, 7, v254\nv_add_u32 v255, s14, v255")
        k(f"v_cmp_gt_u32 vcc, (((M_code_end-{name})+4095)/4096), v254\ns_and_saveexec_b64 s[20:21], vcc\ns_cbranch_execz M_pf_done")
        k("global_load_dword v255, v255, s[6:7]")
        k.label("M_pf_done")
        k("s_mov_b64 exec, s[20:21]")
    diag = cfg.get("diag")
    hd = cfg.get("hdiag")
    def mark(word, vt=247, only=None):
        if not hd: return
        sk = k.uid("HD")
        k(f"s_cmp_lg_u32 s{sWAVE}, 0\ns_cbranch_scc1 {sk}")
        if only: k(f"s_cmp_lg_u32 s{only[0]}, {only[1]}\ns_cbranch_scc1 {sk}")
        k("s_memrealtime s[80:81]\ns_waitcnt lgkmcnt(0)")
        k(f"v_mov_b32 v{vt+1}, 0\nv_mov_b32 v{vt}, s80\ns_mov_b64 exec, 1\nglobal_store_dword v{vt+1}, v{vt}, s[4:5] offset:{4*word} sc1\ns_mov_b64 exec, -1")
        k.label(sk)
    cfg["mark"] = mark
    prep2.DIAG = bool(diag)
    if diag:
        for i in range(12): k(f"s_mov_b32 s{60+2*i}, 0")
    if diag: k("s_memrealtime s[96:97]\ns_mov_b32 s98, 0\ns_mov_b32 s44, 0")
    if hd: k("s_mov_b32 s98, 0")
    srd(k, sWS, KARG["ws"], WS_BYTES)
    k(f"s_load_dwordx2 s[4:5], s[0:1], {KARG['dbg']}")
    k("s_getreg_b32 s3, hwreg(HW_REG_XCC_ID)\ns_and_b32 s3, s3, 15")
    k(f"s_mov_b32 s{sSPIN}, {SPIN}")
    k(f"v_lshrrev_b32 v3, 6, v0\ns_nop 0\nv_readfirstlane_b32 s{sWAVE}, v3")
    k("s_waitcnt lgkmcnt(0)")
    if hd:
        mark(1, only=(2, 0))
    k("s_and_b32 s3, s3, 7")
    k(f"s_lshl_b32 s{sT0}, s3, 5")
    k(f"v_mov_b32 v1, 0\nv_mov_b32 v2, 1\nv_mov_b32 v4, s{sT0}")
    k("v_cmp_eq_u32 vcc, 0, v0\ns_and_saveexec_b64 s[20:21], vcc\ns_cbranch_execz M_reg_issued")
    k("global_atomic_add v2, v4, v2, s[4:5] sc0 sc1")
    k.label("M_reg_issued")
    k("s_mov_b64 exec, s[20:21]")
    if cfg.get("wtouch", False):
        k("s_load_dwordx8 s[60:67], s[0:1], 16\ns_waitcnt lgkmcnt(0)")
        k(f"s_cmp_ge_u32 s{sWAVE}, 2\ns_cselect_b32 s68, s62, s60\ns_cselect_b32 s69, s63, s61\ns_cselect_b32 s70, s66, s64\ns_cselect_b32 s71, s67, s65")
        k("v_and_b32 v5, 127, v0\ns_mul_i32 s72, s2, 112\nv_add_u32 v6, s72, v5\nv_lshlrev_b32 v6, 7, v6")
        k("v_cmp_gt_u32 vcc, 0x70, v5\ns_and_saveexec_b64 s[20:21], vcc\ns_cbranch_execz M_wt_done")
        k("global_load_dword v253, v6, s[68:69]\nglobal_load_dword v254, v6, s[70:71]")
        k.label("M_wt_done")
        k("s_mov_b64 exec, s[20:21]")
    k("v_cmp_eq_u32 vcc, 0, v0\ns_and_saveexec_b64 s[20:21], vcc\ns_cbranch_execz M_reg_done")
    k(f"s_waitcnt vmcnt({2 if cfg.get('wtouch', False) else 0})")
    k("ds_write_b32 v1, v2\ns_waitcnt lgkmcnt(0)")
    k.label("M_reg_done")
    k("s_mov_b64 exec, s[20:21]\ns_barrier\nds_read_b32 v3, v1\ns_waitcnt lgkmcnt(0)\ns_nop 0")
    k(f"v_readfirstlane_b32 s{sRANK}, v3")
    k("s_barrier")
    if diag: k("s_memrealtime s[84:85]")
    def load_counts(k, vt):
        k(f"v_mbcnt_lo_u32_b32 v{vt}, -1, 0\nv_mbcnt_hi_u32_b32 v{vt}, -1, v{vt}\nv_and_b32 v{vt}, 7, v{vt}\nv_lshlrev_b32 v{vt}, 5, v{vt}")
        k(f"global_load_dword v{vt+1}, v{vt}, s[4:5] sc1\ns_waitcnt vmcnt(0)")
        k(f"v_readlane_b32 s{sT1}, v{vt+1}, 0")
        for x in range(1, 8):
            k(f"v_readlane_b32 s{sT0}, v{vt+1}, {x}\ns_add_u32 s{sT1}, s{sT1}, s{sT0}")
    def wait_all(k, vt):
        top = k.uid("M_wa"); done = k.uid("M_wad")
        k.label(top)
        load_counts(k, vt)
        k(f"s_cmp_ge_u32 s{sT1}, 256\ns_cbranch_scc1 {done}")
        k(f"s_sleep 4\ns_sub_u32 s{sSPIN}, s{sSPIN}, 1\ns_cbranch_scc0 {top}\ns_branch M_abort")
        k.label(done)
    def delay(k, seg):
        if seg is None: return
        sk = k.uid("M_dl")
        k(f"s_cmp_lg_u32 s{sWAVE}, 0\ns_cbranch_scc1 {sk}")
        k(f"s_mov_b32 s{sT0}, {FLAGV2}\nv_mov_b32 v8, 0")
        workers.wait_counter(k, sT0, seg + 1, 9, 8, "M_abort", sleep=16)
        k.label(sk)
        k("s_barrier")
    def mode_hook(k, vt):
        top = k.uid("M_md"); done = k.uid("M_mdd")
        k.label(top)
        load_counts(k, vt)
        k(f"v_readlane_b32 s{sT0}, v{vt+1}, 0\ns_mov_b32 s{sMODE}, 0\ns_cmp_ge_u32 s{sT0}, {32 if cfg.get('force_slow') is None else 999}\ns_cbranch_scc1 {done}")
        k(f"s_mov_b32 s{sMODE}, 1\ns_cmp_ge_u32 s{sT1}, 256\ns_cbranch_scc1 {done}")
        k(f"s_sleep 4\ns_sub_u32 s{sSPIN}, s{sSPIN}, 1\ns_cbranch_scc0 {top}\ns_branch M_abort")
        k.label(done)
    k(f"s_cmp_lt_u32 s{sRANK}, 32\ns_cbranch_scc0 M_overflow")
    k(f"s_lshl_b32 s{sT0}, s3, 5\ns_add_u32 s{sRANK}, s{sRANK}, s{sT0}")
    k.label("M_dispatch")
    k(f"s_cmp_ge_u32 s{sRANK}, 32\ns_cbranch_scc1 M_worker")
    k(f"s_lshl_b32 s56, s{sRANK}, 1")
    prep2.emit_ln_segment(k, 56, pre="load")
    prep2.emit_init(k, sRANK)
    prep2.emit_ln_segment(k, 56, pre="have", X0=112, last=False)
    k("s_add_u32 s56, s56, 1")
    prep2.emit_ln_segment(k, 56, pre="have", X0=144, need_init="M_abort", nsig=2)
    prep2.wait_init_wg(k, 16, "M_abort")
    k(f"s_cmp_lt_u32 s{sRANK}, 30\ns_cbranch_scc1 M_chain")
    k("s_branch M_helper")
    k.label("M_worker")
    k(f"s_sub_u32 s{sRANK}, s{sRANK}, 32")
    prep2.emit_gemm_task(k, sRANK, "M_phase0_done", "M_abort")
    k.label("M_phase0_done")
    mark(2, only=(sRANK, 0)); mark(10, only=(sRANK, 7)); mark(12, only=(sRANK, 101))
    prep2.dump_stamps(k)
    if diag: k("s_memrealtime s[86:87]")
    k(f"s_cmp_lt_u32 s{sRANK}, {t1}\ns_cbranch_scc1 M_vx")
    k(f"s_cmp_lt_u32 s{sRANK}, {t2}\ns_cbranch_scc1 M_xa")
    k(f"s_cmp_lt_u32 s{sRANK}, {t3}\ns_cbranch_scc1 M_pv")
    k(f"s_cmp_lt_u32 s{sRANK}, {t4}\ns_cbranch_scc1 M_ff")
    k(f"s_cmp_lt_u32 s{sRANK}, {t5}\ns_cbranch_scc1 M_vm")
    k("s_branch M_exit")
    k.label("M_overflow")
    wait_all(k, 8)
    k(f"s_sub_u32 s20, s{sRANK}, 32")
    for x in range(7):
        k(f"v_readlane_b32 s{sT0}, v9, {x}\ns_max_u32 s{sT0}, s{sT0}, 32\ns_sub_u32 s{sT0}, s{sT0}, 32")
        k(f"s_cmp_gt_u32 s3, {x}\ns_cselect_b32 s{sT0}, s{sT0}, 0\ns_add_u32 s20, s20, s{sT0}")
    for x in range(8):
        nx = k.uid("M_es")
        k(f"v_readlane_b32 s{sT0}, v9, {x}\ns_min_u32 s{sT0}, s{sT0}, 32\ns_sub_u32 s21, 32, s{sT0}")
        k(f"s_cmp_lt_u32 s20, s21\ns_cbranch_scc0 {nx}")
        k(f"s_add_u32 s{sRANK}, s20, s{sT0}\ns_add_u32 s{sRANK}, s{sRANK}, {32*x}\ns_branch M_dispatch")
        k.label(nx)
        k("s_sub_u32 s20, s20, s21")
    k("s_branch M_exit")
    k.label("M_chain")
    ccfg = dict(nsteps=63, modes=["", "sc1"], mode_hook=mode_hook, vxwait=True, pflag_pos=2, mflag_pos=1, fused=True, stagger=False, pace=1, pace2=8, allpoll=True, pf=False, vxearly=0, exporter=True)
    if diag: ccfg.update(dict(tot=True, trace=True))
    if cfg.get("rawfull"): ccfg.update(dict(raw=True, tot=False, nsteps=63))
    if hd: ccfg["mark"] = mark
    ccfg.update(cfg.get("chain", {}))
    for kk_ in ("pf", "pf_dist", "vxearly", "pflag_pos", "mflag_pos", "b_sleep", "pace", "pace2", "rot", "stagger", "cnt_retry", "pf64", "exporter", "ex_sleep", "allpoll", "pollwave", "pairs", "lastdirect"):
        if kk_ in cfg: ccfg[kk_] = cfg[kk_]
    k(f"s_cmp_ge_u32 s{sRANK}, 16\ns_cbranch_scc1 M_chainB")
    chain.emit_chain_A(k, ccfg, "M_abort")
    k.label("M_chainB")
    if diag: k("s_mov_b32 s98, 1")
    chain.emit_chain_B(k, ccfg, "M_abort")
    wcfg = dict(vx_par=VXP, xa_par=XAP, pv_par=PVP, vm_par=VMP, s0=cfg.get('s0', 32), fused=True, ln_in_ffn=False, xadiag=cfg.get('xadiag'), vm_split=cfg.get('vm_split', 48), xa_sleep=cfg.get('xa_sleep', 1), vm_sleep=cfg.get('vm_sleep', 1), xa_imm=cfg.get('xa_imm', 30), out_st=cfg.get('out_st', ''))
    k.label("M_helper")
    if diag: k("s_mov_b32 s98, 6")
    chain.emit_helper(k, ccfg, "M_abort")
    k.label("M_vx")
    if diag: k("s_mov_b32 s98, 2")
    workers.emit_vxgen(k, wcfg, "M_abort")
    k.label("M_vm")
    if diag: k("s_mov_b32 s98, 7")
    k(f"s_sub_u32 s{sRANK}, s{sRANK}, {t4}")
    delay(k, cfg.get("vm_delay", 6))
    workers.emit_vxgen(k, wcfg, "M_abort", "vm")
    k.label("M_xa")
    if diag: k("s_mov_b32 s98, 3")
    k(f"s_sub_u32 s{sRANK}, s{sRANK}, {t1}")
    delay(k, cfg.get("xa_delay", 6))
    workers.emit_xattn(k, wcfg, "M_abort")
    k.label("M_pv")
    if diag or hd: k("s_mov_b32 s98, 4")
    k(f"s_sub_u32 s{sRANK}, s{sRANK}, {t2}")
    workers.emit_pvout(k, wcfg, "M_abort")
    k.label("M_ff")
    if diag: k("s_mov_b32 s98, 5")
    k(f"s_sub_u32 s{sRANK}, s{sRANK}, {t3}")
    delay(k, cfg.get("ff_delay", 2))
    workers.emit_ffn(k, wcfg, "M_abort")
    for t in ccfg.get("outofline", []) + wcfg.get("outofline", []): k(t)
    if hd:
        txt = "\n".join(k.lines)
        head, body = txt.split("M_chain:", 1)
        body = body.replace("s_endpgm", "s_branch M_hdexit")
        k.lines = (head + "M_chain:" + body).split("\n")
        k.label("M_hdexit")
        k("s_waitcnt vmcnt(0)")
        k("s_cmp_lg_u32 s98, 4\ns_cbranch_scc1 M_hdx"); mark(9, only=(sRANK, 7 * (63 % cfg.get("pv_par", 4)))); k.label("M_hdx")
        k("s_waitcnt vmcnt(0)\ns_endpgm")
    if diag:
        txt = "\n".join(k.lines)
        head, body = txt.split("M_chain:", 1)
        body = body.replace("s_endpgm", "s_branch M_diag")
        k.lines = (head + "M_chain:" + body).split("\n")
        k.label("M_diag")
        k(f"s_cmp_lg_u32 s{sWAVE}, 0\ns_cbranch_scc1 M_exit")
        k("s_memrealtime s[94:95]\ns_waitcnt lgkmcnt(0)")
        k(f"s_lshl_b32 s{sT0}, s2, 5\ns_add_u32 s{sT0}, s{sT0}, {PROF+16384}")
        k("v_mov_b32 v1, 0")
        for i, r in enumerate(("s86", f"s{sRANK}", "s96", "s94", "s44", "s88", "s98", "s84")):
            k(f"v_mov_b32 v2, {r}\nbuffer_store_dword v2, v1, s[{sWS}:{sWS+3}], s{sT0} offen offset:{4*i}")
        k("s_waitcnt vmcnt(0)\ns_endpgm")
    k.label("M_abort")
    k("v_mov_b32 v1, 0\nv_mov_b32 v2, 1\nglobal_atomic_add v1, v2, s[4:5] offset:20 sc1\ns_waitcnt vmcnt(0)")
    k.label("M_exit")
    k("s_endpgm")
    k.label("M_code_end")
    k(".fill 1100, 4, 0xbf800000")

def build(cfg):
    k = K()
    k(HEADER.rstrip())
    k("; @launch grid=(256,1,1) block=(256,1,1) lds=151552")
    k('.amdgcn_target "amdgcn-amd-amdhsa--gfx950"\n.text')
    emit_main(k, cfg, NAME + "_kernel")
    k('.section .rodata,"a"')
    k(kd(NAME + "_kernel", 512, 256, 102))
    return k.text()

if __name__ == "__main__":
    import kfw
    cfg = {}
    if "diag" in sys.argv: cfg["diag"] = True; sys.argv.remove("diag")
    for a in list(sys.argv[1:]):
        if "=" in a:
            kk_, vv = a.split("="); cfg[kk_] = eval(vv); sys.argv.remove(a)
    t = build(cfg)
    out = sys.argv[1] if len(sys.argv) > 1 else "cdna_kernels/" + NAME + ".s"
    open(out, "w").write(t)
    print("bytes", len(t), "lines", t.count("\n"), "hazards", len(kfw.check(t)))
```
